```python
import torch

def _softmax(x, axis=-1):
    return torch.softmax(x, dim=axis)
def _gelu(x):
    return torch.nn.functional.gelu(x, approximate="tanh")
def _silu(x):
    return torch.nn.functional.silu(x)
def _sigmoid(x):
    return torch.sigmoid(x)
def _layernorm(x, axis=-1, eps=1e-5):
    m = x.mean(dim=axis, keepdim=True)
    v = x.var(dim=axis, keepdim=True, unbiased=False)
    return (x - m) / torch.sqrt(v + eps)
def _scatter_add(tgt, idx, src, axis=0):
    return tgt.clone().index_add_(axis, idx, src)
def _segment_sum(src, seg, n):
    out = torch.zeros((n,) + src.shape[1:], dtype=src.dtype)
    return out.index_add_(0, seg, src)
def _pad(x, pw):
    flat = tuple(v for pair in reversed(pw) for v in pair)
    return torch.nn.functional.pad(x, flat)

kernel_name = 'gated_mix__spectral_fnet__mha_block__prompt'

def setup_inputs():

    _w = (lambda a: (lambda t: t.to(torch.bfloat16) if t.is_floating_point() else t)(torch.as_tensor(a)))
    def _A_setup():
        B, S, D = 1, 2048, 512
        ns = torch.arange(S)[:, None] * torch.arange(S)[None, :]
        nd = torch.arange(D)[:, None] * torch.arange(D)[None, :]
        Ws_re = torch.cos(-2.0 * torch.pi * ns / S).to(float)
        Ws_im = torch.sin(-2.0 * torch.pi * ns / S).to(float)
        Wd_re = torch.cos(-2.0 * torch.pi * nd / D).to(float)
        Wd_im = torch.sin(-2.0 * torch.pi * nd / D).to(float)
        return {
            "x": _w((lambda *s: torch.randn(*s, dtype=torch.bfloat16) * 0.05)(B, S, D)),
            "dft_seq_re": _w(Ws_re),
            "dft_seq_im": _w(Ws_im),
            "dft_hid_re": _w(Wd_re),
            "dft_hid_im": _w(Wd_im),
        }
    _A_in = _A_setup()

    def _B_setup():
        B, S, D, H = 1, 2048, 512, 32
        return {
            "x": _w((lambda *s: torch.randn(*s, dtype=torch.bfloat16) * 0.05)(B, S, D)),
            "wqkv": _w((lambda *s: torch.randn(*s, dtype=torch.bfloat16) * 1.6)(D, 3 * D)),
            "wo": _w((lambda *s: torch.randn(*s, dtype=torch.bfloat16) * 1.6)(D, D)),
        }
    _B_in = _B_setup()

    return {
        "A_x": _A_in["x"],
        "A_dft_seq_re": _A_in["dft_seq_re"],
        "A_dft_seq_im": _A_in["dft_seq_im"],
        "A_dft_hid_re": _A_in["dft_hid_re"],
        "A_dft_hid_im": _A_in["dft_hid_im"],
        "B_x": _B_in["x"],
        "B_wqkv": _B_in["wqkv"],
        "B_wo": _B_in["wo"],
        "gate_w": _w((lambda *s: torch.randn(*s, dtype=torch.bfloat16) * 0.05)(512) * 16.0),
    }

def reference(A_x, A_dft_seq_re, A_dft_seq_im, A_dft_hid_re, A_dft_hid_im, B_x, B_wqkv, B_wo, gate_w):
    def _A_ref(x, dft_seq_re, dft_seq_im, dft_hid_re, dft_hid_im):
        a = torch.einsum("bsd,ed->bse", x, dft_hid_re)
        b = torch.einsum("bsd,ed->bse", x, dft_hid_im)
        y = torch.einsum("ts,bse->bte", dft_seq_re, a) - torch.einsum("ts,bse->bte", dft_seq_im, b)
        return y

    def _B_ref(x, wqkv, wo):
        B, S, D = x.shape
        H = 32
        Dh = D // H
        qkv = (lambda x, *d: x.permute(*d))((x @ wqkv).reshape(B, S, 3, H, Dh), 2, 0, 3, 1, 4)
        q, k, v = qkv[0], qkv[1], qkv[2]
        scores = torch.einsum("bhqd,bhkd->bhqk", q, k) * (Dh ** -0.5)
        p = _softmax(scores, axis=-1)
        o = torch.einsum("bhqk,bhkd->bhqd", p, v)
        return (lambda x, *d: x.permute(*d))(o, 0, 2, 1, 3).reshape(B, S, D) @ wo

    x = A_x
    g = _sigmoid((x * gate_w).sum(-1, keepdims=True))
    a = _A_ref(x, A_dft_seq_re, A_dft_seq_im, A_dft_hid_re, A_dft_hid_im)
    b = _B_ref(x, B_wqkv, B_wo)
    return g * a + (1 - g) * b
```

```python
import sys, os
NAME='gated_mix__spectral_fnet__mha_block__prompt'
WS_Q=0; WS_KV=0x200000; WS_O=0x600000; WS_Y=0x800000; WS_T1=0xA00000; WS_T2=0xB00000; WS_G=0xC00000
WS_SIZE=0xD00000
T1_ET=65*1024; T2_ET=64*1024
C_SCALE=0.25*1.4426950408889634
import struct
def f2u(x): return struct.unpack('<I',struct.pack('<f',x))[0]

STAMPS = os.environ.get('STAMPS','0')=='1'
NOFNET = os.environ.get('NOFNET','0')=='1'
NOPRIO = os.environ.get('NOPRIO','0')=='1'
FAKEA = os.environ.get('FAKEA','0')=='1'
class Asm:
    def __init__(self): self.L=[]
    def __call__(self, s):
        for line in s.strip('\n').split('\n'):
            if NOPRIO and line.strip().startswith('s_setprio'): continue
            self.L.append('    '+line.strip())
    def label(self, s): self.L.append(s+':')
    def raw(self, s): self.L.append(s)
    def text(self): return '\n'.join(self.L)+'\n'

def srd(a, d, lo, size):
    a(f's_mov_b32 s{d}, s{lo}')
    a(f's_mov_b32 s{d+1}, s{lo+1}')
    a(f's_mov_b32 s{d+2}, {hex(size)}')
    a(f's_mov_b32 s{d+3}, 0x20000')

def pi_perm(a, dst, src, tmp):
    a(f'v_and_b32 v{dst}, 0x13, v{src}')
    a(f'v_and_b32 v{tmp}, 4, v{src}')
    a(f'v_lshl_or_b32 v{dst}, v{tmp}, 1, v{dst}')
    a(f'v_and_b32 v{tmp}, 8, v{src}')
    a(f'v_lshrrev_b32 v{tmp}, 1, v{tmp}')
    a(f'v_or_b32 v{dst}, v{dst}, v{tmp}')

WS_STAMP=0x1000000
def stamp(a, i):
    if STAMPS:
        a(f's_memrealtime s[{80+2*i}:{81+2*i}]')
def stamp_flush(a, n, wsreg, widreg, wpw, kidx, vtmp=100, extra=None):
    if not STAMPS: return
    a('s_waitcnt vmcnt(0) lgkmcnt(0)')
    a(f's_memrealtime s[{80+2*n}:{81+2*n}]')
    a('s_waitcnt lgkmcnt(0)')
    a(f's_mul_i32 s98, s2, {wpw}')
    a(f's_add_u32 s98, s98, s{widreg}')
    a('s_lshl_b32 s98, s98, 5')
    a(f's_add_u32 s98, s98, {WS_STAMP+kidx*0x40000}')
    a(f's_mov_b32 s{wsreg+2}, 0x2000000')
    a('s_mov_b64 exec, 1')
    a(f'v_mov_b32 v{vtmp+1}, 0')
    for i in range(n+1):
        a(f'v_mov_b32 v{vtmp}, s{80+2*i}')
        a(f'buffer_store_dword v{vtmp}, v{vtmp+1}, s[{wsreg}:{wsreg+3}], s98 offen offset:{4*i}')
        a('s_nop 1')
    if extra is not None:
        a(f'v_mov_b32 v{vtmp}, s{extra}')
        a(f'buffer_store_dword v{vtmp}, v{vtmp+1}, s[{wsreg}:{wsreg+3}], s98 offen offset:28')

def kernel_header(a, name):
    a.raw(f'.globl {name}')
    a.raw('.p2align 8')
    a.raw(f'.type {name},@function')
    a.label(name)

def kernel_desc(name, vgpr, sgpr=102):
    acc = (vgpr+3)//4*4
    return f""".p2align 6
.amdhsa_kernel {name}
  .amdhsa_next_free_vgpr {vgpr}
  .amdhsa_next_free_sgpr {sgpr}
  .amdhsa_accum_offset {acc}
  .amdhsa_group_segment_fixed_size 0
  .amdhsa_kernarg_size 96
  .amdhsa_user_sgpr_count 2
  .amdhsa_user_sgpr_kernarg_segment_ptr 1
  .amdhsa_system_sgpr_workgroup_id_x 1
.end_amdhsa_kernel
"""

K1_SLOT=32768
K1_NS=int(os.environ.get('K1_NS','5'))
K1_X=0; K1_W=16384; K1_WD=28672
K1_LDS=K1_NS*K1_SLOT

def gen_k1(a, name):
    NS=K1_NS
    kernel_header(a, name)
    a('s_cmp_ge_u32 s2, 256')
    a(f's_cbranch_scc1 L_{name}_end')
    stamp(a,0)
    a('s_load_dwordx2 s[4:5], s[0:1], 0')
    a('s_load_dwordx4 s[36:39], s[0:1], 24')
    a('s_load_dwordx2 s[42:43], s[0:1], 48')
    a('s_load_dwordx2 s[44:45], s[0:1], 64')
    a('s_load_dwordx2 s[46:47], s[0:1], 88')
    a('v_lshrrev_b32 v2, 6, v0')
    a('v_and_b32 v1, 63, v0')
    a('v_readfirstlane_b32 s32, v2')
    a('s_and_b32 s33, s2, 7')
    a('s_lshr_b32 s34, s2, 3')
    a('s_lshr_b32 s54, s33, 1')
    a('s_lshl_b32 s54, s54, 2')
    a('s_and_b32 s55, s34, 3')
    a('s_add_u32 s54, s54, s55')
    a('s_and_b32 s55, s33, 1')
    a('s_lshl_b32 s55, s55, 3')
    a('s_lshr_b32 s56, s34, 2')
    a('s_add_u32 s55, s55, s56')
    a('v_lshrrev_b32 v2, 3, v1')
    a('v_and_b32 v3, 7, v1')
    a('v_lshrrev_b32 v4, 4, v1')
    a('v_xor_b32 v3, v3, v4')
    a('v_lshlrev_b32 v3, 4, v3')
    a('v_and_b32 v8, 31, v1')
    a('v_lshrrev_b32 v9, 5, v1')
    a('s_and_b32 s35, s32, 3')
    a('s_lshr_b32 s40, s32, 2')
    a('s_waitcnt lgkmcnt(0)')
    srd(a, 8, 4, 0x200000)
    srd(a, 16, 42, 0x180000)
    srd(a, 24, 46, WS_SIZE)
    srd(a, 28, 44, 1024)
    a('s_lshl_b32 s48, s2, 3')
    a('s_add_u32 s48, s48, s32')
    a('s_lshl_b32 s49, s48, 10')
    a('v_lshlrev_b32 v12, 4, v1')
    a('buffer_load_dwordx4 v[128:131], v12, s[8:11], s49 offen')
    a('buffer_load_dwordx4 v[132:135], v12, s[28:31], 0 offen')
    a('s_cmp_eq_u32 s40, 0')
    a(f's_cbranch_scc0 L_{name}_ldw')
    a('s_lshl_b32 s56, s54, 6')
    a('s_and_b32 s57, s35, 1')
    a('s_lshl_b32 s57, s57, 5')
    a('s_add_u32 s56, s56, s57')
    a('s_cmp_lt_u32 s35, 2')
    a('s_cselect_b64 s[58:59], -1, 0')
    a('v_mov_b32 v13, 1024')
    for i in range(4):
        a(f'v_add_u32 v11, {8*i}, v2')
        a('v_add_u32 v11, s56, v11')
        a('v_sub_u32 v12, 2048, v11')
        a('v_cmp_eq_u32 vcc, 2048, v12')
        a('s_nop 1')
        a('v_cndmask_b32 v12, v12, v13, vcc')
        a('v_cndmask_b32 v11, v12, v11, s[58:59]')
        a(f'v_lshl_add_u32 v{4+i}, v11, 10, v3')
        if i%2==1: a(f'v_xor_b32 v{4+i}, 64, v{4+i}')
    a('s_mov_b32 s56, 0')
    a('s_lshl_b32 s61, s35, 12')
    def issueA(sB):
        a(f's_add_u32 s63, {sB}, s61')
        for i in range(4):
            a(f's_add_u32 m0, s63, {K1_X+i*1024}')
            a('s_nop 0')
            a(f'buffer_load_dwordx4 v{4+i}, s[8:11], s56 offen lds')
        a('s_add_u32 s56, s56, 128')
    for c in range(NS):
        a(f's_mov_b32 s52, {c*K1_SLOT}')
        issueA('s52')
    a(f's_branch L_{name}_lddone')
    a.label(f'L_{name}_ldw')
    a('s_lshl_b32 s58, s55, 7')
    a('s_lshl_b32 s59, s55, 6')
    a('s_add_u32 s59, s59, 2048-128')
    a('s_mov_b32 s60, 43691')
    for i in range(3):
        a(f'v_add_u32 v15, {64*i}, v1')
        a(f'v_mul_lo_u32 v16, v15, s60')
        a(f'v_lshrrev_b32 v16, 19, v16')
        a(f'v_mul_u32_u24 v17, 12, v16')
        a(f'v_sub_u32 v17, v15, v17')
        a(f'v_lshlrev_b32 v18, 4, v17')
        a(f'v_add_u32 v19, s58, v18')
        a(f'v_add_u32 v18, s59, v18')
        a(f'v_cmp_gt_u32 vcc, 8, v17')
        a(f'v_mul_u32_u24 v16, 3072, v16')
        a('s_nop 0')
        a(f'v_cndmask_b32 v18, v18, v19, vcc')
        a(f'v_add_u32 v{4+i}, v16, v18')
    a('s_cmp_lt_u32 s35, 2')
    a('s_cselect_b32 s20, s36, s38')
    a('s_cselect_b32 s21, s37, s39')
    a('s_mov_b32 s22, 0x80000')
    a('s_mov_b32 s23, 0x20000')
    a('s_lshl_b32 s56, s55, 4')
    a('s_and_b32 s57, s35, 1')
    a('s_lshl_b32 s58, s57, 3')
    a('s_add_u32 s56, s56, s58')
    a('v_add_u32 v11, s56, v2')
    a('v_lshl_add_u32 v7, v11, 10, v3')
    a('s_lshl_b32 s58, s57, 6')
    a('v_xor_b32 v7, s58, v7')
    a('s_mul_i32 s57, s35, 16*3072')
    a('s_mov_b32 s56, 0')
    a('s_mul_i32 s61, s35, 3072')
    a(f's_add_u32 s61, s61, {K1_W}')
    a('s_lshl_b32 s62, s35, 10')
    a(f's_add_u32 s62, s62, {K1_WD}')
    def issueB(sB):
        a(f's_add_u32 s63, {sB}, s61')
        for i in range(3):
            a(f's_add_u32 m0, s63, {i*1024}')
            a('s_nop 0')
            a(f'buffer_load_dwordx4 v{4+i}, s[16:19], s57 offen lds')
        a(f's_add_u32 m0, {sB}, s62')
        a(f's_add_u32 s57, s57, {64*3072}')
        a(f'buffer_load_dwordx4 v7, s[20:23], s56 offen lds')
        a('s_add_u32 s56, s56, 128')
    for c in range(NS):
        a(f's_mov_b32 s52, {c*K1_SLOT}')
        issueB('s52')
    a.label(f'L_{name}_lddone')
    a('s_mov_b32 s50, 0')
    a('s_mov_b32 s51, 0')
    a('s_mov_b32 s52, 0')
    pi_perm(a, 10, 8, 11)
    def frag_addr(dst0, rowreg, base_off, tmp):
        a(f'v_lshrrev_b32 v{tmp}, 1, v{rowreg}')
        a(f'v_and_b32 v{tmp}, 7, v{tmp}')
        a(f'v_xor_b32 v{tmp}, v{tmp}, v9')
        a(f'v_lshlrev_b32 v{tmp}, 4, v{tmp}')
        a(f'v_lshl_add_u32 v{dst0}, v{rowreg}, 7, v{tmp}')
        for ks in range(1,4): a(f'v_xor_b32 v{dst0+ks}, {ks*32}, v{dst0}')
        if base_off:
            for ks in range(4): a(f'v_add_u32 v{dst0+ks}, {base_off}, v{dst0+ks}')
    a('s_lshl_b32 s63, s35, 5')
    a('v_add_u32 v11, s63, v10')
    frag_addr(16, 11, K1_X, 15)
    a('v_bfe_u32 v11, v1, 2, 2')
    a('v_lshl_add_u32 v11, v9, 3, v11')
    a('v_mul_u32_u24 v11, 192, v11')
    a('v_bfe_u32 v12, v1, 4, 1')
    a('v_lshl_add_u32 v11, v12, 5, v11')
    a('v_and_b32 v12, 3, v1')
    a('v_lshl_add_u32 v20, v12, 3, v11')
    a(f'v_add_u32 v20, {K1_W}, v20')
    frag_addr(24, 8, K1_WD, 15)
    a('s_cmp_eq_u32 s55, 0')
    a('s_cselect_b32 s66, 0x10000, 0')
    a('s_mov_b32 s67, s66')
    a('v_mov_b32 v14, 0xbf803f80')
    ACC=[32,48]
    for r in range(32,64): a(f'v_mov_b32 v{r}, 0')
    FX=[64,80]; F0=[68,84]; F1=[72,88]
    def wait_sel(tag):
        n=4
        allowed={}
        for c in range(8):
            issued_last = min(7, max(NS-1, c+NS-2))
            allowed[c] = n*(issued_last-c)
        groups={}
        for c,v in allowed.items(): groups.setdefault(v,[]).append(c)
        common=max(groups,key=lambda v:len(groups[v]))
        for c in range(8):
            if allowed[c]!=common:
                a(f's_cmp_eq_u32 s50, {c}')
                a(f's_cbranch_scc1 L_{tag}_w{c}')
        a(f's_waitcnt vmcnt({common})')
        a(f's_branch L_{tag}_wd')
        for c in range(8):
            if allowed[c]!=common:
                a.label(f'L_{tag}_w{c}')
                a(f's_waitcnt vmcnt({allowed[c]})')
                a(f's_branch L_{tag}_wd')
        a.label(f'L_{tag}_wd')
    def loop(tag, issue, compute):
        a.label(f'L_{tag}_loop')
        wait_sel(tag)
        a('s_barrier')
        if STAMPS:
            a('s_cmp_eq_u32 s50, 0')
            a(f's_cbranch_scc0 L_{tag}_ns')
            stamp(a,2)
            a.label(f'L_{tag}_ns')
        a('s_sub_u32 s53, s50, 1')
        a(f's_cmp_lt_u32 s53, {8-NS}')
        a(f's_cbranch_scc0 L_{tag}_norefill')
        issue('s52')
        a(f's_add_u32 s52, s52, {K1_SLOT}')
        a.label(f'L_{tag}_norefill')
        compute()
        a(f's_add_u32 s51, s51, {K1_SLOT}')
        a(f's_cmp_eq_u32 s51, {NS*K1_SLOT}')
        a('s_cselect_b32 s51, 0, s51')
        a('s_add_u32 s50, s50, 1')
        a('s_cmp_lt_u32 s50, 8')
        a(f's_cbranch_scc1 L_{tag}_loop')
    assert 8-NS <= NS
    stamp(a,1)
    a('s_cmp_eq_u32 s40, 0')
    a(f's_cbranch_scc0 L_{name}_cw1')
    def reads0(ks):
        s=ks%2
        a(f'ds_read_b128 v[{FX[s]}:{FX[s]+3}], v{112+ks}')
        for j,F in enumerate((F0,F1)):
            a(f'ds_read_b64_tr_b16 v[{F[s]}:{F[s]+1}], v116 offset:{ks*3072+j*64}')
            a(f'ds_read_b64_tr_b16 v[{F[s]+2}:{F[s]+3}], v116 offset:{ks*3072+j*64+768}')
    def compute0():
        for ks in range(4): a(f'v_add_u32 v{112+ks}, s51, v{16+ks}')
        a('v_add_u32 v116, s51, v20')
        reads0(0)
        for ks in range(4):
            if ks<3: reads0(ks+1); a('s_waitcnt lgkmcnt(5)')
            else: a('s_waitcnt lgkmcnt(0)')
            s=ks%2
            for j,F in enumerate((F0,F1)):
                a(f'v_mfma_f32_32x32x16_bf16 v[{ACC[j]}:{ACC[j]+15}], v[{F[s]}:{F[s]+3}], v[{FX[s]}:{FX[s]+3}], v[{ACC[j]}:{ACC[j]+15}]')
    loop(f'{name}_a', issueA, compute0)
    stamp(a,3)
    a('s_barrier')
    a('s_lshl_b32 s56, s54, 1')
    a('s_and_b32 s57, s35, 1')
    a('s_add_u32 s56, s56, s57')
    a('s_lshr_b32 s57, s35, 1')
    a('s_lshl_b32 s57, s57, 5')
    a('s_add_u32 s56, s56, s57')
    a('s_cmp_ge_u32 s55, 8')
    a('s_cselect_b32 s57, 17, 16')
    a('s_cselect_b32 s58, 11, 10')
    a(f's_cselect_b32 s59, {WS_KV}, {WS_Q}')
    a(f's_cselect_b32 s60, 1.0, {hex(f2u(C_SCALE))}')
    a('s_lshl_b32 s57, 1, s57')
    a('s_lshl_b32 s61, s56, s58')
    a('s_add_u32 s59, s59, s61')
    a('s_and_b32 s62, s55, 7')
    a('s_lshl_b32 s62, s62, 2')
    a('s_mul_i32 s62, s62, s57')
    a('s_add_u32 s59, s59, s62')
    a('v_lshlrev_b32 v11, 9, v9')
    a('v_lshl_add_u32 v11, v10, 4, v11')
    a('s_nop 7')
    for j in range(2):
        for hb in range(2):
            base=ACC[j]+8*hb
            for r in range(8): a(f'v_mul_f32 v{base+r}, s60, v{base+r}')
            d=64+4*(2*j+hb)
            for q in range(4): a(f'v_cvt_pk_bf16_f32 v{d+q}, v{base+2*q}, v{base+2*q+1}')
            a(f'buffer_store_dwordx4 v[{d}:{d+3}], v11, s[24:27], s59 offen')
            a('s_add_u32 s59, s59, s57')
    a(f's_branch L_{name}_gate')
    a.label(f'L_{name}_cw1')
    def reads1(ks):
        s=ks%2
        a(f'ds_read_b128 v[{FX[s]}:{FX[s]+3}], v{112+ks}')
        a(f'ds_read_b64_tr_b16 v[{F0[s]}:{F0[s]+1}], v116 offset:{ks*3072+128}')
        a(f'ds_read_b64_tr_b16 v[{F0[s]+2}:{F0[s]+3}], v116 offset:{ks*3072+128+768}')
        a(f'ds_read_b128 v[{F1[s]}:{F1[s]+3}], v{120+ks}')
    def compute1():
        for ks in range(4): a(f'v_add_u32 v{112+ks}, s51, v{16+ks}')
        a('v_add_u32 v116, s51, v20')
        for ks in range(4): a(f'v_add_u32 v{120+ks}, s51, v{24+ks}')
        reads1(0)
        for ks in range(4):
            if ks<3: reads1(ks+1); a('s_waitcnt lgkmcnt(4)')
            else: a('s_waitcnt lgkmcnt(0)')
            s=ks%2
            a(f'v_mfma_f32_32x32x16_bf16 v[{ACC[0]}:{ACC[0]+15}], v[{FX[s]}:{FX[s]+3}], v[{F0[s]}:{F0[s]+3}], v[{ACC[0]}:{ACC[0]+15}]')
            for q in range(4): a(f'v_cndmask_b32 v{F1[s]+q}, v{F1[s]+q}, v14, s[66:67]')
            a('s_nop 1')
            a(f'v_mfma_f32_32x32x16_bf16 v[{ACC[1]}:{ACC[1]+15}], v[{FX[s]}:{FX[s]+3}], v[{F1[s]}:{F1[s]+3}], v[{ACC[1]}:{ACC[1]+15}]')
    loop(f'{name}_b', issueB, compute1)
    stamp(a,3)
    a('s_nop 15')
    XCH = ((7+1)%NS)*K1_SLOT
    assert (7%NS)*K1_SLOT != XCH
    a('v_lshlrev_b32 v11, 4, v1')
    a('s_and_b32 s63, s35, 1')
    a('s_lshl_b32 s63, s63, 12')
    a(f's_add_u32 s63, s63, {XCH}')
    a('v_add_u32 v11, s63, v11')
    a('s_cmp_ge_u32 s35, 2')
    a(f's_cbranch_scc0 L_{name}_nowr')
    for g in range(4): a(f'ds_write_b128 v11, v[{48+4*g}:{51+4*g}] offset:{g*1024}')
    a('s_waitcnt lgkmcnt(0)')
    a.label(f'L_{name}_nowr')
    a('s_barrier')
    a('s_lshl_b32 s56, s54, 1')
    a('s_and_b32 s57, s35, 1')
    a('s_add_u32 s56, s56, s57')
    a('s_lshr_b32 s57, s35, 1')
    a('s_lshl_b32 s57, s57, 5')
    a('s_add_u32 s58, s56, s57')
    a('v_lshrrev_b32 v12, 4, v8')
    a('v_lshlrev_b32 v12, 17, v12')
    a('v_lshl_add_u32 v12, v9, 9, v12')
    a('v_and_b32 v13, 15, v8')
    a('v_lshl_add_u32 v12, v13, 4, v12')
    a('s_lshl_b32 s61, s55, 18')
    a('s_lshl_b32 s62, s58, 11')
    a('s_add_u32 s61, s61, s62')
    a(f's_add_u32 s61, s61, {WS_KV+1024}')
    for mf in range(2):
        base=ACC[0]+8*mf
        for q in range(4): a(f'v_cvt_pk_bf16_f32 v{64+4*mf+q}, v{base+2*q}, v{base+2*q+1}')
        a(f'buffer_store_dwordx4 v[{64+4*mf}:{67+4*mf}], v12, s[24:27], s61 offen offset:{mf*256}')
    a('s_cmp_ge_u32 s35, 2')
    a(f's_cbranch_scc1 L_{name}_gate')
    for g in range(4): a(f'ds_read_b128 v[{80+4*g}:{83+4*g}], v11 offset:{g*1024}')
    a('v_mov_b32 v12, -1.0')
    a('v_mov_b32 v13, 1.0')
    a('v_cmp_gt_u32 vcc, 16, v8')
    a('s_nop 1')
    a('v_cndmask_b32 v12, v12, v13, vcc')
    a('v_cndmask_b32 v12, v12, v13, s[66:67]')
    a('s_waitcnt lgkmcnt(0)')
    a('v_mov_b32 v15, v80')
    a('s_cmp_eq_u32 s56, 0')
    a('s_cselect_b32 s68, -1, 0')
    a('s_mov_b32 s69, 0')
    a('v_mov_b32 v13, 0')
    a('v_cndmask_b32 v80, v80, v13, s[68:69]')
    for r in range(16): a(f'v_fma_f32 v{48+r}, v{80+r}, v12, v{48+r}')
    for q in range(8): a(f'v_cvt_pk_bf16_f32 v{96+q}, v{48+2*q}, v{49+2*q}')
    a('s_lshr_b32 s57, s55, 1')
    a(f's_mul_i32 s58, s57, {T1_ET}')
    a(f's_add_u32 s58, s58, {WS_T1}')
    a('s_lshl_b32 s59, s57, 16')
    a(f's_add_u32 s59, s59, {WS_T2}')
    a('s_and_b32 s60, s55, 1')
    a('s_lshl_b32 s60, s60, 8')
    a('v_and_b32 v16, 15, v8')
    a('v_lshlrev_b32 v16, 4, v16')
    a('v_lshl_add_u32 v16, v9, 9, v16')
    a('v_add_u32 v16, s60, v16')
    a('v_mov_b32 v17, s59')
    a('v_mov_b32 v18, s58')
    a('v_cndmask_b32 v17, v17, v18, vcc')
    a('v_add_u32 v17, v17, v16')
    a(f'v_mov_b32 v18, {WS_T1+8*T1_ET}')
    a('v_lshl_add_u32 v18, v9, 9, v18')
    a('v_cndmask_b32 v19, v17, v18, s[66:67]')
    a('s_lshl_b32 s63, s56, 11')
    a('buffer_store_dwordx4 v[96:99], v19, s[24:27], s63 offen')
    a('buffer_store_dwordx4 v[100:103], v19, s[24:27], s63 offen offset:1024')
    a('s_cmp_eq_u32 s55, 0')
    a(f's_cbranch_scc0 L_{name}_nz')
    for r in range(4): a(f'v_mov_b32 v{104+r}, 0')
    a('s_mov_b64 exec, s[66:67]')
    a('buffer_store_dwordx4 v[104:107], v17, s[24:27], s63 offen')
    a('buffer_store_dwordx4 v[104:107], v17, s[24:27], s63 offen offset:1024')
    a('s_mov_b64 exec, -1')
    a.label(f'L_{name}_nz')
    a('s_cmp_eq_u32 s56, 0')
    a(f's_cbranch_scc0 L_{name}_gate')
    a('v_mov_b32 v13, 0')
    a('v_cndmask_b32 v15, v13, v15, s[68:69]')
    a('v_cvt_pk_bf16_f32 v108, v15, v13')
    a('v_mov_b32 v109, 0'); a('v_mov_b32 v110, 0'); a('v_mov_b32 v111, 0')
    a('s_mov_b32 s70, 0x0000ffff')
    a('s_mov_b32 s71, 0x0000ffff')
    a('s_or_b64 s[70:71], s[70:71], s[66:67]')
    a('s_mov_b64 exec, s[70:71]')
    a(f's_mov_b32 s63, {64*1024}')
    a('buffer_store_dwordx4 v[108:111], v19, s[24:27], s63 offen')
    a('s_mov_b64 exec, -1')

    a.label(f'L_{name}_gate')
    a('v_mov_b32 v16, 0')
    a('s_nop 1')
    for q in range(4): a(f'v_dot2_f32_bf16 v16, v{128+q}, v{132+q}, v16')
    a('s_nop 2')
    for sh in (1,2,4,8):
        a('s_nop 1')
        a(f'v_add_f32_dpp v16, v16, v16 row_shr:{sh} row_mask:0xf bank_mask:0xf')
    a('s_nop 1')
    a('v_add_f32_dpp v16, v16, v16 row_bcast:15 row_mask:0xa bank_mask:0xf')
    a('s_nop 1')
    a('v_add_f32_dpp v16, v16, v16 row_bcast:31 row_mask:0xc bank_mask:0xf')
    a(f'v_mul_f32 v16, {hex(f2u(-1.4426950408889634))}, v16')
    a('v_exp_f32 v16, v16')
    a('s_nop 0')
    a('v_add_f32 v16, 1.0, v16')
    a('v_rcp_f32 v16, v16')
    a('s_lshl_b32 s49, s48, 2')
    a(f's_add_u32 s49, s49, {WS_G}')
    a('v_mov_b32 v17, 0')
    a('s_mov_b32 exec_lo, 0')
    a('s_mov_b32 exec_hi, 0x80000000')
    a('buffer_store_dword v16, v17, s[24:27], s49 offen')
    stamp_flush(a, 4, 24, 32, 8, 0)
    a.label(f'L_{name}_end')
    a('s_endpgm')
    return 136

K2_SUM=131072
K2_CNT=K2_SUM+24576
K2_LDS=K2_CNT+64
def gen_k2(a, name):
    kernel_header(a, name)
    a('s_cmp_ge_u32 s2, 256')
    a(f's_cbranch_scc1 L_{name}_end')
    stamp(a,0)
    a('s_load_dwordx4 s[36:39], s[0:1], 8')
    a('s_load_dwordx2 s[46:47], s[0:1], 88')
    a('v_lshrrev_b32 v2, 6, v0')
    a('v_and_b32 v1, 63, v0')
    a('v_readfirstlane_b32 s32, v2')
    a('v_lshlrev_b32 v2, 4, v1')
    a('s_and_b32 s33, s2, 7')
    a('s_lshr_b32 s34, s2, 3')
    a('s_and_b32 s35, s34, 3')
    a('s_lshl_b32 s40, s33, 2')
    a('s_add_u32 s40, s40, s35')
    a('s_lshr_b32 s41, s2, 5')
    a('s_waitcnt lgkmcnt(0)')
    srd(a, 24, 46, WS_SIZE)
    a('s_cmp_ge_u32 s32, 8')
    a(f's_cbranch_scc1 L_{name}_fnet')
    Q=4; C=8; S=[24,40]; O=56; K=[72,76]; V0=[80,88]; V1=[84,92]; ADDR=96; IDX=3
    a('s_lshl_b32 s42, s41, 3')
    a('s_add_u32 s42, s42, s32')
    a('s_lshl_b32 s43, s40, 16')
    a('s_lshl_b32 s44, s42, 10')
    a('s_add_u32 s43, s43, s44')
    a(f'buffer_load_dwordx4 v[{Q}:{Q+3}], v2, s[24:27], s43 offen')
    a('s_lshl_b32 s43, s40, 17')
    a(f's_add_u32 s43, s43, {WS_KV}')
    a('s_lshl_b32 s44, s32, 11')
    a('s_add_u32 s43, s43, s44')
    for i in range(8):
        a(f's_add_u32 m0, s44, {i*8*2048}')
        a(f's_add_u32 s45, s43, {i*8*2048}')
        a('buffer_load_dwordx4 v2, s[24:27], s45 offen lds')
        a('buffer_load_dwordx4 v2, s[24:27], s45 offen offset:1024 lds')
    a(f'v_mov_b32 v{IDX}, 0xdddddddd')
    for r in range(80,96): a(f'v_mov_b32 v{r}, 0x3f803f80')
    a('s_mov_b32 s48, 0x0000ffff')
    a('s_mov_b32 s49, 0x0000ffff')
    a('s_mov_b32 s50, 0')
    a('s_setprio 2')
    a('s_waitcnt vmcnt(12)')
    a('s_barrier')
    stamp(a,1)
    a(f'ds_read_b128 v[{K[0]}:{K[0]+3}], v2')
    a('s_waitcnt lgkmcnt(0)')
    a(f'v_mfma_f32_32x32x16_bf16 v[{S[0]}:{S[0]+15}], v[{K[0]}:{K[0]+3}], v[{Q}:{Q+3}], 0')
    a('s_nop 15')
    s0=S[0]
    a(f'v_max3_f32 v97, v{s0}, v{s0+1}, v{s0+2}')
    for r in range(3,15,2): a(f'v_max3_f32 v97, v97, v{s0+r}, v{s0+r+1}')
    a(f'v_max_f32 v97, v97, v{s0+15}')
    a.label(f'L_{name}_havemax')
    a('v_mov_b32 v98, v97')
    a('s_nop 1')
    a('v_permlane32_swap_b32 v97, v98')
    a('s_nop 1')
    a('v_max_f32 v97, v97, v98')
    for r in range(16): a(f'v_sub_f32 v{C+r}, 0, v97')
    for r in range(16): a(f'v_mov_b32 v{O+r}, 0')
    for r in range(8,16): a(f'v_mov_b32 v{S[1]+r}, 0')
    a(f'v_mov_b32 v{ADDR}, v2')
    a(f'ds_read_b128 v[{K[0]}:{K[0]+3}], v2')
    a(f'ds_read_b128 v[{K[1]}:{K[1]+3}], v2 offset:2048')
    a('s_mov_b64 exec, s[48:49]')
    a(f'ds_read_b128 v[{V0[0]}:{V0[0]+3}], v2 offset:1024')
    a(f'ds_read_b128 v[{V1[0]}:{V1[0]+3}], v2 offset:1280')
    a('s_mov_b64 exec, -1')
    a('s_waitcnt lgkmcnt(0)')
    a(f'v_mfma_f32_32x32x16_bf16 v[{S[0]}:{S[0]+15}], v[{K[0]}:{K[0]+3}], v[{Q}:{Q+3}], v[{C}:{C+15}]')
    a('s_mov_b32 s51, 0')
    if STAMPS: a('s_memtime s[74:75]')
    a('s_nop 15')
    a.raw('.p2align 6')
    a.label(f'L_{name}_loop')
    for i in range(4):
        cur=S[i%2]; prev=S[(i+1)%2]
        def e(x,y):
            for j in range(x,y): a(f'v_exp_f32 v{cur+j}, v{cur+j}')
        a('s_waitcnt lgkmcnt(0)')
        e(0,2)
        a(f'v_smfmac_f32_32x32x32_bf16 v[{O}:{O+15}], v[{V1[(i+1)%2]}:{V1[(i+1)%2]+3}], v[{prev+8}:{prev+15}], v{IDX}')
        a(f'ds_read_b128 v[{K[i%2]}:{K[i%2]+3}], v{ADDR} offset:{(i+2)*2048}')
        a('s_mov_b64 exec, s[48:49]')
        a(f'ds_read_b128 v[{V0[(i+1)%2]}:{V0[(i+1)%2]+3}], v{ADDR} offset:{(i+1)*2048+1024}')
        a(f'ds_read_b128 v[{V1[(i+1)%2]}:{V1[(i+1)%2]+3}], v{ADDR} offset:{(i+1)*2048+1280}')
        a('s_mov_b64 exec, -1')
        e(2,7)
        a(f'v_mfma_f32_32x32x16_bf16 v[{prev}:{prev+15}], v[{K[(i+1)%2]}:{K[(i+1)%2]+3}], v[{Q}:{Q+3}], v[{C}:{C+15}]')
        e(7,12)
        a(f'v_smfmac_f32_32x32x32_bf16 v[{O}:{O+15}], v[{V0[i%2]}:{V0[i%2]+3}], v[{cur}:{cur+7}], v{IDX}')
        e(12,16)
    a(f'v_add_u32 v{ADDR}, 8192, v{ADDR}')
    a('s_add_u32 s51, s51, 1')
    a('s_cmp_eq_u32 s51, 3')
    a(f's_cbranch_scc1 L_{name}_ev3')
    a('s_cmp_eq_u32 s51, 10')
    a(f's_cbranch_scc1 L_{name}_ev10')
    a('s_cmp_eq_u32 s51, 14')
    a(f's_cbranch_scc1 L_{name}_ev14')
    a('s_cmp_lt_u32 s51, 16')
    a(f's_cbranch_scc1 L_{name}_loop')
    a(f's_branch L_{name}_done')
    a.label(f'L_{name}_ev3')
    a('s_cmp_eq_u32 s50, 0')
    a(f's_cbranch_scc0 L_{name}_loop')
    stamp(a,3)
    a('s_waitcnt vmcnt(0)')
    a('s_barrier')
    stamp(a,4)
    a(f's_branch L_{name}_loop')
    a.label(f'L_{name}_ev10')
    stamp(a,5)
    a('s_setprio 1')
    a(f's_branch L_{name}_loop')
    a.label(f'L_{name}_ev14')
    a('s_setprio 0')
    a(f's_branch L_{name}_loop')
    a.label(f'L_{name}_done')
    a('s_nop 1')
    a(f'v_smfmac_f32_32x32x32_bf16 v[{O}:{O+15}], v[{V1[1]}:{V1[1]+3}], v[{S[1]+8}:{S[1]+15}], v{IDX}')
    a('s_waitcnt lgkmcnt(0)')
    a('s_nop 15')
    stamp(a,2)
    if STAMPS:
        a('s_memtime s[76:77]')
        a('s_waitcnt lgkmcnt(0)')
        a('s_sub_u32 s78, s76, s74')
    a(f's_mov_b32 s52, {hex(f2u(2.0**60))}')
    a(f'v_cmp_gt_f32 vcc, s52, v{O+8}')
    a('s_nop 3')
    a('s_cmp_eq_u64 vcc, -1')
    a(f's_cbranch_scc1 L_{name}_ok')
    a('s_cmp_eq_u32 s50, 0')
    a(f's_cbranch_scc0 L_{name}_ok')
    a('s_mov_b32 s50, 1')
    a('s_setprio 2')
    a('v_mov_b32 v97, 0xff800000')
    a(f'v_mov_b32 v{ADDR}, v2')
    a('s_mov_b32 s51, 0')
    a.label(f'L_{name}_fb')
    a(f'ds_read_b128 v[{K[0]}:{K[0]+3}], v{ADDR}')
    a('s_waitcnt lgkmcnt(0)')
    a(f'v_mfma_f32_32x32x16_bf16 v[{S[0]}:{S[0]+15}], v[{K[0]}:{K[0]+3}], v[{Q}:{Q+3}], 0')
    a('s_nop 15')
    for r in range(0,16,2): a(f'v_max3_f32 v97, v97, v{s0+r}, v{s0+r+1}')
    a(f'v_add_u32 v{ADDR}, 2048, v{ADDR}')
    a('s_add_u32 s51, s51, 1')
    a('s_cmp_lt_u32 s51, 64')
    a(f's_cbranch_scc1 L_{name}_fb')
    a(f's_branch L_{name}_havemax')
    a.label(f'L_{name}_ok')
    a(f'v_rcp_f32 v97, v{O+8}')
    a('s_nop 0')
    for r in range(8): a(f'v_mul_f32 v{O+r}, v97, v{O+r}')
    for q in range(4): a(f'v_cvt_pk_bf16_f32 v{100+q}, v{O+2*q}, v{O+2*q+1}')
    a('s_lshl_b32 s43, s42, 15')
    a('s_lshl_b32 s44, s40, 10')
    a('s_add_u32 s43, s43, s44')
    a(f's_add_u32 s43, s43, {WS_O}')
    a('buffer_store_dwordx4 v[100:103], v2, s[24:27], s43 offen')
    a(f's_branch L_{name}_fin')

    a.label(f'L_{name}_fnet')
    a('s_setprio 3')
    a('s_sub_u32 s35, s32, 8')
    srd(a, 8, 36, 0x800000)
    srd(a, 12, 38, 0x800000)
    a('v_mov_b32 v4, 0'); a('v_mov_b32 v5, 0')
    a(f'v_mov_b32 v8, {K2_CNT}')
    a('ds_write_b64 v8, v[4:5]')
    a('s_waitcnt lgkmcnt(0)')
    a('s_barrier')
    stamp(a,1)
    if NOFNET:
        a('s_barrier')
        a(f's_branch L_{name}_fin')
    a('v_and_b32 v9, 31, v1')
    a('v_lshrrev_b32 v10, 5, v1')
    stamp(a,2)
    a('s_mov_b32 s60, 0')
    a('s_mov_b32 s61, 0')
    a('s_lshr_b32 s62, s35, 1')
    a('s_and_b32 s63, s35, 1')
    a('s_cmp_eq_u32 s62, 0')
    a('s_cselect_b32 s16, s8, s12')
    a('s_cselect_b32 s17, s9, s13')
    a('s_mov_b32 s18, 0x800000')
    a('s_mov_b32 s19, 0x20000')
    a.label(f'L_{name}_job')
    a('s_cmp_eq_u32 s60, 0')
    a(f's_cbranch_scc1 L_{name}_dojob')
    a('s_cmp_eq_u32 s62, 0')
    a(f's_cbranch_scc0 L_{name}_fin')
    a.label(f'L_{name}_dojob')
    a('s_lshl_b32 s42, s40, 5')
    a('v_add_u32 v11, s42, v9')
    a('v_lshlrev_b32 v11, 12, v11')
    a('v_lshl_add_u32 v11, v10, 4, v11')
    if FAKEA: a('v_mov_b32 v11, v2')
    a(f's_mul_i32 s43, s41, {T1_ET}')
    a(f's_add_u32 s43, s43, {WS_T1}')
    a(f's_lshl_b32 s44, s41, 16')
    a(f's_add_u32 s44, s44, {WS_T2}')
    a('s_cmp_eq_u32 s62, 0')
    a('s_cselect_b32 s43, s43, s44')
    a('s_lshl_b32 s45, s63, 15')
    a('s_add_u32 s43, s43, s45')
    a('s_lshl_b32 s45, s63, 10')
    ACCF=16
    for r in range(16): a(f'v_mov_b32 v{ACCF+r}, 0')
    SET=[32,96]
    def issue(setb, k0):
        for k in range(8):
            ra=setb+8*k
            a(f'buffer_load_dwordx4 v[{ra}:{ra+3}], v11, s[16:19], s45 offen offset:{(k0+k)*32}')
            a(f's_add_u32 s46, s43, {(k0+k)*1024}')
            a(f'buffer_load_dwordx4 v[{ra+4}:{ra+7}], v2, s[24:27], s46 offen')
    def mm(setb, first_wait):
        for k in range(8):
            ra=setb+8*k
            a(f's_waitcnt vmcnt({first_wait-2*k-2})')
            a(f'v_mfma_f32_32x32x16_bf16 v[{ACCF}:{ACCF+15}], v[{ra}:{ra+3}], v[{ra+4}:{ra+7}], v[{ACCF}:{ACCF+15}]')
    issue(SET[0],0)
    a('s_cmp_eq_u32 s61, 0')
    a(f's_cbranch_scc0 L_{name}_nob2')
    a('s_mov_b32 s61, 1')
    stamp(a,3)
    a('s_barrier')
    stamp(a,4)
    a.label(f'L_{name}_nob2')
    issue(SET[1],8)
    mm(SET[0],32)
    issue(SET[0],16)
    mm(SET[1],32)
    issue(SET[1],24)
    mm(SET[0],32)
    mm(SET[1],16)
    a('s_cmp_eq_u32 s35, 1')
    a(f's_cbranch_scc0 L_{name}_nox')
    a('s_mov_b32 s45, 2048')
    a(f'buffer_load_dwordx4 v[32:35], v11, s[16:19], s45 offen')
    a(f's_add_u32 s46, s43, {32*1024}')
    a(f'buffer_load_dwordx4 v[36:39], v2, s[24:27], s46 offen')
    a('s_waitcnt vmcnt(0)')
    a(f'v_mfma_f32_32x32x16_bf16 v[{ACCF}:{ACCF+15}], v[32:35], v[36:39], v[{ACCF}:{ACCF+15}]')
    a.label(f'L_{name}_nox')
    a('s_nop 15')
    a('s_lshl_b32 s45, s35, 12')
    a('s_lshl_b32 s46, s60, 14')
    a('s_add_u32 s45, s45, s46')
    a(f's_add_u32 s45, s45, {K2_SUM}')
    a('v_add_u32 v12, s45, v2')
    for g in range(4): a(f'ds_write_b128 v12, v[{ACCF+4*g}:{ACCF+4*g+3}] offset:{g*1024}')
    stamp(a,5)
    a('s_waitcnt lgkmcnt(0)')
    a('s_lshl_b32 s45, s60, 2')
    a(f's_add_u32 s45, s45, {K2_CNT}')
    a('v_mov_b32 v12, s45')
    a('v_mov_b32 v13, 1')
    a('s_mov_b64 exec, 1')
    a('ds_add_rtn_u32 v14, v12, v13')
    a('s_waitcnt lgkmcnt(0)')
    a('s_mov_b64 exec, -1')
    a('v_readfirstlane_b32 s47, v14')
    a('s_cmp_eq_u32 s60, 0')
    a('s_cselect_b32 s48, 3, 1')
    a('s_nop 2')
    a('s_cmp_eq_u32 s47, s48')
    a(f's_cbranch_scc0 L_{name}_nextjob')
    a('s_lshl_b32 s46, s60, 14')
    a(f's_add_u32 s45, s46, {K2_SUM}')
    a('v_add_u32 v12, s45, v2')
    for g in range(4): a(f'ds_read_b128 v[{32+4*g}:{35+4*g}], v12 offset:{g*1024}')
    for g in range(4): a(f'ds_read_b128 v[{80+4*g}:{83+4*g}], v12 offset:{4096+g*1024}')
    a('s_cmp_eq_u32 s60, 0')
    a(f's_cbranch_scc0 L_{name}_noq')
    for g in range(4): a(f'ds_read_b128 v[{48+4*g}:{51+4*g}], v12 offset:{8192+g*1024}')
    for g in range(4): a(f'ds_read_b128 v[{96+4*g}:{99+4*g}], v12 offset:{12288+g*1024}')
    a('s_waitcnt lgkmcnt(0)')
    for r in range(16): a(f'v_add_f32 v{48+r}, v{48+r}, v{96+r}')
    a(f's_branch L_{name}_haveq')
    a.label(f'L_{name}_noq')
    for r in range(16): a(f'v_mov_b32 v{48+r}, 0')
    a.label(f'L_{name}_haveq')
    a('s_waitcnt lgkmcnt(0)')
    for r in range(16):
        a(f'v_add_f32 v{32+r}, v{32+r}, v{80+r}')
    for r in range(16):
        a(f'v_sub_f32 v{64+r}, v{32+r}, v{48+r}')
        a(f'v_add_f32 v{32+r}, v{32+r}, v{48+r}')
        a(f'v_cvt_pk_bf16_f32 v{64+r}, v{64+r}, v{32+r}')
    a(f's_add_u32 s20, s24, {WS_Y}')
    a('s_addc_u32 s21, s25, 0')
    a('s_mov_b32 s22, 0x200000')
    a('s_mov_b32 s23, 0x20000')
    a('s_lshl_b32 s42, s41, 5')
    a('v_add_u32 v13, s42, v9')
    a('v_lshlrev_b32 v14, 1, v13')
    a('v_sub_u32 v15, 1024, v14')
    a('v_mov_b32 v8, 0x40000000')
    a('v_cmp_eq_u32 vcc, 0, v13')
    a('s_nop 1')
    a('v_cndmask_b32 v15, v15, v8, vcc')
    a('v_cmp_lt_u32 vcc, 256, v13')
    a('s_nop 1')
    a('v_cndmask_b32 v14, v14, v8, vcc')
    a('v_cndmask_b32 v15, v15, v8, vcc')
    a('s_lshl_b32 s42, s40, 5')
    a('v_lshlrev_b32 v12, 2, v10')
    a('v_add_u32 v12, s42, v12')
    a('v_lshlrev_b32 v4, 10, v12')
    a('v_sub_u32 v5, 2048-27, v12')
    a('v_lshlrev_b32 v5, 10, v5')
    a('v_add_u32 v6, v4, v14')
    a('v_add_u32 v7, v5, v15')
    a('v_add_u32 v16, v5, v14')
    a('v_add_u32 v17, v4, v15')
    a('s_cmp_eq_u32 s40, 32')
    a(f's_cbranch_scc1 L_{name}_t32')
    for r in range(16):
        rr=(r%4)+8*(r//4)
        a(f's_mov_b32 s42, {rr*1024}')
        a(f's_mov_b32 s43, {(27-rr)*1024}')
        a(f'buffer_store_short v{64+r}, v6, s[20:23], s42 offen')
        a(f'buffer_store_short v{64+r}, v7, s[20:23], s43 offen')
        a(f'buffer_store_short_d16_hi v{64+r}, v16, s[20:23], s43 offen')
        a(f'buffer_store_short_d16_hi v{64+r}, v17, s[20:23], s42 offen')
    a(f's_branch L_{name}_nextjob')
    a.label(f'L_{name}_t32')
    a('s_mov_b32 exec_hi, 0')
    a('buffer_store_short v64, v6, s[20:23], 0 offen')
    a('buffer_store_short_d16_hi v64, v17, s[20:23], 0 offen')
    a('s_mov_b64 exec, -1')
    a.label(f'L_{name}_nextjob')
    a('s_add_u32 s60, s60, 1')
    a('s_cmp_eq_u32 s60, 1')
    a(f's_cbranch_scc0 L_{name}_fin')
    a('s_cmp_lt_u32 s2, 41')
    a(f's_cbranch_scc0 L_{name}_fin')
    a('s_sub_u32 s42, s2, 9')
    a('s_cmp_lt_u32 s2, 9')
    a('s_cselect_b32 s40, 32, s42')
    a('s_cselect_b32 s41, s2, 8')
    a(f's_branch L_{name}_job')
    a.label(f'L_{name}_fin')
    stamp_flush(a, 6, 24, 32, 12, 1, vtmp=104, extra=78)
    a.label(f'L_{name}_end')
    a('s_endpgm')
    return 168


K3_X=65536
K3_LDS=K3_X+16384
def gen_k3(a, name):
    kernel_header(a, name)
    a('s_cmp_ge_u32 s2, 256')
    a(f's_cbranch_scc1 L_{name}_end')
    stamp(a,0)
    a('s_load_dwordx2 s[36:37], s[0:1], 56')
    a('s_load_dwordx2 s[38:39], s[0:1], 72')
    a('s_load_dwordx2 s[46:47], s[0:1], 88')
    a('v_lshrrev_b32 v2, 6, v0')
    a('v_and_b32 v1, 63, v0')
    a('v_readfirstlane_b32 s32, v2')
    a('v_lshlrev_b32 v2, 4, v1')
    a('s_and_b32 s33, s2, 7')
    a('s_lshr_b32 s34, s2, 3')
    a('s_and_b32 s35, s34, 3')
    a('s_lshl_b32 s40, s33, 2')
    a('s_add_u32 s40, s40, s35')
    a('s_lshr_b32 s41, s2, 5')
    a('s_and_b32 s42, s32, 1')
    a('s_lshr_b32 s43, s32, 1')
    a('s_lshl_b32 s44, s40, 1')
    a('s_add_u32 s44, s44, s42')
    a('v_lshrrev_b32 v3, 3, v1')
    a('v_bfe_u32 v4, v1, 4, 1')
    a('v_lshlrev_b32 v4, 2, v4')
    a('v_and_b32 v5, 7, v1')
    a('v_xor_b32 v4, v4, v5')
    a('v_lshlrev_b32 v4, 4, v4')
    a('v_lshl_add_u32 v3, v3, 10, v4')
    a('v_and_b32 v8, 31, v1')
    a('v_lshrrev_b32 v9, 5, v1')
    a('s_waitcnt lgkmcnt(0)')
    srd(a, 8, 36, 0x80000)
    srd(a, 12, 38, 0x200000)
    srd(a, 24, 46, WS_SIZE)
    a('s_lshl_b32 s45, s32, 17')
    a('s_lshl_b32 s48, s41, 7')
    a('s_add_u32 s45, s45, s48')
    a('s_lshl_b32 s48, s32, 14')
    for i in range(16):
        a(f's_add_u32 m0, s48, {i*1024}')
        a(f's_add_u32 s49, s45, {i*8192}')
        a('buffer_load_dwordx4 v3, s[8:11], s49 offen lds')
    OF=32
    a('s_lshl_b32 s45, s44, 15')
    a('s_lshl_b32 s48, s43, 14')
    a('s_add_u32 s45, s45, s48')
    a(f's_add_u32 s45, s45, {WS_O}')
    for i in range(16):
        a(f's_add_u32 s49, s45, {i*1024}')
        a(f'buffer_load_dwordx4 v[{OF+4*i}:{OF+4*i+3}], v2, s[24:27], s49 offen')
    a('s_lshl_b32 s48, s44, 5')
    a('v_add_u32 v10, s48, v8')
    a('v_sub_u32 v11, 3072, v10')
    a('v_mov_b32 v12, 1024')
    a('v_cmp_eq_u32 vcc, 1024, v10')
    a('s_nop 1')
    a('v_cndmask_b32 v11, v11, v12, vcc')
    a('v_cmp_gt_u32 vcc, 1024, v10')
    a('s_nop 1')
    a('v_cndmask_b32 v10, v11, v10, vcc')
    a('v_lshlrev_b32 v11, 10, v10')
    a('v_lshl_add_u32 v11, v9, 3, v11')
    a('s_lshl_b32 s48, s41, 7')
    a('s_lshl_b32 s49, s43, 6')
    a('s_add_u32 s48, s48, s49')
    a('v_add_u32 v11, s48, v11')
    a(f's_mov_b32 s49, {WS_Y}')
    for b in range(4): a(f'buffer_load_dwordx2 v[{96+2*b}:{97+2*b}], v11, s[24:27], s49 offen offset:{b*16}')
    a('v_lshlrev_b32 v12, 2, v10')
    a(f's_mov_b32 s49, {WS_G}')
    a('buffer_load_dword v104, v12, s[24:27], s49 offen')
    a('v_bfe_u32 v5, v1, 2, 2')
    a('v_lshl_add_u32 v6, v9, 2, v5')
    a('v_lshlrev_b32 v6, 7, v6')
    a('v_bfe_u32 v7, v1, 3, 1')
    a('v_lshlrev_b32 v7, 6, v7')
    a('v_bfe_u32 v12, v1, 4, 1')
    a('v_lshl_add_u32 v6, v12, 5, v6')
    a('v_bfe_u32 v12, v1, 1, 1')
    a('v_lshl_add_u32 v6, v12, 4, v6')
    a('v_and_b32 v12, 1, v1')
    a('v_lshl_add_u32 v6, v12, 3, v6')
    a('v_add_u32 v14, v6, v7')
    a('v_xor_b32 v15, 64, v14')
    a('s_lshl_b32 s48, s43, 15')
    a('v_add_u32 v14, s48, v14')
    a('v_add_u32 v15, s48, v15')
    ACC=[16,112]
    for j in range(2):
        for r in range(16): a(f'v_mov_b32 v{ACC[j]+r}, 0')
    stamp(a,1)
    a('s_waitcnt vmcnt(21)')
    a('s_barrier')
    stamp(a,2)
    FW=[128,136]
    def reads(i):
        s=i%2
        for j in range(2):
            a(f'ds_read_b64_tr_b16 v[{FW[s]+4*j}:{FW[s]+4*j+1}], v{14+j} offset:{i*2048}')
            a(f'ds_read_b64_tr_b16 v[{FW[s]+4*j+2}:{FW[s]+4*j+3}], v{14+j} offset:{i*2048+1024}')
    reads(0)
    for i in range(16):
        if i<15:
            reads(i+1); a(f's_waitcnt vmcnt({5+15-i}) lgkmcnt(4)')
        else:
            a('s_waitcnt vmcnt(5) lgkmcnt(0)')
        s=i%2
        for j in range(2):
            a(f'v_mfma_f32_32x32x16_bf16 v[{ACC[j]}:{ACC[j]+15}], v[{FW[s]+4*j}:{FW[s]+4*j+3}], v[{OF+4*i}:{OF+4*i+3}], v[{ACC[j]}:{ACC[j]+15}]')
    stamp(a,3)
    a('s_nop 15')
    a('s_lshl_b32 s48, s42, 13')
    a('s_xor_b32 s49, s43, 1')
    a('s_lshl_b32 s49, s49, 12')
    a('s_add_u32 s49, s49, s48')
    a(f's_add_u32 s49, s49, {K3_X}')
    a('v_add_u32 v5, s49, v2')
    a('s_lshl_b32 s49, s43, 12')
    a('s_add_u32 s49, s49, s48')
    a(f's_add_u32 s49, s49, {K3_X}')
    a('v_add_u32 v6, s49, v2')
    a('s_cmp_eq_u32 s43, 0')
    a(f's_cbranch_scc0 L_{name}_kw1')
    for g in range(4): a(f'ds_write_b128 v5, v[{ACC[1]+4*g}:{ACC[1]+4*g+3}] offset:{g*1024}')
    a(f's_branch L_{name}_x')
    a.label(f'L_{name}_kw1')
    for g in range(4): a(f'ds_write_b128 v5, v[{ACC[0]+4*g}:{ACC[0]+4*g+3}] offset:{g*1024}')
    a('s_nop 1')
    for r in range(16): a(f'v_mov_b32 v{ACC[0]+r}, v{ACC[1]+r}')
    a.label(f'L_{name}_x')
    a('s_waitcnt lgkmcnt(0)')
    a('s_barrier')
    for g in range(4): a(f'ds_read_b128 v[{32+4*g}:{35+4*g}], v6 offset:{g*1024}')
    a('s_waitcnt vmcnt(0) lgkmcnt(0)')
    a('v_sub_f32 v105, 1.0, v104')
    for r in range(16):
        a(f'v_add_f32 v{16+r}, v{16+r}, v{32+r}')
        a(f'v_mul_f32 v{16+r}, v105, v{16+r}')
    for b in range(4):
        for q in range(2):
            src=96+2*b+q
            a(f'v_lshlrev_b32 v48, 16, v{src}')
            a(f'v_and_b32 v49, 0xffff0000, v{src}')
            a(f'v_fmac_f32 v{16+4*b+2*q}, v104, v48')
            a(f'v_fmac_f32 v{16+4*b+2*q+1}, v104, v49')
        a(f'v_cvt_pk_bf16_f32 v{52+2*b}, v{16+4*b}, v{16+4*b+1}')
        a(f'v_cvt_pk_bf16_f32 v{53+2*b}, v{16+4*b+2}, v{16+4*b+3}')
        a(f'buffer_store_dwordx2 v[{52+2*b}:{53+2*b}], v11, s[12:15], 0 offen offset:{b*16}')
    stamp_flush(a, 4, 24, 32, 4, 2, vtmp=106)
    a.label(f'L_{name}_end')
    a('s_endpgm')
    return 144

def build(kernels):
    a=Asm()
    hdr = """; Kernarg layout (96 bytes): A_x, dft_seq_re, dft_seq_im, dft_hid_re, dft_hid_im, B_x, wqkv, wo, gate_w, out, debug, ws
"""
    descs=''
    body=Asm()
    for (name, fn, grid, block, lds) in kernels:
        hdr += f'; @launch kernel={name} grid=({grid},1,1) block=({block},1,1) lds={lds}\n'
    body.raw('.amdgcn_target "amdgcn-amd-amdhsa--gfx950"')
    body.raw('.text')
    for (name, fn, grid, block, lds) in kernels:
        v=fn(body,name)
        descs += kernel_desc(name, v)
    return hdr + body.text() + '.section .rodata,"a"\n' + descs

if __name__=='__main__':
    which = sys.argv[1] if len(sys.argv)>1 else 'k1'
    ks=[]
    ks.append(('k1_qkv_kernel', gen_k1, 256, 512, K1_LDS))
    if which in ('k2','all'): ks.append(('k2_attn_kernel', gen_k2, 256, 768, K2_LDS))
    if which=='all': ks.append(('k3_out_kernel', gen_k3, 256, 256, K3_LDS))
    txt=build(ks)
    out = sys.argv[2] if len(sys.argv)>2 else 'out.s'
    open(out,'w').write(txt)
```

```python
import sys, os
NAME='gated_mix__spectral_fnet__mha_block__prompt'
WS_Q=0; WS_KV=0x200000; WS_O=0x600000; WS_Y=0x800000; WS_T1=0xA00000; WS_T2=0xB00000; WS_G=0xC00000
WS_SIZE=0xD00000
T1_ET=65*1024; T2_ET=64*1024
C_SCALE=0.25*1.4426950408889634
import struct
def f2u(x): return struct.unpack('<I',struct.pack('<f',x))[0]

STAMPS = os.environ.get('STAMPS','0')=='1'
NOFNET = os.environ.get('NOFNET','0')=='1'
NOPRIO = os.environ.get('NOPRIO','0')=='1'
FAKEA = os.environ.get('FAKEA','0')=='1'
EXPT = os.environ.get('EXPT','')
PR = [int(x) for x in os.environ.get('PR','9,10,15,63').split(',')]
class Asm:
    def __init__(self): self.L=[]; self.noload=False; self.stflag=''
    def __call__(self, s):
        for line in s.strip('\n').split('\n'):
            if self.noload and line.strip().endswith(' lds'): continue
            if NOPRIO and line.strip().startswith('s_setprio'): continue
            if line.strip().startswith('buffer_store_dwordx4') and self.stflag:
                if self.stflag=='none': continue
                line = line.strip()+' '+self.stflag
            self.L.append('    '+line.strip())
    def label(self, s): self.L.append(s+':')
    def raw(self, s): self.L.append(s)
    def text(self): return '\n'.join(self.L)+'\n'

def srd(a, d, lo, size):
    a(f's_mov_b32 s{d}, s{lo}')
    a(f's_mov_b32 s{d+1}, s{lo+1}')
    a(f's_mov_b32 s{d+2}, {hex(size)}')
    a(f's_mov_b32 s{d+3}, 0x20000')

def pi_perm(a, dst, src, tmp):
    a(f'v_and_b32 v{dst}, 0x13, v{src}')
    a(f'v_and_b32 v{tmp}, 4, v{src}')
    a(f'v_lshl_or_b32 v{dst}, v{tmp}, 1, v{dst}')
    a(f'v_and_b32 v{tmp}, 8, v{src}')
    a(f'v_lshrrev_b32 v{tmp}, 1, v{tmp}')
    a(f'v_or_b32 v{dst}, v{dst}, v{tmp}')

WS_STAMP=0x1000000
def stamp(a, i):
    if STAMPS:
        a(f's_memrealtime s[{80+2*i}:{81+2*i}]')
def stamp_flush(a, n, wsreg, widreg, wpw, kidx, vtmp=100, extra=None):
    if not STAMPS: return
    a('s_waitcnt vmcnt(0) lgkmcnt(0)')
    a(f's_memrealtime s[{80+2*n}:{81+2*n}]')
    a('s_waitcnt lgkmcnt(0)')
    a(f's_mul_i32 s98, s2, {wpw}')
    a(f's_add_u32 s98, s98, s{widreg}')
    a('s_lshl_b32 s98, s98, 5')
    a(f's_add_u32 s98, s98, {WS_STAMP+kidx*0x40000}')
    a(f's_mov_b32 s{wsreg+2}, 0x2000000')
    a('s_mov_b64 exec, 1')
    a(f'v_mov_b32 v{vtmp+1}, 0')
    for i in range(n+1):
        a(f'v_mov_b32 v{vtmp}, s{80+2*i}')
        a(f'buffer_store_dword v{vtmp}, v{vtmp+1}, s[{wsreg}:{wsreg+3}], s98 offen offset:{4*i}')
        a('s_nop 1')
    if extra is not None:
        a(f'v_mov_b32 v{vtmp}, s{extra}')
        a(f'buffer_store_dword v{vtmp}, v{vtmp+1}, s[{wsreg}:{wsreg+3}], s98 offen offset:28')

def kernel_header(a, name):
    a.raw(f'.globl {name}')
    a.raw('.p2align 8')
    a.raw(f'.type {name},@function')
    a.label(name)

def kernel_desc(name, vgpr, sgpr=102):
    acc = (vgpr+3)//4*4
    return f""".p2align 6
.amdhsa_kernel {name}
  .amdhsa_next_free_vgpr {vgpr}
  .amdhsa_next_free_sgpr {sgpr}
  .amdhsa_accum_offset {acc}
  .amdhsa_group_segment_fixed_size 0
  .amdhsa_kernarg_size 96
  .amdhsa_user_sgpr_count 2
  .amdhsa_user_sgpr_kernarg_segment_ptr 1
  .amdhsa_system_sgpr_workgroup_id_x 1
.end_amdhsa_kernel
"""

K1_SLOT=32768
K1_NS=4
K1_X=0; K1_WQK=16384; K1_WV=24576; K1_WD=28672
K1_LDS=K1_NS*K1_SLOT

def gen_k1(a, name):
    NS=K1_NS
    a.noload = 'noload' in EXPT
    a.stflag = 'sc1' if 'st_sc1' in EXPT else 'nt' if 'st_nt' in EXPT else 'none' if 'st_none' in EXPT else 'sc0 sc1' if 'st_sc01' in EXPT else '' if 'st_plain' in EXPT else 'sc1'
    kernel_header(a, name)
    a('s_cmp_ge_u32 s2, 256')
    a(f's_cbranch_scc1 L_{name}_end')
    stamp(a,0)
    a('s_load_dwordx2 s[4:5], s[0:1], 0')
    a('s_load_dwordx4 s[36:39], s[0:1], 24')
    a('s_load_dwordx2 s[42:43], s[0:1], 48')
    a('s_load_dwordx2 s[44:45], s[0:1], 64')
    a('s_load_dwordx2 s[46:47], s[0:1], 88')
    a('v_lshrrev_b32 v2, 6, v0')
    a('v_and_b32 v1, 63, v0')
    a('v_readfirstlane_b32 s32, v2')
    a('s_and_b32 s33, s2, 7')
    a('s_lshr_b32 s34, s2, 3')
    a('s_lshr_b32 s54, s33, 1')
    a('s_lshl_b32 s54, s54, 2')
    a('s_and_b32 s55, s34, 3')
    a('s_add_u32 s54, s54, s55')
    a('s_and_b32 s55, s33, 1')
    a('s_lshl_b32 s55, s55, 3')
    a('s_lshr_b32 s56, s34, 2')
    a('s_add_u32 s55, s55, s56')
    a('s_cmp_lt_u32 s32, 4')
    a(f's_cbranch_scc1 L_{name}_comp')
    a('s_sub_u32 s35, s32, 4')
    a('v_lshrrev_b32 v2, 3, v1')
    a('v_and_b32 v3, 7, v1')
    a('v_lshrrev_b32 v4, 4, v1')
    a('v_xor_b32 v5, v3, v4')
    a('v_lshlrev_b32 v5, 4, v5')
    a('s_lshl_b32 s56, s54, 6')
    a('s_and_b32 s57, s35, 1')
    a('s_lshl_b32 s58, s57, 5')
    a('s_add_u32 s56, s56, s58')
    a('v_add_u32 v11, s56, v2')
    a('s_cmp_lt_u32 s35, 2')
    a(f's_cbranch_scc0 L_{name}_mir')
    a('v_lshl_add_u32 v16, v11, 10, v5')
    a('v_add_u32 v17, 8192, v16')
    a('v_add_u32 v18, 16384, v16')
    a('v_add_u32 v19, 24576, v16')
    a(f's_branch L_{name}_mird')
    a.label(f'L_{name}_mir')
    a('v_sub_u32 v12, 2048, v11')
    a('v_lshl_add_u32 v16, v12, 10, v5')
    a('v_subrev_u32 v17, 8192, v16')
    a('v_subrev_u32 v18, 16384, v16')
    a('v_subrev_u32 v19, 24576, v16')
    a('v_cmp_eq_u32 vcc, 2048, v12')
    a('v_subrev_u32 v13, 0x100000, v16')
    a('s_nop 0')
    a('v_cndmask_b32 v16, v16, v13, vcc')
    a.label(f'L_{name}_mird')
    a('v_xor_b32 v17, 64, v17')
    a('v_xor_b32 v19, 64, v19')
    a('v_bfe_u32 v6, v1, 4, 1')
    a('v_lshlrev_b32 v6, 2, v6')
    a('v_xor_b32 v6, v6, v3')
    a('v_lshlrev_b32 v6, 4, v6')
    a('v_mul_u32_u24 v7, 3072, v2')
    a('v_add_u32 v6, v6, v7')
    a('s_lshl_b32 s58, s55, 7')
    a('v_add_u32 v20, s58, v6')
    a('v_add_u32 v21, 8*3072, v20')
    a('v_lshrrev_b32 v6, 2, v1')
    a('v_mul_u32_u24 v6, 3072, v6')
    a('v_and_b32 v7, 3, v1')
    a('v_lshl_add_u32 v6, v7, 4, v6')
    a('s_lshl_b32 s58, s55, 6')
    a('s_add_u32 s58, s58, 2048')
    a('v_add_u32 v22, s58, v6')
    a('s_lshl_b32 s56, s55, 4')
    a('s_lshl_b32 s58, s57, 3')
    a('s_add_u32 s56, s56, s58')
    a('v_add_u32 v11, s56, v2')
    a('v_lshl_add_u32 v23, v11, 10, v5')
    a('s_lshl_b32 s58, s57, 6')
    a('v_xor_b32 v23, s58, v23')
    a('s_mul_i32 s71, s35, 16*3072')
    if 'norot' in EXPT: a('s_mov_b32 s70, 0')
    else:
        a('s_lshr_b32 s70, s34, 2')
        a('s_and_b32 s72, s34, 3')
        a('s_lshl_b32 s72, s72, 1')
        a('s_add_u32 s70, s70, s72')
        a('s_and_b32 s70, s70, 7')
    a('s_lshl_b32 s56, s70, 7')
    a(f's_mul_i32 s57, s70, {64*3072}')
    a('s_add_u32 s57, s57, s71')
    a('s_lshl_b32 s61, s35, 12')
    a('s_lshl_b32 s62, s35, 11')
    a(f's_add_u32 s62, s62, {K1_WQK}')
    a('s_lshl_b32 s63, s35, 10')
    a(f's_add_u32 s64, s63, {K1_WV}')
    a(f's_add_u32 s63, s63, {K1_WD}')
    a('s_waitcnt lgkmcnt(0)')
    srd(a, 8, 4, 0x200000)
    srd(a, 16, 42, 0x180000)
    a('s_cmp_lt_u32 s35, 2')
    a('s_cselect_b32 s20, s36, s38')
    a('s_cselect_b32 s21, s37, s39')
    a('s_mov_b32 s22, 0x80000')
    a('s_mov_b32 s23, 0x20000')
    a('s_mov_b32 s52, 0')
    a('s_mov_b32 s50, 0')
    a.label(f'L_{name}_issue')
    a('s_add_u32 s65, s52, s61')
    for i in range(4):
        a(f's_add_u32 m0, s65, {i*1024}')
        a('s_nop 0')
        a(f'buffer_load_dwordx4 v{16+i}, s[8:11], s56 offen lds')
    a('s_add_u32 s65, s52, s62')
    for i in range(2):
        a(f's_add_u32 m0, s65, {i*1024}')
        a('s_nop 0')
        a(f'buffer_load_dwordx4 v{20+i}, s[16:19], s57 offen lds')
    a('s_add_u32 m0, s52, s64')
    a('s_nop 0')
    a(f'buffer_load_dwordx4 v22, s[16:19], s57 offen lds')
    a('s_add_u32 m0, s52, s63')
    a('s_add_u32 s70, s70, 1')
    a(f'buffer_load_dwordx4 v23, s[20:23], s56 offen lds')
    a('s_and_b32 s70, s70, 7')
    a('s_lshl_b32 s56, s70, 7')
    a(f's_mul_i32 s57, s70, {64*3072}')
    a('s_add_u32 s57, s57, s71')
    a(f's_add_u32 s52, s52, {K1_SLOT}')
    a(f's_cmp_eq_u32 s52, {NS*K1_SLOT}')
    a('s_cselect_b32 s52, 0, s52')
    a('s_add_u32 s50, s50, 1')
    a('s_cmp_lt_u32 s50, 2')
    a(f's_cbranch_scc1 L_{name}_issue')
    if STAMPS:
        a('s_cmp_eq_u32 s50, 2')
        a(f's_cbranch_scc0 L_{name}_ns1')
        stamp(a,1)
        a.label(f'L_{name}_ns1')
    a('s_cmp_eq_u32 s50, 8')
    a(f's_cbranch_scc1 L_{name}_ld8')
    a('s_waitcnt vmcnt(8)')
    a('s_barrier')
    if STAMPS:
        a('s_cmp_eq_u32 s50, 2')
        a(f's_cbranch_scc0 L_{name}_ns2')
        stamp(a,2)
        a.label(f'L_{name}_ns2')
    a(f's_branch L_{name}_issue')
    a.label(f'L_{name}_ld8')
    srd(a, 28, 44, 1024)
    a('s_lshl_b32 s48, s2, 3')
    a('s_lshl_b32 s49, s35, 1')
    a('s_add_u32 s48, s48, s49')
    a('s_lshl_b32 s49, s48, 10')
    a('v_lshlrev_b32 v12, 4, v1')
    a('buffer_load_dwordx4 v[24:27], v12, s[8:11], s49 offen')
    a('buffer_load_dwordx4 v[28:31], v12, s[8:11], s49 offen offset:1024')
    a('buffer_load_dwordx4 v[32:35], v12, s[28:31], 0 offen')
    a('s_waitcnt vmcnt(11)')
    a('s_barrier')
    a('s_waitcnt vmcnt(3)')
    a('s_barrier')
    stamp(a,3)
    a('s_barrier')
    srd(a, 24, 46, WS_SIZE)
    a('v_mov_b32 v16, 0'); a('v_mov_b32 v17, 0')
    a('s_waitcnt vmcnt(0)')
    for q in range(4):
        a(f'v_dot2_f32_bf16 v16, v{24+q}, v{32+q}, v16')
        a(f'v_dot2_f32_bf16 v17, v{28+q}, v{32+q}, v17')
    a('s_nop 2')
    def dpp(op):
        a('s_nop 0')
        a(f'v_add_f32_dpp v16, v16, v16 {op}')
        a(f'v_add_f32_dpp v17, v17, v17 {op}')
    for sh in (1,2,4,8): dpp(f'row_shr:{sh} row_mask:0xf bank_mask:0xf')
    dpp('row_bcast:15 row_mask:0xa bank_mask:0xf')
    dpp('row_bcast:31 row_mask:0xc bank_mask:0xf')
    for r in (16,17): a(f'v_mul_f32 v{r}, {hex(f2u(-1.4426950408889634))}, v{r}')
    for r in (16,17): a(f'v_exp_f32 v{r}, v{r}')
    a('s_nop 0')
    for r in (16,17): a(f'v_add_f32 v{r}, 1.0, v{r}')
    for r in (16,17): a(f'v_rcp_f32 v{r}, v{r}')
    a('s_lshl_b32 s49, s48, 2')
    a(f's_add_u32 s49, s49, {WS_G}')
    a('v_mov_b32 v18, 0')
    a('s_mov_b32 exec_lo, 0')
    a('s_mov_b32 exec_hi, 0x80000000')
    a('buffer_store_dwordx2 v[16:17], v18, s[24:27], s49 offen')
    a(f's_branch L_{name}_fin')

    a.label(f'L_{name}_comp')
    a('s_lshr_b32 s35, s32, 1')
    a('s_and_b32 s40, s32, 1')
    a('v_and_b32 v8, 31, v1')
    a('v_lshrrev_b32 v9, 5, v1')
    pi_perm(a, 10, 8, 11)
    def frag_addr(dst0, rowreg, base_off, tmp):
        a(f'v_lshrrev_b32 v{tmp}, 1, v{rowreg}')
        a(f'v_and_b32 v{tmp}, 7, v{tmp}')
        a(f'v_xor_b32 v{tmp}, v{tmp}, v9')
        a(f'v_lshlrev_b32 v{tmp}, 4, v{tmp}')
        a(f'v_lshl_add_u32 v{dst0}, v{rowreg}, 7, v{tmp}')
        if base_off: a(f'v_add_u32 v{dst0}, {base_off}, v{dst0}')
        for ks in range(1,4): a(f'v_xor_b32 v{dst0+ks}, {ks*32}, v{dst0}')
    a('s_lshl_b32 s63, s35, 6')
    a('v_add_u32 v11, s63, v10')
    frag_addr(16, 11, K1_X, 15)
    a('v_bfe_u32 v11, v1, 2, 2')
    a('v_lshl_add_u32 v11, v9, 3, v11')
    a('v_bfe_u32 v12, v1, 4, 1')
    a('v_and_b32 v13, 3, v1')
    ACC=[[32,48],[64,80]]
    for r in range(32,96): a(f'v_mov_b32 v{r}, 0')
    FS=[96,112,128,144]
    WA=160
    a('s_mov_b32 s50, 0')
    a('s_mov_b32 s51, 0')
    srd_done=[False]
    def mf(d,A,B): a(f'v_mfma_f32_32x32x16_bf16 v[{d}:{d+15}], v[{A}:{A+3}], v[{B}:{B+3}], v[{d}:{d+15}]')
    def capture(fn, *args):
        sub=Asm(); saved=a.L; a.L=sub.L
        fn(*args); a.L=saved
        return [x.strip() for x in sub.L]
    def inter(ms, others):
        pre=[x for x in ms if not x.startswith('v_mfma')]
        mm=[x for x in ms if x.startswith('v_mfma')]
        k=len(mm); per=-(-len(others)//k) if others else 0
        for x in pre: a(x)
        if pre: a('s_nop 0')
        oi=0
        for i,x in enumerate(mm):
            a(x)
            for y in others[oi:oi+per]: a(y)
            oi+=per
        for y in others[oi:]: a(y)
    def run(tag, n, setaddr, reads, mfmas):
        if 'nocomp' in EXPT:
            reads=lambda k: None
            mfmas=lambda k: None
        a('s_waitcnt lgkmcnt(0)')
        a('s_barrier')
        stamp(a,2)
        if STAMPS: a('s_memtime s[74:75]')
        setaddr('s51')
        reads(0); reads(1)
        a.label(f'L_{tag}_loop')
        a(f's_waitcnt lgkmcnt({n})'); inter(capture(mfmas,0), capture(reads,2))
        a(f's_waitcnt lgkmcnt({n})'); inter(capture(mfmas,1), capture(reads,3))
        a('s_cmp_eq_u32 s50, 7')
        a(f's_cbranch_scc1 L_{tag}_last')
        a(f's_add_u32 s51, s51, {K1_SLOT}')
        a(f's_cmp_eq_u32 s51, {NS*K1_SLOT}')
        a('s_cselect_b32 s51, 0, s51')
        setaddr('s51')
        a('s_barrier')
        a(f's_waitcnt lgkmcnt({n})')
        inter(capture(mfmas,2), capture(reads,0))
        a(f's_waitcnt lgkmcnt({n})'); inter(capture(mfmas,3), capture(reads,1))
        a('s_add_u32 s50, s50, 1')
        a(f's_branch L_{tag}_loop')
        a.label(f'L_{tag}_last')
        a(f's_waitcnt lgkmcnt({n})'); inter(capture(mfmas,2), [])
        a('s_waitcnt lgkmcnt(0)'); inter(capture(mfmas,3), [])
        if STAMPS:
            a('s_memtime s[76:77]')
            a('s_waitcnt lgkmcnt(0)')
            a('s_sub_u32 s78, s76, s74')
    stamp(a,1)
    a('s_cmp_eq_u32 s40, 0')
    a(f's_cbranch_scc0 L_{name}_cw1')
    a('v_lshlrev_b32 v20, 7, v11')
    a('v_bfe_u32 v14, v1, 3, 1')
    a('v_lshl_add_u32 v20, v14, 6, v20')
    a('v_lshl_add_u32 v20, v12, 5, v20')
    a('v_lshrrev_b32 v14, 1, v13')
    a('v_lshl_add_u32 v20, v14, 4, v20')
    a('v_and_b32 v14, 1, v13')
    a('v_lshl_add_u32 v20, v14, 3, v20')
    a(f'v_add_u32 v20, {K1_WQK}, v20')
    a('v_xor_b32 v21, 64, v20')
    def setaddr0(sS):
        for ks in range(4): a(f'v_add_u32 v{WA+ks}, {sS}, v{16+ks}')
        a(f'v_add_u32 v{WA+4}, {sS}, v20')
        a(f'v_add_u32 v{WA+5}, {sS}, v21')
    def reads0(ks):
        F=FS[ks]
        a(f'ds_read_b128 v[{F}:{F+3}], v{WA+ks}')
        a(f'ds_read_b128 v[{F+4}:{F+7}], v{WA+ks} offset:4096')
        for j in range(2):
            a(f'ds_read_b64_tr_b16 v[{F+8+4*j}:{F+9+4*j}], v{WA+4+j} offset:{ks*2048}')
            a(f'ds_read_b64_tr_b16 v[{F+10+4*j}:{F+11+4*j}], v{WA+4+j} offset:{ks*2048+512}')
    def mfmas0(ks):
        F=FS[ks]
        for t in range(2):
            for j in range(2): mf(ACC[t][j], F+8+4*j, F+4*t)
    run(f'{name}_a', 6, setaddr0, reads0, mfmas0)
    stamp(a,3)
    a('s_barrier')
    srd(a, 24, 46, WS_SIZE)
    a('s_lshl_b32 s56, s54, 1')
    a('s_lshl_b32 s57, s35, 5')
    a('s_add_u32 s56, s56, s57')
    a('s_cmp_ge_u32 s55, 8')
    a('s_cselect_b32 s57, 17, 16')
    a('s_cselect_b32 s58, 11, 10')
    a(f's_cselect_b32 s59, {WS_KV}, {WS_Q}')
    a(f's_cselect_b32 s60, 1.0, {hex(f2u(C_SCALE))}')
    a('s_lshl_b32 s57, 1, s57')
    a('s_lshl_b32 s61, s56, s58')
    a('s_add_u32 s59, s59, s61')
    a('s_lshl_b32 s63, 1, s58')
    a('s_and_b32 s62, s55, 7')
    a('s_lshl_b32 s62, s62, 2')
    a('s_mul_i32 s62, s62, s57')
    a('s_add_u32 s59, s59, s62')
    a('v_lshlrev_b32 v11, 9, v9')
    a('v_lshl_add_u32 v11, v10, 4, v11')
    a('s_nop 7')
    k=0
    for t in range(2):
        a(f's_mov_b32 s64, s59')
        for j in range(2):
            for hb in range(2):
                base=ACC[t][j]+8*hb
                for r in range(8): a(f'v_mul_f32 v{base+r}, s60, v{base+r}')
                d=96+4*k; k+=1
                for q in range(4): a(f'v_cvt_pk_bf16_f32 v{d+q}, v{base+2*q}, v{base+2*q+1}')
                a(f'buffer_store_dwordx4 v[{d}:{d+3}], v11, s[24:27], s64 offen')
                a('s_add_u32 s64, s64, s57')
        a('s_add_u32 s59, s59, s63')
    a(f's_branch L_{name}_fin')
    a.label(f'L_{name}_cw1')
    a('v_lshlrev_b32 v20, 6, v11')
    a('v_lshl_add_u32 v20, v12, 5, v20')
    a('v_lshl_add_u32 v20, v13, 3, v20')
    a(f'v_add_u32 v20, {K1_WV}, v20')
    frag_addr(24, 8, K1_WD, 15)
    a('s_cmp_eq_u32 s55, 0')
    a('s_cselect_b32 s66, 0x10000, 0')
    a('s_mov_b32 s67, s66')
    a('v_mov_b32 v14, 0xbf803f80')
    def setaddr1(sS):
        for ks in range(4): a(f'v_add_u32 v{WA+ks}, {sS}, v{16+ks}')
        a(f'v_add_u32 v{WA+4}, {sS}, v20')
        for ks in range(4): a(f'v_add_u32 v{WA+5+ks}, {sS}, v{24+ks}')
    def reads1(ks):
        F=FS[ks]
        a(f'ds_read_b128 v[{F}:{F+3}], v{WA+ks}')
        a(f'ds_read_b128 v[{F+4}:{F+7}], v{WA+ks} offset:4096')
        a(f'ds_read_b64_tr_b16 v[{F+8}:{F+9}], v{WA+4} offset:{ks*1024}')
        a(f'ds_read_b64_tr_b16 v[{F+10}:{F+11}], v{WA+4} offset:{ks*1024+256}')
        a(f'ds_read_b128 v[{F+12}:{F+15}], v{WA+5+ks}')
    def mfmas1(ks):
        F=FS[ks]
        for q in range(4): a(f'v_cndmask_b32 v{F+12+q}, v{F+12+q}, v14, s[66:67]')
        for t in range(2): mf(ACC[t][0], F+4*t, F+8)
        for t in range(2): mf(ACC[t][1], F+4*t, F+12)
    run(f'{name}_b', 5, setaddr1, reads1, mfmas1)
    stamp(a,3)
    srd(a, 24, 46, WS_SIZE)
    a('s_nop 15')
    XCH = 0
    a('v_lshlrev_b32 v11, 4, v1')
    a(f'v_add_u32 v11, {XCH}, v11')
    a('s_cmp_eq_u32 s35, 1')
    a(f's_cbranch_scc0 L_{name}_nowr')
    for t in range(2):
        for g in range(4): a(f'ds_write_b128 v11, v[{ACC[t][1]+4*g}:{ACC[t][1]+4*g+3}] offset:{t*4096+g*1024}')
    a('s_waitcnt lgkmcnt(0)')
    a.label(f'L_{name}_nowr')
    a('s_barrier')
    a('s_lshl_b32 s56, s54, 1')
    a('s_lshl_b32 s57, s35, 5')
    a('s_add_u32 s58, s56, s57')
    a('v_lshrrev_b32 v12, 4, v8')
    a('v_lshlrev_b32 v12, 17, v12')
    a('v_lshl_add_u32 v12, v9, 9, v12')
    a('v_and_b32 v13, 15, v8')
    a('v_lshl_add_u32 v12, v13, 4, v12')
    a('s_lshl_b32 s61, s55, 18')
    a('s_lshl_b32 s62, s58, 11')
    a('s_add_u32 s61, s61, s62')
    a(f's_add_u32 s61, s61, {WS_KV+1024}')
    for t in range(2):
        for mfi in range(2):
            base=ACC[t][0]+8*mfi
            d=96+8*t+4*mfi
            for q in range(4): a(f'v_cvt_pk_bf16_f32 v{d+q}, v{base+2*q}, v{base+2*q+1}')
            a(f'buffer_store_dwordx4 v[{d}:{d+3}], v12, s[24:27], s61 offen offset:{t*2048+mfi*256}')
    a('s_cmp_eq_u32 s35, 1')
    a(f's_cbranch_scc1 L_{name}_fin')
    for t in range(2):
        for g in range(4): a(f'ds_read_b128 v[{112+16*t+4*g}:{115+16*t+4*g}], v11 offset:{t*4096+g*1024}')
    a('v_mov_b32 v12, -1.0')
    a('v_mov_b32 v13, 1.0')
    a('v_cmp_gt_u32 vcc, 16, v8')
    a('s_nop 1')
    a('v_cndmask_b32 v12, v12, v13, vcc')
    a('v_cndmask_b32 v12, v12, v13, s[66:67]')
    a('s_lshr_b32 s57, s55, 1')
    a(f's_mul_i32 s58, s57, {T1_ET}')
    a(f's_add_u32 s58, s58, {WS_T1}')
    a('s_lshl_b32 s59, s57, 16')
    a(f's_add_u32 s59, s59, {WS_T2}')
    a('s_and_b32 s60, s55, 1')
    a('s_lshl_b32 s60, s60, 8')
    a('v_and_b32 v16, 15, v8')
    a('v_lshlrev_b32 v16, 4, v16')
    a('v_lshl_add_u32 v16, v9, 9, v16')
    a('v_add_u32 v16, s60, v16')
    a('v_mov_b32 v17, s59')
    a('v_mov_b32 v18, s58')
    a('v_cndmask_b32 v17, v17, v18, vcc')
    a('v_add_u32 v17, v17, v16')
    a(f'v_mov_b32 v18, {WS_T1+8*T1_ET}')
    a('v_lshl_add_u32 v18, v9, 9, v18')
    a('v_cndmask_b32 v19, v17, v18, s[66:67]')
    a('s_waitcnt lgkmcnt(0)')
    a('v_mov_b32 v15, v112')
    a('s_cmp_eq_u32 s56, 0')
    a('s_cselect_b32 s68, -1, 0')
    a('s_mov_b32 s69, 0')
    a('v_mov_b32 v13, 0')
    a('v_cndmask_b32 v112, v112, v13, s[68:69]')
    a('s_lshl_b32 s63, s56, 11')
    for t in range(2):
        A_=ACC[t][1]
        for r in range(16): a(f'v_fma_f32 v{A_+r}, v{112+16*t+r}, v12, v{A_+r}')
        for q in range(8): a(f'v_cvt_pk_bf16_f32 v{144+8*t+q}, v{A_+2*q}, v{A_+2*q+1}')
        for c in range(2):
            a(f'buffer_store_dwordx4 v[{144+8*t+4*c}:{147+8*t+4*c}], v19, s[24:27], s63 offen offset:{t*2048+c*1024}')
    a('s_cmp_eq_u32 s55, 0')
    a(f's_cbranch_scc0 L_{name}_nz')
    for r in range(4): a(f'v_mov_b32 v{104+r}, 0')
    a('s_mov_b64 exec, s[66:67]')
    for q in range(4): a(f'buffer_store_dwordx4 v[104:107], v17, s[24:27], s63 offen offset:{q*1024}')
    a('s_mov_b64 exec, -1')
    a.label(f'L_{name}_nz')
    a('s_cmp_eq_u32 s56, 0')
    a(f's_cbranch_scc0 L_{name}_fin')
    a('v_mov_b32 v13, 0')
    a('v_cndmask_b32 v15, v13, v15, s[68:69]')
    a('v_cvt_pk_bf16_f32 v108, v15, v13')
    a('v_mov_b32 v109, 0'); a('v_mov_b32 v110, 0'); a('v_mov_b32 v111, 0')
    a('s_mov_b32 s70, 0x0000ffff')
    a('s_mov_b32 s71, 0x0000ffff')
    a('s_or_b64 s[70:71], s[70:71], s[66:67]')
    a('s_mov_b64 exec, s[70:71]')
    a(f's_mov_b32 s63, {64*1024}')
    a('buffer_store_dwordx4 v[108:111], v19, s[24:27], s63 offen')
    a('s_mov_b64 exec, -1')
    a.label(f'L_{name}_fin')
    if STAMPS: srd(a, 24, 46, WS_SIZE)
    stamp_flush(a, 4, 24, 32, 8, 0, vtmp=170, extra=78)
    a.label(f'L_{name}_end')
    a('s_endpgm')
    return 176

K2_SUM=131072
K2_CNT=K2_SUM+16384
K2_LDS=K2_CNT+64
def gen_k2(a, name):
    a.noload=False
    kernel_header(a, name)
    a('s_cmp_ge_u32 s2, 256')
    a(f's_cbranch_scc1 L_{name}_end')
    stamp(a,0)
    a('s_load_dwordx4 s[36:39], s[0:1], 8')
    a('s_load_dwordx2 s[46:47], s[0:1], 88')
    a('v_lshrrev_b32 v2, 6, v0')
    a('v_and_b32 v1, 63, v0')
    a('v_readfirstlane_b32 s32, v2')
    a('v_lshlrev_b32 v2, 4, v1')
    a('s_and_b32 s33, s2, 7')
    a('s_lshr_b32 s34, s2, 3')
    a('s_and_b32 s35, s34, 3')
    a('s_lshl_b32 s40, s33, 2')
    a('s_add_u32 s40, s40, s35')
    a('s_lshr_b32 s41, s2, 5')
    a('s_waitcnt lgkmcnt(0)')
    srd(a, 24, 46, WS_SIZE)
    a('s_cmp_ge_u32 s32, 8')
    a(f's_cbranch_scc1 L_{name}_fnet')
    Q=4; C=8; S=[24,40]; O=56; K=[72,76]; V0=[80,88]; V1=[84,92]; ADDR=96; IDX=3
    a('s_lshl_b32 s42, s41, 3')
    a('s_add_u32 s42, s42, s32')
    a('s_lshl_b32 s43, s40, 16')
    a('s_lshl_b32 s44, s42, 10')
    a('s_add_u32 s43, s43, s44')
    a(f'buffer_load_dwordx4 v[{Q}:{Q+3}], v2, s[24:27], s43 offen')
    a('s_lshl_b32 s43, s40, 17')
    a(f's_add_u32 s43, s43, {WS_KV}')
    a('s_lshl_b32 s44, s32, 11')
    if 'kvrot' in EXPT:
        a('s_lshl_b32 s46, s41, 3')
        a('s_add_u32 s46, s46, s32')
    else: a('s_mov_b32 s46, s32')
    for i in range(8):
        a(f's_add_u32 m0, s44, {i*8*2048}')
        a('s_and_b32 s46, s46, 63')
        a('s_lshl_b32 s45, s46, 11')
        a('s_add_u32 s45, s45, s43')
        a('buffer_load_dwordx4 v2, s[24:27], s45 offen lds')
        a('buffer_load_dwordx4 v2, s[24:27], s45 offen offset:1024 lds')
        a('s_add_u32 s46, s46, 8')
    a(f'v_mov_b32 v{IDX}, 0xdddddddd')
    if 'allones' in EXPT:
        for r in range(80,96): a(f'v_mov_b32 v{r}, 0x3f803f80')
    else:
        a('v_mov_b32 v97, 0')
        a('v_mov_b32 v98, 0x3f803f80')
        a('s_mov_b32 s52, 0x00110000')
        a('s_mov_b32 s53, 0x00110000')
        a('v_cndmask_b32 v97, v97, v98, s[52:53]')
        for r in range(80,96): a(f'v_mov_b32 v{r}, v97')
    a('s_mov_b32 s48, 0x0000ffff')
    a('s_mov_b32 s49, 0x0000ffff')
    a('s_mov_b32 s50, 0')
    a('s_cmp_lt_u32 s32, 4')
    a(f's_cselect_b32 s54, {PR[0]}, {PR[1]}')
    a(f's_cselect_b32 s55, {PR[2]}, {PR[3]}')
    a('s_setprio 2')
    a('s_waitcnt vmcnt(12)')
    a('s_barrier')
    stamp(a,1)
    a(f'ds_read_b128 v[{K[0]}:{K[0]+3}], v2')
    a('s_waitcnt lgkmcnt(0)')
    a(f'v_mfma_f32_32x32x16_bf16 v[{S[0]}:{S[0]+15}], v[{K[0]}:{K[0]+3}], v[{Q}:{Q+3}], 0')
    a('s_nop 15')
    s0=S[0]
    a(f'v_max3_f32 v97, v{s0}, v{s0+1}, v{s0+2}')
    for r in range(3,15,2): a(f'v_max3_f32 v97, v97, v{s0+r}, v{s0+r+1}')
    a(f'v_max_f32 v97, v97, v{s0+15}')
    a.label(f'L_{name}_havemax')
    a('v_mov_b32 v98, v97')
    a('s_nop 1')
    a('v_permlane32_swap_b32 v97, v98')
    a('s_nop 1')
    a('v_max_f32 v97, v97, v98')
    for r in range(16): a(f'v_sub_f32 v{C+r}, 0, v97')
    for r in range(16): a(f'v_mov_b32 v{O+r}, 0')
    for r in range(8,16): a(f'v_mov_b32 v{S[1]+r}, 0')
    a(f'v_mov_b32 v{ADDR}, v2')
    a(f'ds_read_b128 v[{K[0]}:{K[0]+3}], v2')
    a(f'ds_read_b128 v[{K[1]}:{K[1]+3}], v2 offset:2048')
    a('s_mov_b64 exec, s[48:49]')
    a(f'ds_read_b128 v[{V0[0]}:{V0[0]+3}], v2 offset:1024')
    a(f'ds_read_b128 v[{V1[0]}:{V1[0]+3}], v2 offset:1280')
    a('s_mov_b64 exec, -1')
    a('s_waitcnt lgkmcnt(0)')
    a(f'v_mfma_f32_32x32x16_bf16 v[{S[0]}:{S[0]+15}], v[{K[0]}:{K[0]+3}], v[{Q}:{Q+3}], v[{C}:{C+15}]')
    a('s_mov_b32 s51, 0')
    if STAMPS: a('s_memtime s[74:75]')
    a('s_nop 15')
    a.raw('.p2align 6')
    a.label(f'L_{name}_loop')
    for i in range(4):
        cur=S[i%2]; prev=S[(i+1)%2]
        def e(x,y):
            for j in range(x,y):
                if 'noexp' in EXPT: a(f'v_mov_b32 v{cur+j}, v{cur+j}')
                else: a(f'v_exp_f32 v{cur+j}, v{cur+j}')
        a('s_waitcnt lgkmcnt(0)')
        e(0,2)
        if 'nopv' not in EXPT: a(f'v_smfmac_f32_32x32x32_bf16 v[{O}:{O+15}], v[{V1[(i+1)%2]}:{V1[(i+1)%2]+3}], v[{prev+8}:{prev+15}], v{IDX}')
        a(f'ds_read_b128 v[{K[i%2]}:{K[i%2]+3}], v{ADDR} offset:{(i+2)*2048}')
        a('s_mov_b64 exec, s[48:49]')
        a(f'ds_read_b128 v[{V0[(i+1)%2]}:{V0[(i+1)%2]+3}], v{ADDR} offset:{(i+1)*2048+1024}')
        a(f'ds_read_b128 v[{V1[(i+1)%2]}:{V1[(i+1)%2]+3}], v{ADDR} offset:{(i+1)*2048+1280}')
        a('s_mov_b64 exec, -1')
        e(2,7)
        a(f'v_mfma_f32_32x32x16_bf16 v[{prev}:{prev+15}], v[{K[(i+1)%2]}:{K[(i+1)%2]+3}], v[{Q}:{Q+3}], v[{C}:{C+15}]')
        e(7,12)
        if 'nopv' not in EXPT: a(f'v_smfmac_f32_32x32x32_bf16 v[{O}:{O+15}], v[{V0[i%2]}:{V0[i%2]+3}], v[{cur}:{cur+7}], v{IDX}')
        e(12,16)
    a(f'v_add_u32 v{ADDR}, 8192, v{ADDR}')
    a('s_add_u32 s51, s51, 1')
    a('s_cmp_eq_u32 s51, 3')
    a(f's_cbranch_scc1 L_{name}_ev3')
    a('s_cmp_eq_u32 s51, s54')
    a(f's_cbranch_scc1 L_{name}_ev10')
    a('s_cmp_eq_u32 s51, s55')
    a(f's_cbranch_scc1 L_{name}_ev14')
    a('s_cmp_lt_u32 s51, 16')
    a(f's_cbranch_scc1 L_{name}_loop')
    a(f's_branch L_{name}_done')
    a.label(f'L_{name}_ev3')
    a('s_cmp_eq_u32 s50, 0')
    a(f's_cbranch_scc0 L_{name}_loop')
    stamp(a,3)
    a('s_waitcnt vmcnt(0)')
    a('s_barrier')
    stamp(a,4)
    a(f's_branch L_{name}_loop')
    a.label(f'L_{name}_ev10')
    stamp(a,5)
    a('s_setprio 1')
    a(f's_branch L_{name}_loop')
    a.label(f'L_{name}_ev14')
    a('s_setprio 0')
    a(f's_branch L_{name}_loop')
    a.label(f'L_{name}_done')
    a('s_nop 1')
    a(f'v_smfmac_f32_32x32x32_bf16 v[{O}:{O+15}], v[{V1[1]}:{V1[1]+3}], v[{S[1]+8}:{S[1]+15}], v{IDX}')
    a('s_waitcnt lgkmcnt(0)')
    a('s_nop 15')
    stamp(a,2)
    if STAMPS:
        a('s_memtime s[76:77]')
        a('s_waitcnt lgkmcnt(0)')
        a('s_sub_u32 s78, s76, s74')
    a(f's_mov_b32 s52, {hex(f2u(2.0**60))}')
    a(f'v_cmp_gt_f32 vcc, s52, v{O+8}')
    if 'nopv' in EXPT or 'noexp' in EXPT: a('s_mov_b32 s50, 1')
    a('s_nop 3')
    a('s_cmp_eq_u64 vcc, -1')
    a(f's_cbranch_scc1 L_{name}_ok')
    a('s_cmp_eq_u32 s50, 0')
    a(f's_cbranch_scc0 L_{name}_ok')
    a('s_mov_b32 s50, 1')
    a('s_setprio 2')
    a('v_mov_b32 v97, 0xff800000')
    a(f'v_mov_b32 v{ADDR}, v2')
    a('s_mov_b32 s51, 0')
    a.label(f'L_{name}_fb')
    a(f'ds_read_b128 v[{K[0]}:{K[0]+3}], v{ADDR}')
    a('s_waitcnt lgkmcnt(0)')
    a(f'v_mfma_f32_32x32x16_bf16 v[{S[0]}:{S[0]+15}], v[{K[0]}:{K[0]+3}], v[{Q}:{Q+3}], 0')
    a('s_nop 15')
    for r in range(0,16,2): a(f'v_max3_f32 v97, v97, v{s0+r}, v{s0+r+1}')
    a(f'v_add_u32 v{ADDR}, 2048, v{ADDR}')
    a('s_add_u32 s51, s51, 1')
    a('s_cmp_lt_u32 s51, 64')
    a(f's_cbranch_scc1 L_{name}_fb')
    a(f's_branch L_{name}_havemax')
    a.label(f'L_{name}_ok')
    a(f'v_rcp_f32 v97, v{O+8}')
    a('s_nop 0')
    for r in range(8): a(f'v_mul_f32 v{O+r}, v97, v{O+r}')
    for q in range(4): a(f'v_cvt_pk_bf16_f32 v{100+q}, v{O+2*q}, v{O+2*q+1}')
    a('s_lshl_b32 s43, s42, 15')
    a('s_lshl_b32 s44, s40, 10')
    a('s_add_u32 s43, s43, s44')
    a(f's_add_u32 s43, s43, {WS_O}')
    a('buffer_store_dwordx4 v[100:103], v2, s[24:27], s43 offen')
    a(f's_branch L_{name}_fin')

    a.label(f'L_{name}_fnet')
    a('s_setprio 3')
    a('s_sub_u32 s35, s32, 8')
    srd(a, 8, 36, 0x800000)
    srd(a, 12, 38, 0x800000)
    for r in range(4,8): a(f'v_mov_b32 v{r}, 0')
    a(f'v_mov_b32 v8, {K2_CNT}')
    a('ds_write_b128 v8, v[4:7]')
    a('s_waitcnt lgkmcnt(0)')
    a('s_barrier')
    stamp(a,1)
    if NOFNET:
        a('s_barrier')
        a(f's_branch L_{name}_fin')
    a('v_and_b32 v9, 31, v1')
    a('v_lshrrev_b32 v10, 5, v1')
    stamp(a,2)
    a('s_mov_b32 s60, 0')
    a('s_mov_b32 s61, 0')
    a('s_lshr_b32 s62, s35, 1')
    a('s_and_b32 s63, s35, 1')
    a('s_cmp_eq_u32 s62, 0')
    a('s_cselect_b32 s16, s8, s12')
    a('s_cselect_b32 s17, s9, s13')
    a('s_mov_b32 s18, 0x800000')
    a('s_mov_b32 s19, 0x20000')
    a.label(f'L_{name}_job')
    a('s_cmp_eq_u32 s60, 0')
    a(f's_cbranch_scc1 L_{name}_dojob')
    a('s_mov_b32 s16, s8')
    a('s_mov_b32 s17, s9')
    a('s_mov_b32 s62, 0')
    a.label(f'L_{name}_dojob')
    a('s_lshl_b32 s42, s40, 5')
    a('v_add_u32 v11, s42, v9')
    a('v_lshlrev_b32 v11, 12, v11')
    a('v_lshl_add_u32 v11, v10, 4, v11')
    if FAKEA: a('v_mov_b32 v11, v2')
    a(f's_mul_i32 s43, s41, {T1_ET}')
    a(f's_add_u32 s43, s43, {WS_T1}')
    a(f's_lshl_b32 s44, s41, 16')
    a(f's_add_u32 s44, s44, {WS_T2}')
    a('s_cmp_eq_u32 s62, 0')
    a('s_cselect_b32 s43, s43, s44')
    a('s_lshl_b32 s45, s63, 5')
    a('s_lshl_b32 s46, s35, 4')
    a('s_cmp_eq_u32 s60, 0')
    a('s_cselect_b32 s49, s45, s46')
    a('s_lshl_b32 s45, s49, 10')
    a('s_add_u32 s43, s43, s45')
    a('s_lshl_b32 s45, s49, 5')
    ACCF=16
    for r in range(16): a(f'v_mov_b32 v{ACCF+r}, 0')
    SET=[32,96]
    def issue(setb, k0):
        for k in range(8):
            ra=setb+8*k
            a(f'buffer_load_dwordx4 v[{ra}:{ra+3}], v11, s[16:19], s45 offen offset:{(k0+k)*32}')
            a(f's_add_u32 s46, s43, {(k0+k)*1024}')
            a(f'buffer_load_dwordx4 v[{ra+4}:{ra+7}], v2, s[24:27], s46 offen')
    def mm(setb, first_wait):
        for k in range(8):
            ra=setb+8*k
            a(f's_waitcnt vmcnt({first_wait-2*k-2})')
            a(f'v_mfma_f32_32x32x16_bf16 v[{ACCF}:{ACCF+15}], v[{ra}:{ra+3}], v[{ra+4}:{ra+7}], v[{ACCF}:{ACCF+15}]')
    issue(SET[0],0)
    a('s_cmp_eq_u32 s61, 0')
    a(f's_cbranch_scc0 L_{name}_nob2')
    a('s_mov_b32 s61, 1')
    stamp(a,3)
    a('s_barrier')
    stamp(a,4)
    a.label(f'L_{name}_nob2')
    issue(SET[1],8)
    a('s_cmp_eq_u32 s60, 0')
    a(f's_cbranch_scc0 L_{name}_short')
    mm(SET[0],32)
    issue(SET[0],16)
    mm(SET[1],32)
    issue(SET[1],24)
    a(f's_add_u32 s43, s43, {16*1024}')
    a.label(f'L_{name}_short')
    mm(SET[0],32)
    mm(SET[1],16)
    a('s_cmp_eq_u32 s60, 0')
    a('s_cselect_b32 s46, 1, 3')
    a('s_cmp_eq_u32 s35, s46')
    a(f's_cbranch_scc0 L_{name}_nox')
    a('s_mov_b32 s45, 2048')
    a(f'buffer_load_dwordx4 v[32:35], v11, s[16:19], s45 offen')
    a(f's_add_u32 s46, s43, {16*1024}')
    a(f'buffer_load_dwordx4 v[36:39], v2, s[24:27], s46 offen')
    a('s_waitcnt vmcnt(0)')
    a(f'v_mfma_f32_32x32x16_bf16 v[{ACCF}:{ACCF+15}], v[32:35], v[36:39], v[{ACCF}:{ACCF+15}]')
    a.label(f'L_{name}_nox')
    a('s_nop 15')
    a('s_cmp_eq_u32 s60, 0')
    a(f's_cbranch_scc1 L_{name}_nospin')
    a(f'v_mov_b32 v12, {K2_CNT+8}')
    a.label(f'L_{name}_spin')
    a('ds_read_b32 v13, v12')
    a('s_waitcnt lgkmcnt(0)')
    a('v_readfirstlane_b32 s47, v13')
    a('s_nop 3')
    a('s_cmp_eq_u32 s47, 0')
    a(f's_cbranch_scc0 L_{name}_nospin')
    a('s_sleep 2')
    a(f's_branch L_{name}_spin')
    a.label(f'L_{name}_nospin')
    a('s_lshl_b32 s45, s35, 12')
    a(f's_add_u32 s45, s45, {K2_SUM}')
    a('v_add_u32 v12, s45, v2')
    for g in range(4): a(f'ds_write_b128 v12, v[{ACCF+4*g}:{ACCF+4*g+3}] offset:{g*1024}')
    stamp(a,5)
    a('s_waitcnt lgkmcnt(0)')
    a('s_lshl_b32 s45, s60, 2')
    a(f's_add_u32 s45, s45, {K2_CNT}')
    a('v_mov_b32 v12, s45')
    a('v_mov_b32 v13, 1')
    a('s_mov_b64 exec, 1')
    a('ds_add_rtn_u32 v14, v12, v13')
    a('s_waitcnt lgkmcnt(0)')
    a('s_mov_b64 exec, -1')
    a('v_readfirstlane_b32 s47, v14')
    a('s_nop 3')
    a('s_cmp_eq_u32 s47, 3')
    a(f's_cbranch_scc0 L_{name}_nextjob')
    a(f'v_add_u32 v12, {K2_SUM}, v2')
    for g in range(4): a(f'ds_read_b128 v[{32+4*g}:{35+4*g}], v12 offset:{g*1024}')
    for g in range(4): a(f'ds_read_b128 v[{80+4*g}:{83+4*g}], v12 offset:{4096+g*1024}')
    for g in range(4): a(f'ds_read_b128 v[{48+4*g}:{51+4*g}], v12 offset:{8192+g*1024}')
    a('s_waitcnt lgkmcnt(8)')
    for g in range(4): a(f'ds_read_b128 v[{96+4*g}:{99+4*g}], v12 offset:{12288+g*1024}')
    a('s_waitcnt lgkmcnt(0)')
    a(f'v_mov_b32 v12, {K2_CNT+8}')
    a('v_mov_b32 v13, 1')
    a('ds_write_b32 v12, v13')
    for r in range(16): a(f'v_add_f32 v{48+r}, v{48+r}, v{96+r}')
    for r in range(16): a(f'v_add_f32 v{32+r}, v{32+r}, v{80+r}')
    a('s_cmp_eq_u32 s60, 0')
    a(f's_cbranch_scc1 L_{name}_haveq')
    for r in range(16):
        a(f'v_add_f32 v{32+r}, v{32+r}, v{48+r}')
        a(f'v_mov_b32 v{48+r}, 0')
    a.label(f'L_{name}_haveq')
    for r in range(16):
        a(f'v_sub_f32 v{64+r}, v{32+r}, v{48+r}')
        a(f'v_add_f32 v{32+r}, v{32+r}, v{48+r}')
        a(f'v_cvt_pk_bf16_f32 v{64+r}, v{64+r}, v{32+r}')
    a(f's_add_u32 s20, s24, {WS_Y}')
    a('s_addc_u32 s21, s25, 0')
    a('s_mov_b32 s22, 0x200000')
    a('s_mov_b32 s23, 0x20000')
    a('s_lshl_b32 s42, s41, 5')
    a('v_add_u32 v13, s42, v9')
    a('v_lshlrev_b32 v14, 1, v13')
    a('v_sub_u32 v15, 1024, v14')
    a('v_mov_b32 v8, 0x40000000')
    a('v_cmp_eq_u32 vcc, 0, v13')
    a('s_nop 1')
    a('v_cndmask_b32 v15, v15, v8, vcc')
    a('v_cmp_lt_u32 vcc, 256, v13')
    a('s_nop 1')
    a('v_cndmask_b32 v14, v14, v8, vcc')
    a('v_cndmask_b32 v15, v15, v8, vcc')
    a('s_lshl_b32 s42, s40, 5')
    a('v_lshlrev_b32 v12, 2, v10')
    a('v_add_u32 v12, s42, v12')
    a('v_lshlrev_b32 v4, 10, v12')
    a('v_sub_u32 v5, 2048-27, v12')
    a('v_lshlrev_b32 v5, 10, v5')
    a('v_add_u32 v6, v4, v14')
    a('v_add_u32 v7, v5, v15')
    a('v_add_u32 v16, v5, v14')
    a('v_add_u32 v17, v4, v15')
    a('s_cmp_eq_u32 s40, 32')
    a(f's_cbranch_scc1 L_{name}_t32')
    for r in range(16):
        rr=(r%4)+8*(r//4)
        a(f's_mov_b32 s42, {rr*1024}')
        a(f's_mov_b32 s43, {(27-rr)*1024}')
        a(f'buffer_store_short v{64+r}, v6, s[20:23], s42 offen')
        a(f'buffer_store_short v{64+r}, v7, s[20:23], s43 offen')
        a(f'buffer_store_short_d16_hi v{64+r}, v16, s[20:23], s43 offen')
        a(f'buffer_store_short_d16_hi v{64+r}, v17, s[20:23], s42 offen')
    a(f's_branch L_{name}_nextjob')
    a.label(f'L_{name}_t32')
    a('s_mov_b32 exec_hi, 0')
    a('buffer_store_short v64, v6, s[20:23], 0 offen')
    a('buffer_store_short_d16_hi v64, v17, s[20:23], 0 offen')
    a('s_mov_b64 exec, -1')
    a.label(f'L_{name}_nextjob')
    a('s_add_u32 s60, s60, 1')
    a('s_cmp_eq_u32 s60, 1')
    a(f's_cbranch_scc0 L_{name}_fin')
    a('s_cmp_lt_u32 s2, 41')
    a(f's_cbranch_scc0 L_{name}_fin')
    a('s_sub_u32 s42, s2, 9')
    a('s_cmp_lt_u32 s2, 9')
    a('s_cselect_b32 s40, 32, s42')
    a('s_cselect_b32 s41, s2, 8')
    a(f's_branch L_{name}_job')
    a.label(f'L_{name}_fin')
    stamp_flush(a, 6, 24, 32, 12, 1, vtmp=104, extra=78)
    a.label(f'L_{name}_end')
    a('s_endpgm')
    return 168


K3_X=65536
K3_LDS=K3_X+16384
def gen_k3(a, name):
    a.stflag=''
    kernel_header(a, name)
    a('s_cmp_ge_u32 s2, 256')
    a(f's_cbranch_scc1 L_{name}_end')
    stamp(a,0)
    a('s_load_dwordx2 s[36:37], s[0:1], 56')
    a('s_load_dwordx2 s[38:39], s[0:1], 72')
    a('s_load_dwordx2 s[46:47], s[0:1], 88')
    a('v_lshrrev_b32 v2, 6, v0')
    a('v_and_b32 v1, 63, v0')
    a('v_readfirstlane_b32 s32, v2')
    a('v_lshlrev_b32 v2, 4, v1')
    a('s_and_b32 s33, s2, 7')
    a('s_lshr_b32 s34, s2, 3')
    a('s_and_b32 s35, s34, 3')
    a('s_lshl_b32 s40, s33, 2')
    a('s_add_u32 s40, s40, s35')
    a('s_lshr_b32 s41, s2, 5')
    a('s_and_b32 s42, s32, 1')
    a('s_lshr_b32 s43, s32, 1')
    a('s_lshl_b32 s44, s40, 1')
    a('s_add_u32 s44, s44, s42')
    a('s_add_u32 s50, s41, s35')
    a('s_and_b32 s50, s50, 3')
    a('v_lshrrev_b32 v3, 3, v1')
    a('v_bfe_u32 v4, v1, 4, 1')
    a('v_lshlrev_b32 v4, 2, v4')
    a('v_and_b32 v5, 7, v1')
    a('v_xor_b32 v4, v4, v5')
    a('v_lshlrev_b32 v4, 4, v4')
    a('v_lshl_add_u32 v3, v3, 10, v4')
    a('s_lshl_b32 s45, s43, 8')
    a('s_lshl_b32 s48, s42, 5')
    a('s_add_u32 s45, s45, s48')
    a('s_lshl_b32 s48, s41, 7')
    a('s_lshl_b32 s51, s44, 15')
    a('s_lshl_b32 s52, s43, 14')
    a('s_add_u32 s51, s51, s52')
    a(f's_add_u32 s51, s51, {WS_O}')
    a('s_waitcnt lgkmcnt(0)')
    srd(a, 8, 36, 0x80000)
    srd(a, 24, 46, WS_SIZE)
    OF=32
    def issue(st):
        a(f's_add_u32 s53, s50, {st}')
        a('s_and_b32 s53, s53, 3')
        a('s_lshl_b32 s54, s53, 6')
        a('s_add_u32 s54, s54, s45')
        a('s_lshl_b32 s55, s54, 7')
        a('s_lshl_b32 s56, s54, 10')
        a('s_add_u32 s56, s56, s48')
        for i in range(4):
            a(f's_add_u32 m0, s55, {i*1024}')
            a(f's_add_u32 s57, s56, {i*8192}')
            a('buffer_load_dwordx4 v3, s[8:11], s57 offen lds')
        a('s_lshl_b32 s56, s53, 12')
        a('s_add_u32 s56, s56, s51')
        for i in range(4):
            a(f'buffer_load_dwordx4 v[{OF+16*st+4*i}:{OF+16*st+4*i+3}], v2, s[24:27], s56 offen offset:{i*1024}')
    issue(0); issue(1)
    srd(a, 12, 38, 0x200000)
    a('v_and_b32 v8, 31, v1')
    a('v_lshrrev_b32 v9, 5, v1')
    a('s_lshl_b32 s58, s44, 5')
    a('v_add_u32 v10, s58, v8')
    a('v_sub_u32 v11, 3072, v10')
    a('v_mov_b32 v12, 1024')
    a('v_cmp_eq_u32 vcc, 1024, v10')
    a('s_nop 1')
    a('v_cndmask_b32 v11, v11, v12, vcc')
    a('v_cmp_gt_u32 vcc, 1024, v10')
    a('s_nop 1')
    a('v_cndmask_b32 v10, v11, v10, vcc')
    a('v_lshlrev_b32 v11, 10, v10')
    a('v_lshl_add_u32 v11, v9, 3, v11')
    a('s_lshl_b32 s58, s41, 7')
    a('s_lshl_b32 s59, s43, 6')
    a('s_add_u32 s58, s58, s59')
    a('v_add_u32 v11, s58, v11')
    a('v_lshlrev_b32 v13, 2, v10')
    a('v_bfe_u32 v5, v1, 2, 2')
    a('v_lshl_add_u32 v6, v9, 2, v5')
    a('v_lshlrev_b32 v6, 7, v6')
    a('v_bfe_u32 v7, v1, 3, 1')
    a('v_lshlrev_b32 v7, 6, v7')
    a('v_bfe_u32 v12, v1, 4, 1')
    a('v_lshl_add_u32 v6, v12, 5, v6')
    a('v_bfe_u32 v12, v1, 1, 1')
    a('v_lshl_add_u32 v6, v12, 4, v6')
    a('v_and_b32 v12, 1, v1')
    a('v_lshl_add_u32 v6, v12, 3, v6')
    a('v_add_u32 v14, v6, v7')
    a('s_lshl_b32 s58, s43, 15')
    a('v_add_u32 v14, s58, v14')
    ACC=[16,112]
    FW=[128,136]
    stamp(a,1)
    first=True
    waits={0:8, 1:8, 2:13, 3:5}
    for st in range(4):
        a(f's_add_u32 s53, s50, {st}')
        a('s_and_b32 s53, s53, 3')
        a('s_lshl_b32 s53, s53, 13')
        a('v_add_u32 v6, s53, v14')
        a('v_xor_b32 v7, 64, v6')
        a(f's_waitcnt vmcnt({waits[st]})')
        a('s_barrier')
        if st==0: stamp(a,2)
        def reads(i):
            s_=i%2
            for j in range(2):
                a(f'ds_read_b64_tr_b16 v[{FW[s_]+4*j}:{FW[s_]+4*j+1}], v{6+j} offset:{i*2048}')
                a(f'ds_read_b64_tr_b16 v[{FW[s_]+4*j+2}:{FW[s_]+4*j+3}], v{6+j} offset:{i*2048+1024}')
        reads(0)
        if st==0: issue(2)
        if st==1:
            issue(3)
            a(f's_mov_b32 s59, {WS_Y}')
            for b in range(4): a(f'buffer_load_dwordx2 v[{96+2*b}:{97+2*b}], v11, s[24:27], s59 offen offset:{b*16}')
            a(f's_mov_b32 s59, {WS_G}')
            a('buffer_load_dword v104, v13, s[24:27], s59 offen')
        for i in range(4):
            if i<3: reads(i+1); a('s_waitcnt lgkmcnt(4)')
            else: a('s_waitcnt lgkmcnt(0)')
            s_=i%2
            for j in range(2):
                c = '0' if first else f'v[{ACC[j]}:{ACC[j]+15}]'
                a(f'v_mfma_f32_32x32x16_bf16 v[{ACC[j]}:{ACC[j]+15}], v[{FW[s_]+4*j}:{FW[s_]+4*j+3}], v[{OF+16*st+4*i}:{OF+16*st+4*i+3}], {c}')
            first=False
    stamp(a,3)
    a('s_lshl_b32 s48, s42, 13')
    a('s_xor_b32 s49, s43, 1')
    a('s_lshl_b32 s49, s49, 12')
    a('s_add_u32 s49, s49, s48')
    a(f's_add_u32 s49, s49, {K3_X}')
    a('v_add_u32 v5, s49, v2')
    a('s_lshl_b32 s49, s43, 12')
    a('s_add_u32 s49, s49, s48')
    a(f's_add_u32 s49, s49, {K3_X}')
    a('v_add_u32 v6, s49, v2')
    a('s_nop 7')
    a('s_cmp_eq_u32 s43, 0')
    a(f's_cbranch_scc0 L_{name}_kw1')
    for g in range(4): a(f'ds_write_b128 v5, v[{ACC[1]+4*g}:{ACC[1]+4*g+3}] offset:{g*1024}')
    a(f's_branch L_{name}_x')
    a.label(f'L_{name}_kw1')
    for g in range(4): a(f'ds_write_b128 v5, v[{ACC[0]+4*g}:{ACC[0]+4*g+3}] offset:{g*1024}')
    a('s_nop 1')
    for r in range(16): a(f'v_mov_b32 v{ACC[0]+r}, v{ACC[1]+r}')
    a.label(f'L_{name}_x')
    a('s_waitcnt vmcnt(0) lgkmcnt(0)')
    a('s_barrier')
    for g in range(4): a(f'ds_read_b128 v[{32+4*g}:{35+4*g}], v6 offset:{g*1024}')
    a('v_sub_f32 v105, 1.0, v104')
    for b in range(4):
        for q in range(2):
            src=96+2*b+q
            a(f'v_lshlrev_b32 v{48+4*b+2*q}, 16, v{src}')
            a(f'v_and_b32 v{48+4*b+2*q+1}, 0xffff0000, v{src}')
    for r in range(16): a(f'v_mul_f32 v{48+r}, v104, v{48+r}')
    a('s_waitcnt lgkmcnt(0)')
    for r in range(16):
        a(f'v_add_f32 v{16+r}, v{16+r}, v{32+r}')
    for r in range(16):
        a(f'v_fmac_f32 v{48+r}, v105, v{16+r}')
    for b in range(4):
        a(f'v_cvt_pk_bf16_f32 v{64+2*b}, v{48+4*b}, v{48+4*b+1}')
        a(f'v_cvt_pk_bf16_f32 v{65+2*b}, v{48+4*b+2}, v{48+4*b+3}')
    for b in range(4):
        a(f'buffer_store_dwordx2 v[{64+2*b}:{65+2*b}], v11, s[12:15], 0 offen offset:{b*16}')
    stamp_flush(a, 4, 24, 32, 4, 2, vtmp=106)
    a.label(f'L_{name}_end')
    a('s_endpgm')
    return 144

def build(kernels):
    a=Asm()
    hdr = """; Kernarg layout (96 bytes): A_x, dft_seq_re, dft_seq_im, dft_hid_re, dft_hid_im, B_x, wqkv, wo, gate_w, out, debug, ws
"""
    descs=''
    body=Asm()
    for (name, fn, grid, block, lds) in kernels:
        hdr += f'; @launch kernel={name} grid=({grid},1,1) block=({block},1,1) lds={lds}\n'
    body.raw('.amdgcn_target "amdgcn-amd-amdhsa--gfx950"')
    body.raw('.text')
    for (name, fn, grid, block, lds) in kernels:
        v=fn(body,name)
        descs += kernel_desc(name, v)
    return hdr + body.text() + '.section .rodata,"a"\n' + descs

if __name__=='__main__':
    which = sys.argv[1] if len(sys.argv)>1 else 'k1'
    ks=[]
    ks.append(('k1_qkv_kernel', gen_k1, 256, 512, K1_LDS))
    if which in ('k2','all'): ks.append(('k2_attn_kernel', gen_k2, 256, 768, K2_LDS))
    if which=='all': ks.append(('k3_out_kernel', gen_k3, 256, 256, K3_LDS))
    txt=build(ks)
    out = sys.argv[2] if len(sys.argv)>2 else 'out.s'
    open(out,'w').write(txt)
```

```python
import sys, os
NAME='gated_mix__spectral_fnet__mha_block__prompt'
WS_Q=0; WS_KV=0x200000; WS_O=0x600000; WS_Y=0x800000; WS_T1=0xA00000; WS_T2=0xB00000; WS_G=0xC00000
WS_FLAG=0xC80000
WS_SIZE=0xD00000
YQ_PITCH=576; YQ_SZ=0x98000
T1_ET=65*1024; T2_ET=64*1024
C_SCALE=0.25*1.4426950408889634
import struct
def f2u(x): return struct.unpack('<I',struct.pack('<f',x))[0]

STAMPS = os.environ.get('STAMPS','0')=='1'
NOFNET = os.environ.get('NOFNET','0')=='1'
NOPRIO = os.environ.get('NOPRIO','0')=='1'
FAKEA = os.environ.get('FAKEA','0')=='1'
EXPT = os.environ.get('EXPT','')
PR = [int(x) for x in os.environ.get('PR','9,10,15,63').split(',')]
class Asm:
    def __init__(self): self.L=[]; self.noload=False; self.stflag=''
    def __call__(self, s):
        for line in s.strip('\n').split('\n'):
            if self.noload and line.strip().endswith(' lds'): continue
            if NOPRIO and line.strip().startswith('s_setprio'): continue
            if line.strip().startswith('buffer_store_dwordx4') and self.stflag:
                if self.stflag=='none': continue
                line = line.strip()+' '+self.stflag
            self.L.append('    '+line.strip())
    def label(self, s): self.L.append(s+':')
    def raw(self, s): self.L.append(s)
    def text(self): return '\n'.join(self.L)+'\n'

def srd(a, d, lo, size):
    a(f's_mov_b32 s{d}, s{lo}')
    a(f's_mov_b32 s{d+1}, s{lo+1}')
    a(f's_mov_b32 s{d+2}, {hex(size)}')
    a(f's_mov_b32 s{d+3}, 0x20000')

def pi_perm(a, dst, src, tmp):
    a(f'v_and_b32 v{dst}, 0x13, v{src}')
    a(f'v_and_b32 v{tmp}, 4, v{src}')
    a(f'v_lshl_or_b32 v{dst}, v{tmp}, 1, v{dst}')
    a(f'v_and_b32 v{tmp}, 8, v{src}')
    a(f'v_lshrrev_b32 v{tmp}, 1, v{tmp}')
    a(f'v_or_b32 v{dst}, v{dst}, v{tmp}')

WS_STAMP=0x1000000
def stamp(a, i):
    if STAMPS:
        a(f's_memrealtime s[{80+2*i}:{81+2*i}]')
def stamp_flush(a, n, wsreg, widreg, wpw, kidx, vtmp=100, extra=None):
    if not STAMPS: return
    a('s_waitcnt vmcnt(0) lgkmcnt(0)')
    a(f's_memrealtime s[{80+2*n}:{81+2*n}]')
    a('s_waitcnt lgkmcnt(0)')
    a(f's_mul_i32 s98, s2, {wpw}')
    a(f's_add_u32 s98, s98, s{widreg}')
    a('s_lshl_b32 s98, s98, 5')
    a(f's_add_u32 s98, s98, {WS_STAMP+kidx*0x40000}')
    a(f's_mov_b32 s{wsreg+2}, 0x2000000')
    a('s_mov_b64 exec, 1')
    a(f'v_mov_b32 v{vtmp+1}, 0')
    for i in range(n+1):
        a(f'v_mov_b32 v{vtmp}, s{80+2*i}')
        a(f'buffer_store_dword v{vtmp}, v{vtmp+1}, s[{wsreg}:{wsreg+3}], s98 offen offset:{4*i}')
        a('s_nop 1')
    if extra is not None:
        a(f'v_mov_b32 v{vtmp}, s{extra}')
        a(f'buffer_store_dword v{vtmp}, v{vtmp+1}, s[{wsreg}:{wsreg+3}], s98 offen offset:28')

def kernel_header(a, name):
    a.raw(f'.globl {name}')
    a.raw('.p2align 8')
    a.raw(f'.type {name},@function')
    a.label(name)

def kernel_desc(name, vgpr, sgpr=102):
    acc = (vgpr+3)//4*4
    return f""".p2align 6
.amdhsa_kernel {name}
  .amdhsa_next_free_vgpr {vgpr}
  .amdhsa_next_free_sgpr {sgpr}
  .amdhsa_accum_offset {acc}
  .amdhsa_group_segment_fixed_size 0
  .amdhsa_kernarg_size 96
  .amdhsa_user_sgpr_count 2
  .amdhsa_user_sgpr_kernarg_segment_ptr 1
  .amdhsa_system_sgpr_workgroup_id_x 1
.end_amdhsa_kernel
"""

K1_SLOT=32768
K1_NS=4
K1_X=0; K1_WQK=16384; K1_WV=24576; K1_WD=28672
K1_LDS=K1_NS*K1_SLOT

def gen_k1(a, name):
    NS=K1_NS
    a.noload = 'noload' in EXPT
    a.stflag = 'sc1' if 'st_sc1' in EXPT else 'nt' if 'st_nt' in EXPT else 'none' if 'st_none' in EXPT else 'sc0 sc1' if 'st_sc01' in EXPT else '' if 'st_plain' in EXPT else 'sc1'
    kernel_header(a, name)
    a('s_cmp_ge_u32 s2, 256')
    a(f's_cbranch_scc1 L_{name}_end')
    stamp(a,0)
    a('s_load_dwordx2 s[4:5], s[0:1], 0')
    a('s_load_dwordx4 s[36:39], s[0:1], 24')
    a('s_load_dwordx2 s[42:43], s[0:1], 48')
    a('s_load_dwordx2 s[44:45], s[0:1], 64')
    a('s_load_dwordx2 s[46:47], s[0:1], 88')
    a('v_lshrrev_b32 v2, 6, v0')
    a('v_and_b32 v1, 63, v0')
    a('v_readfirstlane_b32 s32, v2')
    a('s_and_b32 s33, s2, 7')
    a('s_lshr_b32 s34, s2, 3')
    a('s_lshr_b32 s54, s33, 1')
    a('s_lshl_b32 s54, s54, 2')
    a('s_and_b32 s55, s34, 3')
    a('s_add_u32 s54, s54, s55')
    a('s_and_b32 s55, s33, 1')
    a('s_lshl_b32 s55, s55, 3')
    a('s_lshr_b32 s56, s34, 2')
    a('s_add_u32 s55, s55, s56')
    a('s_cmp_lt_u32 s32, 4')
    a(f's_cbranch_scc1 L_{name}_comp')
    a('s_sub_u32 s35, s32, 4')
    a('v_lshrrev_b32 v2, 3, v1')
    a('v_and_b32 v3, 7, v1')
    a('v_lshrrev_b32 v4, 4, v1')
    a('v_xor_b32 v5, v3, v4')
    a('v_lshlrev_b32 v5, 4, v5')
    a('s_lshl_b32 s56, s54, 6')
    a('s_and_b32 s57, s35, 1')
    a('s_lshl_b32 s58, s57, 5')
    a('s_add_u32 s56, s56, s58')
    a('v_add_u32 v11, s56, v2')
    a('s_cmp_lt_u32 s35, 2')
    a(f's_cbranch_scc0 L_{name}_mir')
    a('v_lshl_add_u32 v16, v11, 10, v5')
    a('v_add_u32 v17, 8192, v16')
    a('v_add_u32 v18, 16384, v16')
    a('v_add_u32 v19, 24576, v16')
    a(f's_branch L_{name}_mird')
    a.label(f'L_{name}_mir')
    a('v_sub_u32 v12, 2048, v11')
    a('v_lshl_add_u32 v16, v12, 10, v5')
    a('v_subrev_u32 v17, 8192, v16')
    a('v_subrev_u32 v18, 16384, v16')
    a('v_subrev_u32 v19, 24576, v16')
    a('v_cmp_eq_u32 vcc, 2048, v12')
    a('v_subrev_u32 v13, 0x100000, v16')
    a('s_nop 0')
    a('v_cndmask_b32 v16, v16, v13, vcc')
    a.label(f'L_{name}_mird')
    a('v_xor_b32 v17, 64, v17')
    a('v_xor_b32 v19, 64, v19')
    a('v_bfe_u32 v6, v1, 4, 1')
    a('v_lshlrev_b32 v6, 2, v6')
    a('v_xor_b32 v6, v6, v3')
    a('v_lshlrev_b32 v6, 4, v6')
    a('v_mul_u32_u24 v7, 3072, v2')
    a('v_add_u32 v6, v6, v7')
    a('s_lshl_b32 s58, s55, 7')
    a('v_add_u32 v20, s58, v6')
    a('v_add_u32 v21, 8*3072, v20')
    a('v_lshrrev_b32 v6, 2, v1')
    a('v_mul_u32_u24 v6, 3072, v6')
    a('v_and_b32 v7, 3, v1')
    a('v_lshl_add_u32 v6, v7, 4, v6')
    a('s_lshl_b32 s58, s55, 6')
    a('s_add_u32 s58, s58, 2048')
    a('v_add_u32 v22, s58, v6')
    a('s_lshl_b32 s56, s55, 4')
    a('s_lshl_b32 s58, s57, 3')
    a('s_add_u32 s56, s56, s58')
    a('v_add_u32 v11, s56, v2')
    a('v_lshl_add_u32 v23, v11, 10, v5')
    a('s_lshl_b32 s58, s57, 6')
    a('v_xor_b32 v23, s58, v23')
    a('s_mul_i32 s71, s35, 16*3072')
    if 'norot' in EXPT: a('s_mov_b32 s70, 0')
    else:
        a('s_lshr_b32 s70, s34, 2')
        a('s_and_b32 s72, s34, 3')
        a('s_lshl_b32 s72, s72, 1')
        a('s_add_u32 s70, s70, s72')
        a('s_and_b32 s70, s70, 7')
    a('s_lshl_b32 s56, s70, 7')
    a(f's_mul_i32 s57, s70, {64*3072}')
    a('s_add_u32 s57, s57, s71')
    a('s_lshl_b32 s61, s35, 12')
    a('s_lshl_b32 s62, s35, 11')
    a(f's_add_u32 s62, s62, {K1_WQK}')
    a('s_lshl_b32 s63, s35, 10')
    a(f's_add_u32 s64, s63, {K1_WV}')
    a(f's_add_u32 s63, s63, {K1_WD}')
    a('s_waitcnt lgkmcnt(0)')
    srd(a, 8, 4, 0x200000)
    srd(a, 16, 42, 0x180000)
    a('s_cmp_lt_u32 s35, 2')
    a('s_cselect_b32 s20, s36, s38')
    a('s_cselect_b32 s21, s37, s39')
    a('s_mov_b32 s22, 0x80000')
    a('s_mov_b32 s23, 0x20000')
    a('s_mov_b32 s52, 0')
    a('s_mov_b32 s50, 0')
    a.label(f'L_{name}_issue')
    a('s_add_u32 s65, s52, s61')
    for i in range(4):
        a(f's_add_u32 m0, s65, {i*1024}')
        a('s_nop 0')
        a(f'buffer_load_dwordx4 v{16+i}, s[8:11], s56 offen lds')
    a('s_add_u32 s65, s52, s62')
    for i in range(2):
        a(f's_add_u32 m0, s65, {i*1024}')
        a('s_nop 0')
        a(f'buffer_load_dwordx4 v{20+i}, s[16:19], s57 offen lds')
    a('s_add_u32 m0, s52, s64')
    a('s_nop 0')
    a(f'buffer_load_dwordx4 v22, s[16:19], s57 offen lds')
    a('s_add_u32 m0, s52, s63')
    a('s_add_u32 s70, s70, 1')
    a(f'buffer_load_dwordx4 v23, s[20:23], s56 offen lds')
    a('s_and_b32 s70, s70, 7')
    a('s_lshl_b32 s56, s70, 7')
    a(f's_mul_i32 s57, s70, {64*3072}')
    a('s_add_u32 s57, s57, s71')
    a(f's_add_u32 s52, s52, {K1_SLOT}')
    a(f's_cmp_eq_u32 s52, {NS*K1_SLOT}')
    a('s_cselect_b32 s52, 0, s52')
    a('s_add_u32 s50, s50, 1')
    a('s_cmp_lt_u32 s50, 2')
    a(f's_cbranch_scc1 L_{name}_issue')
    if STAMPS:
        a('s_cmp_eq_u32 s50, 2')
        a(f's_cbranch_scc0 L_{name}_ns1')
        stamp(a,1)
        a.label(f'L_{name}_ns1')
    a('s_cmp_eq_u32 s50, 8')
    a(f's_cbranch_scc1 L_{name}_ld8')
    a('s_waitcnt vmcnt(8)')
    a('s_barrier')
    if STAMPS:
        a('s_cmp_eq_u32 s50, 2')
        a(f's_cbranch_scc0 L_{name}_ns2')
        stamp(a,2)
        a.label(f'L_{name}_ns2')
    a(f's_branch L_{name}_issue')
    a.label(f'L_{name}_ld8')
    srd(a, 28, 44, 1024)
    a('s_lshl_b32 s48, s2, 3')
    a('s_lshl_b32 s49, s35, 1')
    a('s_add_u32 s48, s48, s49')
    a('s_lshl_b32 s49, s48, 10')
    a('v_lshlrev_b32 v12, 4, v1')
    a('buffer_load_dwordx4 v[24:27], v12, s[8:11], s49 offen')
    a('buffer_load_dwordx4 v[28:31], v12, s[8:11], s49 offen offset:1024')
    a('buffer_load_dwordx4 v[32:35], v12, s[28:31], 0 offen')
    a('s_waitcnt vmcnt(11)')
    a('s_barrier')
    a('s_waitcnt vmcnt(3)')
    a('s_barrier')
    stamp(a,3)
    a('s_barrier')
    srd(a, 24, 46, WS_SIZE)
    a('v_mov_b32 v16, 0'); a('v_mov_b32 v17, 0')
    a('s_waitcnt vmcnt(0)')
    for q in range(4):
        a(f'v_dot2_f32_bf16 v16, v{24+q}, v{32+q}, v16')
        a(f'v_dot2_f32_bf16 v17, v{28+q}, v{32+q}, v17')
    a('s_nop 2')
    def dpp(op):
        a('s_nop 0')
        a(f'v_add_f32_dpp v16, v16, v16 {op}')
        a(f'v_add_f32_dpp v17, v17, v17 {op}')
    for sh in (1,2,4,8): dpp(f'row_shr:{sh} row_mask:0xf bank_mask:0xf')
    dpp('row_bcast:15 row_mask:0xa bank_mask:0xf')
    dpp('row_bcast:31 row_mask:0xc bank_mask:0xf')
    for r in (16,17): a(f'v_mul_f32 v{r}, {hex(f2u(-1.4426950408889634))}, v{r}')
    for r in (16,17): a(f'v_exp_f32 v{r}, v{r}')
    a('s_nop 0')
    for r in (16,17): a(f'v_add_f32 v{r}, 1.0, v{r}')
    for r in (16,17): a(f'v_rcp_f32 v{r}, v{r}')
    a('s_lshl_b32 s49, s48, 2')
    a(f's_add_u32 s49, s49, {WS_G}')
    a('v_mov_b32 v18, 0')
    a('s_mov_b32 exec_lo, 0')
    a('s_mov_b32 exec_hi, 0x80000000')
    a('buffer_store_dwordx2 v[16:17], v18, s[24:27], s49 offen')
    a('s_mov_b64 exec, -1')
    a('s_cmp_eq_u32 s2, 0')
    a(f's_cbranch_scc0 L_{name}_fin')
    a('s_cmp_eq_u32 s32, 4')
    a(f's_cbranch_scc0 L_{name}_fin')
    for r in range(20,24): a(f'v_mov_b32 v{r}, 0')
    a('v_lshlrev_b32 v18, 4, v1')
    a(f's_mov_b32 s49, {WS_FLAG}')
    a('buffer_store_dwordx4 v[20:23], v18, s[24:27], s49 offen')
    a(f's_branch L_{name}_fin')

    a.label(f'L_{name}_comp')
    a('s_lshr_b32 s35, s32, 1')
    a('s_and_b32 s40, s32, 1')
    a('v_and_b32 v8, 31, v1')
    a('v_lshrrev_b32 v9, 5, v1')
    pi_perm(a, 10, 8, 11)
    def frag_addr(dst0, rowreg, base_off, tmp):
        a(f'v_lshrrev_b32 v{tmp}, 1, v{rowreg}')
        a(f'v_and_b32 v{tmp}, 7, v{tmp}')
        a(f'v_xor_b32 v{tmp}, v{tmp}, v9')
        a(f'v_lshlrev_b32 v{tmp}, 4, v{tmp}')
        a(f'v_lshl_add_u32 v{dst0}, v{rowreg}, 7, v{tmp}')
        if base_off: a(f'v_add_u32 v{dst0}, {base_off}, v{dst0}')
        for ks in range(1,4): a(f'v_xor_b32 v{dst0+ks}, {ks*32}, v{dst0}')
    a('s_lshl_b32 s63, s35, 6')
    a('v_add_u32 v11, s63, v10')
    frag_addr(16, 11, K1_X, 15)
    a('v_bfe_u32 v11, v1, 2, 2')
    a('v_lshl_add_u32 v11, v9, 3, v11')
    a('v_bfe_u32 v12, v1, 4, 1')
    a('v_and_b32 v13, 3, v1')
    ACC=[[32,48],[64,80]]
    for r in range(32,96): a(f'v_mov_b32 v{r}, 0')
    FS=[96,112,128,144]
    WA=160
    a('s_mov_b32 s50, 0')
    a('s_mov_b32 s51, 0')
    srd_done=[False]
    def mf(d,A,B): a(f'v_mfma_f32_32x32x16_bf16 v[{d}:{d+15}], v[{A}:{A+3}], v[{B}:{B+3}], v[{d}:{d+15}]')
    def capture(fn, *args):
        sub=Asm(); saved=a.L; a.L=sub.L
        fn(*args); a.L=saved
        return [x.strip() for x in sub.L]
    def inter(ms, others):
        pre=[x for x in ms if not x.startswith('v_mfma')]
        mm=[x for x in ms if x.startswith('v_mfma')]
        k=len(mm); per=-(-len(others)//k) if others else 0
        for x in pre: a(x)
        if pre: a('s_nop 0')
        oi=0
        for i,x in enumerate(mm):
            a(x)
            for y in others[oi:oi+per]: a(y)
            oi+=per
        for y in others[oi:]: a(y)
    def run(tag, n, setaddr, reads, mfmas):
        if 'nocomp' in EXPT:
            reads=lambda k: None
            mfmas=lambda k: None
        a('s_waitcnt lgkmcnt(0)')
        a('s_barrier')
        stamp(a,2)
        if STAMPS: a('s_memtime s[74:75]')
        setaddr('s51')
        reads(0); reads(1)
        a.label(f'L_{tag}_loop')
        a(f's_waitcnt lgkmcnt({n})'); inter(capture(mfmas,0), capture(reads,2))
        a(f's_waitcnt lgkmcnt({n})'); inter(capture(mfmas,1), capture(reads,3))
        a('s_cmp_eq_u32 s50, 7')
        a(f's_cbranch_scc1 L_{tag}_last')
        a(f's_add_u32 s51, s51, {K1_SLOT}')
        a(f's_cmp_eq_u32 s51, {NS*K1_SLOT}')
        a('s_cselect_b32 s51, 0, s51')
        setaddr('s51')
        a('s_barrier')
        a(f's_waitcnt lgkmcnt({n})')
        inter(capture(mfmas,2), capture(reads,0))
        a(f's_waitcnt lgkmcnt({n})'); inter(capture(mfmas,3), capture(reads,1))
        a('s_add_u32 s50, s50, 1')
        a(f's_branch L_{tag}_loop')
        a.label(f'L_{tag}_last')
        a(f's_waitcnt lgkmcnt({n})'); inter(capture(mfmas,2), [])
        a('s_waitcnt lgkmcnt(0)'); inter(capture(mfmas,3), [])
        if STAMPS:
            a('s_memtime s[76:77]')
            a('s_waitcnt lgkmcnt(0)')
            a('s_sub_u32 s78, s76, s74')
    stamp(a,1)
    a('s_cmp_eq_u32 s40, 0')
    a(f's_cbranch_scc0 L_{name}_cw1')
    a('v_lshlrev_b32 v20, 7, v11')
    a('v_bfe_u32 v14, v1, 3, 1')
    a('v_lshl_add_u32 v20, v14, 6, v20')
    a('v_lshl_add_u32 v20, v12, 5, v20')
    a('v_lshrrev_b32 v14, 1, v13')
    a('v_lshl_add_u32 v20, v14, 4, v20')
    a('v_and_b32 v14, 1, v13')
    a('v_lshl_add_u32 v20, v14, 3, v20')
    a(f'v_add_u32 v20, {K1_WQK}, v20')
    a('v_xor_b32 v21, 64, v20')
    def setaddr0(sS):
        for ks in range(4): a(f'v_add_u32 v{WA+ks}, {sS}, v{16+ks}')
        a(f'v_add_u32 v{WA+4}, {sS}, v20')
        a(f'v_add_u32 v{WA+5}, {sS}, v21')
    def reads0(ks):
        F=FS[ks]
        a(f'ds_read_b128 v[{F}:{F+3}], v{WA+ks}')
        a(f'ds_read_b128 v[{F+4}:{F+7}], v{WA+ks} offset:4096')
        for j in range(2):
            a(f'ds_read_b64_tr_b16 v[{F+8+4*j}:{F+9+4*j}], v{WA+4+j} offset:{ks*2048}')
            a(f'ds_read_b64_tr_b16 v[{F+10+4*j}:{F+11+4*j}], v{WA+4+j} offset:{ks*2048+512}')
    def mfmas0(ks):
        F=FS[ks]
        for t in range(2):
            for j in range(2): mf(ACC[t][j], F+8+4*j, F+4*t)
    run(f'{name}_a', 6, setaddr0, reads0, mfmas0)
    stamp(a,3)
    a('s_barrier')
    srd(a, 24, 46, WS_SIZE)
    a('s_lshl_b32 s56, s54, 1')
    a('s_lshl_b32 s57, s35, 5')
    a('s_add_u32 s56, s56, s57')
    a('s_cmp_ge_u32 s55, 8')
    a('s_cselect_b32 s57, 17, 16')
    a('s_cselect_b32 s58, 11, 10')
    a(f's_cselect_b32 s59, {WS_KV}, {WS_Q}')
    a(f's_cselect_b32 s60, 1.0, {hex(f2u(C_SCALE))}')
    a('s_lshl_b32 s57, 1, s57')
    a('s_lshl_b32 s61, s56, s58')
    a('s_add_u32 s59, s59, s61')
    a('s_lshl_b32 s63, 1, s58')
    a('s_and_b32 s62, s55, 7')
    a('s_lshl_b32 s62, s62, 2')
    a('s_mul_i32 s62, s62, s57')
    a('s_add_u32 s59, s59, s62')
    a('v_lshlrev_b32 v11, 9, v9')
    a('v_lshl_add_u32 v11, v10, 4, v11')
    a('s_nop 7')
    k=0
    for t in range(2):
        a(f's_mov_b32 s64, s59')
        for j in range(2):
            for hb in range(2):
                base=ACC[t][j]+8*hb
                for r in range(8): a(f'v_mul_f32 v{base+r}, s60, v{base+r}')
                d=96+4*k; k+=1
                for q in range(4): a(f'v_cvt_pk_bf16_f32 v{d+q}, v{base+2*q}, v{base+2*q+1}')
                a(f'buffer_store_dwordx4 v[{d}:{d+3}], v11, s[24:27], s64 offen')
                a('s_add_u32 s64, s64, s57')
        a('s_add_u32 s59, s59, s63')
    a(f's_branch L_{name}_fin')
    a.label(f'L_{name}_cw1')
    a('v_lshlrev_b32 v20, 6, v11')
    a('v_lshl_add_u32 v20, v12, 5, v20')
    a('v_lshl_add_u32 v20, v13, 3, v20')
    a(f'v_add_u32 v20, {K1_WV}, v20')
    frag_addr(24, 8, K1_WD, 15)
    a('s_cmp_eq_u32 s55, 0')
    a('s_cselect_b32 s66, 0x10000, 0')
    a('s_mov_b32 s67, s66')
    a('v_mov_b32 v14, 0xbf803f80')
    def setaddr1(sS):
        for ks in range(4): a(f'v_add_u32 v{WA+ks}, {sS}, v{16+ks}')
        a(f'v_add_u32 v{WA+4}, {sS}, v20')
        for ks in range(4): a(f'v_add_u32 v{WA+5+ks}, {sS}, v{24+ks}')
    def reads1(ks):
        F=FS[ks]
        a(f'ds_read_b128 v[{F}:{F+3}], v{WA+ks}')
        a(f'ds_read_b128 v[{F+4}:{F+7}], v{WA+ks} offset:4096')
        a(f'ds_read_b64_tr_b16 v[{F+8}:{F+9}], v{WA+4} offset:{ks*1024}')
        a(f'ds_read_b64_tr_b16 v[{F+10}:{F+11}], v{WA+4} offset:{ks*1024+256}')
        a(f'ds_read_b128 v[{F+12}:{F+15}], v{WA+5+ks}')
    def mfmas1(ks):
        F=FS[ks]
        for q in range(4): a(f'v_cndmask_b32 v{F+12+q}, v{F+12+q}, v14, s[66:67]')
        for t in range(2): mf(ACC[t][0], F+4*t, F+8)
        for t in range(2): mf(ACC[t][1], F+4*t, F+12)
    run(f'{name}_b', 5, setaddr1, reads1, mfmas1)
    stamp(a,3)
    srd(a, 24, 46, WS_SIZE)
    a('s_nop 15')
    XCH = 0
    a('v_lshlrev_b32 v11, 4, v1')
    a(f'v_add_u32 v11, {XCH}, v11')
    a('s_cmp_eq_u32 s35, 1')
    a(f's_cbranch_scc0 L_{name}_nowr')
    for t in range(2):
        for g in range(4): a(f'ds_write_b128 v11, v[{ACC[t][1]+4*g}:{ACC[t][1]+4*g+3}] offset:{t*4096+g*1024}')
    a('s_waitcnt lgkmcnt(0)')
    a.label(f'L_{name}_nowr')
    a('s_barrier')
    a('s_lshl_b32 s56, s54, 1')
    a('s_lshl_b32 s57, s35, 5')
    a('s_add_u32 s58, s56, s57')
    a('v_lshrrev_b32 v12, 4, v8')
    a('v_lshlrev_b32 v12, 17, v12')
    a('v_lshl_add_u32 v12, v9, 9, v12')
    a('v_and_b32 v13, 15, v8')
    a('v_lshl_add_u32 v12, v13, 4, v12')
    a('s_lshl_b32 s61, s55, 18')
    a('s_lshl_b32 s62, s58, 11')
    a('s_add_u32 s61, s61, s62')
    a(f's_add_u32 s61, s61, {WS_KV+1024}')
    for t in range(2):
        for mfi in range(2):
            base=ACC[t][0]+8*mfi
            d=96+8*t+4*mfi
            for q in range(4): a(f'v_cvt_pk_bf16_f32 v{d+q}, v{base+2*q}, v{base+2*q+1}')
            a(f'buffer_store_dwordx4 v[{d}:{d+3}], v12, s[24:27], s61 offen offset:{t*2048+mfi*256}')
    a('s_cmp_eq_u32 s35, 1')
    a(f's_cbranch_scc1 L_{name}_fin')
    for t in range(2):
        for g in range(4): a(f'ds_read_b128 v[{112+16*t+4*g}:{115+16*t+4*g}], v11 offset:{t*4096+g*1024}')
    a('v_mov_b32 v12, -1.0')
    a('v_mov_b32 v13, 1.0')
    a('v_cmp_gt_u32 vcc, 16, v8')
    a('s_nop 1')
    a('v_cndmask_b32 v12, v12, v13, vcc')
    a('v_cndmask_b32 v12, v12, v13, s[66:67]')
    a('s_lshr_b32 s57, s55, 1')
    a(f's_mul_i32 s58, s57, {T1_ET}')
    a(f's_add_u32 s58, s58, {WS_T1}')
    a('s_lshl_b32 s59, s57, 16')
    a(f's_add_u32 s59, s59, {WS_T2}')
    a('s_and_b32 s60, s55, 1')
    a('s_lshl_b32 s60, s60, 8')
    a('v_and_b32 v16, 15, v8')
    a('v_lshlrev_b32 v16, 4, v16')
    a('v_lshl_add_u32 v16, v9, 9, v16')
    a('v_add_u32 v16, s60, v16')
    a('v_mov_b32 v17, s59')
    a('v_mov_b32 v18, s58')
    a('v_cndmask_b32 v17, v17, v18, vcc')
    a('v_add_u32 v17, v17, v16')
    a(f'v_mov_b32 v18, {WS_T1+8*T1_ET}')
    a('v_lshl_add_u32 v18, v9, 9, v18')
    a('v_cndmask_b32 v19, v17, v18, s[66:67]')
    a('s_waitcnt lgkmcnt(0)')
    a('v_mov_b32 v15, v112')
    a('s_cmp_eq_u32 s56, 0')
    a('s_cselect_b32 s68, -1, 0')
    a('s_mov_b32 s69, 0')
    a('v_mov_b32 v13, 0')
    a('v_cndmask_b32 v112, v112, v13, s[68:69]')
    a('s_lshl_b32 s63, s56, 11')
    for t in range(2):
        A_=ACC[t][1]
        for r in range(16): a(f'v_fma_f32 v{A_+r}, v{112+16*t+r}, v12, v{A_+r}')
        for q in range(8): a(f'v_cvt_pk_bf16_f32 v{144+8*t+q}, v{A_+2*q}, v{A_+2*q+1}')
        for c in range(2):
            a(f'buffer_store_dwordx4 v[{144+8*t+4*c}:{147+8*t+4*c}], v19, s[24:27], s63 offen offset:{t*2048+c*1024}')
    a('s_cmp_eq_u32 s55, 0')
    a(f's_cbranch_scc0 L_{name}_nz')
    for r in range(4): a(f'v_mov_b32 v{104+r}, 0')
    a('s_mov_b64 exec, s[66:67]')
    for q in range(4): a(f'buffer_store_dwordx4 v[104:107], v17, s[24:27], s63 offen offset:{q*1024}')
    a('s_mov_b64 exec, -1')
    a.label(f'L_{name}_nz')
    a('s_cmp_eq_u32 s56, 0')
    a(f's_cbranch_scc0 L_{name}_fin')
    a('v_mov_b32 v13, 0')
    a('v_cndmask_b32 v15, v13, v15, s[68:69]')
    a('v_cvt_pk_bf16_f32 v108, v15, v13')
    a('v_mov_b32 v109, 0'); a('v_mov_b32 v110, 0'); a('v_mov_b32 v111, 0')
    a('s_mov_b32 s70, 0x0000ffff')
    a('s_mov_b32 s71, 0x0000ffff')
    a('s_or_b64 s[70:71], s[70:71], s[66:67]')
    a('s_mov_b64 exec, s[70:71]')
    a(f's_mov_b32 s63, {64*1024}')
    a('buffer_store_dwordx4 v[108:111], v19, s[24:27], s63 offen')
    a('s_mov_b64 exec, -1')
    a.label(f'L_{name}_fin')
    if STAMPS: srd(a, 24, 46, WS_SIZE)
    stamp_flush(a, 4, 24, 32, 8, 0, vtmp=170, extra=78)
    a.label(f'L_{name}_end')
    a('s_endpgm')
    return 176


SPIN_MAX=400000
SLEEP=int(os.environ.get('SLEEP','2'))
def poll(a, tag, addr_v, exp_v, nl, base='s[56:57]', tmp=12):
    a(f's_mov_b32 s61, 0')
    a(f's_mov_b64 exec, {(1<<nl)-1}')
    a.label(f'L_{tag}_poll')
    a(f'global_load_dword v{tmp}, v{addr_v}, {base} sc1')
    a('s_waitcnt vmcnt(0)')
    a(f'v_cmp_eq_u32 vcc, v{tmp}, v{exp_v}')
    a('s_add_u32 s61, s61, 1')
    a('s_nop 2')
    a(f's_cmp_eq_u64 vcc, exec')
    a(f's_cbranch_scc1 L_{tag}_polld')
    a(f's_cmp_ge_u32 s61, {SPIN_MAX}')
    a(f's_cbranch_scc1 L_{tag}_polld')
    a(f's_sleep {SLEEP}')
    a(f's_branch L_{tag}_poll')
    a.label(f'L_{tag}_polld')
    a('s_mov_b64 exec, -1')

def phase_c(a, name):
    stamp(a,0)
    a('s_load_dwordx2 s[36:37], s[0:1], 56')
    a('s_load_dwordx2 s[38:39], s[0:1], 72')
    a('s_cmp_eq_u32 s32, 0')
    a(f's_cbranch_scc0 L_{name}_nosig')
    a('s_lshr_b32 s33, s2, 5')
    a('s_lshl_b32 s33, s33, 7')
    a(f's_add_u32 s33, s33, {WS_FLAG}')
    a('v_mov_b32 v12, s33')
    a('v_mov_b32 v13, 1')
    a('s_mov_b64 exec, 1')
    a('global_atomic_add v12, v13, s[24:25] sc1')
    a('s_mov_b64 exec, -1')
    a.label(f'L_{name}_nosig')
    a('s_and_b32 s33, s2, 7')
    a('s_lshr_b32 s34, s2, 3')
    a('s_and_b32 s35, s34, 3')
    a('s_lshl_b32 s40, s33, 2')
    a('s_add_u32 s40, s40, s35')
    a('s_lshr_b32 s41, s2, 5')
    a('s_and_b32 s42, s32, 1')
    a('s_lshr_b32 s43, s32, 1')
    a('s_lshl_b32 s44, s40, 1')
    a('s_add_u32 s44, s44, s42')
    a('v_lshrrev_b32 v3, 3, v1')
    a('v_bfe_u32 v4, v1, 4, 1')
    a('v_lshlrev_b32 v4, 2, v4')
    a('v_and_b32 v5, 7, v1')
    a('v_xor_b32 v4, v4, v5')
    a('v_lshlrev_b32 v4, 4, v4')
    a('v_lshl_add_u32 v3, v3, 10, v4')
    a('s_lshl_b32 s45, s32, 17')
    a('s_lshl_b32 s48, s41, 7')
    a('s_add_u32 s45, s45, s48')
    a('s_lshl_b32 s55, s32, 14')
    a('s_waitcnt lgkmcnt(0)')
    srd(a, 8, 36, 0x80000)
    for i in range(16):
        a(f's_add_u32 m0, s55, {i*1024}')
        a(f's_add_u32 s49, s45, {i*8192}')
        a('buffer_load_dwordx4 v3, s[8:11], s49 offen lds')
    srd(a, 12, 38, 0x200000)
    a('v_and_b32 v8, 31, v1')
    a('v_lshrrev_b32 v9, 5, v1')
    a('s_lshl_b32 s58, s44, 5')
    a('v_add_u32 v10, s58, v8')
    a('v_sub_u32 v11, 3072, v10')
    a('v_mov_b32 v12, 1024')
    a('v_subrev_u32 v13, 1024, v10')
    a('v_cmp_eq_u32 vcc, 1024, v10')
    a('s_nop 1')
    a('v_cndmask_b32 v11, v11, v12, vcc')
    a('v_cndmask_b32 v13, v13, v12, vcc')
    a('v_cmp_gt_u32 vcc, 1024, v10')
    a('s_nop 1')
    a('v_cndmask_b32 v13, v13, v10, vcc')
    a('v_cndmask_b32 v10, v11, v10, vcc')
    a('v_lshlrev_b32 v11, 10, v10')
    a('v_lshl_add_u32 v11, v9, 3, v11')
    a('s_lshl_b32 s58, s41, 7')
    a('s_lshl_b32 s59, s43, 6')
    a('s_add_u32 s58, s58, s59')
    a('v_add_u32 v11, s58, v11')
    a(f'v_mul_u32_u24 v13, {YQ_PITCH}, v13')
    a('v_lshlrev_b32 v12, 3, v9')
    a('s_cmp_lt_u32 s41, 4')
    a(f's_cbranch_scc0 L_{name}_ym')
    a('v_add_u32 v13, v13, v12')
    a('v_add_u32 v13, s58, v13')
    a(f's_branch L_{name}_ymd')
    a.label(f'L_{name}_ym')
    a('v_sub_u32 v13, v13, v12')
    a('s_sub_u32 s59, 1018-48, s58')
    a('v_add_u32 v13, s59, v13')
    a.label(f'L_{name}_ymd')
    a('s_lshr_b32 s58, s44, 5')
    a('s_lshr_b32 s59, s41, 2')
    a('s_xor_b32 s58, s58, s59')
    a('s_lshl_b32 s58, s58, 20')
    a(f's_add_u32 s60, s58, {WS_Y}')
    a('v_lshlrev_b32 v105, 2, v10')
    a('v_bfe_u32 v5, v1, 2, 2')
    a('v_lshl_add_u32 v6, v9, 2, v5')
    a('v_lshlrev_b32 v6, 7, v6')
    a('v_bfe_u32 v7, v1, 3, 1')
    a('v_lshlrev_b32 v7, 6, v7')
    a('v_bfe_u32 v16, v1, 4, 1')
    a('v_lshl_add_u32 v6, v16, 5, v6')
    a('v_bfe_u32 v16, v1, 1, 1')
    a('v_lshl_add_u32 v6, v16, 4, v6')
    a('v_and_b32 v16, 1, v1')
    a('v_lshl_add_u32 v6, v16, 3, v6')
    a('v_add_u32 v14, v6, v7')
    a('s_lshl_b32 s58, s43, 15')
    a('v_add_u32 v14, s58, v14')
    a('v_xor_b32 v15, 64, v14')
    a(f's_mov_b32 s59, {WS_G}')
    a('buffer_load_dword v104, v105, s[24:27], s59 offen')
    stamp(a,1)
    a('s_cmp_eq_u32 s32, 0')
    a(f's_cbranch_scc0 L_{name}_nopoll')
    a('s_lshl_b32 s58, s33, 7')
    a(f's_add_u32 s58, s58, {WS_FLAG}')
    a('v_lshlrev_b32 v16, 2, v1')
    a('v_add_u32 v16, s58, v16')
    a('v_mov_b32 v17, 32')
    a('v_mov_b32 v19, 297')
    a('v_cmp_eq_u32 vcc, 1, v1')
    a('s_nop 1')
    a('v_cndmask_b32 v17, v17, v19, vcc')
    poll(a, name+'_c', 16, 17, 2, base='s[24:25]', tmp=18)
    a.label(f'L_{name}_nopoll')
    a('s_waitcnt vmcnt(0)')
    a('s_barrier')
    stamp(a,2)
    OF=32
    a('s_lshl_b32 s51, s44, 15')
    a('s_lshl_b32 s52, s43, 14')
    a('s_add_u32 s51, s51, s52')
    a(f's_add_u32 s51, s51, {WS_O}')
    for i in range(16):
        if i%4==0 and i: a('s_add_u32 s51, s51, 4096')
        a(f'buffer_load_dwordx4 v[{OF+4*i}:{OF+4*i+3}], v2, s[24:27], s51 offen offset:{(i%4)*1024} sc1')
    for b in range(4): a(f'buffer_load_dwordx2 v[{96+2*b}:{97+2*b}], v13, s[24:27], s60 offen offset:{b*16} sc1')
    ACC=[16,112]; FW=[128,136]
    def reads(i):
        s_=i%2
        for j in range(2):
            a(f'ds_read_b64_tr_b16 v[{FW[s_]+4*j}:{FW[s_]+4*j+1}], v{14+j} offset:{i*2048}')
            a(f'ds_read_b64_tr_b16 v[{FW[s_]+4*j+2}:{FW[s_]+4*j+3}], v{14+j} offset:{i*2048+1024}')
    reads(0)
    for i in range(16):
        if i<15: reads(i+1); a(f's_waitcnt vmcnt({4+15-i}) lgkmcnt(4)')
        else: a('s_waitcnt vmcnt(4) lgkmcnt(0)')
        s_=i%2
        for j in range(2):
            c = '0' if i==0 else f'v[{ACC[j]}:{ACC[j]+15}]'
            a(f'v_mfma_f32_32x32x16_bf16 v[{ACC[j]}:{ACC[j]+15}], v[{FW[s_]+4*j}:{FW[s_]+4*j+3}], v[{OF+4*i}:{OF+4*i+3}], {c}')
    stamp(a,3)
    K3X=65536
    a('s_lshl_b32 s48, s42, 13')
    a('s_xor_b32 s49, s43, 1')
    a('s_lshl_b32 s49, s49, 12')
    a('s_add_u32 s49, s49, s48')
    a(f's_add_u32 s49, s49, {K3X}')
    a('v_add_u32 v5, s49, v2')
    a('s_lshl_b32 s49, s43, 12')
    a('s_add_u32 s49, s49, s48')
    a(f's_add_u32 s49, s49, {K3X}')
    a('v_add_u32 v6, s49, v2')
    a('s_nop 7')
    a('s_cmp_eq_u32 s43, 0')
    a(f's_cbranch_scc0 L_{name}_kw1')
    for g in range(4): a(f'ds_write_b128 v5, v[{ACC[1]+4*g}:{ACC[1]+4*g+3}] offset:{g*1024}')
    a(f's_branch L_{name}_x')
    a.label(f'L_{name}_kw1')
    for g in range(4): a(f'ds_write_b128 v5, v[{ACC[0]+4*g}:{ACC[0]+4*g+3}] offset:{g*1024}')
    a('s_nop 1')
    for r in range(16): a(f'v_mov_b32 v{ACC[0]+r}, v{ACC[1]+r}')
    a.label(f'L_{name}_x')
    a('s_waitcnt vmcnt(0) lgkmcnt(0)')
    a('s_barrier')
    for g in range(4): a(f'ds_read_b128 v[{32+4*g}:{35+4*g}], v6 offset:{g*1024}')
    a('v_sub_f32 v105, 1.0, v104')
    a('s_cmp_lt_u32 s41, 4')
    a(f's_cbranch_scc0 L_{name}_um')
    for b in range(4):
        for q in range(2):
            src=96+2*b+q
            a(f'v_lshlrev_b32 v{48+4*b+2*q}, 16, v{src}')
            a(f'v_and_b32 v{48+4*b+2*q+1}, 0xffff0000, v{src}')
    a(f's_branch L_{name}_umd')
    a.label(f'L_{name}_um')
    for b in range(4):
        g=3-b
        d0=96+2*b; d1=97+2*b
        a(f'v_and_b32 v{48+4*g+0}, 0xffff0000, v{d1}')
        a(f'v_lshlrev_b32 v{48+4*g+1}, 16, v{d1}')
        a(f'v_and_b32 v{48+4*g+2}, 0xffff0000, v{d0}')
        a(f'v_lshlrev_b32 v{48+4*g+3}, 16, v{d0}')
    a.label(f'L_{name}_umd')
    for r in range(16): a(f'v_mul_f32 v{48+r}, v104, v{48+r}')
    a('s_waitcnt lgkmcnt(0)')
    for r in range(16): a(f'v_add_f32 v{16+r}, v{16+r}, v{32+r}')
    for r in range(16): a(f'v_fmac_f32 v{48+r}, v105, v{16+r}')
    for b in range(4):
        a(f'v_cvt_pk_bf16_f32 v{64+2*b}, v{48+4*b}, v{48+4*b+1}')
        a(f'v_cvt_pk_bf16_f32 v{65+2*b}, v{48+4*b+2}, v{48+4*b+3}')
    for b in range(4):
        a(f'buffer_store_dwordx2 v[{64+2*b}:{65+2*b}], v11, s[12:15], 0 offen offset:{b*16}')
    stamp_flush(a, 4, 24, 32, 4, 2, vtmp=106)

K2_SUM=131072
K2_CNT=K2_SUM+16384
K2_LDS=K2_CNT+64
def gen_k23(a, name):
    return gen_k2(a, name, fused=True)

def gen_k2(a, name, fused=False):
    a.noload=False
    kernel_header(a, name)
    a('s_cmp_ge_u32 s2, 256')
    a(f's_cbranch_scc1 L_{name}_end')
    stamp(a,0)
    a('s_load_dwordx4 s[36:39], s[0:1], 8')
    a('s_load_dwordx2 s[46:47], s[0:1], 88')
    a('s_load_dwordx2 s[56:57], s[0:1], 80')
    a('v_lshrrev_b32 v2, 6, v0')
    a('v_and_b32 v1, 63, v0')
    a('v_readfirstlane_b32 s32, v2')
    a('v_lshlrev_b32 v2, 4, v1')
    a('s_and_b32 s33, s2, 7')
    a('s_lshr_b32 s34, s2, 3')
    a('s_and_b32 s35, s34, 3')
    a('s_lshl_b32 s40, s33, 2')
    a('s_add_u32 s40, s40, s35')
    a('s_lshr_b32 s41, s2, 5')
    a('s_waitcnt lgkmcnt(0)')
    srd(a, 24, 46, WS_SIZE)
    a('s_cmp_ge_u32 s32, 8')
    a(f's_cbranch_scc1 L_{name}_fnet')
    Q=4; C=8; S=[24,40]; O=56; K=[72,76]; V0=[80,88]; V1=[84,92]; ADDR=96; IDX=3
    a('s_lshl_b32 s42, s41, 3')
    a('s_add_u32 s42, s42, s32')
    a('s_lshl_b32 s43, s40, 16')
    a('s_lshl_b32 s44, s42, 10')
    a('s_add_u32 s43, s43, s44')
    a(f'buffer_load_dwordx4 v[{Q}:{Q+3}], v2, s[24:27], s43 offen')
    a('s_lshl_b32 s43, s40, 17')
    a(f's_add_u32 s43, s43, {WS_KV}')
    a('s_lshl_b32 s44, s32, 11')
    if 'kvrot' in EXPT:
        a('s_lshl_b32 s46, s41, 3')
        a('s_add_u32 s46, s46, s32')
    else: a('s_mov_b32 s46, s32')
    for i in range(8):
        a(f's_add_u32 m0, s44, {i*8*2048}')
        a('s_and_b32 s46, s46, 63')
        a('s_lshl_b32 s45, s46, 11')
        a('s_add_u32 s45, s45, s43')
        a('buffer_load_dwordx4 v2, s[24:27], s45 offen lds')
        a('buffer_load_dwordx4 v2, s[24:27], s45 offen offset:1024 lds')
        a('s_add_u32 s46, s46, 8')
    a(f'v_mov_b32 v{IDX}, 0xdddddddd')
    if 'allones' in EXPT:
        for r in range(80,96): a(f'v_mov_b32 v{r}, 0x3f803f80')
    else:
        a('v_mov_b32 v97, 0')
        a('v_mov_b32 v98, 0x3f803f80')
        a('s_mov_b32 s52, 0x00110000')
        a('s_mov_b32 s53, 0x00110000')
        a('v_cndmask_b32 v97, v97, v98, s[52:53]')
        for r in range(80,96): a(f'v_mov_b32 v{r}, v97')
    a('s_mov_b32 s48, 0x0000ffff')
    a('s_mov_b32 s49, 0x0000ffff')
    a('s_mov_b32 s50, 0')
    a('s_cmp_lt_u32 s32, 4')
    a(f's_cselect_b32 s54, {PR[0]}, {PR[1]}')
    a(f's_cselect_b32 s55, {PR[2]}, {PR[3]}')
    a('s_setprio 2')
    a('s_waitcnt vmcnt(12)')
    a('s_barrier')
    stamp(a,1)
    a(f'ds_read_b128 v[{K[0]}:{K[0]+3}], v2')
    a('s_waitcnt lgkmcnt(0)')
    a(f'v_mfma_f32_32x32x16_bf16 v[{S[0]}:{S[0]+15}], v[{K[0]}:{K[0]+3}], v[{Q}:{Q+3}], 0')
    a('s_nop 15')
    s0=S[0]
    a(f'v_max3_f32 v97, v{s0}, v{s0+1}, v{s0+2}')
    for r in range(3,15,2): a(f'v_max3_f32 v97, v97, v{s0+r}, v{s0+r+1}')
    a(f'v_max_f32 v97, v97, v{s0+15}')
    a.label(f'L_{name}_havemax')
    a('v_mov_b32 v98, v97')
    a('s_nop 1')
    a('v_permlane32_swap_b32 v97, v98')
    a('s_nop 1')
    a('v_max_f32 v97, v97, v98')
    for r in range(16): a(f'v_sub_f32 v{C+r}, 0, v97')
    for r in range(16): a(f'v_mov_b32 v{O+r}, 0')
    for r in range(8,16): a(f'v_mov_b32 v{S[1]+r}, 0')
    a(f'v_mov_b32 v{ADDR}, v2')
    a(f'ds_read_b128 v[{K[0]}:{K[0]+3}], v2')
    a(f'ds_read_b128 v[{K[1]}:{K[1]+3}], v2 offset:2048')
    a('s_mov_b64 exec, s[48:49]')
    a(f'ds_read_b128 v[{V0[0]}:{V0[0]+3}], v2 offset:1024')
    a(f'ds_read_b128 v[{V1[0]}:{V1[0]+3}], v2 offset:1280')
    a('s_mov_b64 exec, -1')
    a('s_waitcnt lgkmcnt(0)')
    a(f'v_mfma_f32_32x32x16_bf16 v[{S[0]}:{S[0]+15}], v[{K[0]}:{K[0]+3}], v[{Q}:{Q+3}], v[{C}:{C+15}]')
    a('s_mov_b32 s51, 0')
    if STAMPS: a('s_memtime s[74:75]')
    a('s_nop 15')
    a.raw('.p2align 6')
    a.label(f'L_{name}_loop')
    for i in range(4):
        cur=S[i%2]; prev=S[(i+1)%2]
        def e(x,y):
            for j in range(x,y):
                if 'noexp' in EXPT: a(f'v_mov_b32 v{cur+j}, v{cur+j}')
                else: a(f'v_exp_f32 v{cur+j}, v{cur+j}')
        a('s_waitcnt lgkmcnt(0)')
        e(0,2)
        if 'nopv' not in EXPT: a(f'v_smfmac_f32_32x32x32_bf16 v[{O}:{O+15}], v[{V1[(i+1)%2]}:{V1[(i+1)%2]+3}], v[{prev+8}:{prev+15}], v{IDX}')
        a(f'ds_read_b128 v[{K[i%2]}:{K[i%2]+3}], v{ADDR} offset:{(i+2)*2048}')
        a('s_mov_b64 exec, s[48:49]')
        a(f'ds_read_b128 v[{V0[(i+1)%2]}:{V0[(i+1)%2]+3}], v{ADDR} offset:{(i+1)*2048+1024}')
        a(f'ds_read_b128 v[{V1[(i+1)%2]}:{V1[(i+1)%2]+3}], v{ADDR} offset:{(i+1)*2048+1280}')
        a('s_mov_b64 exec, -1')
        e(2,7)
        a(f'v_mfma_f32_32x32x16_bf16 v[{prev}:{prev+15}], v[{K[(i+1)%2]}:{K[(i+1)%2]+3}], v[{Q}:{Q+3}], v[{C}:{C+15}]')
        e(7,12)
        if 'nopv' not in EXPT: a(f'v_smfmac_f32_32x32x32_bf16 v[{O}:{O+15}], v[{V0[i%2]}:{V0[i%2]+3}], v[{cur}:{cur+7}], v{IDX}')
        e(12,16)
    a(f'v_add_u32 v{ADDR}, 8192, v{ADDR}')
    a('s_add_u32 s51, s51, 1')
    a('s_cmp_eq_u32 s51, 3')
    a(f's_cbranch_scc1 L_{name}_ev3')
    a('s_cmp_eq_u32 s51, s54')
    a(f's_cbranch_scc1 L_{name}_ev10')
    a('s_cmp_eq_u32 s51, s55')
    a(f's_cbranch_scc1 L_{name}_ev14')
    a('s_cmp_lt_u32 s51, 16')
    a(f's_cbranch_scc1 L_{name}_loop')
    a(f's_branch L_{name}_done')
    a.label(f'L_{name}_ev3')
    a('s_cmp_eq_u32 s50, 0')
    a(f's_cbranch_scc0 L_{name}_loop')
    stamp(a,3)
    a('s_waitcnt vmcnt(0)')
    a('s_barrier')
    stamp(a,4)
    a(f's_branch L_{name}_loop')
    a.label(f'L_{name}_ev10')
    stamp(a,5)
    a('s_setprio 1')
    a(f's_branch L_{name}_loop')
    a.label(f'L_{name}_ev14')
    a('s_setprio 0')
    a(f's_branch L_{name}_loop')
    a.label(f'L_{name}_done')
    a('s_nop 1')
    a(f'v_smfmac_f32_32x32x32_bf16 v[{O}:{O+15}], v[{V1[1]}:{V1[1]+3}], v[{S[1]+8}:{S[1]+15}], v{IDX}')
    a('s_waitcnt lgkmcnt(0)')
    a('s_nop 15')
    stamp(a,2)
    if STAMPS:
        a('s_memtime s[76:77]')
        a('s_waitcnt lgkmcnt(0)')
        a('s_sub_u32 s78, s76, s74')
    a(f's_mov_b32 s52, {hex(f2u(2.0**60))}')
    a(f'v_cmp_gt_f32 vcc, s52, v{O+8}')
    if 'nopv' in EXPT or 'noexp' in EXPT: a('s_mov_b32 s50, 1')
    a('s_nop 3')
    a('s_cmp_eq_u64 vcc, -1')
    a(f's_cbranch_scc1 L_{name}_ok')
    a('s_cmp_eq_u32 s50, 0')
    a(f's_cbranch_scc0 L_{name}_ok')
    a('s_mov_b32 s50, 1')
    a('s_setprio 2')
    a('v_mov_b32 v97, 0xff800000')
    a(f'v_mov_b32 v{ADDR}, v2')
    a('s_mov_b32 s51, 0')
    a.label(f'L_{name}_fb')
    a(f'ds_read_b128 v[{K[0]}:{K[0]+3}], v{ADDR}')
    a('s_waitcnt lgkmcnt(0)')
    a(f'v_mfma_f32_32x32x16_bf16 v[{S[0]}:{S[0]+15}], v[{K[0]}:{K[0]+3}], v[{Q}:{Q+3}], 0')
    a('s_nop 15')
    for r in range(0,16,2): a(f'v_max3_f32 v97, v97, v{s0+r}, v{s0+r+1}')
    a(f'v_add_u32 v{ADDR}, 2048, v{ADDR}')
    a('s_add_u32 s51, s51, 1')
    a('s_cmp_lt_u32 s51, 64')
    a(f's_cbranch_scc1 L_{name}_fb')
    a(f's_branch L_{name}_havemax')
    a.label(f'L_{name}_ok')
    a(f'v_rcp_f32 v97, v{O+8}')
    a('s_nop 0')
    for r in range(8): a(f'v_mul_f32 v{O+r}, v97, v{O+r}')
    for q in range(4): a(f'v_cvt_pk_bf16_f32 v{100+q}, v{O+2*q}, v{O+2*q+1}')
    a('s_lshl_b32 s43, s42, 15')
    a('s_lshl_b32 s44, s40, 10')
    a('s_add_u32 s43, s43, s44')
    a(f's_add_u32 s43, s43, {WS_O}')
    a('buffer_store_dwordx4 v[100:103], v2, s[24:27], s43 offen')
    if fused:
        a('s_waitcnt vmcnt(0)')
        a(f's_branch L_{name}_endB')
    else:
        a(f's_branch L_{name}_fin')

    a.label(f'L_{name}_fnet')
    a('s_setprio 3')
    a('s_sub_u32 s35, s32, 8')
    srd(a, 8, 36, 0x800000)
    srd(a, 12, 38, 0x800000)
    for r in range(4,8): a(f'v_mov_b32 v{r}, 0')
    a(f'v_mov_b32 v8, {K2_CNT}')
    a('ds_write_b128 v8, v[4:7]')
    a('s_waitcnt lgkmcnt(0)')
    a('s_barrier')
    stamp(a,1)
    if NOFNET:
        a('s_barrier')
        a(f's_branch L_{name}_fin')
    a('v_and_b32 v9, 31, v1')
    a('v_lshrrev_b32 v10, 5, v1')
    stamp(a,2)
    a('s_mov_b32 s60, 0')
    a('s_mov_b32 s61, 0')
    a('s_lshr_b32 s62, s35, 1')
    a('s_and_b32 s63, s35, 1')
    a('s_cmp_eq_u32 s62, 0')
    a('s_cselect_b32 s16, s8, s12')
    a('s_cselect_b32 s17, s9, s13')
    a('s_mov_b32 s18, 0x800000')
    a('s_mov_b32 s19, 0x20000')
    a.label(f'L_{name}_job')
    a('s_cmp_eq_u32 s60, 0')
    a(f's_cbranch_scc1 L_{name}_dojob')
    a('s_mov_b32 s16, s8')
    a('s_mov_b32 s17, s9')
    a('s_mov_b32 s62, 0')
    a.label(f'L_{name}_dojob')
    a('s_lshl_b32 s42, s40, 5')
    a('v_add_u32 v11, s42, v9')
    a('v_lshlrev_b32 v11, 12, v11')
    a('v_lshl_add_u32 v11, v10, 4, v11')
    if FAKEA: a('v_mov_b32 v11, v2')
    a(f's_mul_i32 s43, s41, {T1_ET}')
    a(f's_add_u32 s43, s43, {WS_T1}')
    a(f's_lshl_b32 s44, s41, 16')
    a(f's_add_u32 s44, s44, {WS_T2}')
    a('s_cmp_eq_u32 s62, 0')
    a('s_cselect_b32 s43, s43, s44')
    a('s_lshl_b32 s45, s63, 5')
    a('s_lshl_b32 s46, s35, 4')
    a('s_cmp_eq_u32 s60, 0')
    a('s_cselect_b32 s49, s45, s46')
    a('s_lshl_b32 s45, s49, 10')
    a('s_add_u32 s43, s43, s45')
    a('s_lshl_b32 s45, s49, 5')
    ACCF=16
    for r in range(16): a(f'v_mov_b32 v{ACCF+r}, 0')
    SET=[32,96]
    a('s_cmp_eq_u32 s60, 0')
    a('s_cselect_b32 s58, 3, 1')
    a('s_and_b32 s59, s41, s58')
    def issue(setb, k0):
        b=k0//8
        a(f's_add_u32 s64, s59, {b}')
        a('s_and_b32 s64, s64, s58')
        a('s_lshl_b32 s65, s64, 8')
        a('s_add_u32 s65, s65, s45')
        a('s_lshl_b32 s64, s64, 13')
        a('s_add_u32 s64, s64, s43')
        for k in range(8):
            ra=setb+8*k
            a(f'buffer_load_dwordx4 v[{ra}:{ra+3}], v11, s[16:19], s65 offen offset:{k*32}')
            if k==4: a('s_add_u32 s64, s64, 4096')
            a(f'buffer_load_dwordx4 v[{ra+4}:{ra+7}], v2, s[24:27], s64 offen offset:{(k%4)*1024}')
    def mm(setb, first_wait):
        for k in range(8):
            ra=setb+8*k
            a(f's_waitcnt vmcnt({first_wait-2*k-2})')
            a(f'v_mfma_f32_32x32x16_bf16 v[{ACCF}:{ACCF+15}], v[{ra+4}:{ra+7}], v[{ra}:{ra+3}], v[{ACCF}:{ACCF+15}]')
    issue(SET[0],0)
    a('s_cmp_eq_u32 s61, 0')
    a(f's_cbranch_scc0 L_{name}_nob2')
    a('s_mov_b32 s61, 1')
    stamp(a,3)
    a('s_barrier')
    stamp(a,4)
    a.label(f'L_{name}_nob2')
    issue(SET[1],8)
    a('s_cmp_eq_u32 s60, 0')
    a(f's_cbranch_scc0 L_{name}_short')
    mm(SET[0],32)
    issue(SET[0],16)
    mm(SET[1],32)
    issue(SET[1],24)
    a(f's_add_u32 s43, s43, {16*1024}')
    a.label(f'L_{name}_short')
    mm(SET[0],32)
    mm(SET[1],16)
    a('s_cmp_eq_u32 s60, 0')
    a('s_cselect_b32 s46, 1, 3')
    a('s_cmp_eq_u32 s35, s46')
    a(f's_cbranch_scc0 L_{name}_nox')
    a('s_mov_b32 s45, 2048')
    a(f'buffer_load_dwordx4 v[32:35], v11, s[16:19], s45 offen')
    a(f's_add_u32 s46, s43, {16*1024}')
    a(f'buffer_load_dwordx4 v[36:39], v2, s[24:27], s46 offen')
    a('s_waitcnt vmcnt(0)')
    a(f'v_mfma_f32_32x32x16_bf16 v[{ACCF}:{ACCF+15}], v[36:39], v[32:35], v[{ACCF}:{ACCF+15}]')
    a.label(f'L_{name}_nox')
    a('s_nop 15')
    a('s_cmp_eq_u32 s60, 0')
    a(f's_cbranch_scc1 L_{name}_nospin')
    a(f'v_mov_b32 v12, {K2_CNT+8}')
    a.label(f'L_{name}_spin')
    a('ds_read_b32 v13, v12')
    a('s_waitcnt lgkmcnt(0)')
    a('v_readfirstlane_b32 s47, v13')
    a('s_nop 3')
    a('s_cmp_eq_u32 s47, 0')
    a(f's_cbranch_scc0 L_{name}_nospin')
    a('s_sleep 2')
    a(f's_branch L_{name}_spin')
    a.label(f'L_{name}_nospin')
    a('s_lshl_b32 s45, s35, 12')
    a(f's_add_u32 s45, s45, {K2_SUM}')
    a('v_add_u32 v12, s45, v2')
    for g in range(4): a(f'ds_write_b128 v12, v[{ACCF+4*g}:{ACCF+4*g+3}] offset:{g*1024}')
    stamp(a,5)
    a('s_waitcnt lgkmcnt(0)')
    a('s_lshl_b32 s45, s60, 2')
    a(f's_add_u32 s45, s45, {K2_CNT}')
    a('v_mov_b32 v12, s45')
    a('v_mov_b32 v13, 1')
    a('s_mov_b64 exec, 1')
    a('ds_add_rtn_u32 v14, v12, v13')
    a('s_waitcnt lgkmcnt(0)')
    a('s_mov_b64 exec, -1')
    a('v_readfirstlane_b32 s47, v14')
    a('s_nop 3')
    a('s_cmp_eq_u32 s47, 3')
    a(f's_cbranch_scc0 L_{name}_nextjob')
    a(f'v_add_u32 v12, {K2_SUM}, v2')
    for g in range(4): a(f'ds_read_b128 v[{32+4*g}:{35+4*g}], v12 offset:{g*1024}')
    for g in range(4): a(f'ds_read_b128 v[{80+4*g}:{83+4*g}], v12 offset:{4096+g*1024}')
    for g in range(4): a(f'ds_read_b128 v[{48+4*g}:{51+4*g}], v12 offset:{8192+g*1024}')
    a('s_waitcnt lgkmcnt(8)')
    for g in range(4): a(f'ds_read_b128 v[{96+4*g}:{99+4*g}], v12 offset:{12288+g*1024}')
    a('s_waitcnt lgkmcnt(0)')
    a(f'v_mov_b32 v12, {K2_CNT+8}')
    a('v_mov_b32 v13, 1')
    a('ds_write_b32 v12, v13')
    for r in range(16): a(f'v_add_f32 v{48+r}, v{48+r}, v{96+r}')
    for r in range(16): a(f'v_add_f32 v{32+r}, v{32+r}, v{80+r}')
    a('s_cmp_eq_u32 s60, 0')
    a(f's_cbranch_scc1 L_{name}_haveq')
    for r in range(16):
        a(f'v_add_f32 v{32+r}, v{32+r}, v{48+r}')
        a(f'v_mov_b32 v{48+r}, 0')
    a.label(f'L_{name}_haveq')
    for r in range(16):
        a(f'v_sub_f32 v{64+r}, v{32+r}, v{48+r}')
        a(f'v_add_f32 v{32+r}, v{32+r}, v{48+r}')
    for q in range(8):
        a(f'v_cvt_pk_bf16_f32 v{80+q}, v{64+2*q}, v{64+2*q+1}')
        a(f'v_cvt_pk_bf16_f32 v{88+q}, v{32+2*q}, v{32+2*q+1}')
    a('s_lshl_b32 s42, s40, 5')
    a('v_add_u32 v13, s42, v9')
    a(f'v_mul_u32_u24 v13, {YQ_PITCH}, v13')
    a('v_lshl_add_u32 v13, v10, 3, v13')
    a('s_lshl_b32 s42, s41, 6')
    a(f's_add_u32 s42, s42, {WS_Y}')
    a(f's_add_u32 s43, s42, 0x100000')
    for b in range(4):
        a(f'buffer_store_dwordx2 v[{80+2*b}:{81+2*b}], v13, s[24:27], s42 offen offset:{b*16} sc1')
        a(f'buffer_store_dwordx2 v[{88+2*b}:{89+2*b}], v13, s[24:27], s43 offen offset:{b*16} sc1')
    if fused:
        a('s_waitcnt vmcnt(0)')
        a('v_lshlrev_b32 v12, 7, v1')
        a(f'v_add_u32 v12, {WS_FLAG+4}, v12')
        a('v_mov_b32 v13, 1')
        a('s_mov_b64 exec, 0xff')
        a('global_atomic_add v12, v13, s[24:25] sc1')
        a('s_mov_b64 exec, -1')
    a.label(f'L_{name}_nextjob')
    a('s_add_u32 s60, s60, 1')
    a('s_cmp_eq_u32 s60, 1')
    a(f's_cbranch_scc0 L_{name}_fin')
    a('s_cmp_lt_u32 s2, 41')
    a(f's_cbranch_scc0 L_{name}_fin')
    a('s_sub_u32 s42, s2, 9')
    a('s_cmp_lt_u32 s2, 9')
    a('s_cselect_b32 s40, 32, s42')
    a('s_cselect_b32 s41, s2, 8')
    a(f's_branch L_{name}_job')
    a.label(f'L_{name}_fin')
    if fused:
        a.label(f'L_{name}_endB')
        a('s_setprio 0')
        a('s_barrier')
        stamp_flush(a, 6, 24, 32, 12, 1, vtmp=104, extra=78)
        if STAMPS: a('s_mov_b64 exec, -1')
        a('s_cmp_ge_u32 s32, 4')
        a(f's_cbranch_scc1 L_{name}_end')
        phase_c(a, name)
    else:
        stamp_flush(a, 6, 24, 32, 12, 1, vtmp=104, extra=78)
    a.label(f'L_{name}_end')
    a('s_endpgm')
    return 168


K3_X=65536
K3_LDS=K3_X+16384
def gen_k3(a, name):
    a.stflag=''
    kernel_header(a, name)
    a('s_cmp_ge_u32 s2, 256')
    a(f's_cbranch_scc1 L_{name}_end')
    stamp(a,0)
    a('s_load_dwordx2 s[36:37], s[0:1], 56')
    a('s_load_dwordx2 s[38:39], s[0:1], 72')
    a('s_load_dwordx2 s[46:47], s[0:1], 88')
    a('v_lshrrev_b32 v2, 6, v0')
    a('v_and_b32 v1, 63, v0')
    a('v_readfirstlane_b32 s32, v2')
    a('v_lshlrev_b32 v2, 4, v1')
    a('s_and_b32 s33, s2, 7')
    a('s_lshr_b32 s34, s2, 3')
    a('s_and_b32 s35, s34, 3')
    a('s_lshl_b32 s40, s33, 2')
    a('s_add_u32 s40, s40, s35')
    a('s_lshr_b32 s41, s2, 5')
    a('s_and_b32 s42, s32, 1')
    a('s_lshr_b32 s43, s32, 1')
    a('s_lshl_b32 s44, s40, 1')
    a('s_add_u32 s44, s44, s42')
    a('s_add_u32 s50, s41, s35')
    a('s_and_b32 s50, s50, 3')
    a('v_lshrrev_b32 v3, 3, v1')
    a('v_bfe_u32 v4, v1, 4, 1')
    a('v_lshlrev_b32 v4, 2, v4')
    a('v_and_b32 v5, 7, v1')
    a('v_xor_b32 v4, v4, v5')
    a('v_lshlrev_b32 v4, 4, v4')
    a('v_lshl_add_u32 v3, v3, 10, v4')
    a('s_lshl_b32 s45, s43, 8')
    a('s_lshl_b32 s48, s42, 5')
    a('s_add_u32 s45, s45, s48')
    a('s_lshl_b32 s48, s41, 7')
    a('s_lshl_b32 s51, s44, 15')
    a('s_lshl_b32 s52, s43, 14')
    a('s_add_u32 s51, s51, s52')
    a(f's_add_u32 s51, s51, {WS_O}')
    a('s_waitcnt lgkmcnt(0)')
    srd(a, 8, 36, 0x80000)
    srd(a, 24, 46, WS_SIZE)
    OF=32
    def issue(st):
        a(f's_add_u32 s53, s50, {st}')
        a('s_and_b32 s53, s53, 3')
        a('s_lshl_b32 s54, s53, 6')
        a('s_add_u32 s54, s54, s45')
        a('s_lshl_b32 s55, s54, 7')
        a('s_lshl_b32 s56, s54, 10')
        a('s_add_u32 s56, s56, s48')
        for i in range(4):
            a(f's_add_u32 m0, s55, {i*1024}')
            a(f's_add_u32 s57, s56, {i*8192}')
            a('buffer_load_dwordx4 v3, s[8:11], s57 offen lds')
        a('s_lshl_b32 s56, s53, 12')
        a('s_add_u32 s56, s56, s51')
        for i in range(4):
            a(f'buffer_load_dwordx4 v[{OF+16*st+4*i}:{OF+16*st+4*i+3}], v2, s[24:27], s56 offen offset:{i*1024}')
    issue(0); issue(1)
    srd(a, 12, 38, 0x200000)
    a('v_and_b32 v8, 31, v1')
    a('v_lshrrev_b32 v9, 5, v1')
    a('s_lshl_b32 s58, s44, 5')
    a('v_add_u32 v10, s58, v8')
    a('v_sub_u32 v11, 3072, v10')
    a('v_mov_b32 v12, 1024')
    a('v_subrev_u32 v13, 1024, v10')
    a('v_cmp_eq_u32 vcc, 1024, v10')
    a('s_nop 1')
    a('v_cndmask_b32 v11, v11, v12, vcc')
    a('v_cndmask_b32 v13, v13, v12, vcc')
    a('v_cmp_gt_u32 vcc, 1024, v10')
    a('s_nop 1')
    a('v_cndmask_b32 v13, v13, v10, vcc')
    a('v_cndmask_b32 v10, v11, v10, vcc')
    a('v_lshlrev_b32 v11, 10, v10')
    a('v_lshl_add_u32 v11, v9, 3, v11')
    a('s_lshl_b32 s58, s41, 7')
    a('s_lshl_b32 s59, s43, 6')
    a('s_add_u32 s58, s58, s59')
    a('v_add_u32 v11, s58, v11')
    a(f'v_mul_u32_u24 v13, {YQ_PITCH}, v13')
    a('v_lshlrev_b32 v12, 3, v9')
    a('s_cmp_lt_u32 s41, 4')
    a(f's_cbranch_scc0 L_{name}_ym')
    a('v_add_u32 v13, v13, v12')
    a('v_add_u32 v13, s58, v13')
    a(f's_branch L_{name}_ymd')
    a.label(f'L_{name}_ym')
    a('v_sub_u32 v13, v13, v12')
    a('s_sub_u32 s59, 1018-48, s58')
    a('v_add_u32 v13, s59, v13')
    a.label(f'L_{name}_ymd')
    a('s_lshr_b32 s58, s44, 5')
    a('s_lshr_b32 s59, s41, 2')
    a('s_xor_b32 s58, s58, s59')
    a('s_lshl_b32 s58, s58, 20')
    a(f's_add_u32 s60, s58, {WS_Y}')
    a('v_lshlrev_b32 v105, 2, v10')
    a('v_bfe_u32 v5, v1, 2, 2')
    a('v_lshl_add_u32 v6, v9, 2, v5')
    a('v_lshlrev_b32 v6, 7, v6')
    a('v_bfe_u32 v7, v1, 3, 1')
    a('v_lshlrev_b32 v7, 6, v7')
    a('v_bfe_u32 v12, v1, 4, 1')
    a('v_lshl_add_u32 v6, v12, 5, v6')
    a('v_bfe_u32 v12, v1, 1, 1')
    a('v_lshl_add_u32 v6, v12, 4, v6')
    a('v_and_b32 v12, 1, v1')
    a('v_lshl_add_u32 v6, v12, 3, v6')
    a('v_add_u32 v14, v6, v7')
    a('s_lshl_b32 s58, s43, 15')
    a('v_add_u32 v14, s58, v14')
    ACC=[16,112]
    FW=[128,136]
    stamp(a,1)
    first=True
    waits={0:8, 1:8, 2:13, 3:5}
    for st in range(4):
        a(f's_add_u32 s53, s50, {st}')
        a('s_and_b32 s53, s53, 3')
        a('s_lshl_b32 s53, s53, 13')
        a('v_add_u32 v6, s53, v14')
        a('v_xor_b32 v7, 64, v6')
        a(f's_waitcnt vmcnt({waits[st]})')
        a('s_barrier')
        if st==0: stamp(a,2)
        def reads(i):
            s_=i%2
            for j in range(2):
                a(f'ds_read_b64_tr_b16 v[{FW[s_]+4*j}:{FW[s_]+4*j+1}], v{6+j} offset:{i*2048}')
                a(f'ds_read_b64_tr_b16 v[{FW[s_]+4*j+2}:{FW[s_]+4*j+3}], v{6+j} offset:{i*2048+1024}')
        reads(0)
        if st==0: issue(2)
        if st==1:
            issue(3)
            for b in range(4): a(f'buffer_load_dwordx2 v[{96+2*b}:{97+2*b}], v13, s[24:27], s60 offen offset:{b*16}')
            a(f's_mov_b32 s59, {WS_G}')
            a('buffer_load_dword v104, v105, s[24:27], s59 offen')
        for i in range(4):
            if i<3: reads(i+1); a('s_waitcnt lgkmcnt(4)')
            else: a('s_waitcnt lgkmcnt(0)')
            s_=i%2
            for j in range(2):
                c = '0' if first else f'v[{ACC[j]}:{ACC[j]+15}]'
                a(f'v_mfma_f32_32x32x16_bf16 v[{ACC[j]}:{ACC[j]+15}], v[{FW[s_]+4*j}:{FW[s_]+4*j+3}], v[{OF+16*st+4*i}:{OF+16*st+4*i+3}], {c}')
            first=False
    stamp(a,3)
    a('s_lshl_b32 s48, s42, 13')
    a('s_xor_b32 s49, s43, 1')
    a('s_lshl_b32 s49, s49, 12')
    a('s_add_u32 s49, s49, s48')
    a(f's_add_u32 s49, s49, {K3_X}')
    a('v_add_u32 v5, s49, v2')
    a('s_lshl_b32 s49, s43, 12')
    a('s_add_u32 s49, s49, s48')
    a(f's_add_u32 s49, s49, {K3_X}')
    a('v_add_u32 v6, s49, v2')
    a('s_nop 7')
    a('s_cmp_eq_u32 s43, 0')
    a(f's_cbranch_scc0 L_{name}_kw1')
    for g in range(4): a(f'ds_write_b128 v5, v[{ACC[1]+4*g}:{ACC[1]+4*g+3}] offset:{g*1024}')
    a(f's_branch L_{name}_x')
    a.label(f'L_{name}_kw1')
    for g in range(4): a(f'ds_write_b128 v5, v[{ACC[0]+4*g}:{ACC[0]+4*g+3}] offset:{g*1024}')
    a('s_nop 1')
    for r in range(16): a(f'v_mov_b32 v{ACC[0]+r}, v{ACC[1]+r}')
    a.label(f'L_{name}_x')
    a('s_waitcnt vmcnt(0) lgkmcnt(0)')
    a('s_barrier')
    for g in range(4): a(f'ds_read_b128 v[{32+4*g}:{35+4*g}], v6 offset:{g*1024}')
    a('v_sub_f32 v105, 1.0, v104')
    a('s_cmp_lt_u32 s41, 4')
    a(f's_cbranch_scc0 L_{name}_um')
    for b in range(4):
        for q in range(2):
            src=96+2*b+q
            a(f'v_lshlrev_b32 v{48+4*b+2*q}, 16, v{src}')
            a(f'v_and_b32 v{48+4*b+2*q+1}, 0xffff0000, v{src}')
    a(f's_branch L_{name}_umd')
    a.label(f'L_{name}_um')
    for b in range(4):
        g=3-b
        d0=96+2*b; d1=97+2*b
        a(f'v_and_b32 v{48+4*g+0}, 0xffff0000, v{d1}')
        a(f'v_lshlrev_b32 v{48+4*g+1}, 16, v{d1}')
        a(f'v_and_b32 v{48+4*g+2}, 0xffff0000, v{d0}')
        a(f'v_lshlrev_b32 v{48+4*g+3}, 16, v{d0}')
    a.label(f'L_{name}_umd')
    for r in range(16): a(f'v_mul_f32 v{48+r}, v104, v{48+r}')
    a('s_waitcnt lgkmcnt(0)')
    for r in range(16):
        a(f'v_add_f32 v{16+r}, v{16+r}, v{32+r}')
    for r in range(16):
        a(f'v_fmac_f32 v{48+r}, v105, v{16+r}')
    for b in range(4):
        a(f'v_cvt_pk_bf16_f32 v{64+2*b}, v{48+4*b}, v{48+4*b+1}')
        a(f'v_cvt_pk_bf16_f32 v{65+2*b}, v{48+4*b+2}, v{48+4*b+3}')
    for b in range(4):
        a(f'buffer_store_dwordx2 v[{64+2*b}:{65+2*b}], v11, s[12:15], 0 offen offset:{b*16}')
    stamp_flush(a, 4, 24, 32, 4, 2, vtmp=106)
    a.label(f'L_{name}_end')
    a('s_endpgm')
    return 144

def build(kernels):
    a=Asm()
    hdr = """; Kernarg layout (96 bytes): A_x, dft_seq_re, dft_seq_im, dft_hid_re, dft_hid_im, B_x, wqkv, wo, gate_w, out, debug, ws
"""
    descs=''
    body=Asm()
    for (name, fn, grid, block, lds) in kernels:
        hdr += f'; @launch kernel={name} grid=({grid},1,1) block=({block},1,1) lds={lds}\n'
    body.raw('.amdgcn_target "amdgcn-amd-amdhsa--gfx950"')
    body.raw('.text')
    for (name, fn, grid, block, lds) in kernels:
        v=fn(body,name)
        descs += kernel_desc(name, v)
    return hdr + body.text() + '.section .rodata,"a"\n' + descs

if __name__=='__main__':
    which = sys.argv[1] if len(sys.argv)>1 else 'k1'
    ks=[]
    ks.append(('k1_qkv_kernel', gen_k1, 256, 512, K1_LDS))
    if which in ('k2','all'): ks.append(('k2_attn_kernel', gen_k2, 256, 768, K2_LDS))
    if which=='f23': ks.append(('k2_attn_kernel', gen_k23, 256, 768, K2_LDS))
    if which=='all': ks.append(('k3_out_kernel', gen_k3, 256, 256, K3_LDS))
    txt=build(ks)
    out = sys.argv[2] if len(sys.argv)>2 else 'out.s'
    open(out,'w').write(txt)
```

```python
import sys, os
NAME='gated_mix__spectral_fnet__mha_block__prompt'
WS_Q=0; WS_KV=0x200000; WS_O=0x600000; WS_Y=0x800000; WS_T1=0xA00000; WS_T2=0xB00000; WS_G=0xC00000
WS_FLAG=0xC80000
WS_SIZE=0xD00000
YQ_PITCH=576; YQ_SZ=0x98000
T1_ET=65*1024; T2_ET=64*1024
C_SCALE=0.25*1.4426950408889634
import struct
def f2u(x): return struct.unpack('<I',struct.pack('<f',x))[0]

STAMPS = os.environ.get('STAMPS','0')=='1'
NOFNET = os.environ.get('NOFNET','0')=='1'
NOPRIO = os.environ.get('NOPRIO','0')=='1'
FAKEA = os.environ.get('FAKEA','0')=='1'
EXPT = os.environ.get('EXPT','')
PR = [int(x) for x in os.environ.get('PR','9,10,15,63').split(',')]
class Asm:
    def __init__(self): self.L=[]; self.noload=False; self.stflag=''
    def __call__(self, s):
        for line in s.strip('\n').split('\n'):
            if self.noload and line.strip().endswith(' lds'): continue
            if NOPRIO and line.strip().startswith('s_setprio'): continue
            if line.strip().startswith('buffer_store_dwordx4') and self.stflag:
                if self.stflag=='none': continue
                line = line.strip()+' '+self.stflag
            self.L.append('    '+line.strip())
    def label(self, s): self.L.append(s+':')
    def raw(self, s): self.L.append(s)
    def text(self): return '\n'.join(self.L)+'\n'

def srd(a, d, lo, size):
    a(f's_mov_b32 s{d}, s{lo}')
    a(f's_mov_b32 s{d+1}, s{lo+1}')
    a(f's_mov_b32 s{d+2}, {hex(size)}')
    a(f's_mov_b32 s{d+3}, 0x20000')

def pi_perm(a, dst, src, tmp):
    a(f'v_and_b32 v{dst}, 0x13, v{src}')
    a(f'v_and_b32 v{tmp}, 4, v{src}')
    a(f'v_lshl_or_b32 v{dst}, v{tmp}, 1, v{dst}')
    a(f'v_and_b32 v{tmp}, 8, v{src}')
    a(f'v_lshrrev_b32 v{tmp}, 1, v{tmp}')
    a(f'v_or_b32 v{dst}, v{dst}, v{tmp}')

WS_STAMP=0x1000000
def stamp(a, i):
    if STAMPS:
        a(f's_memrealtime s[{80+2*i}:{81+2*i}]')
def stamp_flush(a, n, wsreg, widreg, wpw, kidx, vtmp=100, extra=None):
    if not STAMPS: return
    a('s_waitcnt vmcnt(0) lgkmcnt(0)')
    a(f's_memrealtime s[{80+2*n}:{81+2*n}]')
    a('s_waitcnt lgkmcnt(0)')
    a(f's_mul_i32 s98, s2, {wpw}')
    a(f's_add_u32 s98, s98, s{widreg}')
    a('s_lshl_b32 s98, s98, 5')
    a(f's_add_u32 s98, s98, {WS_STAMP+kidx*0x40000}')
    a(f's_mov_b32 s{wsreg+2}, 0x2000000')
    a('s_mov_b64 exec, 1')
    a(f'v_mov_b32 v{vtmp+1}, 0')
    for i in range(n+1):
        a(f'v_mov_b32 v{vtmp}, s{80+2*i}')
        a(f'buffer_store_dword v{vtmp}, v{vtmp+1}, s[{wsreg}:{wsreg+3}], s98 offen offset:{4*i}')
        a('s_nop 1')
    if extra is not None:
        a(f'v_mov_b32 v{vtmp}, s{extra}')
        a(f'buffer_store_dword v{vtmp}, v{vtmp+1}, s[{wsreg}:{wsreg+3}], s98 offen offset:28')

def kernel_header(a, name):
    a.raw(f'.globl {name}')
    a.raw('.p2align 8')
    a.raw(f'.type {name},@function')
    a.label(name)

def kernel_desc(name, vgpr, sgpr=102):
    acc = (vgpr+3)//4*4
    return f""".p2align 6
.amdhsa_kernel {name}
  .amdhsa_next_free_vgpr {vgpr}
  .amdhsa_next_free_sgpr {sgpr}
  .amdhsa_accum_offset {acc}
  .amdhsa_group_segment_fixed_size 0
  .amdhsa_kernarg_size 96
  .amdhsa_user_sgpr_count 2
  .amdhsa_user_sgpr_kernarg_segment_ptr 1
  .amdhsa_system_sgpr_workgroup_id_x 1
.end_amdhsa_kernel
"""

K1_SLOT=32768
K1_NS=4
K1_X=0; K1_WQK=16384; K1_WV=24576; K1_WD=28672
K1_LDS=K1_NS*K1_SLOT

def gen_k1(a, name):
    NS=K1_NS
    a.noload = 'noload' in EXPT
    a.stflag = 'sc1' if 'st_sc1' in EXPT else 'nt' if 'st_nt' in EXPT else 'none' if 'st_none' in EXPT else 'sc0 sc1' if 'st_sc01' in EXPT else '' if 'st_plain' in EXPT else 'sc1'
    kernel_header(a, name)
    a('s_cmp_ge_u32 s2, 256')
    a(f's_cbranch_scc1 L_{name}_end')
    stamp(a,0)
    a('s_load_dwordx2 s[4:5], s[0:1], 0')
    a('s_load_dwordx4 s[36:39], s[0:1], 24')
    a('s_load_dwordx2 s[42:43], s[0:1], 48')
    a('s_load_dwordx2 s[44:45], s[0:1], 64')
    a('s_load_dwordx2 s[46:47], s[0:1], 88')
    a('v_lshrrev_b32 v2, 6, v0')
    a('v_and_b32 v1, 63, v0')
    a('v_readfirstlane_b32 s32, v2')
    a('s_and_b32 s33, s2, 7')
    a('s_lshr_b32 s34, s2, 3')
    a('s_lshr_b32 s54, s33, 1')
    a('s_lshl_b32 s54, s54, 2')
    a('s_and_b32 s55, s34, 3')
    a('s_add_u32 s54, s54, s55')
    a('s_and_b32 s55, s33, 1')
    a('s_lshl_b32 s55, s55, 3')
    a('s_lshr_b32 s56, s34, 2')
    a('s_add_u32 s55, s55, s56')
    a('s_cmp_lt_u32 s32, 4')
    a(f's_cbranch_scc1 L_{name}_comp')
    a('s_sub_u32 s35, s32, 4')
    a('v_lshrrev_b32 v2, 3, v1')
    a('v_and_b32 v3, 7, v1')
    a('v_lshrrev_b32 v4, 4, v1')
    a('v_xor_b32 v5, v3, v4')
    a('v_lshlrev_b32 v5, 4, v5')
    a('s_lshl_b32 s56, s54, 6')
    a('s_and_b32 s57, s35, 1')
    a('s_lshl_b32 s58, s57, 5')
    a('s_add_u32 s56, s56, s58')
    a('v_add_u32 v11, s56, v2')
    a('s_cmp_lt_u32 s35, 2')
    a(f's_cbranch_scc0 L_{name}_mir')
    a('v_lshl_add_u32 v16, v11, 10, v5')
    a('v_add_u32 v17, 8192, v16')
    a('v_add_u32 v18, 16384, v16')
    a('v_add_u32 v19, 24576, v16')
    a(f's_branch L_{name}_mird')
    a.label(f'L_{name}_mir')
    a('v_sub_u32 v12, 2048, v11')
    a('v_lshl_add_u32 v16, v12, 10, v5')
    a('v_subrev_u32 v17, 8192, v16')
    a('v_subrev_u32 v18, 16384, v16')
    a('v_subrev_u32 v19, 24576, v16')
    a('v_cmp_eq_u32 vcc, 2048, v12')
    a('v_subrev_u32 v13, 0x100000, v16')
    a('s_nop 0')
    a('v_cndmask_b32 v16, v16, v13, vcc')
    a.label(f'L_{name}_mird')
    a('v_xor_b32 v17, 64, v17')
    a('v_xor_b32 v19, 64, v19')
    a('v_bfe_u32 v6, v1, 4, 1')
    a('v_lshlrev_b32 v6, 2, v6')
    a('v_xor_b32 v6, v6, v3')
    a('v_lshlrev_b32 v6, 4, v6')
    a('v_mul_u32_u24 v7, 3072, v2')
    a('v_add_u32 v6, v6, v7')
    a('s_lshl_b32 s58, s55, 7')
    a('v_add_u32 v20, s58, v6')
    a('v_add_u32 v21, 8*3072, v20')
    a('v_lshrrev_b32 v6, 2, v1')
    a('v_mul_u32_u24 v6, 3072, v6')
    a('v_and_b32 v7, 3, v1')
    a('v_lshl_add_u32 v6, v7, 4, v6')
    a('s_lshl_b32 s58, s55, 6')
    a('s_add_u32 s58, s58, 2048')
    a('v_add_u32 v22, s58, v6')
    a('s_lshl_b32 s56, s55, 4')
    a('s_lshl_b32 s58, s57, 3')
    a('s_add_u32 s56, s56, s58')
    a('v_add_u32 v11, s56, v2')
    a('v_lshl_add_u32 v23, v11, 10, v5')
    a('s_lshl_b32 s58, s57, 6')
    a('v_xor_b32 v23, s58, v23')
    a('s_mul_i32 s71, s35, 16*3072')
    if 'norot' in EXPT: a('s_mov_b32 s70, 0')
    else:
        a('s_lshr_b32 s70, s34, 2')
        a('s_and_b32 s72, s34, 3')
        a('s_lshl_b32 s72, s72, 1')
        a('s_add_u32 s70, s70, s72')
        a('s_and_b32 s70, s70, 7')
    a('s_lshl_b32 s56, s70, 7')
    a(f's_mul_i32 s57, s70, {64*3072}')
    a('s_add_u32 s57, s57, s71')
    a('s_lshl_b32 s61, s35, 12')
    a('s_lshl_b32 s62, s35, 11')
    a(f's_add_u32 s62, s62, {K1_WQK}')
    a('s_lshl_b32 s63, s35, 10')
    a(f's_add_u32 s64, s63, {K1_WV}')
    a(f's_add_u32 s63, s63, {K1_WD}')
    a('s_waitcnt lgkmcnt(0)')
    if STAMPS:
        a('s_memrealtime s[76:77]')
        a('s_waitcnt lgkmcnt(0)')
        a('s_sub_u32 s78, s76, s80')
    srd(a, 8, 4, 0x200000)
    srd(a, 16, 42, 0x180000)
    a('s_cmp_lt_u32 s35, 2')
    a('s_cselect_b32 s20, s36, s38')
    a('s_cselect_b32 s21, s37, s39')
    a('s_mov_b32 s22, 0x80000')
    a('s_mov_b32 s23, 0x20000')
    a('s_mov_b32 s52, 0')
    a('s_mov_b32 s50, 0')
    a.label(f'L_{name}_issue')
    a('s_add_u32 s65, s52, s61')
    for i in range(4):
        a(f's_add_u32 m0, s65, {i*1024}')
        a('s_nop 0')
        a(f'buffer_load_dwordx4 v{16+i}, s[8:11], s56 offen lds')
    a('s_add_u32 s65, s52, s62')
    for i in range(2):
        a(f's_add_u32 m0, s65, {i*1024}')
        a('s_nop 0')
        a(f'buffer_load_dwordx4 v{20+i}, s[16:19], s57 offen lds')
    a('s_add_u32 m0, s52, s64')
    a('s_nop 0')
    a(f'buffer_load_dwordx4 v22, s[16:19], s57 offen lds')
    a('s_add_u32 m0, s52, s63')
    a('s_add_u32 s70, s70, 1')
    a(f'buffer_load_dwordx4 v23, s[20:23], s56 offen lds')
    a('s_and_b32 s70, s70, 7')
    a('s_lshl_b32 s56, s70, 7')
    a(f's_mul_i32 s57, s70, {64*3072}')
    a('s_add_u32 s57, s57, s71')
    a(f's_add_u32 s52, s52, {K1_SLOT}')
    a(f's_cmp_eq_u32 s52, {NS*K1_SLOT}')
    a('s_cselect_b32 s52, 0, s52')
    a('s_add_u32 s50, s50, 1')
    a('s_cmp_lt_u32 s50, 2')
    a(f's_cbranch_scc1 L_{name}_issue')
    if STAMPS:
        a('s_cmp_eq_u32 s50, 2')
        a(f's_cbranch_scc0 L_{name}_ns1')
        stamp(a,1)
        a.label(f'L_{name}_ns1')
    a('s_cmp_eq_u32 s50, 8')
    a(f's_cbranch_scc1 L_{name}_ld8')
    a('s_waitcnt vmcnt(8)')
    a('s_barrier')
    if STAMPS:
        a('s_cmp_eq_u32 s50, 2')
        a(f's_cbranch_scc0 L_{name}_ns2')
        stamp(a,2)
        a.label(f'L_{name}_ns2')
    a(f's_branch L_{name}_issue')
    a.label(f'L_{name}_ld8')
    srd(a, 28, 44, 1024)
    a('s_lshl_b32 s48, s2, 3')
    a('s_lshl_b32 s49, s35, 1')
    a('s_add_u32 s48, s48, s49')
    a('s_lshl_b32 s49, s48, 10')
    a('v_lshlrev_b32 v12, 4, v1')
    a('buffer_load_dwordx4 v[24:27], v12, s[8:11], s49 offen')
    a('buffer_load_dwordx4 v[28:31], v12, s[8:11], s49 offen offset:1024')
    a('buffer_load_dwordx4 v[32:35], v12, s[28:31], 0 offen')
    a('s_waitcnt vmcnt(11)')
    a('s_barrier')
    a('s_waitcnt vmcnt(3)')
    a('s_barrier')
    stamp(a,3)
    a('s_barrier')
    srd(a, 24, 46, WS_SIZE)
    a('v_mov_b32 v16, 0'); a('v_mov_b32 v17, 0')
    a('s_waitcnt vmcnt(0)')
    for q in range(4):
        a(f'v_dot2_f32_bf16 v16, v{24+q}, v{32+q}, v16')
        a(f'v_dot2_f32_bf16 v17, v{28+q}, v{32+q}, v17')
    a('s_nop 2')
    def dpp(op):
        a('s_nop 0')
        a(f'v_add_f32_dpp v16, v16, v16 {op}')
        a(f'v_add_f32_dpp v17, v17, v17 {op}')
    for sh in (1,2,4,8): dpp(f'row_shr:{sh} row_mask:0xf bank_mask:0xf')
    dpp('row_bcast:15 row_mask:0xa bank_mask:0xf')
    dpp('row_bcast:31 row_mask:0xc bank_mask:0xf')
    for r in (16,17): a(f'v_mul_f32 v{r}, {hex(f2u(-1.4426950408889634))}, v{r}')
    for r in (16,17): a(f'v_exp_f32 v{r}, v{r}')
    a('s_nop 0')
    for r in (16,17): a(f'v_add_f32 v{r}, 1.0, v{r}')
    for r in (16,17): a(f'v_rcp_f32 v{r}, v{r}')
    a('s_lshl_b32 s49, s48, 2')
    a(f's_add_u32 s49, s49, {WS_G}')
    a('v_mov_b32 v18, 0')
    a('s_mov_b32 exec_lo, 0')
    a('s_mov_b32 exec_hi, 0x80000000')
    a('buffer_store_dwordx2 v[16:17], v18, s[24:27], s49 offen')
    a('s_mov_b64 exec, -1')
    if 'nopf' not in EXPT:
        a('s_cmp_lt_u32 s2, 16')
        a(f's_cbranch_scc0 L_{name}_nopf')
        a('s_cmp_eq_u32 s32, 7')
        a(f's_cbranch_scc0 L_{name}_nopf')
        a('s_getpc_b64 s[72:73]')
        a.label(f'L_{name}_pc')
        a(f's_add_u32 s72, s72, k2_attn_kernel-L_{name}_pc')
        a('s_addc_u32 s73, s73, 0')
        a('v_lshlrev_b32 v18, 4, v1')
        for i in range(6):
            a(f'global_load_dwordx4 v[{36+4*i}:{39+4*i}], v18, s[72:73]')
            a('v_add_u32 v18, 1024, v18')
        a('v_lshlrev_b32 v18, 4, v1')
        a('v_add_u32 v18, L_k2_attn_kernel_end-k2_attn_kernel-1024, v18')
        a('global_load_dwordx4 v[60:63], v18, s[72:73]')
        a.label(f'L_{name}_nopf')
    a('s_cmp_eq_u32 s2, 0')
    a(f's_cbranch_scc0 L_{name}_fin')
    a('s_cmp_eq_u32 s32, 4')
    a(f's_cbranch_scc0 L_{name}_fin')
    for r in range(20,24): a(f'v_mov_b32 v{r}, 0')
    a('v_lshlrev_b32 v18, 4, v1')
    a(f's_mov_b32 s49, {WS_FLAG}')
    a('buffer_store_dwordx4 v[20:23], v18, s[24:27], s49 offen')
    a(f's_branch L_{name}_fin')

    a.label(f'L_{name}_comp')
    a('s_lshr_b32 s35, s32, 1')
    a('s_and_b32 s40, s32, 1')
    a('v_and_b32 v8, 31, v1')
    a('v_lshrrev_b32 v9, 5, v1')
    pi_perm(a, 10, 8, 11)
    def frag_addr(dst0, rowreg, base_off, tmp):
        a(f'v_lshrrev_b32 v{tmp}, 1, v{rowreg}')
        a(f'v_and_b32 v{tmp}, 7, v{tmp}')
        a(f'v_xor_b32 v{tmp}, v{tmp}, v9')
        a(f'v_lshlrev_b32 v{tmp}, 4, v{tmp}')
        a(f'v_lshl_add_u32 v{dst0}, v{rowreg}, 7, v{tmp}')
        if base_off: a(f'v_add_u32 v{dst0}, {base_off}, v{dst0}')
        for ks in range(1,4): a(f'v_xor_b32 v{dst0+ks}, {ks*32}, v{dst0}')
    a('s_lshl_b32 s63, s35, 6')
    a('v_add_u32 v11, s63, v10')
    frag_addr(16, 11, K1_X, 15)
    a('v_bfe_u32 v11, v1, 2, 2')
    a('v_lshl_add_u32 v11, v9, 3, v11')
    a('v_bfe_u32 v12, v1, 4, 1')
    a('v_and_b32 v13, 3, v1')
    ACC=[[32,48],[64,80]]
    for r in range(32,96): a(f'v_mov_b32 v{r}, 0')
    FS=[96,112,128,144]
    WA=160
    a('s_mov_b32 s50, 0')
    a('s_mov_b32 s51, 0')
    srd_done=[False]
    def mf(d,A,B): a(f'v_mfma_f32_32x32x16_bf16 v[{d}:{d+15}], v[{A}:{A+3}], v[{B}:{B+3}], v[{d}:{d+15}]')
    def capture(fn, *args):
        sub=Asm(); saved=a.L; a.L=sub.L
        fn(*args); a.L=saved
        return [x.strip() for x in sub.L]
    def inter(ms, others):
        pre=[x for x in ms if not x.startswith('v_mfma')]
        mm=[x for x in ms if x.startswith('v_mfma')]
        k=len(mm); per=-(-len(others)//k) if others else 0
        for x in pre: a(x)
        if pre: a('s_nop 0')
        oi=0
        for i,x in enumerate(mm):
            a(x)
            for y in others[oi:oi+per]: a(y)
            oi+=per
        for y in others[oi:]: a(y)
    def run(tag, n, setaddr, reads, mfmas):
        if 'nocomp' in EXPT:
            reads=lambda k: None
            mfmas=lambda k: None
        a('s_waitcnt lgkmcnt(0)')
        a('s_barrier')
        stamp(a,2)
        if STAMPS: a('s_memtime s[74:75]')
        setaddr('s51')
        reads(0); reads(1)
        a.label(f'L_{tag}_loop')
        a(f's_waitcnt lgkmcnt({n})'); inter(capture(mfmas,0), capture(reads,2))
        a(f's_waitcnt lgkmcnt({n})'); inter(capture(mfmas,1), capture(reads,3))
        a('s_cmp_eq_u32 s50, 7')
        a(f's_cbranch_scc1 L_{tag}_last')
        a(f's_add_u32 s51, s51, {K1_SLOT}')
        a(f's_cmp_eq_u32 s51, {NS*K1_SLOT}')
        a('s_cselect_b32 s51, 0, s51')
        setaddr('s51')
        a('s_barrier')
        a(f's_waitcnt lgkmcnt({n})')
        inter(capture(mfmas,2), capture(reads,0))
        a(f's_waitcnt lgkmcnt({n})'); inter(capture(mfmas,3), capture(reads,1))
        a('s_add_u32 s50, s50, 1')
        a(f's_branch L_{tag}_loop')
        a.label(f'L_{tag}_last')
        a(f's_waitcnt lgkmcnt({n})'); inter(capture(mfmas,2), [])
        a('s_waitcnt lgkmcnt(0)'); inter(capture(mfmas,3), [])
        if STAMPS:
            a('s_memtime s[76:77]')
            a('s_waitcnt lgkmcnt(0)')
            a('s_sub_u32 s78, s76, s74')
    stamp(a,1)
    a('s_cmp_eq_u32 s40, 0')
    a(f's_cbranch_scc0 L_{name}_cw1')
    a('v_lshlrev_b32 v20, 7, v11')
    a('v_bfe_u32 v14, v1, 3, 1')
    a('v_lshl_add_u32 v20, v14, 6, v20')
    a('v_lshl_add_u32 v20, v12, 5, v20')
    a('v_lshrrev_b32 v14, 1, v13')
    a('v_lshl_add_u32 v20, v14, 4, v20')
    a('v_and_b32 v14, 1, v13')
    a('v_lshl_add_u32 v20, v14, 3, v20')
    a(f'v_add_u32 v20, {K1_WQK}, v20')
    a('v_xor_b32 v21, 64, v20')
    def setaddr0(sS):
        for ks in range(4): a(f'v_add_u32 v{WA+ks}, {sS}, v{16+ks}')
        a(f'v_add_u32 v{WA+4}, {sS}, v20')
        a(f'v_add_u32 v{WA+5}, {sS}, v21')
    def reads0(ks):
        F=FS[ks]
        a(f'ds_read_b128 v[{F}:{F+3}], v{WA+ks}')
        a(f'ds_read_b128 v[{F+4}:{F+7}], v{WA+ks} offset:4096')
        for j in range(2):
            a(f'ds_read_b64_tr_b16 v[{F+8+4*j}:{F+9+4*j}], v{WA+4+j} offset:{ks*2048}')
            a(f'ds_read_b64_tr_b16 v[{F+10+4*j}:{F+11+4*j}], v{WA+4+j} offset:{ks*2048+512}')
    def mfmas0(ks):
        F=FS[ks]
        for t in range(2):
            for j in range(2): mf(ACC[t][j], F+8+4*j, F+4*t)
    run(f'{name}_a', 6, setaddr0, reads0, mfmas0)
    stamp(a,3)
    a('s_barrier')
    srd(a, 24, 46, WS_SIZE)
    a('s_lshl_b32 s56, s54, 1')
    a('s_lshl_b32 s57, s35, 5')
    a('s_add_u32 s56, s56, s57')
    a('s_cmp_ge_u32 s55, 8')
    a('s_cselect_b32 s57, 17, 16')
    a('s_cselect_b32 s58, 11, 10')
    a(f's_cselect_b32 s59, {WS_KV}, {WS_Q}')
    a(f's_cselect_b32 s60, 1.0, {hex(f2u(C_SCALE))}')
    a('s_lshl_b32 s57, 1, s57')
    a('s_lshl_b32 s61, s56, s58')
    a('s_add_u32 s59, s59, s61')
    a('s_lshl_b32 s63, 1, s58')
    a('s_and_b32 s62, s55, 7')
    a('s_lshl_b32 s62, s62, 2')
    a('s_mul_i32 s62, s62, s57')
    a('s_add_u32 s59, s59, s62')
    a('v_lshlrev_b32 v11, 9, v9')
    a('v_lshl_add_u32 v11, v10, 4, v11')
    a('s_nop 7')
    k=0
    for t in range(2):
        a(f's_mov_b32 s64, s59')
        for j in range(2):
            for hb in range(2):
                base=ACC[t][j]+8*hb
                for r in range(8): a(f'v_mul_f32 v{base+r}, s60, v{base+r}')
                d=96+4*k; k+=1
                for q in range(4): a(f'v_cvt_pk_bf16_f32 v{d+q}, v{base+2*q}, v{base+2*q+1}')
                a(f'buffer_store_dwordx4 v[{d}:{d+3}], v11, s[24:27], s64 offen')
                a('s_add_u32 s64, s64, s57')
        a('s_add_u32 s59, s59, s63')
    a(f's_branch L_{name}_fin')
    a.label(f'L_{name}_cw1')
    a('v_lshlrev_b32 v20, 6, v11')
    a('v_lshl_add_u32 v20, v12, 5, v20')
    a('v_lshl_add_u32 v20, v13, 3, v20')
    a(f'v_add_u32 v20, {K1_WV}, v20')
    frag_addr(24, 8, K1_WD, 15)
    a('s_cmp_eq_u32 s55, 0')
    a('s_cselect_b32 s66, 0x10000, 0')
    a('s_mov_b32 s67, s66')
    a('v_mov_b32 v14, 0xbf803f80')
    def setaddr1(sS):
        for ks in range(4): a(f'v_add_u32 v{WA+ks}, {sS}, v{16+ks}')
        a(f'v_add_u32 v{WA+4}, {sS}, v20')
        for ks in range(4): a(f'v_add_u32 v{WA+5+ks}, {sS}, v{24+ks}')
    def reads1(ks):
        F=FS[ks]
        a(f'ds_read_b128 v[{F}:{F+3}], v{WA+ks}')
        a(f'ds_read_b128 v[{F+4}:{F+7}], v{WA+ks} offset:4096')
        a(f'ds_read_b64_tr_b16 v[{F+8}:{F+9}], v{WA+4} offset:{ks*1024}')
        a(f'ds_read_b64_tr_b16 v[{F+10}:{F+11}], v{WA+4} offset:{ks*1024+256}')
        a(f'ds_read_b128 v[{F+12}:{F+15}], v{WA+5+ks}')
    def mfmas1(ks):
        F=FS[ks]
        for q in range(4): a(f'v_cndmask_b32 v{F+12+q}, v{F+12+q}, v14, s[66:67]')
        for t in range(2): mf(ACC[t][0], F+4*t, F+8)
        for t in range(2): mf(ACC[t][1], F+4*t, F+12)
    run(f'{name}_b', 5, setaddr1, reads1, mfmas1)
    stamp(a,3)
    srd(a, 24, 46, WS_SIZE)
    a('s_nop 15')
    XCH = 0
    a('v_lshlrev_b32 v11, 4, v1')
    a(f'v_add_u32 v11, {XCH}, v11')
    a('s_cmp_eq_u32 s35, 1')
    a(f's_cbranch_scc0 L_{name}_nowr')
    for t in range(2):
        for g in range(4): a(f'ds_write_b128 v11, v[{ACC[t][1]+4*g}:{ACC[t][1]+4*g+3}] offset:{t*4096+g*1024}')
    a('s_waitcnt lgkmcnt(0)')
    a.label(f'L_{name}_nowr')
    a('s_barrier')
    a('s_lshl_b32 s56, s54, 1')
    a('s_lshl_b32 s57, s35, 5')
    a('s_add_u32 s58, s56, s57')
    a('v_lshrrev_b32 v12, 4, v8')
    a('v_lshlrev_b32 v12, 17, v12')
    a('v_lshl_add_u32 v12, v9, 9, v12')
    a('v_and_b32 v13, 15, v8')
    a('v_lshl_add_u32 v12, v13, 4, v12')
    a('s_lshl_b32 s61, s55, 18')
    a('s_lshl_b32 s62, s58, 11')
    a('s_add_u32 s61, s61, s62')
    a(f's_add_u32 s61, s61, {WS_KV+1024}')
    for t in range(2):
        for mfi in range(2):
            base=ACC[t][0]+8*mfi
            d=96+8*t+4*mfi
            for q in range(4): a(f'v_cvt_pk_bf16_f32 v{d+q}, v{base+2*q}, v{base+2*q+1}')
            a(f'buffer_store_dwordx4 v[{d}:{d+3}], v12, s[24:27], s61 offen offset:{t*2048+mfi*256}')
    a('s_cmp_eq_u32 s35, 1')
    a(f's_cbranch_scc1 L_{name}_fin')
    for t in range(2):
        for g in range(4): a(f'ds_read_b128 v[{112+16*t+4*g}:{115+16*t+4*g}], v11 offset:{t*4096+g*1024}')
    a('v_mov_b32 v12, -1.0')
    a('v_mov_b32 v13, 1.0')
    a('v_cmp_gt_u32 vcc, 16, v8')
    a('s_nop 1')
    a('v_cndmask_b32 v12, v12, v13, vcc')
    a('v_cndmask_b32 v12, v12, v13, s[66:67]')
    a('s_lshr_b32 s57, s55, 1')
    a(f's_mul_i32 s58, s57, {T1_ET}')
    a(f's_add_u32 s58, s58, {WS_T1}')
    a('s_lshl_b32 s59, s57, 16')
    a(f's_add_u32 s59, s59, {WS_T2}')
    a('s_and_b32 s60, s55, 1')
    a('s_lshl_b32 s60, s60, 8')
    a('v_and_b32 v16, 15, v8')
    a('v_lshlrev_b32 v16, 4, v16')
    a('v_lshl_add_u32 v16, v9, 9, v16')
    a('v_add_u32 v16, s60, v16')
    a('v_mov_b32 v17, s59')
    a('v_mov_b32 v18, s58')
    a('v_cndmask_b32 v17, v17, v18, vcc')
    a('v_add_u32 v17, v17, v16')
    a(f'v_mov_b32 v18, {WS_T1+8*T1_ET}')
    a('v_lshl_add_u32 v18, v9, 9, v18')
    a('v_cndmask_b32 v19, v17, v18, s[66:67]')
    a('s_waitcnt lgkmcnt(0)')
    a('v_mov_b32 v15, v112')
    a('s_cmp_eq_u32 s56, 0')
    a('s_cselect_b32 s68, -1, 0')
    a('s_mov_b32 s69, 0')
    a('v_mov_b32 v13, 0')
    a('v_cndmask_b32 v112, v112, v13, s[68:69]')
    a('s_lshl_b32 s63, s56, 11')
    for t in range(2):
        A_=ACC[t][1]
        for r in range(16): a(f'v_fma_f32 v{A_+r}, v{112+16*t+r}, v12, v{A_+r}')
        for q in range(8): a(f'v_cvt_pk_bf16_f32 v{144+8*t+q}, v{A_+2*q}, v{A_+2*q+1}')
        for c in range(2):
            a(f'buffer_store_dwordx4 v[{144+8*t+4*c}:{147+8*t+4*c}], v19, s[24:27], s63 offen offset:{t*2048+c*1024}')
    a('s_cmp_eq_u32 s55, 0')
    a(f's_cbranch_scc0 L_{name}_nz')
    for r in range(4): a(f'v_mov_b32 v{104+r}, 0')
    a('s_mov_b64 exec, s[66:67]')
    for q in range(4): a(f'buffer_store_dwordx4 v[104:107], v17, s[24:27], s63 offen offset:{q*1024}')
    a('s_mov_b64 exec, -1')
    a.label(f'L_{name}_nz')
    a('s_cmp_eq_u32 s56, 0')
    a(f's_cbranch_scc0 L_{name}_fin')
    a('v_mov_b32 v13, 0')
    a('v_cndmask_b32 v15, v13, v15, s[68:69]')
    a('v_cvt_pk_bf16_f32 v108, v15, v13')
    a('v_mov_b32 v109, 0'); a('v_mov_b32 v110, 0'); a('v_mov_b32 v111, 0')
    a('s_mov_b32 s70, 0x0000ffff')
    a('s_mov_b32 s71, 0x0000ffff')
    a('s_or_b64 s[70:71], s[70:71], s[66:67]')
    a('s_mov_b64 exec, s[70:71]')
    a(f's_mov_b32 s63, {64*1024}')
    a('buffer_store_dwordx4 v[108:111], v19, s[24:27], s63 offen')
    a('s_mov_b64 exec, -1')
    a.label(f'L_{name}_fin')
    if STAMPS: srd(a, 24, 46, WS_SIZE)
    stamp_flush(a, 4, 24, 32, 8, 0, vtmp=170, extra=78)
    a.label(f'L_{name}_end')
    a('s_endpgm')
    return 176


SPIN_MAX=400000
SLEEP=int(os.environ.get('SLEEP','2'))
def poll(a, tag, addr_v, exp_v, nl, base='s[56:57]', tmp=12):
    a(f's_mov_b32 s61, 0')
    a(f's_mov_b64 exec, {(1<<nl)-1}')
    a.label(f'L_{tag}_poll')
    a(f'global_load_dword v{tmp}, v{addr_v}, {base} sc1')
    a('s_waitcnt vmcnt(0)')
    a(f'v_cmp_eq_u32 vcc, v{tmp}, v{exp_v}')
    a('s_add_u32 s61, s61, 1')
    a('s_nop 2')
    a(f's_cmp_eq_u64 vcc, exec')
    a(f's_cbranch_scc1 L_{tag}_polld')
    a(f's_cmp_ge_u32 s61, {SPIN_MAX}')
    a(f's_cbranch_scc1 L_{tag}_polld')
    a(f's_sleep {SLEEP}')
    a(f's_branch L_{tag}_poll')
    a.label(f'L_{tag}_polld')
    a('s_mov_b64 exec, -1')

def phase_c(a, name):
    stamp(a,0)
    a('s_load_dwordx2 s[36:37], s[0:1], 56')
    a('s_load_dwordx2 s[38:39], s[0:1], 72')
    a('s_cmp_eq_u32 s32, 0')
    a(f's_cbranch_scc0 L_{name}_nosig')
    a('s_lshr_b32 s33, s2, 5')
    a('s_lshl_b32 s33, s33, 7')
    a(f's_add_u32 s33, s33, {WS_FLAG}')
    a('v_mov_b32 v12, s33')
    a('v_mov_b32 v13, 1')
    a('s_mov_b64 exec, 1')
    a('global_atomic_add v12, v13, s[24:25] sc1')
    a('s_mov_b64 exec, -1')
    a.label(f'L_{name}_nosig')
    a('s_and_b32 s33, s2, 7')
    a('s_lshr_b32 s34, s2, 3')
    a('s_and_b32 s35, s34, 3')
    a('s_lshl_b32 s40, s33, 2')
    a('s_add_u32 s40, s40, s35')
    a('s_lshr_b32 s41, s2, 5')
    a('s_and_b32 s42, s32, 1')
    a('s_lshr_b32 s43, s32, 1')
    a('s_lshl_b32 s44, s40, 1')
    a('s_add_u32 s44, s44, s42')
    a('v_lshrrev_b32 v3, 3, v1')
    a('v_bfe_u32 v4, v1, 4, 1')
    a('v_lshlrev_b32 v4, 2, v4')
    a('v_and_b32 v5, 7, v1')
    a('v_xor_b32 v4, v4, v5')
    a('v_lshlrev_b32 v4, 4, v4')
    a('v_lshl_add_u32 v3, v3, 10, v4')
    a('s_lshl_b32 s45, s32, 17')
    a('s_lshl_b32 s48, s41, 7')
    a('s_add_u32 s45, s45, s48')
    a('s_lshl_b32 s55, s32, 14')
    a('s_waitcnt lgkmcnt(0)')
    srd(a, 8, 36, 0x80000)
    for i in range(16):
        a(f's_add_u32 m0, s55, {i*1024}')
        a(f's_add_u32 s49, s45, {i*8192}')
        a('buffer_load_dwordx4 v3, s[8:11], s49 offen lds')
    srd(a, 12, 38, 0x200000)
    a('v_and_b32 v8, 31, v1')
    a('v_lshrrev_b32 v9, 5, v1')
    a('s_lshl_b32 s58, s44, 5')
    a('v_add_u32 v10, s58, v8')
    a('v_sub_u32 v11, 3072, v10')
    a('v_mov_b32 v12, 1024')
    a('v_subrev_u32 v13, 1024, v10')
    a('v_cmp_eq_u32 vcc, 1024, v10')
    a('s_nop 1')
    a('v_cndmask_b32 v11, v11, v12, vcc')
    a('v_cndmask_b32 v13, v13, v12, vcc')
    a('v_cmp_gt_u32 vcc, 1024, v10')
    a('s_nop 1')
    a('v_cndmask_b32 v13, v13, v10, vcc')
    a('v_cndmask_b32 v10, v11, v10, vcc')
    a('v_lshlrev_b32 v11, 10, v10')
    a('v_lshl_add_u32 v11, v9, 3, v11')
    a('s_lshl_b32 s58, s41, 7')
    a('s_lshl_b32 s59, s43, 6')
    a('s_add_u32 s58, s58, s59')
    a('v_add_u32 v11, s58, v11')
    a(f'v_mul_u32_u24 v13, {YQ_PITCH}, v13')
    a('v_lshlrev_b32 v12, 3, v9')
    a('s_cmp_lt_u32 s41, 4')
    a(f's_cbranch_scc0 L_{name}_ym')
    a('v_add_u32 v13, v13, v12')
    a('v_add_u32 v13, s58, v13')
    a(f's_branch L_{name}_ymd')
    a.label(f'L_{name}_ym')
    a('v_sub_u32 v13, v13, v12')
    a('s_sub_u32 s59, 1018-48, s58')
    a('v_add_u32 v13, s59, v13')
    a.label(f'L_{name}_ymd')
    a('s_lshr_b32 s58, s44, 5')
    a('s_lshr_b32 s59, s41, 2')
    a('s_xor_b32 s58, s58, s59')
    a('s_lshl_b32 s58, s58, 20')
    a(f's_add_u32 s60, s58, {WS_Y}')
    a('v_lshlrev_b32 v105, 2, v10')
    a('v_bfe_u32 v5, v1, 2, 2')
    a('v_lshl_add_u32 v6, v9, 2, v5')
    a('v_lshlrev_b32 v6, 7, v6')
    a('v_bfe_u32 v7, v1, 3, 1')
    a('v_lshlrev_b32 v7, 6, v7')
    a('v_bfe_u32 v16, v1, 4, 1')
    a('v_lshl_add_u32 v6, v16, 5, v6')
    a('v_bfe_u32 v16, v1, 1, 1')
    a('v_lshl_add_u32 v6, v16, 4, v6')
    a('v_and_b32 v16, 1, v1')
    a('v_lshl_add_u32 v6, v16, 3, v6')
    a('v_add_u32 v14, v6, v7')
    a('s_lshl_b32 s58, s43, 15')
    a('v_add_u32 v14, s58, v14')
    a('v_xor_b32 v15, 64, v14')
    a(f's_mov_b32 s59, {WS_G}')
    a('buffer_load_dword v104, v105, s[24:27], s59 offen')
    stamp(a,1)
    a('s_cmp_eq_u32 s32, 0')
    a(f's_cbranch_scc0 L_{name}_nopoll')
    a('s_lshl_b32 s58, s33, 7')
    a(f's_add_u32 s58, s58, {WS_FLAG}')
    a('v_lshlrev_b32 v16, 2, v1')
    a('v_add_u32 v16, s58, v16')
    a('v_mov_b32 v17, 32')
    a('v_mov_b32 v19, 297')
    a('v_cmp_eq_u32 vcc, 1, v1')
    a('s_nop 1')
    a('v_cndmask_b32 v17, v17, v19, vcc')
    poll(a, name+'_c', 16, 17, 2, base='s[24:25]', tmp=18)
    a.label(f'L_{name}_nopoll')
    a('s_waitcnt vmcnt(0)')
    a('s_barrier')
    stamp(a,2)
    OF=32
    a('s_lshl_b32 s51, s44, 15')
    a('s_lshl_b32 s52, s43, 14')
    a('s_add_u32 s51, s51, s52')
    a(f's_add_u32 s51, s51, {WS_O}')
    for i in range(16):
        if i%4==0 and i: a('s_add_u32 s51, s51, 4096')
        a(f'buffer_load_dwordx4 v[{OF+4*i}:{OF+4*i+3}], v2, s[24:27], s51 offen offset:{(i%4)*1024} sc1')
    for b in range(4): a(f'buffer_load_dwordx2 v[{96+2*b}:{97+2*b}], v13, s[24:27], s60 offen offset:{b*16} sc1')
    ACC=[16,112]; FW=[128,136]
    def reads(i):
        s_=i%2
        for j in range(2):
            a(f'ds_read_b64_tr_b16 v[{FW[s_]+4*j}:{FW[s_]+4*j+1}], v{14+j} offset:{i*2048}')
            a(f'ds_read_b64_tr_b16 v[{FW[s_]+4*j+2}:{FW[s_]+4*j+3}], v{14+j} offset:{i*2048+1024}')
    reads(0)
    for i in range(16):
        if i<15: reads(i+1); a(f's_waitcnt vmcnt({4+15-i}) lgkmcnt(4)')
        else: a('s_waitcnt vmcnt(4) lgkmcnt(0)')
        s_=i%2
        for j in range(2):
            c = '0' if i==0 else f'v[{ACC[j]}:{ACC[j]+15}]'
            a(f'v_mfma_f32_32x32x16_bf16 v[{ACC[j]}:{ACC[j]+15}], v[{FW[s_]+4*j}:{FW[s_]+4*j+3}], v[{OF+4*i}:{OF+4*i+3}], {c}')
    stamp(a,3)
    K3X=65536
    a('s_lshl_b32 s48, s42, 13')
    a('s_xor_b32 s49, s43, 1')
    a('s_lshl_b32 s49, s49, 12')
    a('s_add_u32 s49, s49, s48')
    a(f's_add_u32 s49, s49, {K3X}')
    a('v_add_u32 v5, s49, v2')
    a('s_lshl_b32 s49, s43, 12')
    a('s_add_u32 s49, s49, s48')
    a(f's_add_u32 s49, s49, {K3X}')
    a('v_add_u32 v6, s49, v2')
    a('s_nop 7')
    a('s_cmp_eq_u32 s43, 0')
    a(f's_cbranch_scc0 L_{name}_kw1')
    for g in range(4): a(f'ds_write_b128 v5, v[{ACC[1]+4*g}:{ACC[1]+4*g+3}] offset:{g*1024}')
    a(f's_branch L_{name}_x')
    a.label(f'L_{name}_kw1')
    for g in range(4): a(f'ds_write_b128 v5, v[{ACC[0]+4*g}:{ACC[0]+4*g+3}] offset:{g*1024}')
    a('s_nop 1')
    for r in range(16): a(f'v_mov_b32 v{ACC[0]+r}, v{ACC[1]+r}')
    a.label(f'L_{name}_x')
    a('s_waitcnt vmcnt(0) lgkmcnt(0)')
    a('s_barrier')
    for g in range(4): a(f'ds_read_b128 v[{32+4*g}:{35+4*g}], v6 offset:{g*1024}')
    a('v_sub_f32 v105, 1.0, v104')
    a('s_cmp_lt_u32 s41, 4')
    a(f's_cbranch_scc0 L_{name}_um')
    for b in range(4):
        for q in range(2):
            src=96+2*b+q
            a(f'v_lshlrev_b32 v{48+4*b+2*q}, 16, v{src}')
            a(f'v_and_b32 v{48+4*b+2*q+1}, 0xffff0000, v{src}')
    a(f's_branch L_{name}_umd')
    a.label(f'L_{name}_um')
    for b in range(4):
        g=3-b
        d0=96+2*b; d1=97+2*b
        a(f'v_and_b32 v{48+4*g+0}, 0xffff0000, v{d1}')
        a(f'v_lshlrev_b32 v{48+4*g+1}, 16, v{d1}')
        a(f'v_and_b32 v{48+4*g+2}, 0xffff0000, v{d0}')
        a(f'v_lshlrev_b32 v{48+4*g+3}, 16, v{d0}')
    a.label(f'L_{name}_umd')
    for r in range(16): a(f'v_mul_f32 v{48+r}, v104, v{48+r}')
    a('s_waitcnt lgkmcnt(0)')
    for r in range(16): a(f'v_add_f32 v{16+r}, v{16+r}, v{32+r}')
    for r in range(16): a(f'v_fmac_f32 v{48+r}, v105, v{16+r}')
    for b in range(4):
        a(f'v_cvt_pk_bf16_f32 v{64+2*b}, v{48+4*b}, v{48+4*b+1}')
        a(f'v_cvt_pk_bf16_f32 v{65+2*b}, v{48+4*b+2}, v{48+4*b+3}')
    for b in range(4):
        a(f'buffer_store_dwordx2 v[{64+2*b}:{65+2*b}], v11, s[12:15], 0 offen offset:{b*16}')
    stamp_flush(a, 4, 24, 32, 4, 2, vtmp=106)

K2_SUM=131072
K2_CNT=K2_SUM+16384
K2_LDS=K2_CNT+64
def gen_k23(a, name):
    return gen_k2(a, name, fused=True)

def gen_k2(a, name, fused=False):
    a.noload=False
    kernel_header(a, name)
    a('s_cmp_ge_u32 s2, 256')
    a(f's_cbranch_scc1 L_{name}_end')
    stamp(a,0)
    a('s_load_dwordx4 s[36:39], s[0:1], 8')
    a('s_load_dwordx2 s[46:47], s[0:1], 88')
    a('s_load_dwordx2 s[56:57], s[0:1], 80')
    a('v_lshrrev_b32 v2, 6, v0')
    a('v_and_b32 v1, 63, v0')
    a('v_readfirstlane_b32 s32, v2')
    a('v_lshlrev_b32 v2, 4, v1')
    a('s_and_b32 s33, s2, 7')
    a('s_lshr_b32 s34, s2, 3')
    a('s_and_b32 s35, s34, 3')
    a('s_lshl_b32 s40, s33, 2')
    a('s_add_u32 s40, s40, s35')
    a('s_lshr_b32 s41, s2, 5')
    a('s_waitcnt lgkmcnt(0)')
    srd(a, 24, 46, WS_SIZE)
    a('s_cmp_ge_u32 s32, 8')
    a(f's_cbranch_scc1 L_{name}_fnet')
    Q=4; C=8; S=[24,40]; O=56; K=[72,76]; V0=[80,88]; V1=[84,92]; ADDR=96; IDX=3
    a('s_lshl_b32 s42, s41, 3')
    a('s_add_u32 s42, s42, s32')
    a('s_lshl_b32 s43, s40, 16')
    a('s_lshl_b32 s44, s42, 10')
    a('s_add_u32 s43, s43, s44')
    a(f'buffer_load_dwordx4 v[{Q}:{Q+3}], v2, s[24:27], s43 offen')
    a('s_lshl_b32 s43, s40, 17')
    a(f's_add_u32 s43, s43, {WS_KV}')
    a('s_lshl_b32 s44, s32, 11')
    if 'kvrot' in EXPT:
        a('s_lshl_b32 s46, s41, 3')
        a('s_add_u32 s46, s46, s32')
    else: a('s_mov_b32 s46, s32')
    for i in range(8):
        a(f's_add_u32 m0, s44, {i*8*2048}')
        a('s_and_b32 s46, s46, 63')
        a('s_lshl_b32 s45, s46, 11')
        a('s_add_u32 s45, s45, s43')
        a('buffer_load_dwordx4 v2, s[24:27], s45 offen lds')
        a('buffer_load_dwordx4 v2, s[24:27], s45 offen offset:1024 lds')
        a('s_add_u32 s46, s46, 8')
    a(f'v_mov_b32 v{IDX}, 0xdddddddd')
    if 'allones' in EXPT:
        for r in range(80,96): a(f'v_mov_b32 v{r}, 0x3f803f80')
    else:
        a('v_mov_b32 v97, 0')
        a('v_mov_b32 v98, 0x3f803f80')
        a('s_mov_b32 s52, 0x00110000')
        a('s_mov_b32 s53, 0x00110000')
        a('v_cndmask_b32 v97, v97, v98, s[52:53]')
        for r in range(80,96): a(f'v_mov_b32 v{r}, v97')
    a('s_mov_b32 s48, 0x0000ffff')
    a('s_mov_b32 s49, 0x0000ffff')
    a('s_mov_b32 s50, 0')
    a('s_cmp_lt_u32 s32, 4')
    a(f's_cselect_b32 s54, {PR[0]}, {PR[1]}')
    a(f's_cselect_b32 s55, {PR[2]}, {PR[3]}')
    a('s_setprio 2')
    a('s_waitcnt vmcnt(12)')
    a('s_barrier')
    stamp(a,1)
    a(f'ds_read_b128 v[{K[0]}:{K[0]+3}], v2')
    a('s_waitcnt lgkmcnt(0)')
    a(f'v_mfma_f32_32x32x16_bf16 v[{S[0]}:{S[0]+15}], v[{K[0]}:{K[0]+3}], v[{Q}:{Q+3}], 0')
    a('s_nop 15')
    s0=S[0]
    a(f'v_max3_f32 v97, v{s0}, v{s0+1}, v{s0+2}')
    for r in range(3,15,2): a(f'v_max3_f32 v97, v97, v{s0+r}, v{s0+r+1}')
    a(f'v_max_f32 v97, v97, v{s0+15}')
    a.label(f'L_{name}_havemax')
    a('v_mov_b32 v98, v97')
    a('s_nop 1')
    a('v_permlane32_swap_b32 v97, v98')
    a('s_nop 1')
    a('v_max_f32 v97, v97, v98')
    for r in range(16): a(f'v_sub_f32 v{C+r}, 0, v97')
    for r in range(16): a(f'v_mov_b32 v{O+r}, 0')
    for r in range(8,16): a(f'v_mov_b32 v{S[1]+r}, 0')
    a(f'v_mov_b32 v{ADDR}, v2')
    a(f'ds_read_b128 v[{K[0]}:{K[0]+3}], v2')
    a(f'ds_read_b128 v[{K[1]}:{K[1]+3}], v2 offset:2048')
    a('s_mov_b64 exec, s[48:49]')
    a(f'ds_read_b128 v[{V0[0]}:{V0[0]+3}], v2 offset:1024')
    a(f'ds_read_b128 v[{V1[0]}:{V1[0]+3}], v2 offset:1280')
    a('s_mov_b64 exec, -1')
    a('s_waitcnt lgkmcnt(0)')
    a(f'v_mfma_f32_32x32x16_bf16 v[{S[0]}:{S[0]+15}], v[{K[0]}:{K[0]+3}], v[{Q}:{Q+3}], v[{C}:{C+15}]')
    a('s_mov_b32 s51, 0')
    if STAMPS: a('s_memtime s[74:75]')
    a('s_nop 15')
    a.raw('.p2align 6')
    a.label(f'L_{name}_loop')
    for i in range(4):
        cur=S[i%2]; prev=S[(i+1)%2]
        def e(x,y):
            for j in range(x,y):
                if 'noexp' in EXPT: a(f'v_mov_b32 v{cur+j}, v{cur+j}')
                else: a(f'v_exp_f32 v{cur+j}, v{cur+j}')
        a('s_waitcnt lgkmcnt(0)')
        e(0,2)
        if 'nopv' not in EXPT: a(f'v_smfmac_f32_32x32x32_bf16 v[{O}:{O+15}], v[{V1[(i+1)%2]}:{V1[(i+1)%2]+3}], v[{prev+8}:{prev+15}], v{IDX}')
        if 'nolds' not in EXPT:
            a(f'ds_read_b128 v[{K[i%2]}:{K[i%2]+3}], v{ADDR} offset:{(i+2)*2048}')
            a('s_mov_b64 exec, s[48:49]')
            a(f'ds_read_b128 v[{V0[(i+1)%2]}:{V0[(i+1)%2]+3}], v{ADDR} offset:{(i+1)*2048+1024}')
            a(f'ds_read_b128 v[{V1[(i+1)%2]}:{V1[(i+1)%2]+3}], v{ADDR} offset:{(i+1)*2048+1280}')
            a('s_mov_b64 exec, -1')
        e(2,7)
        a(f'v_mfma_f32_32x32x16_bf16 v[{prev}:{prev+15}], v[{K[(i+1)%2]}:{K[(i+1)%2]+3}], v[{Q}:{Q+3}], v[{C}:{C+15}]')
        e(7,12)
        if 'nopv' not in EXPT: a(f'v_smfmac_f32_32x32x32_bf16 v[{O}:{O+15}], v[{V0[i%2]}:{V0[i%2]+3}], v[{cur}:{cur+7}], v{IDX}')
        e(12,16)
    a(f'v_add_u32 v{ADDR}, 8192, v{ADDR}')
    a('s_add_u32 s51, s51, 1')
    a('s_cmp_eq_u32 s51, 3')
    a(f's_cbranch_scc1 L_{name}_ev3')
    a('s_cmp_eq_u32 s51, s54')
    a(f's_cbranch_scc1 L_{name}_ev10')
    a('s_cmp_eq_u32 s51, s55')
    a(f's_cbranch_scc1 L_{name}_ev14')
    a('s_cmp_lt_u32 s51, 16')
    a(f's_cbranch_scc1 L_{name}_loop')
    a(f's_branch L_{name}_done')
    a.label(f'L_{name}_ev3')
    a('s_cmp_eq_u32 s50, 0')
    a(f's_cbranch_scc0 L_{name}_loop')
    stamp(a,3)
    a('s_waitcnt vmcnt(0)')
    a('s_barrier')
    stamp(a,4)
    a(f's_branch L_{name}_loop')
    a.label(f'L_{name}_ev10')
    stamp(a,5)
    a('s_setprio 1')
    a(f's_branch L_{name}_loop')
    a.label(f'L_{name}_ev14')
    a('s_setprio 0')
    a(f's_branch L_{name}_loop')
    a.label(f'L_{name}_done')
    a('s_nop 1')
    a(f'v_smfmac_f32_32x32x32_bf16 v[{O}:{O+15}], v[{V1[1]}:{V1[1]+3}], v[{S[1]+8}:{S[1]+15}], v{IDX}')
    a('s_waitcnt lgkmcnt(0)')
    a('s_nop 15')
    stamp(a,2)
    if STAMPS:
        a('s_memtime s[76:77]')
        a('s_waitcnt lgkmcnt(0)')
        a('s_sub_u32 s78, s76, s74')
    a(f's_mov_b32 s52, {hex(f2u(2.0**60))}')
    a(f'v_cmp_gt_f32 vcc, s52, v{O+8}')
    if 'nopv' in EXPT or 'noexp' in EXPT: a('s_mov_b32 s50, 1')
    a('s_nop 3')
    a('s_cmp_eq_u64 vcc, -1')
    a(f's_cbranch_scc1 L_{name}_ok')
    a('s_cmp_eq_u32 s50, 0')
    a(f's_cbranch_scc0 L_{name}_ok')
    a('s_mov_b32 s50, 1')
    a('s_setprio 2')
    a('v_mov_b32 v97, 0xff800000')
    a(f'v_mov_b32 v{ADDR}, v2')
    a('s_mov_b32 s51, 0')
    a.label(f'L_{name}_fb')
    a(f'ds_read_b128 v[{K[0]}:{K[0]+3}], v{ADDR}')
    a('s_waitcnt lgkmcnt(0)')
    a(f'v_mfma_f32_32x32x16_bf16 v[{S[0]}:{S[0]+15}], v[{K[0]}:{K[0]+3}], v[{Q}:{Q+3}], 0')
    a('s_nop 15')
    for r in range(0,16,2): a(f'v_max3_f32 v97, v97, v{s0+r}, v{s0+r+1}')
    a(f'v_add_u32 v{ADDR}, 2048, v{ADDR}')
    a('s_add_u32 s51, s51, 1')
    a('s_cmp_lt_u32 s51, 64')
    a(f's_cbranch_scc1 L_{name}_fb')
    a(f's_branch L_{name}_havemax')
    a.label(f'L_{name}_ok')
    a(f'v_rcp_f32 v97, v{O+8}')
    a('s_nop 0')
    for r in range(8): a(f'v_mul_f32 v{O+r}, v97, v{O+r}')
    for q in range(4): a(f'v_cvt_pk_bf16_f32 v{100+q}, v{O+2*q}, v{O+2*q+1}')
    a('s_lshl_b32 s43, s42, 15')
    a('s_lshl_b32 s44, s40, 10')
    a('s_add_u32 s43, s43, s44')
    a(f's_add_u32 s43, s43, {WS_O}')
    a('buffer_store_dwordx4 v[100:103], v2, s[24:27], s43 offen')
    if fused:
        a('s_waitcnt vmcnt(0)')
        a(f's_branch L_{name}_endB')
    else:
        a(f's_branch L_{name}_fin')

    a.label(f'L_{name}_fnet')
    a('s_setprio 3')
    a('s_sub_u32 s35, s32, 8')
    srd(a, 8, 36, 0x800000)
    srd(a, 12, 38, 0x800000)
    for r in range(4,8): a(f'v_mov_b32 v{r}, 0')
    a(f'v_mov_b32 v8, {K2_CNT}')
    a('ds_write_b128 v8, v[4:7]')
    a('s_waitcnt lgkmcnt(0)')
    a('s_barrier')
    stamp(a,1)
    if NOFNET:
        a('s_barrier')
        a(f's_branch L_{name}_fin')
    a('v_and_b32 v9, 31, v1')
    a('v_lshrrev_b32 v10, 5, v1')
    stamp(a,2)
    a('s_mov_b32 s60, 0')
    a('s_mov_b32 s61, 0')
    a('s_lshr_b32 s62, s35, 1')
    a('s_and_b32 s63, s35, 1')
    a('s_cmp_eq_u32 s62, 0')
    a('s_cselect_b32 s16, s8, s12')
    a('s_cselect_b32 s17, s9, s13')
    a('s_mov_b32 s18, 0x800000')
    a('s_mov_b32 s19, 0x20000')
    a.label(f'L_{name}_job')
    a('s_cmp_eq_u32 s60, 0')
    a(f's_cbranch_scc1 L_{name}_dojob')
    a('s_mov_b32 s16, s8')
    a('s_mov_b32 s17, s9')
    a('s_mov_b32 s62, 0')
    a.label(f'L_{name}_dojob')
    a('s_lshl_b32 s42, s40, 5')
    a('v_add_u32 v11, s42, v9')
    a('v_lshlrev_b32 v11, 12, v11')
    a('v_lshl_add_u32 v11, v10, 4, v11')
    if FAKEA: a('v_mov_b32 v11, v2')
    a(f's_mul_i32 s43, s41, {T1_ET}')
    a(f's_add_u32 s43, s43, {WS_T1}')
    a(f's_lshl_b32 s44, s41, 16')
    a(f's_add_u32 s44, s44, {WS_T2}')
    a('s_cmp_eq_u32 s62, 0')
    a('s_cselect_b32 s43, s43, s44')
    a('s_lshl_b32 s45, s63, 5')
    a('s_lshl_b32 s46, s35, 4')
    a('s_cmp_eq_u32 s60, 0')
    a('s_cselect_b32 s49, s45, s46')
    a('s_lshl_b32 s45, s49, 10')
    a('s_add_u32 s43, s43, s45')
    a('s_lshl_b32 s45, s49, 5')
    ACCF=16
    for r in range(16): a(f'v_mov_b32 v{ACCF+r}, 0')
    SET=[32,96]
    a('s_cmp_eq_u32 s60, 0')
    a('s_cselect_b32 s58, 3, 1')
    a('s_and_b32 s59, s41, s58')
    def issue(setb, k0):
        b=k0//8
        a(f's_add_u32 s64, s59, {b}')
        a('s_and_b32 s64, s64, s58')
        a('s_lshl_b32 s65, s64, 8')
        a('s_add_u32 s65, s65, s45')
        a('s_lshl_b32 s64, s64, 13')
        a('s_add_u32 s64, s64, s43')
        for k in range(8):
            ra=setb+8*k
            a(f'buffer_load_dwordx4 v[{ra}:{ra+3}], v11, s[16:19], s65 offen offset:{k*32}')
            if k==4: a('s_add_u32 s64, s64, 4096')
            a(f'buffer_load_dwordx4 v[{ra+4}:{ra+7}], v2, s[24:27], s64 offen offset:{(k%4)*1024}')
    def mm(setb, first_wait):
        for k in range(8):
            ra=setb+8*k
            a(f's_waitcnt vmcnt({first_wait-2*k-2})')
            a(f'v_mfma_f32_32x32x16_bf16 v[{ACCF}:{ACCF+15}], v[{ra+4}:{ra+7}], v[{ra}:{ra+3}], v[{ACCF}:{ACCF+15}]')
    issue(SET[0],0)
    a('s_cmp_eq_u32 s61, 0')
    a(f's_cbranch_scc0 L_{name}_nob2')
    a('s_mov_b32 s61, 1')
    stamp(a,3)
    a('s_barrier')
    stamp(a,4)
    a.label(f'L_{name}_nob2')
    issue(SET[1],8)
    a('s_cmp_eq_u32 s60, 0')
    a(f's_cbranch_scc0 L_{name}_short')
    mm(SET[0],32)
    issue(SET[0],16)
    mm(SET[1],32)
    issue(SET[1],24)
    a(f's_add_u32 s43, s43, {16*1024}')
    a.label(f'L_{name}_short')
    mm(SET[0],32)
    mm(SET[1],16)
    a('s_cmp_eq_u32 s60, 0')
    a('s_cselect_b32 s46, 1, 3')
    a('s_cmp_eq_u32 s35, s46')
    a(f's_cbranch_scc0 L_{name}_nox')
    a('s_mov_b32 s45, 2048')
    a(f'buffer_load_dwordx4 v[32:35], v11, s[16:19], s45 offen')
    a(f's_add_u32 s46, s43, {16*1024}')
    a(f'buffer_load_dwordx4 v[36:39], v2, s[24:27], s46 offen')
    a('s_waitcnt vmcnt(0)')
    a(f'v_mfma_f32_32x32x16_bf16 v[{ACCF}:{ACCF+15}], v[36:39], v[32:35], v[{ACCF}:{ACCF+15}]')
    a.label(f'L_{name}_nox')
    a('s_nop 15')
    a('s_cmp_eq_u32 s60, 0')
    a(f's_cbranch_scc1 L_{name}_nospin')
    a(f'v_mov_b32 v12, {K2_CNT+8}')
    a.label(f'L_{name}_spin')
    a('ds_read_b32 v13, v12')
    a('s_waitcnt lgkmcnt(0)')
    a('v_readfirstlane_b32 s47, v13')
    a('s_nop 3')
    a('s_cmp_eq_u32 s47, 0')
    a(f's_cbranch_scc0 L_{name}_nospin')
    a('s_sleep 2')
    a(f's_branch L_{name}_spin')
    a.label(f'L_{name}_nospin')
    a('s_lshl_b32 s45, s35, 12')
    a(f's_add_u32 s45, s45, {K2_SUM}')
    a('v_add_u32 v12, s45, v2')
    for g in range(4): a(f'ds_write_b128 v12, v[{ACCF+4*g}:{ACCF+4*g+3}] offset:{g*1024}')
    stamp(a,5)
    a('s_waitcnt lgkmcnt(0)')
    a('s_lshl_b32 s45, s60, 2')
    a(f's_add_u32 s45, s45, {K2_CNT}')
    a('v_mov_b32 v12, s45')
    a('v_mov_b32 v13, 1')
    a('s_mov_b64 exec, 1')
    a('ds_add_rtn_u32 v14, v12, v13')
    a('s_waitcnt lgkmcnt(0)')
    a('s_mov_b64 exec, -1')
    a('v_readfirstlane_b32 s47, v14')
    a('s_nop 3')
    a('s_cmp_eq_u32 s47, 3')
    a(f's_cbranch_scc0 L_{name}_nextjob')
    a(f'v_add_u32 v12, {K2_SUM}, v2')
    for g in range(4): a(f'ds_read_b128 v[{32+4*g}:{35+4*g}], v12 offset:{g*1024}')
    for g in range(4): a(f'ds_read_b128 v[{80+4*g}:{83+4*g}], v12 offset:{4096+g*1024}')
    for g in range(4): a(f'ds_read_b128 v[{48+4*g}:{51+4*g}], v12 offset:{8192+g*1024}')
    a('s_waitcnt lgkmcnt(8)')
    for g in range(4): a(f'ds_read_b128 v[{96+4*g}:{99+4*g}], v12 offset:{12288+g*1024}')
    a('s_waitcnt lgkmcnt(0)')
    a(f'v_mov_b32 v12, {K2_CNT+8}')
    a('v_mov_b32 v13, 1')
    a('ds_write_b32 v12, v13')
    for r in range(16): a(f'v_add_f32 v{48+r}, v{48+r}, v{96+r}')
    for r in range(16): a(f'v_add_f32 v{32+r}, v{32+r}, v{80+r}')
    a('s_cmp_eq_u32 s60, 0')
    a(f's_cbranch_scc1 L_{name}_haveq')
    for r in range(16):
        a(f'v_add_f32 v{32+r}, v{32+r}, v{48+r}')
        a(f'v_mov_b32 v{48+r}, 0')
    a.label(f'L_{name}_haveq')
    for r in range(16):
        a(f'v_sub_f32 v{64+r}, v{32+r}, v{48+r}')
        a(f'v_add_f32 v{32+r}, v{32+r}, v{48+r}')
    for q in range(8):
        a(f'v_cvt_pk_bf16_f32 v{80+q}, v{64+2*q}, v{64+2*q+1}')
        a(f'v_cvt_pk_bf16_f32 v{88+q}, v{32+2*q}, v{32+2*q+1}')
    a('s_lshl_b32 s42, s40, 5')
    a('v_add_u32 v13, s42, v9')
    a(f'v_mul_u32_u24 v13, {YQ_PITCH}, v13')
    a('v_lshl_add_u32 v13, v10, 3, v13')
    a('s_lshl_b32 s42, s41, 6')
    a(f's_add_u32 s42, s42, {WS_Y}')
    a(f's_add_u32 s43, s42, 0x100000')
    for b in range(4):
        a(f'buffer_store_dwordx2 v[{80+2*b}:{81+2*b}], v13, s[24:27], s42 offen offset:{b*16} sc1')
        a(f'buffer_store_dwordx2 v[{88+2*b}:{89+2*b}], v13, s[24:27], s43 offen offset:{b*16} sc1')
    if fused:
        a('s_waitcnt vmcnt(0)')
        a('v_lshlrev_b32 v12, 7, v1')
        a(f'v_add_u32 v12, {WS_FLAG+4}, v12')
        a('v_mov_b32 v13, 1')
        a('s_mov_b64 exec, 0xff')
        a('global_atomic_add v12, v13, s[24:25] sc1')
        a('s_mov_b64 exec, -1')
    a.label(f'L_{name}_nextjob')
    a('s_add_u32 s60, s60, 1')
    a('s_cmp_eq_u32 s60, 1')
    a(f's_cbranch_scc0 L_{name}_fin')
    a('s_cmp_ge_u32 s2, 224')
    a(f's_cbranch_scc1 L_{name}_edgec')
    a('s_sub_u32 s42, s2, 192')
    a('s_cmp_lt_u32 s42, 9')
    a(f's_cbranch_scc0 L_{name}_fin')
    a('s_mov_b32 s40, 32')
    a('s_mov_b32 s41, s42')
    a(f's_branch L_{name}_job')
    a.label(f'L_{name}_edgec')
    a('s_mov_b32 s41, 8')
    a(f's_branch L_{name}_job')
    a.label(f'L_{name}_fin')
    if fused:
        a.label(f'L_{name}_endB')
        a('s_setprio 0')
        a('s_barrier')
        stamp_flush(a, 6, 24, 32, 12, 1, vtmp=104, extra=78)
        if STAMPS: a('s_mov_b64 exec, -1')
        a('s_cmp_ge_u32 s32, 4')
        a(f's_cbranch_scc1 L_{name}_end')
        phase_c(a, name)
    else:
        stamp_flush(a, 6, 24, 32, 12, 1, vtmp=104, extra=78)
    a.label(f'L_{name}_end')
    a('s_endpgm')
    return 168


K3_X=65536
K3_LDS=K3_X+16384
def gen_k3(a, name):
    a.stflag=''
    kernel_header(a, name)
    a('s_cmp_ge_u32 s2, 256')
    a(f's_cbranch_scc1 L_{name}_end')
    stamp(a,0)
    a('s_load_dwordx2 s[36:37], s[0:1], 56')
    a('s_load_dwordx2 s[38:39], s[0:1], 72')
    a('s_load_dwordx2 s[46:47], s[0:1], 88')
    a('v_lshrrev_b32 v2, 6, v0')
    a('v_and_b32 v1, 63, v0')
    a('v_readfirstlane_b32 s32, v2')
    a('v_lshlrev_b32 v2, 4, v1')
    a('s_and_b32 s33, s2, 7')
    a('s_lshr_b32 s34, s2, 3')
    a('s_and_b32 s35, s34, 3')
    a('s_lshl_b32 s40, s33, 2')
    a('s_add_u32 s40, s40, s35')
    a('s_lshr_b32 s41, s2, 5')
    a('s_and_b32 s42, s32, 1')
    a('s_lshr_b32 s43, s32, 1')
    a('s_lshl_b32 s44, s40, 1')
    a('s_add_u32 s44, s44, s42')
    a('s_add_u32 s50, s41, s35')
    a('s_and_b32 s50, s50, 3')
    a('v_lshrrev_b32 v3, 3, v1')
    a('v_bfe_u32 v4, v1, 4, 1')
    a('v_lshlrev_b32 v4, 2, v4')
    a('v_and_b32 v5, 7, v1')
    a('v_xor_b32 v4, v4, v5')
    a('v_lshlrev_b32 v4, 4, v4')
    a('v_lshl_add_u32 v3, v3, 10, v4')
    a('s_lshl_b32 s45, s43, 8')
    a('s_lshl_b32 s48, s42, 5')
    a('s_add_u32 s45, s45, s48')
    a('s_lshl_b32 s48, s41, 7')
    a('s_lshl_b32 s51, s44, 15')
    a('s_lshl_b32 s52, s43, 14')
    a('s_add_u32 s51, s51, s52')
    a(f's_add_u32 s51, s51, {WS_O}')
    a('s_waitcnt lgkmcnt(0)')
    srd(a, 8, 36, 0x80000)
    srd(a, 24, 46, WS_SIZE)
    OF=32
    def issue(st):
        a(f's_add_u32 s53, s50, {st}')
        a('s_and_b32 s53, s53, 3')
        a('s_lshl_b32 s54, s53, 6')
        a('s_add_u32 s54, s54, s45')
        a('s_lshl_b32 s55, s54, 7')
        a('s_lshl_b32 s56, s54, 10')
        a('s_add_u32 s56, s56, s48')
        for i in range(4):
            a(f's_add_u32 m0, s55, {i*1024}')
            a(f's_add_u32 s57, s56, {i*8192}')
            a('buffer_load_dwordx4 v3, s[8:11], s57 offen lds')
        a('s_lshl_b32 s56, s53, 12')
        a('s_add_u32 s56, s56, s51')
        for i in range(4):
            a(f'buffer_load_dwordx4 v[{OF+16*st+4*i}:{OF+16*st+4*i+3}], v2, s[24:27], s56 offen offset:{i*1024}')
    issue(0); issue(1)
    srd(a, 12, 38, 0x200000)
    a('v_and_b32 v8, 31, v1')
    a('v_lshrrev_b32 v9, 5, v1')
    a('s_lshl_b32 s58, s44, 5')
    a('v_add_u32 v10, s58, v8')
    a('v_sub_u32 v11, 3072, v10')
    a('v_mov_b32 v12, 1024')
    a('v_subrev_u32 v13, 1024, v10')
    a('v_cmp_eq_u32 vcc, 1024, v10')
    a('s_nop 1')
    a('v_cndmask_b32 v11, v11, v12, vcc')
    a('v_cndmask_b32 v13, v13, v12, vcc')
    a('v_cmp_gt_u32 vcc, 1024, v10')
    a('s_nop 1')
    a('v_cndmask_b32 v13, v13, v10, vcc')
    a('v_cndmask_b32 v10, v11, v10, vcc')
    a('v_lshlrev_b32 v11, 10, v10')
    a('v_lshl_add_u32 v11, v9, 3, v11')
    a('s_lshl_b32 s58, s41, 7')
    a('s_lshl_b32 s59, s43, 6')
    a('s_add_u32 s58, s58, s59')
    a('v_add_u32 v11, s58, v11')
    a(f'v_mul_u32_u24 v13, {YQ_PITCH}, v13')
    a('v_lshlrev_b32 v12, 3, v9')
    a('s_cmp_lt_u32 s41, 4')
    a(f's_cbranch_scc0 L_{name}_ym')
    a('v_add_u32 v13, v13, v12')
    a('v_add_u32 v13, s58, v13')
    a(f's_branch L_{name}_ymd')
    a.label(f'L_{name}_ym')
    a('v_sub_u32 v13, v13, v12')
    a('s_sub_u32 s59, 1018-48, s58')
    a('v_add_u32 v13, s59, v13')
    a.label(f'L_{name}_ymd')
    a('s_lshr_b32 s58, s44, 5')
    a('s_lshr_b32 s59, s41, 2')
    a('s_xor_b32 s58, s58, s59')
    a('s_lshl_b32 s58, s58, 20')
    a(f's_add_u32 s60, s58, {WS_Y}')
    a('v_lshlrev_b32 v105, 2, v10')
    a('v_bfe_u32 v5, v1, 2, 2')
    a('v_lshl_add_u32 v6, v9, 2, v5')
    a('v_lshlrev_b32 v6, 7, v6')
    a('v_bfe_u32 v7, v1, 3, 1')
    a('v_lshlrev_b32 v7, 6, v7')
    a('v_bfe_u32 v12, v1, 4, 1')
    a('v_lshl_add_u32 v6, v12, 5, v6')
    a('v_bfe_u32 v12, v1, 1, 1')
    a('v_lshl_add_u32 v6, v12, 4, v6')
    a('v_and_b32 v12, 1, v1')
    a('v_lshl_add_u32 v6, v12, 3, v6')
    a('v_add_u32 v14, v6, v7')
    a('s_lshl_b32 s58, s43, 15')
    a('v_add_u32 v14, s58, v14')
    ACC=[16,112]
    FW=[128,136]
    stamp(a,1)
    first=True
    waits={0:8, 1:8, 2:13, 3:5}
    for st in range(4):
        a(f's_add_u32 s53, s50, {st}')
        a('s_and_b32 s53, s53, 3')
        a('s_lshl_b32 s53, s53, 13')
        a('v_add_u32 v6, s53, v14')
        a('v_xor_b32 v7, 64, v6')
        a(f's_waitcnt vmcnt({waits[st]})')
        a('s_barrier')
        if st==0: stamp(a,2)
        def reads(i):
            s_=i%2
            for j in range(2):
                a(f'ds_read_b64_tr_b16 v[{FW[s_]+4*j}:{FW[s_]+4*j+1}], v{6+j} offset:{i*2048}')
                a(f'ds_read_b64_tr_b16 v[{FW[s_]+4*j+2}:{FW[s_]+4*j+3}], v{6+j} offset:{i*2048+1024}')
        reads(0)
        if st==0: issue(2)
        if st==1:
            issue(3)
            for b in range(4): a(f'buffer_load_dwordx2 v[{96+2*b}:{97+2*b}], v13, s[24:27], s60 offen offset:{b*16}')
            a(f's_mov_b32 s59, {WS_G}')
            a('buffer_load_dword v104, v105, s[24:27], s59 offen')
        for i in range(4):
            if i<3: reads(i+1); a('s_waitcnt lgkmcnt(4)')
            else: a('s_waitcnt lgkmcnt(0)')
            s_=i%2
            for j in range(2):
                c = '0' if first else f'v[{ACC[j]}:{ACC[j]+15}]'
                a(f'v_mfma_f32_32x32x16_bf16 v[{ACC[j]}:{ACC[j]+15}], v[{FW[s_]+4*j}:{FW[s_]+4*j+3}], v[{OF+16*st+4*i}:{OF+16*st+4*i+3}], {c}')
            first=False
    stamp(a,3)
    a('s_lshl_b32 s48, s42, 13')
    a('s_xor_b32 s49, s43, 1')
    a('s_lshl_b32 s49, s49, 12')
    a('s_add_u32 s49, s49, s48')
    a(f's_add_u32 s49, s49, {K3_X}')
    a('v_add_u32 v5, s49, v2')
    a('s_lshl_b32 s49, s43, 12')
    a('s_add_u32 s49, s49, s48')
    a(f's_add_u32 s49, s49, {K3_X}')
    a('v_add_u32 v6, s49, v2')
    a('s_nop 7')
    a('s_cmp_eq_u32 s43, 0')
    a(f's_cbranch_scc0 L_{name}_kw1')
    for g in range(4): a(f'ds_write_b128 v5, v[{ACC[1]+4*g}:{ACC[1]+4*g+3}] offset:{g*1024}')
    a(f's_branch L_{name}_x')
    a.label(f'L_{name}_kw1')
    for g in range(4): a(f'ds_write_b128 v5, v[{ACC[0]+4*g}:{ACC[0]+4*g+3}] offset:{g*1024}')
    a('s_nop 1')
    for r in range(16): a(f'v_mov_b32 v{ACC[0]+r}, v{ACC[1]+r}')
    a.label(f'L_{name}_x')
    a('s_waitcnt vmcnt(0) lgkmcnt(0)')
    a('s_barrier')
    for g in range(4): a(f'ds_read_b128 v[{32+4*g}:{35+4*g}], v6 offset:{g*1024}')
    a('v_sub_f32 v105, 1.0, v104')
    a('s_cmp_lt_u32 s41, 4')
    a(f's_cbranch_scc0 L_{name}_um')
    for b in range(4):
        for q in range(2):
            src=96+2*b+q
            a(f'v_lshlrev_b32 v{48+4*b+2*q}, 16, v{src}')
            a(f'v_and_b32 v{48+4*b+2*q+1}, 0xffff0000, v{src}')
    a(f's_branch L_{name}_umd')
    a.label(f'L_{name}_um')
    for b in range(4):
        g=3-b
        d0=96+2*b; d1=97+2*b
        a(f'v_and_b32 v{48+4*g+0}, 0xffff0000, v{d1}')
        a(f'v_lshlrev_b32 v{48+4*g+1}, 16, v{d1}')
        a(f'v_and_b32 v{48+4*g+2}, 0xffff0000, v{d0}')
        a(f'v_lshlrev_b32 v{48+4*g+3}, 16, v{d0}')
    a.label(f'L_{name}_umd')
    for r in range(16): a(f'v_mul_f32 v{48+r}, v104, v{48+r}')
    a('s_waitcnt lgkmcnt(0)')
    for r in range(16):
        a(f'v_add_f32 v{16+r}, v{16+r}, v{32+r}')
    for r in range(16):
        a(f'v_fmac_f32 v{48+r}, v105, v{16+r}')
    for b in range(4):
        a(f'v_cvt_pk_bf16_f32 v{64+2*b}, v{48+4*b}, v{48+4*b+1}')
        a(f'v_cvt_pk_bf16_f32 v{65+2*b}, v{48+4*b+2}, v{48+4*b+3}')
    for b in range(4):
        a(f'buffer_store_dwordx2 v[{64+2*b}:{65+2*b}], v11, s[12:15], 0 offen offset:{b*16}')
    stamp_flush(a, 4, 24, 32, 4, 2, vtmp=106)
    a.label(f'L_{name}_end')
    a('s_endpgm')
    return 144

def build(kernels):
    a=Asm()
    hdr = """; Kernarg layout (96 bytes): A_x, dft_seq_re, dft_seq_im, dft_hid_re, dft_hid_im, B_x, wqkv, wo, gate_w, out, debug, ws
"""
    descs=''
    body=Asm()
    for (name, fn, grid, block, lds) in kernels:
        hdr += f'; @launch kernel={name} grid=({grid},1,1) block=({block},1,1) lds={lds}\n'
    body.raw('.amdgcn_target "amdgcn-amd-amdhsa--gfx950"')
    body.raw('.text')
    for (name, fn, grid, block, lds) in kernels:
        v=fn(body,name)
        descs += kernel_desc(name, v)
    return hdr + body.text() + '.section .rodata,"a"\n' + descs

if __name__=='__main__':
    which = sys.argv[1] if len(sys.argv)>1 else 'k1'
    ks=[]
    ks.append(('k1_qkv_kernel', gen_k1, 256, 512, K1_LDS))
    if which in ('k2','all'): ks.append(('k2_attn_kernel', gen_k2, 256, 768, K2_LDS))
    if which=='f23': ks.append(('k2_attn_kernel', gen_k23, 256, 768, K2_LDS))
    if which=='all': ks.append(('k3_out_kernel', gen_k3, 256, 256, K3_LDS))
    txt=build(ks)
    out = sys.argv[2] if len(sys.argv)>2 else 'out.s'
    open(out,'w').write(txt)
```

```python
import sys, os
NAME='gated_mix__spectral_fnet__mha_block__prompt'
WS_Q=0; WS_KV=0x200000; WS_O=0x600000; WS_Y=0x800000; WS_T1=0xA00000; WS_T2=0xB00000; WS_G=0xC00000
WS_FLAG=0xC80000
WS_SIZE=0xD00000
YQ_PITCH=576; YQ_SZ=0x98000
T1_ET=65*1024; T2_ET=64*1024
WS_T=0xA00000; T_ET=33*1024; T_ARR=0x50000
C_SCALE=0.25*1.4426950408889634
import struct
def f2u(x): return struct.unpack('<I',struct.pack('<f',x))[0]

STAMPS = os.environ.get('STAMPS','0')=='1'
NOFNET = os.environ.get('NOFNET','0')=='1'
NOPRIO = os.environ.get('NOPRIO','0')=='1'
FAKEA = os.environ.get('FAKEA','0')=='1'
EXPT = os.environ.get('EXPT','')
PR = [int(x) for x in os.environ.get('PR','9,10,15,63').split(',')]
class Asm:
    def __init__(self): self.L=[]; self.noload=False; self.stflag=''
    def __call__(self, s):
        for line in s.strip('\n').split('\n'):
            if self.noload and line.strip().endswith(' lds'): continue
            if NOPRIO and line.strip().startswith('s_setprio'): continue
            if line.strip().startswith('buffer_store_dwordx4') and self.stflag:
                if self.stflag=='none': continue
                line = line.strip()+' '+self.stflag
            self.L.append('    '+line.strip())
    def label(self, s): self.L.append(s+':')
    def raw(self, s): self.L.append(s)
    def text(self): return '\n'.join(self.L)+'\n'

def srd(a, d, lo, size):
    a(f's_mov_b32 s{d}, s{lo}')
    a(f's_mov_b32 s{d+1}, s{lo+1}')
    a(f's_mov_b32 s{d+2}, {hex(size)}')
    a(f's_mov_b32 s{d+3}, 0x20000')

def pi_perm(a, dst, src, tmp):
    a(f'v_and_b32 v{dst}, 0x13, v{src}')
    a(f'v_and_b32 v{tmp}, 4, v{src}')
    a(f'v_lshl_or_b32 v{dst}, v{tmp}, 1, v{dst}')
    a(f'v_and_b32 v{tmp}, 8, v{src}')
    a(f'v_lshrrev_b32 v{tmp}, 1, v{tmp}')
    a(f'v_or_b32 v{dst}, v{dst}, v{tmp}')

WS_STAMP=0x1000000
def stamp(a, i):
    if STAMPS:
        a(f's_memrealtime s[{80+2*i}:{81+2*i}]')
def stamp_flush(a, n, wsreg, widreg, wpw, kidx, vtmp=100, extra=None):
    if not STAMPS: return
    a('s_waitcnt vmcnt(0) lgkmcnt(0)')
    a(f's_memrealtime s[{80+2*n}:{81+2*n}]')
    a('s_waitcnt lgkmcnt(0)')
    a(f's_mul_i32 s98, s2, {wpw}')
    a(f's_add_u32 s98, s98, s{widreg}')
    a('s_lshl_b32 s98, s98, 5')
    a(f's_add_u32 s98, s98, {WS_STAMP+kidx*0x40000}')
    a(f's_mov_b32 s{wsreg+2}, 0x2000000')
    a('s_mov_b64 exec, 1')
    a(f'v_mov_b32 v{vtmp+1}, 0')
    for i in range(n+1):
        a(f'v_mov_b32 v{vtmp}, s{80+2*i}')
        a(f'buffer_store_dword v{vtmp}, v{vtmp+1}, s[{wsreg}:{wsreg+3}], s98 offen offset:{4*i}')
        a('s_nop 1')
    if extra is not None:
        a(f'v_mov_b32 v{vtmp}, s{extra}')
        a(f'buffer_store_dword v{vtmp}, v{vtmp+1}, s[{wsreg}:{wsreg+3}], s98 offen offset:28')

def kernel_header(a, name):
    a.raw(f'.globl {name}')
    a.raw('.p2align 8')
    a.raw(f'.type {name},@function')
    a.label(name)

def kernel_desc(name, vgpr, sgpr=102):
    acc = (vgpr+3)//4*4
    return f""".p2align 6
.amdhsa_kernel {name}
  .amdhsa_next_free_vgpr {vgpr}
  .amdhsa_next_free_sgpr {sgpr}
  .amdhsa_accum_offset {acc}
  .amdhsa_group_segment_fixed_size 0
  .amdhsa_kernarg_size 96
  .amdhsa_user_sgpr_count 2
  .amdhsa_user_sgpr_kernarg_segment_ptr 1
  .amdhsa_system_sgpr_workgroup_id_x 1
.end_amdhsa_kernel
"""

K1_SLOT=32768
K1_NS=4
K1_X=0; K1_WQK=16384; K1_WV=24576; K1_WD=28672
K1_LDS=K1_NS*K1_SLOT

def gen_k1(a, name):
    NS=K1_NS
    a.noload = 'noload' in EXPT
    a.stflag = 'sc1' if 'st_sc1' in EXPT else 'nt' if 'st_nt' in EXPT else 'none' if 'st_none' in EXPT else 'sc0 sc1' if 'st_sc01' in EXPT else '' if 'st_plain' in EXPT else 'sc1'
    kernel_header(a, name)
    a('s_cmp_ge_u32 s2, 256')
    a(f's_cbranch_scc1 L_{name}_end')
    stamp(a,0)
    a('s_load_dwordx2 s[4:5], s[0:1], 0')
    a('s_load_dwordx4 s[36:39], s[0:1], 24')
    a('s_load_dwordx2 s[42:43], s[0:1], 48')
    a('s_load_dwordx2 s[44:45], s[0:1], 64')
    a('s_load_dwordx2 s[46:47], s[0:1], 88')
    a('v_lshrrev_b32 v2, 6, v0')
    a('v_and_b32 v1, 63, v0')
    a('v_readfirstlane_b32 s32, v2')
    a('s_and_b32 s33, s2, 7')
    a('s_lshr_b32 s34, s2, 3')
    a('s_lshr_b32 s54, s33, 1')
    a('s_lshl_b32 s54, s54, 2')
    a('s_and_b32 s55, s34, 3')
    a('s_add_u32 s54, s54, s55')
    a('s_and_b32 s55, s33, 1')
    a('s_lshl_b32 s55, s55, 3')
    a('s_lshr_b32 s56, s34, 2')
    a('s_add_u32 s55, s55, s56')
    a('s_cmp_lt_u32 s32, 4')
    a(f's_cbranch_scc1 L_{name}_comp')
    a('s_sub_u32 s35, s32, 4')
    a('v_lshrrev_b32 v2, 3, v1')
    a('v_and_b32 v3, 7, v1')
    a('v_lshrrev_b32 v4, 4, v1')
    a('v_xor_b32 v5, v3, v4')
    a('v_lshlrev_b32 v5, 4, v5')
    a('s_and_b32 s57, s35, 1')
    a('s_lshl_b32 s56, s54, 5')
    a('v_add_u32 v11, s56, v2')
    a('s_lshr_b32 s58, s35, 1')
    a('s_lshl_b32 s58, s58, 10')
    a('s_cmp_eq_u32 s35, 0')
    a(f's_cbranch_scc1 L_{name}_plus')
    a('s_cmp_eq_u32 s35, 3')
    a(f's_cbranch_scc1 L_{name}_plus')
    a('s_sub_u32 s59, 2048, s58')
    a('v_sub_u32 v12, s59, v11')
    a('v_lshl_add_u32 v16, v12, 10, v5')
    a('v_subrev_u32 v17, 8192, v16')
    a('v_subrev_u32 v18, 16384, v16')
    a('v_subrev_u32 v19, 24576, v16')
    a(f's_branch L_{name}_mird')
    a.label(f'L_{name}_plus')
    a('v_add_u32 v12, s58, v11')
    a('v_lshl_add_u32 v16, v12, 10, v5')
    a('v_add_u32 v17, 8192, v16')
    a('v_add_u32 v18, 16384, v16')
    a('v_add_u32 v19, 24576, v16')
    a.label(f'L_{name}_mird')
    a('s_add_u32 s58, s58, 512')
    a('v_mov_b32 v13, s58')
    a('v_lshl_add_u32 v13, v13, 10, v5')
    a('v_cmp_eq_u32 vcc, 0, v11')
    a('s_cmp_eq_u32 s57, 1')
    a('s_cselect_b64 s[58:59], -1, 0')
    a('s_and_b64 vcc, vcc, s[58:59]')
    a('v_cndmask_b32 v16, v16, v13, vcc')
    a('v_xor_b32 v17, 64, v17')
    a('v_xor_b32 v19, 64, v19')
    a('v_bfe_u32 v6, v1, 4, 1')
    a('v_lshlrev_b32 v6, 2, v6')
    a('v_xor_b32 v6, v6, v3')
    a('v_lshlrev_b32 v6, 4, v6')
    a('v_mul_u32_u24 v7, 3072, v2')
    a('v_add_u32 v6, v6, v7')
    a('s_lshl_b32 s58, s55, 7')
    a('v_add_u32 v20, s58, v6')
    a('v_add_u32 v21, 8*3072, v20')
    a('v_lshrrev_b32 v6, 2, v1')
    a('v_mul_u32_u24 v6, 3072, v6')
    a('v_and_b32 v7, 3, v1')
    a('v_lshl_add_u32 v6, v7, 4, v6')
    a('s_lshl_b32 s58, s55, 6')
    a('s_add_u32 s58, s58, 2048')
    a('v_add_u32 v22, s58, v6')
    a('s_lshl_b32 s56, s55, 4')
    a('s_lshl_b32 s58, s57, 3')
    a('s_add_u32 s56, s56, s58')
    a('v_add_u32 v11, s56, v2')
    a('v_lshl_add_u32 v23, v11, 10, v5')
    a('s_lshl_b32 s58, s57, 6')
    a('v_xor_b32 v23, s58, v23')
    a('s_mul_i32 s71, s35, 16*3072')
    if 'norot' in EXPT: a('s_mov_b32 s70, 0')
    else:
        a('s_lshr_b32 s70, s34, 2')
        a('s_and_b32 s72, s34, 3')
        a('s_lshl_b32 s72, s72, 1')
        a('s_add_u32 s70, s70, s72')
        a('s_and_b32 s70, s70, 7')
    a('s_lshl_b32 s56, s70, 7')
    a(f's_mul_i32 s57, s70, {64*3072}')
    a('s_add_u32 s57, s57, s71')
    a('s_lshl_b32 s61, s35, 12')
    a('s_lshl_b32 s62, s35, 11')
    a(f's_add_u32 s62, s62, {K1_WQK}')
    a('s_lshl_b32 s63, s35, 10')
    a(f's_add_u32 s64, s63, {K1_WV}')
    a(f's_add_u32 s63, s63, {K1_WD}')
    a('s_waitcnt lgkmcnt(0)')
    if STAMPS:
        a('s_memrealtime s[76:77]')
        a('s_waitcnt lgkmcnt(0)')
        a('s_sub_u32 s78, s76, s80')
    srd(a, 8, 4, 0x200000)
    srd(a, 16, 42, 0x180000)
    a('s_cmp_lt_u32 s35, 2')
    a('s_cselect_b32 s20, s36, s38')
    a('s_cselect_b32 s21, s37, s39')
    a('s_mov_b32 s22, 0x80000')
    a('s_mov_b32 s23, 0x20000')
    a('s_mov_b32 s52, 0')
    a('s_mov_b32 s50, 0')
    a.label(f'L_{name}_issue')
    a('s_add_u32 s65, s52, s61')
    for i in range(4):
        a(f's_add_u32 m0, s65, {i*1024}')
        a('s_nop 0')
        a(f'buffer_load_dwordx4 v{16+i}, s[8:11], s56 offen lds')
    a('s_add_u32 s65, s52, s62')
    for i in range(2):
        a(f's_add_u32 m0, s65, {i*1024}')
        a('s_nop 0')
        a(f'buffer_load_dwordx4 v{20+i}, s[16:19], s57 offen lds')
    a('s_add_u32 m0, s52, s64')
    a('s_nop 0')
    a(f'buffer_load_dwordx4 v22, s[16:19], s57 offen lds')
    a('s_add_u32 m0, s52, s63')
    a('s_add_u32 s70, s70, 1')
    a(f'buffer_load_dwordx4 v23, s[20:23], s56 offen lds')
    a('s_and_b32 s70, s70, 7')
    a('s_lshl_b32 s56, s70, 7')
    a(f's_mul_i32 s57, s70, {64*3072}')
    a('s_add_u32 s57, s57, s71')
    a(f's_add_u32 s52, s52, {K1_SLOT}')
    a(f's_cmp_eq_u32 s52, {NS*K1_SLOT}')
    a('s_cselect_b32 s52, 0, s52')
    a('s_add_u32 s50, s50, 1')
    a('s_cmp_lt_u32 s50, 2')
    a(f's_cbranch_scc1 L_{name}_issue')
    if STAMPS:
        a('s_cmp_eq_u32 s50, 2')
        a(f's_cbranch_scc0 L_{name}_ns1')
        stamp(a,1)
        a.label(f'L_{name}_ns1')
    a('s_cmp_eq_u32 s50, 8')
    a(f's_cbranch_scc1 L_{name}_ld8')
    a('s_waitcnt vmcnt(8)')
    a('s_barrier')
    if STAMPS:
        a('s_cmp_eq_u32 s50, 2')
        a(f's_cbranch_scc0 L_{name}_ns2')
        stamp(a,2)
        a.label(f'L_{name}_ns2')
    a(f's_branch L_{name}_issue')
    a.label(f'L_{name}_ld8')
    srd(a, 28, 44, 1024)
    a('s_lshl_b32 s48, s2, 3')
    a('s_lshl_b32 s49, s35, 1')
    a('s_add_u32 s48, s48, s49')
    a('s_lshl_b32 s49, s48, 10')
    a('v_lshlrev_b32 v12, 4, v1')
    a('buffer_load_dwordx4 v[24:27], v12, s[8:11], s49 offen')
    a('buffer_load_dwordx4 v[28:31], v12, s[8:11], s49 offen offset:1024')
    a('buffer_load_dwordx4 v[32:35], v12, s[28:31], 0 offen')
    a('s_waitcnt vmcnt(11)')
    a('s_barrier')
    a('s_waitcnt vmcnt(3)')
    a('s_barrier')
    stamp(a,3)
    a('s_barrier')
    srd(a, 24, 46, WS_SIZE)
    a('v_mov_b32 v16, 0'); a('v_mov_b32 v17, 0')
    a('s_waitcnt vmcnt(0)')
    for q in range(4):
        a(f'v_dot2_f32_bf16 v16, v{24+q}, v{32+q}, v16')
        a(f'v_dot2_f32_bf16 v17, v{28+q}, v{32+q}, v17')
    a('s_nop 2')
    def dpp(op):
        a('s_nop 0')
        a(f'v_add_f32_dpp v16, v16, v16 {op}')
        a(f'v_add_f32_dpp v17, v17, v17 {op}')
    for sh in (1,2,4,8): dpp(f'row_shr:{sh} row_mask:0xf bank_mask:0xf')
    dpp('row_bcast:15 row_mask:0xa bank_mask:0xf')
    dpp('row_bcast:31 row_mask:0xc bank_mask:0xf')
    for r in (16,17): a(f'v_mul_f32 v{r}, {hex(f2u(-1.4426950408889634))}, v{r}')
    for r in (16,17): a(f'v_exp_f32 v{r}, v{r}')
    a('s_nop 0')
    for r in (16,17): a(f'v_add_f32 v{r}, 1.0, v{r}')
    for r in (16,17): a(f'v_rcp_f32 v{r}, v{r}')
    a('s_lshl_b32 s49, s48, 2')
    a(f's_add_u32 s49, s49, {WS_G}')
    a('v_mov_b32 v18, 0')
    a('s_mov_b32 exec_lo, 0')
    a('s_mov_b32 exec_hi, 0x80000000')
    a('buffer_store_dwordx2 v[16:17], v18, s[24:27], s49 offen')
    a('s_mov_b64 exec, -1')
    if 'nopf' not in EXPT:
        a('s_cmp_lt_u32 s2, 16')
        a(f's_cbranch_scc0 L_{name}_nopf')
        a('s_cmp_eq_u32 s32, 7')
        a(f's_cbranch_scc0 L_{name}_nopf')
        a('s_getpc_b64 s[72:73]')
        a.label(f'L_{name}_pc')
        a(f's_add_u32 s72, s72, k2_attn_kernel-L_{name}_pc')
        a('s_addc_u32 s73, s73, 0')
        a('v_lshlrev_b32 v18, 4, v1')
        for i in range(6):
            a(f'global_load_dwordx4 v[{36+4*i}:{39+4*i}], v18, s[72:73]')
            a('v_add_u32 v18, 1024, v18')
        a('v_lshlrev_b32 v18, 4, v1')
        a('v_add_u32 v18, L_k2_attn_kernel_end-k2_attn_kernel-1024, v18')
        a('global_load_dwordx4 v[60:63], v18, s[72:73]')
        a.label(f'L_{name}_nopf')
    a('s_cmp_eq_u32 s2, 0')
    a(f's_cbranch_scc0 L_{name}_fin')
    a('s_cmp_eq_u32 s32, 4')
    a(f's_cbranch_scc0 L_{name}_fin')
    for r in range(20,24): a(f'v_mov_b32 v{r}, 0')
    a('v_lshlrev_b32 v18, 4, v1')
    a(f's_mov_b32 s49, {WS_FLAG}')
    a('buffer_store_dwordx4 v[20:23], v18, s[24:27], s49 offen')
    a(f's_branch L_{name}_fin')

    a.label(f'L_{name}_comp')
    a('s_lshr_b32 s35, s32, 1')
    a('s_and_b32 s40, s32, 1')
    a('v_and_b32 v8, 31, v1')
    a('v_lshrrev_b32 v9, 5, v1')
    pi_perm(a, 10, 8, 11)
    def frag_addr(dst0, rowreg, base_off, tmp):
        a(f'v_lshrrev_b32 v{tmp}, 1, v{rowreg}')
        a(f'v_and_b32 v{tmp}, 7, v{tmp}')
        a(f'v_xor_b32 v{tmp}, v{tmp}, v9')
        a(f'v_lshlrev_b32 v{tmp}, 4, v{tmp}')
        a(f'v_lshl_add_u32 v{dst0}, v{rowreg}, 7, v{tmp}')
        if base_off: a(f'v_add_u32 v{dst0}, {base_off}, v{dst0}')
        for ks in range(1,4): a(f'v_xor_b32 v{dst0+ks}, {ks*32}, v{dst0}')
    a('s_lshl_b32 s63, s35, 6')
    a('v_add_u32 v11, s63, v10')
    frag_addr(16, 11, K1_X, 15)
    a('v_bfe_u32 v11, v1, 2, 2')
    a('v_lshl_add_u32 v11, v9, 3, v11')
    a('v_bfe_u32 v12, v1, 4, 1')
    a('v_and_b32 v13, 3, v1')
    ACC=[[32,48],[64,80]]
    for r in range(32,96): a(f'v_mov_b32 v{r}, 0')
    FS=[96,112,128,144]
    WA=160
    a('s_mov_b32 s50, 0')
    a('s_mov_b32 s51, 0')
    srd_done=[False]
    def mf(d,A,B): a(f'v_mfma_f32_32x32x16_bf16 v[{d}:{d+15}], v[{A}:{A+3}], v[{B}:{B+3}], v[{d}:{d+15}]')
    def capture(fn, *args):
        sub=Asm(); saved=a.L; a.L=sub.L
        fn(*args); a.L=saved
        return [x.strip() for x in sub.L]
    def inter(ms, others):
        pre=[x for x in ms if not x.startswith('v_mfma')]
        mm=[x for x in ms if x.startswith('v_mfma')]
        k=len(mm); per=-(-len(others)//k) if others else 0
        for x in pre: a(x)
        if pre: a('s_nop 0')
        oi=0
        for i,x in enumerate(mm):
            a(x)
            for y in others[oi:oi+per]: a(y)
            oi+=per
        for y in others[oi:]: a(y)
    def run(tag, n, setaddr, reads, mfmas):
        if 'nocomp' in EXPT:
            reads=lambda k: None
            mfmas=lambda k: None
        a('s_waitcnt lgkmcnt(0)')
        a('s_barrier')
        stamp(a,2)
        if STAMPS: a('s_memtime s[74:75]')
        setaddr('s51')
        reads(0); reads(1)
        a.label(f'L_{tag}_loop')
        a(f's_waitcnt lgkmcnt({n})'); inter(capture(mfmas,0), capture(reads,2))
        a(f's_waitcnt lgkmcnt({n})'); inter(capture(mfmas,1), capture(reads,3))
        a('s_cmp_eq_u32 s50, 7')
        a(f's_cbranch_scc1 L_{tag}_last')
        a(f's_add_u32 s51, s51, {K1_SLOT}')
        a(f's_cmp_eq_u32 s51, {NS*K1_SLOT}')
        a('s_cselect_b32 s51, 0, s51')
        setaddr('s51')
        a('s_barrier')
        a(f's_waitcnt lgkmcnt({n})')
        inter(capture(mfmas,2), capture(reads,0))
        a(f's_waitcnt lgkmcnt({n})'); inter(capture(mfmas,3), capture(reads,1))
        a('s_add_u32 s50, s50, 1')
        a(f's_branch L_{tag}_loop')
        a.label(f'L_{tag}_last')
        a(f's_waitcnt lgkmcnt({n})'); inter(capture(mfmas,2), [])
        a('s_waitcnt lgkmcnt(0)'); inter(capture(mfmas,3), [])
        if STAMPS:
            a('s_memtime s[76:77]')
            a('s_waitcnt lgkmcnt(0)')
            a('s_sub_u32 s78, s76, s74')
    stamp(a,1)
    a('s_cmp_eq_u32 s40, 0')
    a(f's_cbranch_scc0 L_{name}_cw1')
    a('v_lshlrev_b32 v20, 7, v11')
    a('v_bfe_u32 v14, v1, 3, 1')
    a('v_lshl_add_u32 v20, v14, 6, v20')
    a('v_lshl_add_u32 v20, v12, 5, v20')
    a('v_lshrrev_b32 v14, 1, v13')
    a('v_lshl_add_u32 v20, v14, 4, v20')
    a('v_and_b32 v14, 1, v13')
    a('v_lshl_add_u32 v20, v14, 3, v20')
    a(f'v_add_u32 v20, {K1_WQK}, v20')
    a('v_xor_b32 v21, 64, v20')
    def setaddr0(sS):
        for ks in range(4): a(f'v_add_u32 v{WA+ks}, {sS}, v{16+ks}')
        a(f'v_add_u32 v{WA+4}, {sS}, v20')
        a(f'v_add_u32 v{WA+5}, {sS}, v21')
    def reads0(ks):
        F=FS[ks]
        a(f'ds_read_b128 v[{F}:{F+3}], v{WA+ks}')
        a(f'ds_read_b128 v[{F+4}:{F+7}], v{WA+ks} offset:4096')
        for j in range(2):
            a(f'ds_read_b64_tr_b16 v[{F+8+4*j}:{F+9+4*j}], v{WA+4+j} offset:{ks*2048}')
            a(f'ds_read_b64_tr_b16 v[{F+10+4*j}:{F+11+4*j}], v{WA+4+j} offset:{ks*2048+512}')
    def mfmas0(ks):
        F=FS[ks]
        for t in range(2):
            for j in range(2): mf(ACC[t][j], F+8+4*j, F+4*t)
    run(f'{name}_a', 6, setaddr0, reads0, mfmas0)
    stamp(a,3)
    a('s_barrier')
    srd(a, 24, 46, WS_SIZE)
    a('s_lshl_b32 s57, s35, 5')
    a('s_add_u32 s56, s54, s57')
    a('s_cmp_ge_u32 s55, 8')
    a('s_cselect_b32 s57, 17, 16')
    a('s_cselect_b32 s58, 11, 10')
    a(f's_cselect_b32 s59, {WS_KV}, {WS_Q}')
    a(f's_cselect_b32 s60, 1.0, {hex(f2u(C_SCALE))}')
    a('s_lshl_b32 s57, 1, s57')
    a('s_lshl_b32 s61, s56, s58')
    a('s_add_u32 s59, s59, s61')
    a('s_lshl_b32 s63, 16, s58')
    a('s_and_b32 s62, s55, 7')
    a('s_lshl_b32 s62, s62, 2')
    a('s_mul_i32 s62, s62, s57')
    a('s_add_u32 s59, s59, s62')
    a('v_lshlrev_b32 v11, 9, v9')
    a('v_lshl_add_u32 v11, v10, 4, v11')
    a('s_nop 7')
    k=0
    for t in range(2):
        a(f's_mov_b32 s64, s59')
        for j in range(2):
            for hb in range(2):
                base=ACC[t][j]+8*hb
                for r in range(8): a(f'v_mul_f32 v{base+r}, s60, v{base+r}')
                d=96+4*k; k+=1
                for q in range(4): a(f'v_cvt_pk_bf16_f32 v{d+q}, v{base+2*q}, v{base+2*q+1}')
                a(f'buffer_store_dwordx4 v[{d}:{d+3}], v11, s[24:27], s64 offen')
                a('s_add_u32 s64, s64, s57')
        a('s_add_u32 s59, s59, s63')
    a(f's_branch L_{name}_fin')
    a.label(f'L_{name}_cw1')
    a('v_lshlrev_b32 v20, 6, v11')
    a('v_lshl_add_u32 v20, v12, 5, v20')
    a('v_lshl_add_u32 v20, v13, 3, v20')
    a(f'v_add_u32 v20, {K1_WV}, v20')
    frag_addr(24, 8, K1_WD, 15)
    a('s_cmp_eq_u32 s55, 0')
    a('s_cselect_b32 s66, 0x10000, 0')
    a('s_mov_b32 s67, s66')
    a('v_mov_b32 v14, 0xbf803f80')
    def setaddr1(sS):
        for ks in range(4): a(f'v_add_u32 v{WA+ks}, {sS}, v{16+ks}')
        a(f'v_add_u32 v{WA+4}, {sS}, v20')
        for ks in range(4): a(f'v_add_u32 v{WA+5+ks}, {sS}, v{24+ks}')
    def reads1(ks):
        F=FS[ks]
        a(f'ds_read_b128 v[{F}:{F+3}], v{WA+ks}')
        a(f'ds_read_b128 v[{F+4}:{F+7}], v{WA+ks} offset:4096')
        a(f'ds_read_b64_tr_b16 v[{F+8}:{F+9}], v{WA+4} offset:{ks*1024}')
        a(f'ds_read_b64_tr_b16 v[{F+10}:{F+11}], v{WA+4} offset:{ks*1024+256}')
        a(f'ds_read_b128 v[{F+12}:{F+15}], v{WA+5+ks}')
    def mfmas1(ks):
        F=FS[ks]
        for q in range(4): a(f'v_cndmask_b32 v{F+12+q}, v{F+12+q}, v14, s[66:67]')
        for t in range(2): mf(ACC[t][0], F+4*t, F+8)
        for t in range(2): mf(ACC[t][1], F+4*t, F+12)
    run(f'{name}_b', 5, setaddr1, reads1, mfmas1)
    stamp(a,3)
    srd(a, 24, 46, WS_SIZE)
    a('s_nop 15')
    XCH = 0
    a('v_mov_b32 v12, -1.0')
    a('v_mov_b32 v13, 1.0')
    a('v_cmp_gt_u32 vcc, 16, v8')
    a('s_nop 1')
    a('v_cndmask_b32 v12, v12, v13, vcc')
    a('v_cndmask_b32 v12, v12, v13, s[66:67]')
    a('s_cmp_eq_u32 s54, 0')
    a('s_cselect_b32 s68, -1, 0')
    a('s_mov_b32 s69, 0')
    A0=ACC[0][1]; A1=ACC[1][1]
    a(f'v_mov_b32 v15, v{A1}')
    a('v_mov_b32 v13, 0')
    a(f'v_cndmask_b32 v{A1}, v{A1}, v13, s[68:69]')
    for r in range(16): a(f'v_fma_f32 v{A0+r}, v{A1+r}, v12, v{A0+r}')
    a('v_lshlrev_b32 v11, 4, v1')
    a('s_mul_i32 s63, s35, 5120')
    a(f's_add_u32 s63, s63, {XCH}')
    a('v_add_u32 v16, s63, v11')
    a('s_xor_b32 s63, s35, 1')
    a('s_mul_i32 s63, s63, 5120')
    a(f's_add_u32 s63, s63, {XCH}')
    a('v_add_u32 v17, s63, v11')
    for g in range(4): a(f'ds_write_b128 v16, v[{A0+4*g}:{A0+4*g+3}] offset:{g*1024}')
    a('v_lshlrev_b32 v18, 2, v1')
    a('s_mul_i32 s63, s35, 5120')
    a(f's_add_u32 s63, s63, {XCH+4096}')
    a('v_add_u32 v18, s63, v18')
    a('ds_write_b32 v18, v15')
    a('s_waitcnt lgkmcnt(0)')
    a('s_barrier')
    for g in range(4): a(f'ds_read_b128 v[{112+4*g}:{115+4*g}], v17 offset:{g*1024}')
    a('v_lshlrev_b32 v18, 2, v1')
    a('s_xor_b32 s63, s35, 1')
    a('s_mul_i32 s63, s63, 5120')
    a(f's_add_u32 s63, s63, {XCH+4096}')
    a('v_add_u32 v18, s63, v18')
    a('ds_read_b32 v14, v18')
    a('s_lshl_b32 s57, s35, 5')
    a('s_add_u32 s58, s54, s57')
    a('v_lshrrev_b32 v19, 4, v8')
    a('v_lshlrev_b32 v19, 17, v19')
    a('v_lshl_add_u32 v19, v9, 9, v19')
    a('v_and_b32 v13, 15, v8')
    a('v_lshl_add_u32 v19, v13, 4, v19')
    a('s_lshl_b32 s61, s55, 18')
    a('s_lshl_b32 s62, s58, 11')
    a('s_add_u32 s61, s61, s62')
    a(f's_add_u32 s61, s61, {WS_KV+1024}')
    for t in range(2):
        for mfi in range(2):
            base=ACC[t][0]+8*mfi
            d=96+8*t+4*mfi
            for q in range(4): a(f'v_cvt_pk_bf16_f32 v{d+q}, v{base+2*q}, v{base+2*q+1}')
            a(f'buffer_store_dwordx4 v[{d}:{d+3}], v19, s[24:27], s61 offen offset:{mfi*256}')
        if t==0: a('s_add_u32 s61, s61, 32768')
    a('s_waitcnt lgkmcnt(0)')
    a('s_cmp_eq_u32 s35, 0')
    a(f's_cbranch_scc0 L_{name}_odd')
    for r in range(16): a(f'v_fma_f32 v{A0+r}, v{112+r}, v12, v{A0+r}')
    a('v_fma_f32 v15, v14, v12, v15')
    a(f's_branch L_{name}_oddd')
    a.label(f'L_{name}_odd')
    a('v_sub_f32 v13, 0, v12')
    for r in range(16): a(f'v_fma_f32 v{A0+r}, v{A0+r}, v13, v{112+r}')
    a('v_fma_f32 v15, v15, v12, v14')
    a.label(f'L_{name}_oddd')
    for q in range(8): a(f'v_cvt_pk_bf16_f32 v{144+q}, v{A0+2*q}, v{A0+2*q+1}')
    a('s_lshr_b32 s57, s55, 1')
    a(f's_mul_i32 s58, s57, {T_ET}')
    a(f's_mul_i32 s59, s35, {2*T_ARR}')
    a('s_add_u32 s58, s58, s59')
    a(f's_add_u32 s58, s58, {WS_T}')
    a(f's_add_u32 s60, s58, {T_ARR}')
    a('s_and_b32 s62, s55, 1')
    a('s_lshl_b32 s62, s62, 8')
    a('v_and_b32 v16, 15, v8')
    a('v_lshlrev_b32 v16, 4, v16')
    a('v_lshl_add_u32 v16, v9, 9, v16')
    a('v_add_u32 v16, s62, v16')
    a('v_mov_b32 v17, s60')
    a('v_mov_b32 v18, s58')
    a('v_cmp_gt_u32 vcc, 16, v8')
    a('s_nop 1')
    a('v_cndmask_b32 v17, v17, v18, vcc')
    a('v_add_u32 v17, v17, v16')
    a(f's_add_u32 s59, s59, {WS_T+8*T_ET}')
    a('v_mov_b32 v18, s59')
    a('v_lshl_add_u32 v18, v9, 9, v18')
    a('v_cndmask_b32 v19, v17, v18, s[66:67]')
    a('s_lshl_b32 s63, s54, 11')
    for c in range(2):
        a(f'buffer_store_dwordx4 v[{144+4*c}:{147+4*c}], v19, s[24:27], s63 offen offset:{c*1024}')
    a('s_cmp_eq_u32 s55, 0')
    a(f's_cbranch_scc0 L_{name}_nz')
    for r in range(4): a(f'v_mov_b32 v{104+r}, 0')
    a('s_mov_b64 exec, s[66:67]')
    for q in range(2): a(f'buffer_store_dwordx4 v[104:107], v17, s[24:27], s63 offen offset:{q*1024}')
    a(f's_mov_b32 s64, {32*1024}')
    a('buffer_store_dwordx4 v[104:107], v17, s[24:27], s64 offen')
    a('s_mov_b64 exec, -1')
    a.label(f'L_{name}_nz')
    a('s_cmp_eq_u32 s54, 0')
    a(f's_cbranch_scc0 L_{name}_fin')
    a('v_mov_b32 v13, 0')
    a('v_cndmask_b32 v15, v13, v15, s[68:69]')
    a('v_cvt_pk_bf16_f32 v108, v15, v13')
    a('v_mov_b32 v109, 0'); a('v_mov_b32 v110, 0'); a('v_mov_b32 v111, 0')
    a('s_mov_b32 s70, 0x0000ffff')
    a('s_mov_b32 s71, 0x0000ffff')
    a('s_or_b64 s[70:71], s[70:71], s[66:67]')
    a('s_not_b64 s[72:73], s[70:71]')
    a('s_cmp_eq_u32 s35, 0')
    a('s_cselect_b64 s[70:71], s[70:71], s[72:73]')
    a('s_mov_b64 exec, s[70:71]')
    a(f's_mov_b32 s63, {32*1024}')
    a('buffer_store_dwordx4 v[108:111], v19, s[24:27], s63 offen')
    a('s_mov_b64 exec, -1')
    a.label(f'L_{name}_fin')
    if STAMPS: srd(a, 24, 46, WS_SIZE)
    stamp_flush(a, 4, 24, 32, 8, 0, vtmp=170, extra=78)
    a.label(f'L_{name}_end')
    a('s_endpgm')
    return 176


SPIN_MAX=400000
SLEEP=int(os.environ.get('SLEEP','2'))
def poll(a, tag, addr_v, exp_v, nl, base='s[56:57]', tmp=12):
    a(f's_mov_b32 s61, 0')
    a(f's_mov_b64 exec, {(1<<nl)-1}')
    a.label(f'L_{tag}_poll')
    a(f'global_load_dword v{tmp}, v{addr_v}, {base} sc1')
    a('s_waitcnt vmcnt(0)')
    a(f'v_cmp_eq_u32 vcc, v{tmp}, v{exp_v}')
    a('s_add_u32 s61, s61, 1')
    a('s_nop 2')
    a(f's_cmp_eq_u64 vcc, exec')
    a(f's_cbranch_scc1 L_{tag}_polld')
    a(f's_cmp_ge_u32 s61, {SPIN_MAX}')
    a(f's_cbranch_scc1 L_{tag}_polld')
    a(f's_sleep {SLEEP}')
    a(f's_branch L_{tag}_poll')
    a.label(f'L_{tag}_polld')
    a('s_mov_b64 exec, -1')

def phase_c(a, name):
    stamp(a,0)
    a('s_cmp_eq_u32 s32, 0')
    a(f's_cbranch_scc0 L_{name}_nosig')
    a('s_lshr_b32 s33, s2, 5')
    a('s_lshl_b32 s33, s33, 7')
    a(f's_add_u32 s33, s33, {WS_FLAG}')
    a('v_mov_b32 v12, s33')
    a('v_mov_b32 v13, 1')
    a('s_mov_b64 exec, 1')
    a('global_atomic_add v12, v13, s[24:25] sc1')
    a('s_mov_b64 exec, -1')
    a.label(f'L_{name}_nosig')
    a('s_and_b32 s33, s2, 7')
    a('s_lshr_b32 s34, s2, 3')
    a('s_and_b32 s35, s34, 3')
    a('s_lshl_b32 s40, s33, 2')
    a('s_add_u32 s40, s40, s35')
    a('s_lshr_b32 s41, s2, 5')
    a('s_and_b32 s42, s32, 1')
    a('s_lshr_b32 s43, s32, 1')
    a('s_lshl_b32 s44, s40, 1')
    a('s_add_u32 s44, s44, s42')
    srd(a, 12, 72, 0x200000)
    a('v_and_b32 v8, 31, v1')
    a('v_lshrrev_b32 v9, 5, v1')
    a('s_lshl_b32 s58, s44, 5')
    a('v_add_u32 v10, s58, v8')
    a('v_and_b32 v12, 511, v10')
    a('s_lshr_b32 s58, s44, 4')
    a('s_cmp_eq_u32 s58, 0')
    a('s_cselect_b32 s59, 0, 1024')
    a('s_cmp_eq_u32 s58, 1')
    a('s_cselect_b32 s59, 2048, s59')
    a('s_and_b32 s61, s58, 1')
    a('s_cmp_eq_u32 s58, 1')
    a('s_cselect_b32 s62, 1, 0')
    a('s_cmp_eq_u32 s58, 2')
    a('s_cselect_b32 s62, 1, s62')
    a('v_add_u32 v10, s59, v12')
    a('v_sub_u32 v11, s59, v12')
    a('s_cmp_eq_u32 s62, 1')
    a('s_cselect_b64 vcc, -1, 0')
    a('v_cndmask_b32 v10, v10, v11, vcc')
    a('s_cmp_lt_u32 s58, 2')
    a('s_cselect_b64 vcc, -1, 0')
    a('v_sub_u32 v11, 1024, v12')
    a('v_cndmask_b32 v13, v11, v12, vcc')
    a('s_lshl_b32 s61, s61, 20')
    a('v_mov_b32 v106, s61')
    a('s_lshr_b32 s62, s58, 1')
    a('s_lshl_b32 s63, s62, 10')
    a('s_add_u32 s63, s63, 512')
    a('s_lshl_b32 s62, s62, 20')
    a('s_and_b32 s59, s58, 1')
    a('s_cmp_eq_u32 s59, 1')
    a('s_cselect_b64 s[64:65], -1, 0')
    a('v_cmp_eq_u32 vcc, 0, v12')
    a('s_nop 1')
    a('s_and_b64 vcc, vcc, s[64:65]')
    a('v_mov_b32 v11, s63')
    a('v_cndmask_b32 v10, v10, v11, vcc')
    a('v_mov_b32 v11, 512')
    a('v_cndmask_b32 v13, v13, v11, vcc')
    a('v_mov_b32 v11, s62')
    a('v_cndmask_b32 v106, v106, v11, vcc')
    a('v_lshlrev_b32 v11, 10, v10')
    a('v_lshl_add_u32 v11, v9, 3, v11')
    a('s_lshl_b32 s58, s41, 7')
    a('s_lshl_b32 s59, s43, 6')
    a('s_add_u32 s58, s58, s59')
    a('v_add_u32 v11, s58, v11')
    a(f'v_mul_u32_u24 v13, {YQ_PITCH}, v13')
    a('v_lshlrev_b32 v12, 3, v9')
    a('s_cmp_lt_u32 s41, 4')
    a(f's_cbranch_scc0 L_{name}_ym')
    a('v_add_u32 v13, v13, v12')
    a('v_add_u32 v13, s58, v13')
    a(f's_branch L_{name}_ymd')
    a.label(f'L_{name}_ym')
    a('v_sub_u32 v13, v13, v12')
    a('s_sub_u32 s59, 1018-48, s58')
    a('v_add_u32 v13, s59, v13')
    a.label(f'L_{name}_ymd')
    a('s_lshr_b32 s59, s41, 2')
    a('s_lshl_b32 s59, s59, 20')
    a('v_xor_b32 v106, s59, v106')
    a('v_add_u32 v13, v13, v106')
    a(f's_mov_b32 s60, {WS_Y}')
    a('v_lshlrev_b32 v105, 2, v10')
    a('v_bfe_u32 v5, v1, 2, 2')
    a('v_lshl_add_u32 v6, v9, 2, v5')
    a('v_lshlrev_b32 v6, 7, v6')
    a('v_bfe_u32 v7, v1, 3, 1')
    a('v_lshlrev_b32 v7, 6, v7')
    a('v_bfe_u32 v16, v1, 4, 1')
    a('v_lshl_add_u32 v6, v16, 5, v6')
    a('v_bfe_u32 v16, v1, 1, 1')
    a('v_lshl_add_u32 v6, v16, 4, v6')
    a('v_and_b32 v16, 1, v1')
    a('v_lshl_add_u32 v6, v16, 3, v6')
    a('v_add_u32 v14, v6, v7')
    a('s_lshl_b32 s58, s43, 15')
    a('v_add_u32 v14, s58, v14')
    a('v_xor_b32 v15, 64, v14')
    a(f's_mov_b32 s59, {WS_G}')
    a('buffer_load_dword v104, v105, s[24:27], s59 offen')
    stamp(a,1)
    a('s_cmp_eq_u32 s32, 0')
    a(f's_cbranch_scc0 L_{name}_nopoll')
    a('s_lshl_b32 s58, s33, 7')
    a(f's_add_u32 s58, s58, {WS_FLAG}')
    a('v_lshlrev_b32 v16, 2, v1')
    a('v_add_u32 v16, s58, v16')
    a('v_mov_b32 v17, 32')
    a('v_mov_b32 v19, 297')
    a('v_cmp_eq_u32 vcc, 1, v1')
    a('s_nop 1')
    a('v_cndmask_b32 v17, v17, v19, vcc')
    poll(a, name+'_c', 16, 17, 2, base='s[24:25]', tmp=18)
    a.label(f'L_{name}_nopoll')
    a('s_barrier')
    stamp(a,2)
    OF=32
    a('s_lshl_b32 s51, s44, 15')
    a('s_lshl_b32 s52, s43, 14')
    a('s_add_u32 s51, s51, s52')
    a(f's_add_u32 s51, s51, {WS_O}')
    for i in range(16):
        if i%4==0 and i: a('s_add_u32 s51, s51, 4096')
        a(f'buffer_load_dwordx4 v[{OF+4*i}:{OF+4*i+3}], v2, s[24:27], s51 offen offset:{(i%4)*1024} sc1')
    for b in range(4): a(f'buffer_load_dwordx2 v[{96+2*b}:{97+2*b}], v13, s[24:27], s60 offen offset:{b*16} sc1')
    ACC=[16,112]; FW=[128,136]
    def reads(i):
        s_=i%2
        for j in range(2):
            a(f'ds_read_b64_tr_b16 v[{FW[s_]+4*j}:{FW[s_]+4*j+1}], v{14+j} offset:{i*2048}')
            a(f'ds_read_b64_tr_b16 v[{FW[s_]+4*j+2}:{FW[s_]+4*j+3}], v{14+j} offset:{i*2048+1024}')
    reads(0)
    for i in range(16):
        if i<15: reads(i+1); a(f's_waitcnt vmcnt({4+15-i}) lgkmcnt(4)')
        else: a('s_waitcnt vmcnt(4) lgkmcnt(0)')
        s_=i%2
        for j in range(2):
            c = '0' if i==0 else f'v[{ACC[j]}:{ACC[j]+15}]'
            a(f'v_mfma_f32_32x32x16_bf16 v[{ACC[j]}:{ACC[j]+15}], v[{FW[s_]+4*j}:{FW[s_]+4*j+3}], v[{OF+4*i}:{OF+4*i+3}], {c}')
    stamp(a,3)
    K3X=65536
    a('s_lshl_b32 s48, s42, 13')
    a('s_xor_b32 s49, s43, 1')
    a('s_lshl_b32 s49, s49, 12')
    a('s_add_u32 s49, s49, s48')
    a(f's_add_u32 s49, s49, {K3X}')
    a('v_add_u32 v5, s49, v2')
    a('s_lshl_b32 s49, s43, 12')
    a('s_add_u32 s49, s49, s48')
    a(f's_add_u32 s49, s49, {K3X}')
    a('v_add_u32 v6, s49, v2')
    a('s_nop 7')
    a('s_cmp_eq_u32 s43, 0')
    a(f's_cbranch_scc0 L_{name}_kw1')
    for g in range(4): a(f'ds_write_b128 v5, v[{ACC[1]+4*g}:{ACC[1]+4*g+3}] offset:{g*1024}')
    a(f's_branch L_{name}_x')
    a.label(f'L_{name}_kw1')
    for g in range(4): a(f'ds_write_b128 v5, v[{ACC[0]+4*g}:{ACC[0]+4*g+3}] offset:{g*1024}')
    a('s_nop 1')
    for r in range(16): a(f'v_mov_b32 v{ACC[0]+r}, v{ACC[1]+r}')
    a.label(f'L_{name}_x')
    a('s_waitcnt vmcnt(0) lgkmcnt(0)')
    a('s_barrier')
    for g in range(4): a(f'ds_read_b128 v[{32+4*g}:{35+4*g}], v6 offset:{g*1024}')
    a('v_sub_f32 v105, 1.0, v104')
    a('s_cmp_lt_u32 s41, 4')
    a(f's_cbranch_scc0 L_{name}_um')
    for b in range(4):
        for q in range(2):
            src=96+2*b+q
            a(f'v_lshlrev_b32 v{48+4*b+2*q}, 16, v{src}')
            a(f'v_and_b32 v{48+4*b+2*q+1}, 0xffff0000, v{src}')
    a(f's_branch L_{name}_umd')
    a.label(f'L_{name}_um')
    for b in range(4):
        g=3-b
        d0=96+2*b; d1=97+2*b
        a(f'v_and_b32 v{48+4*g+0}, 0xffff0000, v{d1}')
        a(f'v_lshlrev_b32 v{48+4*g+1}, 16, v{d1}')
        a(f'v_and_b32 v{48+4*g+2}, 0xffff0000, v{d0}')
        a(f'v_lshlrev_b32 v{48+4*g+3}, 16, v{d0}')
    a.label(f'L_{name}_umd')
    for r in range(16): a(f'v_mul_f32 v{48+r}, v104, v{48+r}')
    a('s_waitcnt lgkmcnt(0)')
    for r in range(16): a(f'v_add_f32 v{16+r}, v{16+r}, v{32+r}')
    for r in range(16): a(f'v_fmac_f32 v{48+r}, v105, v{16+r}')
    for b in range(4):
        a(f'v_cvt_pk_bf16_f32 v{64+2*b}, v{48+4*b}, v{48+4*b+1}')
        a(f'v_cvt_pk_bf16_f32 v{65+2*b}, v{48+4*b+2}, v{48+4*b+3}')
    for b in range(4):
        a(f'buffer_store_dwordx2 v[{64+2*b}:{65+2*b}], v11, s[12:15], 0 offen offset:{b*16}')
    stamp_flush(a, 4, 24, 32, 4, 2, vtmp=106)

K2_SUM=131072
K2_CNT=K2_SUM+16384
K2_LDS=K2_CNT+64
def gen_k23(a, name):
    return gen_k2(a, name, fused=True)

def gen_k2(a, name, fused=False):
    a.noload=False
    kernel_header(a, name)
    a('s_cmp_ge_u32 s2, 256')
    a(f's_cbranch_scc1 L_{name}_end')
    stamp(a,0)
    a('s_load_dwordx4 s[36:39], s[0:1], 8')
    a('s_load_dwordx2 s[46:47], s[0:1], 88')
    a('s_load_dwordx2 s[56:57], s[0:1], 56')
    a('s_load_dwordx2 s[72:73], s[0:1], 72')
    a('v_lshrrev_b32 v2, 6, v0')
    a('v_and_b32 v1, 63, v0')
    a('v_readfirstlane_b32 s32, v2')
    a('v_lshlrev_b32 v2, 4, v1')
    a('s_and_b32 s33, s2, 7')
    a('s_lshr_b32 s34, s2, 3')
    a('s_and_b32 s35, s34, 3')
    a('s_lshl_b32 s40, s33, 2')
    a('s_add_u32 s40, s40, s35')
    a('s_lshr_b32 s41, s2, 5')
    a('s_waitcnt lgkmcnt(0)')
    srd(a, 24, 46, WS_SIZE)
    a('s_cmp_ge_u32 s32, 8')
    a(f's_cbranch_scc1 L_{name}_fnet')
    Q=4; C=8; S=[24,40]; O=56; K=[72,76]; V0=[80,88]; V1=[84,92]; ADDR=96; IDX=3
    a('s_lshl_b32 s42, s41, 3')
    a('s_add_u32 s42, s42, s32')
    a('s_lshl_b32 s43, s40, 16')
    a('s_lshl_b32 s44, s42, 10')
    a('s_add_u32 s43, s43, s44')
    a(f'buffer_load_dwordx4 v[{Q}:{Q+3}], v2, s[24:27], s43 offen')
    a('s_lshl_b32 s43, s40, 17')
    a(f's_add_u32 s43, s43, {WS_KV}')
    a('s_lshl_b32 s44, s32, 11')
    if 'kvrot' in EXPT:
        a('s_lshl_b32 s46, s41, 3')
        a('s_add_u32 s46, s46, s32')
    else: a('s_mov_b32 s46, s32')
    for i in range(8):
        a(f's_add_u32 m0, s44, {i*8*2048}')
        a('s_and_b32 s46, s46, 63')
        a('s_lshl_b32 s45, s46, 11')
        a('s_add_u32 s45, s45, s43')
        a('buffer_load_dwordx4 v2, s[24:27], s45 offen lds')
        a('buffer_load_dwordx4 v2, s[24:27], s45 offen offset:1024 lds')
        a('s_add_u32 s46, s46, 8')
    a(f'v_mov_b32 v{IDX}, 0xdddddddd')
    if 'allones' in EXPT:
        for r in range(80,96): a(f'v_mov_b32 v{r}, 0x3f803f80')
    else:
        a('v_mov_b32 v97, 0')
        a('v_mov_b32 v98, 0x3f803f80')
        a('s_mov_b32 s52, 0x00110000')
        a('s_mov_b32 s53, 0x00110000')
        a('v_cndmask_b32 v97, v97, v98, s[52:53]')
        for r in range(80,96): a(f'v_mov_b32 v{r}, v97')
    a('s_mov_b32 s48, 0x0000ffff')
    a('s_mov_b32 s49, 0x0000ffff')
    a('s_mov_b32 s50, 0')
    a('s_cmp_lt_u32 s32, 4')
    a(f's_cselect_b32 s54, {PR[0]}, {PR[1]}')
    a(f's_cselect_b32 s55, {PR[2]}, {PR[3]}')
    a('s_setprio 2')
    a('s_waitcnt vmcnt(12)')
    a('s_barrier')
    stamp(a,1)
    a(f'ds_read_b128 v[{K[0]}:{K[0]+3}], v2')
    a('s_waitcnt lgkmcnt(0)')
    a(f'v_mfma_f32_32x32x16_bf16 v[{S[0]}:{S[0]+15}], v[{K[0]}:{K[0]+3}], v[{Q}:{Q+3}], 0')
    a('s_nop 15')
    s0=S[0]
    a(f'v_max3_f32 v97, v{s0}, v{s0+1}, v{s0+2}')
    for r in range(3,15,2): a(f'v_max3_f32 v97, v97, v{s0+r}, v{s0+r+1}')
    a(f'v_max_f32 v97, v97, v{s0+15}')
    a.label(f'L_{name}_havemax')
    a('v_mov_b32 v98, v97')
    a('s_nop 1')
    a('v_permlane32_swap_b32 v97, v98')
    a('s_nop 1')
    a('v_max_f32 v97, v97, v98')
    for r in range(16): a(f'v_sub_f32 v{C+r}, 0, v97')
    for r in range(16): a(f'v_mov_b32 v{O+r}, 0')
    for r in range(8,16): a(f'v_mov_b32 v{S[1]+r}, 0')
    a(f'v_mov_b32 v{ADDR}, v2')
    a(f'ds_read_b128 v[{K[0]}:{K[0]+3}], v2')
    a(f'ds_read_b128 v[{K[1]}:{K[1]+3}], v2 offset:2048')
    a('s_mov_b64 exec, s[48:49]')
    a(f'ds_read_b128 v[{V0[0]}:{V0[0]+3}], v2 offset:1024')
    a(f'ds_read_b128 v[{V1[0]}:{V1[0]+3}], v2 offset:1280')
    a('s_mov_b64 exec, -1')
    a('s_waitcnt lgkmcnt(0)')
    a(f'v_mfma_f32_32x32x16_bf16 v[{S[0]}:{S[0]+15}], v[{K[0]}:{K[0]+3}], v[{Q}:{Q+3}], v[{C}:{C+15}]')
    a('s_mov_b32 s51, 0')
    if STAMPS: a('s_memtime s[74:75]')
    a('s_nop 15')
    a.raw('.p2align 6')
    a.label(f'L_{name}_loop')
    for i in range(4):
        cur=S[i%2]; prev=S[(i+1)%2]
        def e(x,y):
            for j in range(x,y):
                if 'noexp' in EXPT: a(f'v_mov_b32 v{cur+j}, v{cur+j}')
                else: a(f'v_exp_f32 v{cur+j}, v{cur+j}')
        a('s_waitcnt lgkmcnt(0)')
        e(0,2)
        if 'nopv' not in EXPT: a(f'v_smfmac_f32_32x32x32_bf16 v[{O}:{O+15}], v[{V1[(i+1)%2]}:{V1[(i+1)%2]+3}], v[{prev+8}:{prev+15}], v{IDX}')
        if 'nolds' not in EXPT:
            a(f'ds_read_b128 v[{K[i%2]}:{K[i%2]+3}], v{ADDR} offset:{(i+2)*2048}')
            a('s_mov_b64 exec, s[48:49]')
            a(f'ds_read_b128 v[{V0[(i+1)%2]}:{V0[(i+1)%2]+3}], v{ADDR} offset:{(i+1)*2048+1024}')
            a(f'ds_read_b128 v[{V1[(i+1)%2]}:{V1[(i+1)%2]+3}], v{ADDR} offset:{(i+1)*2048+1280}')
            a('s_mov_b64 exec, -1')
        e(2,7)
        a(f'v_mfma_f32_32x32x16_bf16 v[{prev}:{prev+15}], v[{K[(i+1)%2]}:{K[(i+1)%2]+3}], v[{Q}:{Q+3}], v[{C}:{C+15}]')
        e(7,12)
        if 'nopv' not in EXPT: a(f'v_smfmac_f32_32x32x32_bf16 v[{O}:{O+15}], v[{V0[i%2]}:{V0[i%2]+3}], v[{cur}:{cur+7}], v{IDX}')
        e(12,16)
    a(f'v_add_u32 v{ADDR}, 8192, v{ADDR}')
    a('s_add_u32 s51, s51, 1')
    a('s_cmp_eq_u32 s51, 3')
    a(f's_cbranch_scc1 L_{name}_ev3')
    a('s_cmp_eq_u32 s51, s54')
    a(f's_cbranch_scc1 L_{name}_ev10')
    a('s_cmp_eq_u32 s51, s55')
    a(f's_cbranch_scc1 L_{name}_ev14')
    a('s_cmp_lt_u32 s51, 16')
    a(f's_cbranch_scc1 L_{name}_loop')
    a(f's_branch L_{name}_done')
    a.label(f'L_{name}_ev3')
    a('s_cmp_eq_u32 s50, 0')
    a(f's_cbranch_scc0 L_{name}_loop')
    stamp(a,3)
    a('s_waitcnt vmcnt(0)')
    a('s_barrier')
    stamp(a,4)
    a(f's_branch L_{name}_loop')
    a.label(f'L_{name}_ev10')
    stamp(a,5)
    a('s_setprio 1')
    a(f's_branch L_{name}_loop')
    a.label(f'L_{name}_ev14')
    a('s_setprio 0')
    a(f's_branch L_{name}_loop')
    a.label(f'L_{name}_done')
    a('s_nop 1')
    a(f'v_smfmac_f32_32x32x32_bf16 v[{O}:{O+15}], v[{V1[1]}:{V1[1]+3}], v[{S[1]+8}:{S[1]+15}], v{IDX}')
    a('s_waitcnt lgkmcnt(0)')
    a('s_nop 15')
    stamp(a,2)
    if STAMPS:
        a('s_memtime s[76:77]')
        a('s_waitcnt lgkmcnt(0)')
        a('s_sub_u32 s78, s76, s74')
    a(f's_mov_b32 s52, {hex(f2u(2.0**60))}')
    a(f'v_cmp_gt_f32 vcc, s52, v{O+8}')
    if 'nopv' in EXPT or 'noexp' in EXPT: a('s_mov_b32 s50, 1')
    a('s_nop 3')
    a('s_cmp_eq_u64 vcc, -1')
    a(f's_cbranch_scc1 L_{name}_ok')
    a('s_cmp_eq_u32 s50, 0')
    a(f's_cbranch_scc0 L_{name}_ok')
    a('s_mov_b32 s50, 1')
    a('s_setprio 2')
    a('v_mov_b32 v97, 0xff800000')
    a(f'v_mov_b32 v{ADDR}, v2')
    a('s_mov_b32 s51, 0')
    a.label(f'L_{name}_fb')
    a(f'ds_read_b128 v[{K[0]}:{K[0]+3}], v{ADDR}')
    a('s_waitcnt lgkmcnt(0)')
    a(f'v_mfma_f32_32x32x16_bf16 v[{S[0]}:{S[0]+15}], v[{K[0]}:{K[0]+3}], v[{Q}:{Q+3}], 0')
    a('s_nop 15')
    for r in range(0,16,2): a(f'v_max3_f32 v97, v97, v{s0+r}, v{s0+r+1}')
    a(f'v_add_u32 v{ADDR}, 2048, v{ADDR}')
    a('s_add_u32 s51, s51, 1')
    a('s_cmp_lt_u32 s51, 64')
    a(f's_cbranch_scc1 L_{name}_fb')
    a(f's_branch L_{name}_havemax')
    a.label(f'L_{name}_ok')
    a(f'v_rcp_f32 v97, v{O+8}')
    a('s_nop 0')
    for r in range(8): a(f'v_mul_f32 v{O+r}, v97, v{O+r}')
    for q in range(4): a(f'v_cvt_pk_bf16_f32 v{100+q}, v{O+2*q}, v{O+2*q+1}')
    a('s_lshl_b32 s43, s42, 15')
    a('s_lshl_b32 s44, s40, 10')
    a('s_add_u32 s43, s43, s44')
    a(f's_add_u32 s43, s43, {WS_O}')
    a('buffer_store_dwordx4 v[100:103], v2, s[24:27], s43 offen')
    if fused:
        a('s_waitcnt vmcnt(0)')
        a(f's_branch L_{name}_endB')
    else:
        a(f's_branch L_{name}_fin')

    a.label(f'L_{name}_fnet')
    a('s_setprio 3')
    a('s_sub_u32 s35, s32, 8')
    srd(a, 8, 36, 0x800000)
    srd(a, 12, 38, 0x800000)
    for r in range(4,8): a(f'v_mov_b32 v{r}, 0')
    a(f'v_mov_b32 v8, {K2_CNT}')
    a('ds_write_b128 v8, v[4:7]')
    a('s_waitcnt lgkmcnt(0)')
    a('s_barrier')
    stamp(a,1)
    if NOFNET:
        a('s_barrier')
        a(f's_branch L_{name}_fin')
    a('v_and_b32 v9, 31, v1')
    a('v_lshrrev_b32 v10, 5, v1')
    stamp(a,2)
    a('s_mov_b32 s60, 0')
    a('s_mov_b32 s61, 0')
    a('s_lshr_b32 s62, s35, 1')
    a('s_and_b32 s63, s35, 1')
    a('s_cmp_eq_u32 s62, 0')
    a('s_cselect_b32 s16, s8, s12')
    a('s_cselect_b32 s17, s9, s13')
    a('s_mov_b32 s18, 0x800000')
    a('s_mov_b32 s19, 0x20000')
    a.label(f'L_{name}_job')
    a('s_cmp_eq_u32 s60, 0')
    a(f's_cbranch_scc1 L_{name}_dojob')
    a('s_mov_b32 s16, s8')
    a('s_mov_b32 s17, s9')
    a('s_mov_b32 s62, 0')
    a.label(f'L_{name}_dojob')
    a('s_and_b32 s66, s40, 1')
    a('s_lshr_b32 s42, s40, 1')
    a('s_lshl_b32 s42, s42, 6')
    a('s_add_u32 s42, s42, s66')
    a('v_lshl_add_u32 v11, v9, 1, s42')
    a('v_mov_b32 v8, v11')
    a('v_lshlrev_b32 v11, 12, v11')
    a('v_lshl_add_u32 v11, v10, 4, v11')
    a('s_lshl_b32 s43, s66, 1')
    a('s_add_u32 s43, s43, s62')
    a(f's_mul_i32 s43, s43, {T_ARR}')
    a(f's_mul_i32 s44, s41, {T_ET}')
    a('s_add_u32 s43, s43, s44')
    a(f's_add_u32 s43, s43, {WS_T}')
    a(f's_add_u32 s67, s43, {32*1024}')
    a('s_lshl_b32 s45, s63, 4')
    a('s_lshl_b32 s46, s35, 3')
    a('s_cmp_eq_u32 s60, 0')
    a('s_cselect_b32 s49, s45, s46')
    a('s_lshl_b32 s45, s49, 10')
    a('s_add_u32 s43, s43, s45')
    a('s_lshl_b32 s45, s49, 5')
    ACCF=16
    for r in range(16): a(f'v_mov_b32 v{ACCF+r}, 0')
    SET=[32,96]
    a('s_cmp_eq_u32 s60, 0')
    a('s_cselect_b32 s58, 1, 0')
    a('s_and_b32 s59, s41, s58')
    def issue(setb, b):
        a(f's_xor_b32 s64, s59, {b}')
        a('s_lshl_b32 s65, s64, 8')
        a('s_add_u32 s65, s65, s45')
        a('s_lshl_b32 s64, s64, 13')
        a('s_add_u32 s64, s64, s43')
        for k in range(8):
            ra=setb+8*k
            a(f'buffer_load_dwordx4 v[{ra}:{ra+3}], v11, s[16:19], s65 offen offset:{k*32}')
            if k==4: a('s_add_u32 s64, s64, 4096')
            a(f'buffer_load_dwordx4 v[{ra+4}:{ra+7}], v2, s[24:27], s64 offen offset:{(k%4)*1024}')
    def mm(setb, first_wait):
        for k in range(8):
            ra=setb+8*k
            a(f's_waitcnt vmcnt({first_wait-2*k-2})')
            a(f'v_mfma_f32_32x32x16_bf16 v[{ACCF}:{ACCF+15}], v[{ra+4}:{ra+7}], v[{ra}:{ra+3}], v[{ACCF}:{ACCF+15}]')
    issue(SET[0],0)
    a('s_cmp_eq_u32 s61, 0')
    a(f's_cbranch_scc0 L_{name}_nob2')
    a('s_mov_b32 s61, 1')
    stamp(a,3)
    a('s_barrier')
    stamp(a,4)
    a.label(f'L_{name}_nob2')
    a('s_cmp_eq_u32 s62, s66')
    a('s_cselect_b32 s68, 1, 0')
    a('s_cmp_eq_u32 s60, 0')
    a('s_cselect_b32 s69, s63, 0')
    a('s_cmp_eq_u32 s35, 3')
    a('s_cselect_b32 s70, 1, 0')
    a('s_cmp_eq_u32 s60, 0')
    a('s_cselect_b32 s69, s69, s70')
    a('s_and_b32 s68, s68, s69')
    a('s_cmp_eq_u32 s60, 0')
    a(f's_cbranch_scc0 L_{name}_short')
    issue(SET[1],1)
    mm(SET[0],32)
    mm(SET[1],16)
    a(f's_branch L_{name}_mmd')
    a.label(f'L_{name}_short')
    mm(SET[0],16)
    a.label(f'L_{name}_mmd')
    a('s_cmp_eq_u32 s68, 1')
    a(f's_cbranch_scc0 L_{name}_nox')
    a('s_mov_b32 s45, 1024')
    a(f'buffer_load_dwordx4 v[32:35], v11, s[16:19], s45 offen')
    a(f'buffer_load_dwordx4 v[36:39], v2, s[24:27], s67 offen')
    a('s_waitcnt vmcnt(0)')
    a(f'v_mfma_f32_32x32x16_bf16 v[{ACCF}:{ACCF+15}], v[36:39], v[32:35], v[{ACCF}:{ACCF+15}]')
    a.label(f'L_{name}_nox')
    a('s_nop 15')
    a('s_cmp_eq_u32 s60, 0')
    a(f's_cbranch_scc1 L_{name}_nospin')
    a(f'v_mov_b32 v12, {K2_CNT+8}')
    a.label(f'L_{name}_spin')
    a('ds_read_b32 v13, v12')
    a('s_waitcnt lgkmcnt(0)')
    a('v_readfirstlane_b32 s47, v13')
    a('s_nop 3')
    a('s_cmp_eq_u32 s47, 0')
    a(f's_cbranch_scc0 L_{name}_nospin')
    a('s_sleep 2')
    a(f's_branch L_{name}_spin')
    a.label(f'L_{name}_nospin')
    a('s_lshl_b32 s45, s35, 12')
    a(f's_add_u32 s45, s45, {K2_SUM}')
    a('v_add_u32 v12, s45, v2')
    for g in range(4): a(f'ds_write_b128 v12, v[{ACCF+4*g}:{ACCF+4*g+3}] offset:{g*1024}')
    stamp(a,5)
    a('s_waitcnt lgkmcnt(0)')
    a('s_lshl_b32 s45, s60, 2')
    a(f's_add_u32 s45, s45, {K2_CNT}')
    a('v_mov_b32 v12, s45')
    a('v_mov_b32 v13, 1')
    a('s_mov_b64 exec, 1')
    a('ds_add_rtn_u32 v14, v12, v13')
    a('s_waitcnt lgkmcnt(0)')
    a('s_mov_b64 exec, -1')
    a('v_readfirstlane_b32 s47, v14')
    a('s_nop 3')
    a('s_cmp_eq_u32 s47, 3')
    a(f's_cbranch_scc0 L_{name}_nextjob')
    a(f'v_add_u32 v12, {K2_SUM}, v2')
    for g in range(4): a(f'ds_read_b128 v[{32+4*g}:{35+4*g}], v12 offset:{g*1024}')
    for g in range(4): a(f'ds_read_b128 v[{80+4*g}:{83+4*g}], v12 offset:{4096+g*1024}')
    for g in range(4): a(f'ds_read_b128 v[{48+4*g}:{51+4*g}], v12 offset:{8192+g*1024}')
    a('s_waitcnt lgkmcnt(8)')
    for g in range(4): a(f'ds_read_b128 v[{96+4*g}:{99+4*g}], v12 offset:{12288+g*1024}')
    a('s_waitcnt lgkmcnt(0)')
    a(f'v_mov_b32 v12, {K2_CNT+8}')
    a('v_mov_b32 v13, 1')
    a('ds_write_b32 v12, v13')
    for r in range(16): a(f'v_add_f32 v{48+r}, v{48+r}, v{96+r}')
    for r in range(16): a(f'v_add_f32 v{32+r}, v{32+r}, v{80+r}')
    a('s_cmp_eq_u32 s60, 0')
    a(f's_cbranch_scc1 L_{name}_haveq')
    for r in range(16):
        a(f'v_add_f32 v{32+r}, v{32+r}, v{48+r}')
        a(f'v_mov_b32 v{48+r}, 0')
    a.label(f'L_{name}_haveq')
    for r in range(16):
        a(f'v_sub_f32 v{64+r}, v{32+r}, v{48+r}')
        a(f'v_add_f32 v{32+r}, v{32+r}, v{48+r}')
    for q in range(8):
        a(f'v_cvt_pk_bf16_f32 v{80+q}, v{64+2*q}, v{64+2*q+1}')
        a(f'v_cvt_pk_bf16_f32 v{88+q}, v{32+2*q}, v{32+2*q+1}')
    a(f'v_mul_u32_u24 v13, {YQ_PITCH}, v8')
    a('v_lshl_add_u32 v13, v10, 3, v13')
    a('s_lshl_b32 s42, s41, 6')
    a(f's_add_u32 s42, s42, {WS_Y}')
    a(f's_add_u32 s43, s42, 0x100000')
    for b in range(4):
        a(f'buffer_store_dwordx2 v[{80+2*b}:{81+2*b}], v13, s[24:27], s42 offen offset:{b*16} sc1')
        a(f'buffer_store_dwordx2 v[{88+2*b}:{89+2*b}], v13, s[24:27], s43 offen offset:{b*16} sc1')
    if fused:
        a('s_waitcnt vmcnt(0)')
        a('v_lshlrev_b32 v12, 7, v1')
        a(f'v_add_u32 v12, {WS_FLAG+4}, v12')
        a('v_mov_b32 v13, 1')
        a('s_mov_b64 exec, 0xff')
        a('global_atomic_add v12, v13, s[24:25] sc1')
        a('s_mov_b64 exec, -1')
    a.label(f'L_{name}_nextjob')
    a('s_add_u32 s60, s60, 1')
    a('s_cmp_eq_u32 s60, 1')
    a(f's_cbranch_scc0 L_{name}_fin')
    a('s_cmp_ge_u32 s2, 224')
    a(f's_cbranch_scc1 L_{name}_edgec')
    a('s_sub_u32 s42, s2, 192')
    a('s_cmp_lt_u32 s42, 9')
    a(f's_cbranch_scc0 L_{name}_fin')
    a('s_mov_b32 s40, 32')
    a('s_mov_b32 s41, s42')
    a(f's_branch L_{name}_job')
    a.label(f'L_{name}_edgec')
    a('s_mov_b32 s41, 8')
    a(f's_branch L_{name}_job')
    a.label(f'L_{name}_fin')
    if fused:
        a('s_setprio 0')
        srd(a, 8, 56, 0x80000)
        a('v_lshrrev_b32 v3, 3, v1')
        a('v_bfe_u32 v4, v1, 4, 1')
        a('v_lshlrev_b32 v4, 2, v4')
        a('v_and_b32 v5, 7, v1')
        a('v_xor_b32 v4, v4, v5')
        a('v_lshlrev_b32 v4, 4, v4')
        a('v_lshl_add_u32 v3, v3, 10, v4')
        a('s_lshl_b32 s45, s35, 17')
        a('s_lshr_b32 s48, s2, 5')
        a('s_lshl_b32 s48, s48, 7')
        a('s_add_u32 s45, s45, s48')
        for i in range(16):
            a(f's_add_u32 s49, s45, {i*8192}')
            a(f'buffer_load_dwordx4 v[{32+4*i}:{35+4*i}], v3, s[8:11], s49 offen')
        a('s_lshl_b32 s45, s35, 14')
        a('v_add_u32 v4, s45, v2')
        a('s_waitcnt vmcnt(0)')
        a('s_barrier')
        for i in range(16): a(f'ds_write_b128 v4, v[{32+4*i}:{35+4*i}] offset:{i*1024}')
        a('s_waitcnt lgkmcnt(0)')
        a('s_barrier')
        stamp_flush(a, 6, 24, 32, 12, 1, vtmp=104, extra=78)
        a(f's_branch L_{name}_end')
        a.label(f'L_{name}_endB')
        a('s_setprio 0')
        a('s_barrier')
        stamp_flush(a, 6, 24, 32, 12, 1, vtmp=104, extra=78)
        if STAMPS: a('s_mov_b64 exec, -1')
        a('s_cmp_ge_u32 s32, 4')
        a(f's_cbranch_scc1 L_{name}_w47')
        phase_c(a, name)
        a(f's_branch L_{name}_end')
        a.label(f'L_{name}_w47')
        a('s_barrier')
    else:
        stamp_flush(a, 6, 24, 32, 12, 1, vtmp=104, extra=78)
    a.label(f'L_{name}_end')
    a('s_endpgm')
    return 168


K3_X=65536
K3_LDS=K3_X+16384
def gen_k3(a, name):
    a.stflag=''
    kernel_header(a, name)
    a('s_cmp_ge_u32 s2, 256')
    a(f's_cbranch_scc1 L_{name}_end')
    stamp(a,0)
    a('s_load_dwordx2 s[46:47], s[0:1], 88')
    a('v_lshrrev_b32 v2, 6, v0')
    a('v_and_b32 v1, 63, v0')
    a('v_readfirstlane_b32 s32, v2')
    a('v_lshlrev_b32 v2, 4, v1')
    a('s_and_b32 s33, s2, 7')
    a('s_lshr_b32 s34, s2, 3')
    a('s_and_b32 s35, s34, 3')
    a('s_lshl_b32 s40, s33, 2')
    a('s_add_u32 s40, s40, s35')
    a('s_lshr_b32 s41, s2, 5')
    a('s_and_b32 s42, s32, 1')
    a('s_lshr_b32 s43, s32, 1')
    a('s_lshl_b32 s44, s40, 1')
    a('s_add_u32 s44, s44, s42')
    a('s_add_u32 s50, s41, s35')
    a('s_and_b32 s50, s50, 3')
    a('v_lshrrev_b32 v3, 3, v1')
    a('v_bfe_u32 v4, v1, 4, 1')
    a('v_lshlrev_b32 v4, 2, v4')
    a('v_and_b32 v5, 7, v1')
    a('v_xor_b32 v4, v4, v5')
    a('v_lshlrev_b32 v4, 4, v4')
    a('v_lshl_add_u32 v3, v3, 10, v4')
    a('s_lshl_b32 s45, s43, 8')
    a('s_lshl_b32 s48, s42, 5')
    a('s_add_u32 s45, s45, s48')
    a('s_lshl_b32 s48, s41, 7')
    a('s_lshl_b32 s51, s44, 15')
    a('s_lshl_b32 s52, s43, 14')
    a('s_add_u32 s51, s51, s52')
    a(f's_add_u32 s51, s51, {WS_O}')
    a('s_waitcnt lgkmcnt(0)')
    srd(a, 8, 36, 0x80000)
    srd(a, 24, 46, WS_SIZE)
    OF=32
    def issue(st):
        a(f's_add_u32 s53, s50, {st}')
        a('s_and_b32 s53, s53, 3')
        a('s_lshl_b32 s54, s53, 6')
        a('s_add_u32 s54, s54, s45')
        a('s_lshl_b32 s55, s54, 7')
        a('s_lshl_b32 s56, s54, 10')
        a('s_add_u32 s56, s56, s48')
        for i in range(4):
            a(f's_add_u32 m0, s55, {i*1024}')
            a(f's_add_u32 s57, s56, {i*8192}')
            a('buffer_load_dwordx4 v3, s[8:11], s57 offen lds')
        a('s_lshl_b32 s56, s53, 12')
        a('s_add_u32 s56, s56, s51')
        for i in range(4):
            a(f'buffer_load_dwordx4 v[{OF+16*st+4*i}:{OF+16*st+4*i+3}], v2, s[24:27], s56 offen offset:{i*1024}')
    issue(0); issue(1)
    srd(a, 12, 38, 0x200000)
    a('v_and_b32 v8, 31, v1')
    a('v_lshrrev_b32 v9, 5, v1')
    a('s_lshl_b32 s58, s44, 5')
    a('v_add_u32 v10, s58, v8')
    a('v_and_b32 v12, 511, v10')
    a('s_lshr_b32 s58, s44, 4')
    a('s_cmp_eq_u32 s58, 0')
    a('s_cselect_b32 s59, 0, 1024')
    a('s_cmp_eq_u32 s58, 1')
    a('s_cselect_b32 s59, 2048, s59')
    a('s_and_b32 s61, s58, 1')
    a('s_cmp_eq_u32 s58, 1')
    a('s_cselect_b32 s62, 1, 0')
    a('s_cmp_eq_u32 s58, 2')
    a('s_cselect_b32 s62, 1, s62')
    a('v_add_u32 v10, s59, v12')
    a('v_sub_u32 v11, s59, v12')
    a('s_cmp_eq_u32 s62, 1')
    a('s_cselect_b64 vcc, -1, 0')
    a('v_cndmask_b32 v10, v10, v11, vcc')
    a('s_cmp_lt_u32 s58, 2')
    a('s_cselect_b64 vcc, -1, 0')
    a('v_sub_u32 v11, 1024, v12')
    a('v_cndmask_b32 v13, v11, v12, vcc')
    a('s_lshl_b32 s61, s61, 20')
    a('v_mov_b32 v106, s61')
    a('s_lshr_b32 s62, s58, 1')
    a('s_lshl_b32 s63, s62, 10')
    a('s_add_u32 s63, s63, 512')
    a('s_lshl_b32 s62, s62, 20')
    a('s_and_b32 s59, s58, 1')
    a('s_cmp_eq_u32 s59, 1')
    a('s_cselect_b64 s[64:65], -1, 0')
    a('v_cmp_eq_u32 vcc, 0, v12')
    a('s_nop 1')
    a('s_and_b64 vcc, vcc, s[64:65]')
    a('v_mov_b32 v11, s63')
    a('v_cndmask_b32 v10, v10, v11, vcc')
    a('v_mov_b32 v11, 512')
    a('v_cndmask_b32 v13, v13, v11, vcc')
    a('v_mov_b32 v11, s62')
    a('v_cndmask_b32 v106, v106, v11, vcc')
    a('v_lshlrev_b32 v11, 10, v10')
    a('v_lshl_add_u32 v11, v9, 3, v11')
    a('s_lshl_b32 s58, s41, 7')
    a('s_lshl_b32 s59, s43, 6')
    a('s_add_u32 s58, s58, s59')
    a('v_add_u32 v11, s58, v11')
    a(f'v_mul_u32_u24 v13, {YQ_PITCH}, v13')
    a('v_lshlrev_b32 v12, 3, v9')
    a('s_cmp_lt_u32 s41, 4')
    a(f's_cbranch_scc0 L_{name}_ym')
    a('v_add_u32 v13, v13, v12')
    a('v_add_u32 v13, s58, v13')
    a(f's_branch L_{name}_ymd')
    a.label(f'L_{name}_ym')
    a('v_sub_u32 v13, v13, v12')
    a('s_sub_u32 s59, 1018-48, s58')
    a('v_add_u32 v13, s59, v13')
    a.label(f'L_{name}_ymd')
    a('s_lshr_b32 s59, s41, 2')
    a('s_lshl_b32 s59, s59, 20')
    a('v_xor_b32 v106, s59, v106')
    a('v_add_u32 v13, v13, v106')
    a(f's_mov_b32 s60, {WS_Y}')
    a('v_lshlrev_b32 v105, 2, v10')
    a('v_bfe_u32 v5, v1, 2, 2')
    a('v_lshl_add_u32 v6, v9, 2, v5')
    a('v_lshlrev_b32 v6, 7, v6')
    a('v_bfe_u32 v7, v1, 3, 1')
    a('v_lshlrev_b32 v7, 6, v7')
    a('v_bfe_u32 v12, v1, 4, 1')
    a('v_lshl_add_u32 v6, v12, 5, v6')
    a('v_bfe_u32 v12, v1, 1, 1')
    a('v_lshl_add_u32 v6, v12, 4, v6')
    a('v_and_b32 v12, 1, v1')
    a('v_lshl_add_u32 v6, v12, 3, v6')
    a('v_add_u32 v14, v6, v7')
    a('s_lshl_b32 s58, s43, 15')
    a('v_add_u32 v14, s58, v14')
    ACC=[16,112]
    FW=[128,136]
    stamp(a,1)
    first=True
    waits={0:8, 1:8, 2:13, 3:5}
    for st in range(4):
        a(f's_add_u32 s53, s50, {st}')
        a('s_and_b32 s53, s53, 3')
        a('s_lshl_b32 s53, s53, 13')
        a('v_add_u32 v6, s53, v14')
        a('v_xor_b32 v7, 64, v6')
        a(f's_waitcnt vmcnt({waits[st]})')
        a('s_barrier')
        if st==0: stamp(a,2)
        def reads(i):
            s_=i%2
            for j in range(2):
                a(f'ds_read_b64_tr_b16 v[{FW[s_]+4*j}:{FW[s_]+4*j+1}], v{6+j} offset:{i*2048}')
                a(f'ds_read_b64_tr_b16 v[{FW[s_]+4*j+2}:{FW[s_]+4*j+3}], v{6+j} offset:{i*2048+1024}')
        reads(0)
        if st==0: issue(2)
        if st==1:
            issue(3)
            for b in range(4): a(f'buffer_load_dwordx2 v[{96+2*b}:{97+2*b}], v13, s[24:27], s60 offen offset:{b*16}')
            a(f's_mov_b32 s59, {WS_G}')
            a('buffer_load_dword v104, v105, s[24:27], s59 offen')
        for i in range(4):
            if i<3: reads(i+1); a('s_waitcnt lgkmcnt(4)')
            else: a('s_waitcnt lgkmcnt(0)')
            s_=i%2
            for j in range(2):
                c = '0' if first else f'v[{ACC[j]}:{ACC[j]+15}]'
                a(f'v_mfma_f32_32x32x16_bf16 v[{ACC[j]}:{ACC[j]+15}], v[{FW[s_]+4*j}:{FW[s_]+4*j+3}], v[{OF+16*st+4*i}:{OF+16*st+4*i+3}], {c}')
            first=False
    stamp(a,3)
    a('s_lshl_b32 s48, s42, 13')
    a('s_xor_b32 s49, s43, 1')
    a('s_lshl_b32 s49, s49, 12')
    a('s_add_u32 s49, s49, s48')
    a(f's_add_u32 s49, s49, {K3_X}')
    a('v_add_u32 v5, s49, v2')
    a('s_lshl_b32 s49, s43, 12')
    a('s_add_u32 s49, s49, s48')
    a(f's_add_u32 s49, s49, {K3_X}')
    a('v_add_u32 v6, s49, v2')
    a('s_nop 7')
    a('s_cmp_eq_u32 s43, 0')
    a(f's_cbranch_scc0 L_{name}_kw1')
    for g in range(4): a(f'ds_write_b128 v5, v[{ACC[1]+4*g}:{ACC[1]+4*g+3}] offset:{g*1024}')
    a(f's_branch L_{name}_x')
    a.label(f'L_{name}_kw1')
    for g in range(4): a(f'ds_write_b128 v5, v[{ACC[0]+4*g}:{ACC[0]+4*g+3}] offset:{g*1024}')
    a('s_nop 1')
    for r in range(16): a(f'v_mov_b32 v{ACC[0]+r}, v{ACC[1]+r}')
    a.label(f'L_{name}_x')
    a('s_waitcnt vmcnt(0) lgkmcnt(0)')
    a('s_barrier')
    for g in range(4): a(f'ds_read_b128 v[{32+4*g}:{35+4*g}], v6 offset:{g*1024}')
    a('v_sub_f32 v105, 1.0, v104')
    a('s_cmp_lt_u32 s41, 4')
    a(f's_cbranch_scc0 L_{name}_um')
    for b in range(4):
        for q in range(2):
            src=96+2*b+q
            a(f'v_lshlrev_b32 v{48+4*b+2*q}, 16, v{src}')
            a(f'v_and_b32 v{48+4*b+2*q+1}, 0xffff0000, v{src}')
    a(f's_branch L_{name}_umd')
    a.label(f'L_{name}_um')
    for b in range(4):
        g=3-b
        d0=96+2*b; d1=97+2*b
        a(f'v_and_b32 v{48+4*g+0}, 0xffff0000, v{d1}')
        a(f'v_lshlrev_b32 v{48+4*g+1}, 16, v{d1}')
        a(f'v_and_b32 v{48+4*g+2}, 0xffff0000, v{d0}')
        a(f'v_lshlrev_b32 v{48+4*g+3}, 16, v{d0}')
    a.label(f'L_{name}_umd')
    for r in range(16): a(f'v_mul_f32 v{48+r}, v104, v{48+r}')
    a('s_waitcnt lgkmcnt(0)')
    for r in range(16):
        a(f'v_add_f32 v{16+r}, v{16+r}, v{32+r}')
    for r in range(16):
        a(f'v_fmac_f32 v{48+r}, v105, v{16+r}')
    for b in range(4):
        a(f'v_cvt_pk_bf16_f32 v{64+2*b}, v{48+4*b}, v{48+4*b+1}')
        a(f'v_cvt_pk_bf16_f32 v{65+2*b}, v{48+4*b+2}, v{48+4*b+3}')
    for b in range(4):
        a(f'buffer_store_dwordx2 v[{64+2*b}:{65+2*b}], v11, s[12:15], 0 offen offset:{b*16}')
    stamp_flush(a, 4, 24, 32, 4, 2, vtmp=106)
    a.label(f'L_{name}_end')
    a('s_endpgm')
    return 144

def build(kernels):
    a=Asm()
    hdr = """; Kernarg layout (96 bytes): A_x, dft_seq_re, dft_seq_im, dft_hid_re, dft_hid_im, B_x, wqkv, wo, gate_w, out, debug, ws
"""
    descs=''
    body=Asm()
    for (name, fn, grid, block, lds) in kernels:
        hdr += f'; @launch kernel={name} grid=({grid},1,1) block=({block},1,1) lds={lds}\n'
    body.raw('.amdgcn_target "amdgcn-amd-amdhsa--gfx950"')
    body.raw('.text')
    for (name, fn, grid, block, lds) in kernels:
        v=fn(body,name)
        descs += kernel_desc(name, v)
    return hdr + body.text() + '.section .rodata,"a"\n' + descs

if __name__=='__main__':
    which = sys.argv[1] if len(sys.argv)>1 else 'k1'
    ks=[]
    ks.append(('k1_qkv_kernel', gen_k1, 256, 512, K1_LDS))
    if which in ('k2','all'): ks.append(('k2_attn_kernel', gen_k2, 256, 768, K2_LDS))
    if which=='f23': ks.append(('k2_attn_kernel', gen_k23, 256, 768, K2_LDS))
    if which=='all': ks.append(('k3_out_kernel', gen_k3, 256, 256, K3_LDS))
    txt=build(ks)
    out = sys.argv[2] if len(sys.argv)>2 else 'out.s'
    open(out,'w').write(txt)
```

```python
import sys, os
NAME='gated_mix__spectral_fnet__mha_block__prompt'
WS_Q=0; WS_KV=0x200000; WS_O=0x600000; WS_Y=0x800000; WS_T1=0xA00000; WS_T2=0xB00000; WS_G=0xC00000
WS_FLAG=0xC80000
WS_SIZE=0xD00000
YQ_PITCH=576; YQ_SZ=0x98000
T1_ET=65*1024; T2_ET=64*1024
WS_T=0xA00000; T_ET=33*1024; T_ARR=0x50000
C_SCALE=0.25*1.4426950408889634
import struct
def f2u(x): return struct.unpack('<I',struct.pack('<f',x))[0]

STAMPS = os.environ.get('STAMPS','0')=='1'
NOFNET = os.environ.get('NOFNET','0')=='1'
NOPRIO = os.environ.get('NOPRIO','0')=='1'
FAKEA = os.environ.get('FAKEA','0')=='1'
EXPT = os.environ.get('EXPT','')
PR = [int(x) for x in os.environ.get('PR','9,10,15,63').split(',')]
class Asm:
    def __init__(self): self.L=[]; self.noload=False; self.stflag=''
    def __call__(self, s):
        for line in s.strip('\n').split('\n'):
            if self.noload and line.strip().endswith(' lds'): continue
            if NOPRIO and line.strip().startswith('s_setprio'): continue
            if line.strip().startswith('buffer_store_dwordx4') and self.stflag:
                if self.stflag=='none': continue
                line = line.strip()+' '+self.stflag
            self.L.append('    '+line.strip())
    def label(self, s): self.L.append(s+':')
    def raw(self, s): self.L.append(s)
    def text(self): return '\n'.join(self.L)+'\n'

def srd(a, d, lo, size):
    a(f's_mov_b32 s{d}, s{lo}')
    a(f's_mov_b32 s{d+1}, s{lo+1}')
    a(f's_mov_b32 s{d+2}, {hex(size)}')
    a(f's_mov_b32 s{d+3}, 0x20000')

def pi_perm(a, dst, src, tmp):
    a(f'v_and_b32 v{dst}, 0x13, v{src}')
    a(f'v_and_b32 v{tmp}, 4, v{src}')
    a(f'v_lshl_or_b32 v{dst}, v{tmp}, 1, v{dst}')
    a(f'v_and_b32 v{tmp}, 8, v{src}')
    a(f'v_lshrrev_b32 v{tmp}, 1, v{tmp}')
    a(f'v_or_b32 v{dst}, v{dst}, v{tmp}')

WS_STAMP=0x1000000
def stamp(a, i):
    if STAMPS:
        a(f's_memrealtime s[{80+2*i}:{81+2*i}]')
def stamp_flush(a, n, wsreg, widreg, wpw, kidx, vtmp=100, extra=None):
    if not STAMPS: return
    a('s_waitcnt vmcnt(0) lgkmcnt(0)')
    a(f's_memrealtime s[{80+2*n}:{81+2*n}]')
    a('s_waitcnt lgkmcnt(0)')
    a(f's_mul_i32 s98, s2, {wpw}')
    a(f's_add_u32 s98, s98, s{widreg}')
    a('s_lshl_b32 s98, s98, 5')
    a(f's_add_u32 s98, s98, {WS_STAMP+kidx*0x40000}')
    a(f's_mov_b32 s{wsreg+2}, 0x2000000')
    a('s_mov_b64 exec, 1')
    a(f'v_mov_b32 v{vtmp+1}, 0')
    for i in range(n+1):
        a(f'v_mov_b32 v{vtmp}, s{80+2*i}')
        a(f'buffer_store_dword v{vtmp}, v{vtmp+1}, s[{wsreg}:{wsreg+3}], s98 offen offset:{4*i}')
        a('s_nop 1')
    if extra is not None:
        a(f'v_mov_b32 v{vtmp}, s{extra}')
        a(f'buffer_store_dword v{vtmp}, v{vtmp+1}, s[{wsreg}:{wsreg+3}], s98 offen offset:28')

def kernel_header(a, name):
    a.raw(f'.globl {name}')
    a.raw('.p2align 8')
    a.raw(f'.type {name},@function')
    a.label(name)

def kernel_desc(name, vgpr, sgpr=102):
    acc = (vgpr+3)//4*4
    return f""".p2align 6
.amdhsa_kernel {name}
  .amdhsa_next_free_vgpr {vgpr}
  .amdhsa_next_free_sgpr {sgpr}
  .amdhsa_accum_offset {acc}
  .amdhsa_group_segment_fixed_size 0
  .amdhsa_kernarg_size 96
  .amdhsa_user_sgpr_count 2
  .amdhsa_user_sgpr_kernarg_segment_ptr 1
  .amdhsa_system_sgpr_workgroup_id_x 1
.end_amdhsa_kernel
"""

K1_SLOT=32768
K1_NS=4
K1_X=0; K1_WQK=16384; K1_WV=24576; K1_WD=28672
K1_LDS=163840

def gen_k1(a, name):
    WR=131072
    a.noload = 'noload' in EXPT
    a.stflag = 'sc1' if 'st_sc1' in EXPT else 'nt' if 'st_nt' in EXPT else 'none' if 'st_none' in EXPT else 'sc0 sc1' if 'st_sc01' in EXPT else '' if 'st_plain' in EXPT else 'sc1'
    kernel_header(a, name)
    a('s_cmp_ge_u32 s2, 256')
    a(f's_cbranch_scc1 L_{name}_end')
    stamp(a,0)
    a('s_load_dwordx2 s[4:5], s[0:1], 0')
    a('s_load_dwordx4 s[36:39], s[0:1], 24')
    a('s_load_dwordx2 s[42:43], s[0:1], 48')
    a('s_load_dwordx2 s[44:45], s[0:1], 64')
    a('s_load_dwordx2 s[46:47], s[0:1], 88')
    a('v_lshrrev_b32 v2, 6, v0')
    a('v_and_b32 v1, 63, v0')
    a('v_readfirstlane_b32 s32, v2')
    a('s_and_b32 s33, s2, 7')
    a('s_lshr_b32 s34, s2, 3')
    a('s_lshr_b32 s54, s33, 1')
    a('s_lshl_b32 s54, s54, 2')
    a('s_and_b32 s55, s34, 3')
    a('s_add_u32 s54, s54, s55')
    a('s_and_b32 s55, s33, 1')
    a('s_lshl_b32 s55, s55, 3')
    a('s_lshr_b32 s56, s34, 2')
    a('s_add_u32 s55, s55, s56')
    a('s_cmp_lt_u32 s32, 4')
    a(f's_cbranch_scc1 L_{name}_comp')
    a('s_sub_u32 s35, s32, 4')
    a('v_lshrrev_b32 v2, 3, v1')
    a('v_and_b32 v3, 7, v1')
    a('v_lshrrev_b32 v4, 4, v1')
    a('v_xor_b32 v5, v3, v4')
    a('v_lshlrev_b32 v5, 4, v5')
    a('s_and_b32 s57, s35, 1')
    a('s_lshl_b32 s56, s54, 5')
    a('v_add_u32 v11, s56, v2')
    a('s_lshr_b32 s58, s35, 1')
    a('s_lshl_b32 s58, s58, 10')
    a('s_cmp_eq_u32 s35, 0')
    a(f's_cbranch_scc1 L_{name}_plus')
    a('s_cmp_eq_u32 s35, 3')
    a(f's_cbranch_scc1 L_{name}_plus')
    a('s_sub_u32 s59, 2048, s58')
    a('v_sub_u32 v12, s59, v11')
    a('v_lshl_add_u32 v16, v12, 10, v5')
    a('v_subrev_u32 v17, 8192, v16')
    a('v_subrev_u32 v18, 16384, v16')
    a('v_subrev_u32 v19, 24576, v16')
    a(f's_branch L_{name}_mird')
    a.label(f'L_{name}_plus')
    a('v_add_u32 v12, s58, v11')
    a('v_lshl_add_u32 v16, v12, 10, v5')
    a('v_add_u32 v17, 8192, v16')
    a('v_add_u32 v18, 16384, v16')
    a('v_add_u32 v19, 24576, v16')
    a.label(f'L_{name}_mird')
    a('s_add_u32 s58, s58, 512')
    a('v_mov_b32 v13, s58')
    a('v_lshl_add_u32 v13, v13, 10, v5')
    a('v_cmp_eq_u32 vcc, 0, v11')
    a('s_cmp_eq_u32 s57, 1')
    a('s_cselect_b64 s[58:59], -1, 0')
    a('s_and_b64 vcc, vcc, s[58:59]')
    a('v_cndmask_b32 v16, v16, v13, vcc')
    a('v_xor_b32 v17, 64, v17')
    a('v_xor_b32 v19, 64, v19')
    a('v_bfe_u32 v6, v1, 4, 1')
    a('v_lshlrev_b32 v6, 2, v6')
    a('v_xor_b32 v6, v6, v3')
    a('v_lshlrev_b32 v6, 4, v6')
    a('v_mul_u32_u24 v7, 3072, v2')
    a('v_add_u32 v6, v6, v7')
    a('s_lshl_b32 s58, s55, 7')
    a('v_add_u32 v20, s58, v6')
    a('v_add_u32 v21, 8*3072, v20')
    a('v_lshrrev_b32 v6, 2, v1')
    a('v_mul_u32_u24 v6, 3072, v6')
    a('v_and_b32 v7, 3, v1')
    a('v_lshl_add_u32 v6, v7, 4, v6')
    a('s_lshl_b32 s58, s55, 6')
    a('s_add_u32 s58, s58, 2048')
    a('v_add_u32 v22, s58, v6')
    a('s_lshl_b32 s56, s55, 4')
    a('s_lshl_b32 s58, s57, 3')
    a('s_add_u32 s56, s56, s58')
    a('v_add_u32 v11, s56, v2')
    a('v_lshl_add_u32 v23, v11, 10, v5')
    a('s_lshl_b32 s58, s57, 6')
    a('v_xor_b32 v23, s58, v23')
    a('s_mul_i32 s71, s35, 16*3072')
    if 'norot' in EXPT: a('s_mov_b32 s70, 0')
    else:
        a('s_lshr_b32 s70, s34, 2')
        a('s_and_b32 s72, s34, 3')
        a('s_lshl_b32 s72, s72, 1')
        a('s_add_u32 s70, s70, s72')
        a('s_and_b32 s70, s70, 7')
    a('s_lshl_b32 s56, s70, 7')
    a(f's_mul_i32 s57, s70, {64*3072}')
    a('s_add_u32 s57, s57, s71')
    a('s_lshl_b32 s61, s35, 12')
    a('s_lshl_b32 s62, s35, 11')
    a('s_lshl_b32 s63, s35, 10')
    a('s_waitcnt lgkmcnt(0)')
    if STAMPS:
        a('s_memrealtime s[76:77]')
        a('s_waitcnt lgkmcnt(0)')
        a('s_sub_u32 s78, s76, s80')
    srd(a, 8, 4, 0x200000)
    srd(a, 16, 42, 0x180000)
    a('s_cmp_lt_u32 s35, 2')
    a('s_cselect_b32 s20, s36, s38')
    a('s_cselect_b32 s21, s37, s39')
    a('s_mov_b32 s22, 0x80000')
    a('s_mov_b32 s23, 0x20000')
    a('s_mov_b32 s50, 0')
    a.label(f'L_{name}_issue')
    a('s_and_b32 s52, s50, 3')
    a('s_lshl_b32 s52, s52, 13')
    a(f's_add_u32 s52, s52, {WR}')
    a('s_cmp_lt_u32 s50, 8')
    a(f's_cbranch_scc0 L_{name}_issue2')
    a('s_lshl_b32 s65, s50, 14')
    a('s_add_u32 s65, s65, s61')
    for i in range(4):
        a(f's_add_u32 m0, s65, {i*1024}')
        a('s_nop 0')
        a(f'buffer_load_dwordx4 v{16+i}, s[8:11], s56 offen lds')
    a('s_add_u32 s65, s52, s62')
    for i in range(2):
        a(f's_add_u32 m0, s65, {i*1024}')
        a('s_nop 0')
        a(f'buffer_load_dwordx4 v{20+i}, s[16:19], s57 offen lds')
    a(f's_branch L_{name}_issued')
    a.label(f'L_{name}_issue2')
    a('s_add_u32 s65, s52, s63')
    a('s_mov_b32 m0, s65')
    a('s_nop 0')
    a(f'buffer_load_dwordx4 v22, s[16:19], s57 offen lds')
    a('s_add_u32 m0, s65, 4096')
    a('s_nop 0')
    a(f'buffer_load_dwordx4 v23, s[20:23], s56 offen lds')
    a.label(f'L_{name}_issued')
    a('s_add_u32 s70, s70, 1')
    a('s_and_b32 s70, s70, 7')
    a('s_lshl_b32 s56, s70, 7')
    a(f's_mul_i32 s57, s70, {64*3072}')
    a('s_add_u32 s57, s57, s71')
    a('s_add_u32 s50, s50, 1')
    a('s_cmp_lt_u32 s50, 2')
    a(f's_cbranch_scc1 L_{name}_issue')
    if STAMPS:
        a('s_cmp_eq_u32 s50, 2')
        a(f's_cbranch_scc0 L_{name}_ns1')
        stamp(a,1)
        a.label(f'L_{name}_ns1')
    a('s_cmp_eq_u32 s50, 16')
    a(f's_cbranch_scc1 L_{name}_ld16')
    a('s_cmp_lt_u32 s50, 9')
    a(f's_cbranch_scc1 L_{name}_w6')
    a('s_waitcnt vmcnt(2)')
    a(f's_branch L_{name}_wd')
    a.label(f'L_{name}_w6')
    a('s_waitcnt vmcnt(6)')
    a.label(f'L_{name}_wd')
    a('s_barrier')
    if STAMPS:
        a('s_cmp_eq_u32 s50, 2')
        a(f's_cbranch_scc0 L_{name}_ns2')
        stamp(a,2)
        a.label(f'L_{name}_ns2')
    a(f's_branch L_{name}_issue')
    a.label(f'L_{name}_ld16')
    srd(a, 28, 44, 1024)
    a('s_lshl_b32 s48, s2, 3')
    a('s_lshl_b32 s49, s35, 1')
    a('s_add_u32 s48, s48, s49')
    a('s_lshl_b32 s49, s48, 10')
    a('v_lshlrev_b32 v12, 4, v1')
    a('buffer_load_dwordx4 v[24:27], v12, s[8:11], s49 offen')
    a('buffer_load_dwordx4 v[28:31], v12, s[8:11], s49 offen offset:1024')
    a('buffer_load_dwordx4 v[32:35], v12, s[28:31], 0 offen')
    a('s_waitcnt vmcnt(5)')
    a('s_barrier')
    a('s_waitcnt vmcnt(3)')
    a('s_barrier')
    stamp(a,3)
    a('s_barrier')
    srd(a, 24, 46, WS_SIZE)
    a('v_mov_b32 v16, 0'); a('v_mov_b32 v17, 0')
    a('s_waitcnt vmcnt(0)')
    for q in range(4):
        a(f'v_dot2_f32_bf16 v16, v{24+q}, v{32+q}, v16')
        a(f'v_dot2_f32_bf16 v17, v{28+q}, v{32+q}, v17')
    a('s_nop 2')
    def dpp(op):
        a('s_nop 0')
        a(f'v_add_f32_dpp v16, v16, v16 {op}')
        a(f'v_add_f32_dpp v17, v17, v17 {op}')
    for sh in (1,2,4,8): dpp(f'row_shr:{sh} row_mask:0xf bank_mask:0xf')
    dpp('row_bcast:15 row_mask:0xa bank_mask:0xf')
    dpp('row_bcast:31 row_mask:0xc bank_mask:0xf')
    for r in (16,17): a(f'v_mul_f32 v{r}, {hex(f2u(-1.4426950408889634))}, v{r}')
    for r in (16,17): a(f'v_exp_f32 v{r}, v{r}')
    a('s_nop 0')
    for r in (16,17): a(f'v_add_f32 v{r}, 1.0, v{r}')
    for r in (16,17): a(f'v_rcp_f32 v{r}, v{r}')
    a('s_lshl_b32 s49, s48, 2')
    a(f's_add_u32 s49, s49, {WS_G}')
    a('v_mov_b32 v18, 0')
    a('s_mov_b32 exec_lo, 0')
    a('s_mov_b32 exec_hi, 0x80000000')
    a('buffer_store_dwordx2 v[16:17], v18, s[24:27], s49 offen')
    a('s_mov_b64 exec, -1')
    if 'nopf' not in EXPT:
        a('s_cmp_lt_u32 s2, 16')
        a(f's_cbranch_scc0 L_{name}_nopf')
        a('s_cmp_eq_u32 s32, 7')
        a(f's_cbranch_scc0 L_{name}_nopf')
        a('s_getpc_b64 s[72:73]')
        a.label(f'L_{name}_pc')
        a(f's_add_u32 s72, s72, k2_attn_kernel-L_{name}_pc')
        a('s_addc_u32 s73, s73, 0')
        a('v_lshlrev_b32 v18, 4, v1')
        for i in range(6):
            a(f'global_load_dwordx4 v[{36+4*i}:{39+4*i}], v18, s[72:73]')
            a('v_add_u32 v18, 1024, v18')
        a('v_lshlrev_b32 v18, 4, v1')
        a('v_add_u32 v18, L_k2_attn_kernel_end-k2_attn_kernel-1024, v18')
        a('global_load_dwordx4 v[60:63], v18, s[72:73]')
        a.label(f'L_{name}_nopf')
    a('s_cmp_eq_u32 s2, 0')
    a(f's_cbranch_scc0 L_{name}_fin')
    a('s_cmp_eq_u32 s32, 4')
    a(f's_cbranch_scc0 L_{name}_fin')
    for r in range(20,24): a(f'v_mov_b32 v{r}, 0')
    a('v_lshlrev_b32 v18, 4, v1')
    a(f's_mov_b32 s49, {WS_FLAG}')
    a('buffer_store_dwordx4 v[20:23], v18, s[24:27], s49 offen')
    a(f's_branch L_{name}_fin')

    a.label(f'L_{name}_comp')
    a('s_lshr_b32 s35, s32, 1')
    a('s_and_b32 s40, s32, 1')
    a('v_and_b32 v8, 31, v1')
    a('v_lshrrev_b32 v9, 5, v1')
    pi_perm(a, 10, 8, 11)
    def frag_addr(dst0, rowreg, base_off, tmp):
        a(f'v_lshrrev_b32 v{tmp}, 1, v{rowreg}')
        a(f'v_and_b32 v{tmp}, 7, v{tmp}')
        a(f'v_xor_b32 v{tmp}, v{tmp}, v9')
        a(f'v_lshlrev_b32 v{tmp}, 4, v{tmp}')
        a(f'v_lshl_add_u32 v{dst0}, v{rowreg}, 7, v{tmp}')
        if base_off: a(f'v_add_u32 v{dst0}, {base_off}, v{dst0}')
        for ks in range(1,4): a(f'v_xor_b32 v{dst0+ks}, {ks*32}, v{dst0}')
    a('s_lshl_b32 s63, s35, 6')
    a('v_add_u32 v11, s63, v10')
    frag_addr(16, 11, 0, 15)
    a('v_bfe_u32 v11, v1, 2, 2')
    a('v_lshl_add_u32 v11, v9, 3, v11')
    a('v_bfe_u32 v12, v1, 4, 1')
    a('v_and_b32 v13, 3, v1')
    a('v_lshlrev_b32 v20, 7, v11')
    a('v_bfe_u32 v14, v1, 3, 1')
    a('v_xor_b32 v14, s40, v14')
    a('v_lshl_add_u32 v20, v14, 6, v20')
    a('v_lshl_add_u32 v20, v12, 5, v20')
    a('v_lshrrev_b32 v14, 1, v13')
    a('v_lshl_add_u32 v20, v14, 4, v20')
    a('v_and_b32 v14, 1, v13')
    a('v_lshl_add_u32 v20, v14, 3, v20')
    a('v_lshlrev_b32 v22, 6, v11')
    a('v_lshl_add_u32 v22, v12, 5, v22')
    a('v_lshl_add_u32 v22, v13, 3, v22')
    frag_addr(24, 8, 4096, 15)
    a('s_cmp_eq_u32 s55, 0')
    a('s_cselect_b32 s66, 0x10000, 0')
    a('s_mov_b32 s67, s66')
    a('v_mov_b32 v14, 0xbf803f80')
    A1=[32,48]; A2=[64,80]
    FS=[96,108,120,132]
    XA=28; WA=21; DA=4
    a('s_mov_b32 s50, 0')
    def mf(d,A,B,zero=False):
        c='0' if zero else f'v[{d}:{d+15}]'
        return f'v_mfma_f32_32x32x16_bf16 v[{d}:{d+15}], v[{A}:{A+3}], v[{B}:{B+3}], {c}'
    def setaddr(kind):
        L=[]
        L.append('s_and_b32 s52, s51, 7'); L.append('s_lshl_b32 s52, s52, 14')
        L.append('s_and_b32 s53, s51, 3'); L.append('s_lshl_b32 s53, s53, 13'); L.append(f's_add_u32 s53, s53, {WR}')
        for ks in range(4): L.append(f'v_add_u32 v{XA+ks}, s52, v{16+ks}')
        if kind=='QK': L.append(f'v_add_u32 v{WA}, s53, v20')
        elif kind=='V': L.append(f'v_add_u32 v{WA}, s53, v22')
        else:
            for ks in range(4): L.append(f'v_add_u32 v{DA+ks}, s53, v{24+ks}')
        return L
    def reads(kind, ks):
        F=FS[ks]
        L=[f'ds_read_b128 v[{F}:{F+3}], v{XA+ks}', f'ds_read_b128 v[{F+4}:{F+7}], v{XA+ks} offset:4096']
        if kind=='QK':
            L+= [f'ds_read_b64_tr_b16 v[{F+8}:{F+9}], v{WA} offset:{ks*2048}', f'ds_read_b64_tr_b16 v[{F+10}:{F+11}], v{WA} offset:{ks*2048+512}']
        elif kind=='V':
            L+= [f'ds_read_b64_tr_b16 v[{F+8}:{F+9}], v{WA} offset:{ks*1024}', f'ds_read_b64_tr_b16 v[{F+10}:{F+11}], v{WA} offset:{ks*1024+256}']
        else:
            L+= [f'ds_read_b128 v[{F+8}:{F+11}], v{DA+ks}']
        return L
    def nreads(kind): return 3 if kind=='F' else 4
    def mfmas(kind, ks, zero=False):
        F=FS[ks]
        if kind=='QK': return [], [mf(A1[t], F+8, F+4*t, zero) for t in range(2)]
        pre=[f'v_cndmask_b32 v{F+8+q}, v{F+8+q}, v14, s[66:67]' for q in range(4)] if kind=='F' else []
        return pre, [mf(A2[t], F+4*t, F+8, zero) for t in range(2)]
    def body(kind, nxt, zero=False, extra=None, last=False):
        extra=list(extra or [])
        ex_per = -(-len(extra)//8) if extra else 0
        def take():
            nonlocal extra
            t=extra[:ex_per]; extra=extra[ex_per:]; return t
        n=nreads(kind); nn=nreads(nxt) if nxt else 0
        for ks in range(4):
            cnt=0
            for d in (1,2):
                k2=ks+d
                if k2<4: cnt+=n
                elif nxt: cnt+=nn
            if ks==0: pass
            a(f's_waitcnt lgkmcnt({min(cnt,15)})')
            pre,mm=mfmas(kind,ks,zero and ks==0)
            if ks==0: rd=reads(kind,3)
            elif nxt: rd=reads(nxt,ks-1)
            else: rd=[]
            for x in pre: a(x)
            if pre: a('s_nop 0')
            h1=rd[:2]; h2=rd[2:]
            a(mm[0])
            for x in h1: a(x)
            for x in take(): a(x)
            a(mm[1])
            for x in h2: a(x)
            for x in take(): a(x)
            if ks==0 and nxt:
                a('s_add_u32 s51, s50, 1')
                for x in setaddr(nxt): a(x)
                a('s_barrier')
        for x in extra: a(x)
        a('s_add_u32 s50, s50, 1')
    for r in range(32,64): a(f'v_mov_b32 v{r}, 0')
    stamp(a,1)
    a('s_waitcnt lgkmcnt(0)')
    a('s_barrier')
    stamp(a,2)
    if STAMPS: a('s_memtime s[74:75]')
    a('s_mov_b32 s51, 0')
    for x in setaddr('QK'): a(x)
    for ks in range(3):
        for x in reads('QK',ks): a(x)
    a.label(f'L_{name}_p1')
    body('QK','QK')
    a('s_cmp_lt_u32 s50, 7')
    a(f's_cbranch_scc1 L_{name}_p1')
    srd(a, 24, 46, WS_SIZE)
    a('s_lshl_b32 s57, s35, 5')
    a('s_add_u32 s56, s54, s57')
    a('s_cmp_ge_u32 s55, 8')
    a('s_cselect_b32 s57, 17, 16')
    a('s_cselect_b32 s58, 11, 10')
    a(f's_cselect_b32 s59, {WS_KV}, {WS_Q}')
    a(f's_cselect_b32 s60, 1.0, {hex(f2u(C_SCALE))}')
    a('s_lshl_b32 s57, 1, s57')
    a('s_lshl_b32 s61, s56, s58')
    a('s_add_u32 s59, s59, s61')
    a('s_lshl_b32 s63, 16, s58')
    a('s_and_b32 s62, s55, 7')
    a('s_lshl_b32 s62, s62, 2')
    a('s_lshl_b32 s64, s40, 1')
    a('s_add_u32 s62, s62, s64')
    a('s_mul_i32 s62, s62, s57')
    a('s_add_u32 s59, s59, s62')
    a('s_add_u32 s68, s59, s57')
    a('s_add_u32 s69, s59, s63')
    a('s_add_u32 s70, s68, s63')
    a('v_lshlrev_b32 v11, 9, v9')
    a('v_lshl_add_u32 v11, v10, 4, v11')
    def ep1(t):
        L=[]
        for hb in range(2):
            base=A1[t]+8*hb; d=144+8*t+4*hb
            for r in range(8): L.append(f'v_mul_f32 v{base+r}, s60, v{base+r}')
            for q in range(4): L.append(f'v_cvt_pk_bf16_f32 v{d+q}, v{base+2*q}, v{base+2*q+1}')
            so=[['s59','s68'],['s69','s70']][t][hb]
            L.append(f'buffer_store_dwordx4 v[{d}:{d+3}], v11, s[24:27], {so} offen')
        return L
    a('s_cmp_eq_u32 s40, 0')
    a(f's_cbranch_scc0 L_{name}_roleF')
    for role in ('V','F'):
        if role=='F': a.label(f'L_{name}_roleF')
        body('QK',role)
        stamp(a,1)
        body(role,role,zero=True,extra=['s_nop 7','s_nop 3']+ep1(0))
        body(role,role,extra=ep1(1))
        a.label(f'L_{name}_p2{role}')
        body(role,role)
        a('s_cmp_lt_u32 s50, 15')
        a(f's_cbranch_scc1 L_{name}_p2{role}')
        body(role,None)
        if STAMPS:
            a('s_memtime s[76:77]')
            a('s_waitcnt lgkmcnt(0)')
            a('s_sub_u32 s78, s76, s74')
        stamp(a,3)
        a('s_nop 15')
        if role=='V':
            a('s_barrier')
            a('s_lshl_b32 s57, s35, 5')
            a('s_add_u32 s58, s54, s57')
            a('v_lshrrev_b32 v19, 4, v8')
            a('v_lshlrev_b32 v19, 17, v19')
            a('v_lshl_add_u32 v19, v9, 9, v19')
            a('v_and_b32 v13, 15, v8')
            a('v_lshl_add_u32 v19, v13, 4, v19')
            a('s_lshl_b32 s61, s55, 18')
            a('s_lshl_b32 s62, s58, 11')
            a('s_add_u32 s61, s61, s62')
            a(f's_add_u32 s61, s61, {WS_KV+1024}')
            for t in range(2):
                for mfi in range(2):
                    base=A2[t]+8*mfi
                    d=96+8*t+4*mfi
                    for q in range(4): a(f'v_cvt_pk_bf16_f32 v{d+q}, v{base+2*q}, v{base+2*q+1}')
                    a(f'buffer_store_dwordx4 v[{d}:{d+3}], v19, s[24:27], s61 offen offset:{mfi*256}')
                if t==0: a('s_add_u32 s61, s61, 32768')
            a(f's_branch L_{name}_fin')
    ACC=[[0,A2[0]],[0,A2[1]]]
    XCH = 0
    a('v_mov_b32 v12, -1.0')
    a('v_mov_b32 v13, 1.0')
    a('v_cmp_gt_u32 vcc, 16, v8')
    a('s_nop 1')
    a('v_cndmask_b32 v12, v12, v13, vcc')
    a('v_cndmask_b32 v12, v12, v13, s[66:67]')
    a('s_cmp_eq_u32 s54, 0')
    a('s_cselect_b32 s68, -1, 0')
    a('s_mov_b32 s69, 0')
    A0=ACC[0][1]; A1=ACC[1][1]
    a(f'v_mov_b32 v15, v{A1}')
    a('v_mov_b32 v13, 0')
    a(f'v_cndmask_b32 v{A1}, v{A1}, v13, s[68:69]')
    for r in range(16): a(f'v_fma_f32 v{A0+r}, v{A1+r}, v12, v{A0+r}')
    a('v_lshlrev_b32 v11, 4, v1')
    a('s_mul_i32 s63, s35, 5120')
    a(f's_add_u32 s63, s63, {XCH}')
    a('v_add_u32 v16, s63, v11')
    a('s_xor_b32 s63, s35, 1')
    a('s_mul_i32 s63, s63, 5120')
    a(f's_add_u32 s63, s63, {XCH}')
    a('v_add_u32 v17, s63, v11')
    for g in range(4): a(f'ds_write_b128 v16, v[{A0+4*g}:{A0+4*g+3}] offset:{g*1024}')
    a('v_lshlrev_b32 v18, 2, v1')
    a('s_mul_i32 s63, s35, 5120')
    a(f's_add_u32 s63, s63, {XCH+4096}')
    a('v_add_u32 v18, s63, v18')
    a('ds_write_b32 v18, v15')
    a('s_waitcnt lgkmcnt(0)')
    a('s_barrier')
    for g in range(4): a(f'ds_read_b128 v[{112+4*g}:{115+4*g}], v17 offset:{g*1024}')
    a('v_lshlrev_b32 v18, 2, v1')
    a('s_xor_b32 s63, s35, 1')
    a('s_mul_i32 s63, s63, 5120')
    a(f's_add_u32 s63, s63, {XCH+4096}')
    a('v_add_u32 v18, s63, v18')
    a('ds_read_b32 v14, v18')
    a('s_waitcnt lgkmcnt(0)')
    a('s_cmp_eq_u32 s35, 0')
    a(f's_cbranch_scc0 L_{name}_odd')
    for r in range(16): a(f'v_fma_f32 v{A0+r}, v{112+r}, v12, v{A0+r}')
    a('v_fma_f32 v15, v14, v12, v15')
    a(f's_branch L_{name}_oddd')
    a.label(f'L_{name}_odd')
    a('v_sub_f32 v13, 0, v12')
    for r in range(16): a(f'v_fma_f32 v{A0+r}, v{A0+r}, v13, v{112+r}')
    a('v_fma_f32 v15, v15, v12, v14')
    a.label(f'L_{name}_oddd')
    for q in range(8): a(f'v_cvt_pk_bf16_f32 v{144+q}, v{A0+2*q}, v{A0+2*q+1}')
    a('s_lshr_b32 s57, s55, 1')
    a(f's_mul_i32 s58, s57, {T_ET}')
    a(f's_mul_i32 s59, s35, {2*T_ARR}')
    a('s_add_u32 s58, s58, s59')
    a(f's_add_u32 s58, s58, {WS_T}')
    a(f's_add_u32 s60, s58, {T_ARR}')
    a('s_and_b32 s62, s55, 1')
    a('s_lshl_b32 s62, s62, 8')
    a('v_and_b32 v16, 15, v8')
    a('v_lshlrev_b32 v16, 4, v16')
    a('v_lshl_add_u32 v16, v9, 9, v16')
    a('v_add_u32 v16, s62, v16')
    a('v_mov_b32 v17, s60')
    a('v_mov_b32 v18, s58')
    a('v_cmp_gt_u32 vcc, 16, v8')
    a('s_nop 1')
    a('v_cndmask_b32 v17, v17, v18, vcc')
    a('v_add_u32 v17, v17, v16')
    a(f's_add_u32 s59, s59, {WS_T+8*T_ET}')
    a('v_mov_b32 v18, s59')
    a('v_lshl_add_u32 v18, v9, 9, v18')
    a('v_cndmask_b32 v19, v17, v18, s[66:67]')
    a('s_lshl_b32 s63, s54, 11')
    for c in range(2):
        a(f'buffer_store_dwordx4 v[{144+4*c}:{147+4*c}], v19, s[24:27], s63 offen offset:{c*1024}')
    a('s_cmp_eq_u32 s55, 0')
    a(f's_cbranch_scc0 L_{name}_nz')
    for r in range(4): a(f'v_mov_b32 v{104+r}, 0')
    a('s_mov_b64 exec, s[66:67]')
    for q in range(2): a(f'buffer_store_dwordx4 v[104:107], v17, s[24:27], s63 offen offset:{q*1024}')
    a(f's_mov_b32 s64, {32*1024}')
    a('buffer_store_dwordx4 v[104:107], v17, s[24:27], s64 offen')
    a('s_mov_b64 exec, -1')
    a.label(f'L_{name}_nz')
    a('s_cmp_eq_u32 s54, 0')
    a(f's_cbranch_scc0 L_{name}_fin')
    a('v_mov_b32 v13, 0')
    a('v_cndmask_b32 v15, v13, v15, s[68:69]')
    a('v_cvt_pk_bf16_f32 v108, v15, v13')
    a('v_mov_b32 v109, 0'); a('v_mov_b32 v110, 0'); a('v_mov_b32 v111, 0')
    a('s_mov_b32 s70, 0x0000ffff')
    a('s_mov_b32 s71, 0x0000ffff')
    a('s_or_b64 s[70:71], s[70:71], s[66:67]')
    a('s_not_b64 s[72:73], s[70:71]')
    a('s_cmp_eq_u32 s35, 0')
    a('s_cselect_b64 s[70:71], s[70:71], s[72:73]')
    a('s_mov_b64 exec, s[70:71]')
    a(f's_mov_b32 s63, {32*1024}')
    a('buffer_store_dwordx4 v[108:111], v19, s[24:27], s63 offen')
    a('s_mov_b64 exec, -1')
    a.label(f'L_{name}_fin')
    if STAMPS: srd(a, 24, 46, WS_SIZE)
    stamp_flush(a, 4, 24, 32, 8, 0, vtmp=170, extra=78)
    a.label(f'L_{name}_end')
    a('s_endpgm')
    return 176


SPIN_MAX=400000
SLEEP=int(os.environ.get('SLEEP','2'))
def poll(a, tag, addr_v, exp_v, nl, base='s[56:57]', tmp=12):
    a(f's_mov_b32 s61, 0')
    a(f's_mov_b64 exec, {(1<<nl)-1}')
    a.label(f'L_{tag}_poll')
    a(f'global_load_dword v{tmp}, v{addr_v}, {base} sc1')
    a('s_waitcnt vmcnt(0)')
    a(f'v_cmp_eq_u32 vcc, v{tmp}, v{exp_v}')
    a('s_add_u32 s61, s61, 1')
    a('s_nop 2')
    a(f's_cmp_eq_u64 vcc, exec')
    a(f's_cbranch_scc1 L_{tag}_polld')
    a(f's_cmp_ge_u32 s61, {SPIN_MAX}')
    a(f's_cbranch_scc1 L_{tag}_polld')
    a(f's_sleep {SLEEP}')
    a(f's_branch L_{tag}_poll')
    a.label(f'L_{tag}_polld')
    a('s_mov_b64 exec, -1')

def phase_c(a, name):
    stamp(a,0)
    a('s_cmp_eq_u32 s32, 0')
    a(f's_cbranch_scc0 L_{name}_nosig')
    a('s_lshr_b32 s33, s2, 5')
    a('s_lshl_b32 s33, s33, 7')
    a(f's_add_u32 s33, s33, {WS_FLAG}')
    a('v_mov_b32 v12, s33')
    a('v_mov_b32 v13, 1')
    a('s_mov_b64 exec, 1')
    a('global_atomic_add v12, v13, s[24:25] sc1')
    a('s_mov_b64 exec, -1')
    a.label(f'L_{name}_nosig')
    a('s_and_b32 s33, s2, 7')
    a('s_lshr_b32 s34, s2, 3')
    a('s_and_b32 s35, s34, 3')
    a('s_lshl_b32 s40, s33, 2')
    a('s_add_u32 s40, s40, s35')
    a('s_lshr_b32 s41, s2, 5')
    a('s_and_b32 s42, s32, 1')
    a('s_lshr_b32 s43, s32, 1')
    a('s_lshl_b32 s44, s40, 1')
    a('s_add_u32 s44, s44, s42')
    srd(a, 12, 72, 0x200000)
    a('v_and_b32 v8, 31, v1')
    a('v_lshrrev_b32 v9, 5, v1')
    a('s_lshl_b32 s58, s44, 5')
    a('v_add_u32 v10, s58, v8')
    a('v_and_b32 v12, 511, v10')
    a('s_lshr_b32 s58, s44, 4')
    a('s_cmp_eq_u32 s58, 0')
    a('s_cselect_b32 s59, 0, 1024')
    a('s_cmp_eq_u32 s58, 1')
    a('s_cselect_b32 s59, 2048, s59')
    a('s_and_b32 s61, s58, 1')
    a('s_cmp_eq_u32 s58, 1')
    a('s_cselect_b32 s62, 1, 0')
    a('s_cmp_eq_u32 s58, 2')
    a('s_cselect_b32 s62, 1, s62')
    a('v_add_u32 v10, s59, v12')
    a('v_sub_u32 v11, s59, v12')
    a('s_cmp_eq_u32 s62, 1')
    a('s_cselect_b64 vcc, -1, 0')
    a('v_cndmask_b32 v10, v10, v11, vcc')
    a('s_cmp_lt_u32 s58, 2')
    a('s_cselect_b64 vcc, -1, 0')
    a('v_sub_u32 v11, 1024, v12')
    a('v_cndmask_b32 v13, v11, v12, vcc')
    a('s_lshl_b32 s61, s61, 20')
    a('v_mov_b32 v106, s61')
    a('s_lshr_b32 s62, s58, 1')
    a('s_lshl_b32 s63, s62, 10')
    a('s_add_u32 s63, s63, 512')
    a('s_lshl_b32 s62, s62, 20')
    a('s_and_b32 s59, s58, 1')
    a('s_cmp_eq_u32 s59, 1')
    a('s_cselect_b64 s[64:65], -1, 0')
    a('v_cmp_eq_u32 vcc, 0, v12')
    a('s_nop 1')
    a('s_and_b64 vcc, vcc, s[64:65]')
    a('v_mov_b32 v11, s63')
    a('v_cndmask_b32 v10, v10, v11, vcc')
    a('v_mov_b32 v11, 512')
    a('v_cndmask_b32 v13, v13, v11, vcc')
    a('v_mov_b32 v11, s62')
    a('v_cndmask_b32 v106, v106, v11, vcc')
    a('v_lshlrev_b32 v11, 10, v10')
    a('v_lshl_add_u32 v11, v9, 3, v11')
    a('s_lshl_b32 s58, s41, 7')
    a('s_lshl_b32 s59, s43, 6')
    a('s_add_u32 s58, s58, s59')
    a('v_add_u32 v11, s58, v11')
    a(f'v_mul_u32_u24 v13, {YQ_PITCH}, v13')
    a('v_lshlrev_b32 v12, 3, v9')
    a('s_cmp_lt_u32 s41, 4')
    a(f's_cbranch_scc0 L_{name}_ym')
    a('v_add_u32 v13, v13, v12')
    a('v_add_u32 v13, s58, v13')
    a(f's_branch L_{name}_ymd')
    a.label(f'L_{name}_ym')
    a('v_sub_u32 v13, v13, v12')
    a('s_sub_u32 s59, 1018-48, s58')
    a('v_add_u32 v13, s59, v13')
    a.label(f'L_{name}_ymd')
    a('s_lshr_b32 s59, s41, 2')
    a('s_lshl_b32 s59, s59, 20')
    a('v_xor_b32 v106, s59, v106')
    a('v_add_u32 v13, v13, v106')
    a(f's_mov_b32 s60, {WS_Y}')
    a('v_lshlrev_b32 v105, 2, v10')
    a('v_bfe_u32 v5, v1, 2, 2')
    a('v_lshl_add_u32 v6, v9, 2, v5')
    a('v_lshlrev_b32 v6, 7, v6')
    a('v_bfe_u32 v7, v1, 3, 1')
    a('v_lshlrev_b32 v7, 6, v7')
    a('v_bfe_u32 v16, v1, 4, 1')
    a('v_lshl_add_u32 v6, v16, 5, v6')
    a('v_bfe_u32 v16, v1, 1, 1')
    a('v_lshl_add_u32 v6, v16, 4, v6')
    a('v_and_b32 v16, 1, v1')
    a('v_lshl_add_u32 v6, v16, 3, v6')
    a('v_add_u32 v14, v6, v7')
    a('s_lshl_b32 s58, s43, 15')
    a('v_add_u32 v14, s58, v14')
    a('v_xor_b32 v15, 64, v14')
    a(f's_mov_b32 s59, {WS_G}')
    a('buffer_load_dword v104, v105, s[24:27], s59 offen')
    stamp(a,1)
    a('s_cmp_eq_u32 s32, 0')
    a(f's_cbranch_scc0 L_{name}_nopoll')
    a('s_lshl_b32 s58, s33, 7')
    a(f's_add_u32 s58, s58, {WS_FLAG}')
    a('v_lshlrev_b32 v16, 2, v1')
    a('v_add_u32 v16, s58, v16')
    a('v_mov_b32 v17, 32')
    a('v_mov_b32 v19, 297')
    a('v_cmp_eq_u32 vcc, 1, v1')
    a('s_nop 1')
    a('v_cndmask_b32 v17, v17, v19, vcc')
    poll(a, name+'_c', 16, 17, 2, base='s[24:25]', tmp=18)
    a.label(f'L_{name}_nopoll')
    a('s_barrier')
    stamp(a,2)
    OF=32
    a('s_lshl_b32 s51, s44, 15')
    a('s_lshl_b32 s52, s43, 14')
    a('s_add_u32 s51, s51, s52')
    a(f's_add_u32 s51, s51, {WS_O}')
    for i in range(16):
        if i%4==0 and i: a('s_add_u32 s51, s51, 4096')
        a(f'buffer_load_dwordx4 v[{OF+4*i}:{OF+4*i+3}], v2, s[24:27], s51 offen offset:{(i%4)*1024} sc1')
    for b in range(4): a(f'buffer_load_dwordx2 v[{96+2*b}:{97+2*b}], v13, s[24:27], s60 offen offset:{b*16} sc1')
    ACC=[16,112]; FW=[128,136]
    def reads(i):
        s_=i%2
        for j in range(2):
            a(f'ds_read_b64_tr_b16 v[{FW[s_]+4*j}:{FW[s_]+4*j+1}], v{14+j} offset:{i*2048}')
            a(f'ds_read_b64_tr_b16 v[{FW[s_]+4*j+2}:{FW[s_]+4*j+3}], v{14+j} offset:{i*2048+1024}')
    reads(0)
    for i in range(16):
        if i<15: reads(i+1); a(f's_waitcnt vmcnt({4+15-i}) lgkmcnt(4)')
        else: a('s_waitcnt vmcnt(4) lgkmcnt(0)')
        s_=i%2
        for j in range(2):
            c = '0' if i==0 else f'v[{ACC[j]}:{ACC[j]+15}]'
            a(f'v_mfma_f32_32x32x16_bf16 v[{ACC[j]}:{ACC[j]+15}], v[{FW[s_]+4*j}:{FW[s_]+4*j+3}], v[{OF+4*i}:{OF+4*i+3}], {c}')
    stamp(a,3)
    K3X=65536
    a('s_lshl_b32 s48, s42, 13')
    a('s_xor_b32 s49, s43, 1')
    a('s_lshl_b32 s49, s49, 12')
    a('s_add_u32 s49, s49, s48')
    a(f's_add_u32 s49, s49, {K3X}')
    a('v_add_u32 v5, s49, v2')
    a('s_lshl_b32 s49, s43, 12')
    a('s_add_u32 s49, s49, s48')
    a(f's_add_u32 s49, s49, {K3X}')
    a('v_add_u32 v6, s49, v2')
    a('s_nop 7')
    a('s_cmp_eq_u32 s43, 0')
    a(f's_cbranch_scc0 L_{name}_kw1')
    for g in range(4): a(f'ds_write_b128 v5, v[{ACC[1]+4*g}:{ACC[1]+4*g+3}] offset:{g*1024}')
    a(f's_branch L_{name}_x')
    a.label(f'L_{name}_kw1')
    for g in range(4): a(f'ds_write_b128 v5, v[{ACC[0]+4*g}:{ACC[0]+4*g+3}] offset:{g*1024}')
    a('s_nop 1')
    for r in range(16): a(f'v_mov_b32 v{ACC[0]+r}, v{ACC[1]+r}')
    a.label(f'L_{name}_x')
    a('s_waitcnt vmcnt(0) lgkmcnt(0)')
    a('s_barrier')
    for g in range(4): a(f'ds_read_b128 v[{32+4*g}:{35+4*g}], v6 offset:{g*1024}')
    a('v_sub_f32 v105, 1.0, v104')
    a('s_cmp_lt_u32 s41, 4')
    a(f's_cbranch_scc0 L_{name}_um')
    for b in range(4):
        for q in range(2):
            src=96+2*b+q
            a(f'v_lshlrev_b32 v{48+4*b+2*q}, 16, v{src}')
            a(f'v_and_b32 v{48+4*b+2*q+1}, 0xffff0000, v{src}')
    a(f's_branch L_{name}_umd')
    a.label(f'L_{name}_um')
    for b in range(4):
        g=3-b
        d0=96+2*b; d1=97+2*b
        a(f'v_and_b32 v{48+4*g+0}, 0xffff0000, v{d1}')
        a(f'v_lshlrev_b32 v{48+4*g+1}, 16, v{d1}')
        a(f'v_and_b32 v{48+4*g+2}, 0xffff0000, v{d0}')
        a(f'v_lshlrev_b32 v{48+4*g+3}, 16, v{d0}')
    a.label(f'L_{name}_umd')
    for r in range(16): a(f'v_mul_f32 v{48+r}, v104, v{48+r}')
    a('s_waitcnt lgkmcnt(0)')
    for r in range(16): a(f'v_add_f32 v{16+r}, v{16+r}, v{32+r}')
    for r in range(16): a(f'v_fmac_f32 v{48+r}, v105, v{16+r}')
    for b in range(4):
        a(f'v_cvt_pk_bf16_f32 v{64+2*b}, v{48+4*b}, v{48+4*b+1}')
        a(f'v_cvt_pk_bf16_f32 v{65+2*b}, v{48+4*b+2}, v{48+4*b+3}')
    for b in range(4):
        a(f'buffer_store_dwordx2 v[{64+2*b}:{65+2*b}], v11, s[12:15], 0 offen offset:{b*16}')
    stamp_flush(a, 4, 24, 32, 4, 2, vtmp=106)

K2_SUM=131072
K2_CNT=K2_SUM+16384
K2_LDS=K2_CNT+64
def gen_k23(a, name):
    return gen_k2(a, name, fused=True)

def gen_k2(a, name, fused=False):
    a.noload=False
    kernel_header(a, name)
    a('s_cmp_ge_u32 s2, 256')
    a(f's_cbranch_scc1 L_{name}_end')
    stamp(a,0)
    a('s_load_dwordx4 s[36:39], s[0:1], 8')
    a('s_load_dwordx2 s[46:47], s[0:1], 88')
    a('s_load_dwordx2 s[56:57], s[0:1], 56')
    a('s_load_dwordx2 s[72:73], s[0:1], 72')
    a('v_lshrrev_b32 v2, 6, v0')
    a('v_and_b32 v1, 63, v0')
    a('v_readfirstlane_b32 s32, v2')
    a('v_lshlrev_b32 v2, 4, v1')
    a('s_and_b32 s33, s2, 7')
    a('s_lshr_b32 s34, s2, 3')
    a('s_and_b32 s35, s34, 3')
    a('s_lshl_b32 s40, s33, 2')
    a('s_add_u32 s40, s40, s35')
    a('s_lshr_b32 s41, s2, 5')
    a('s_waitcnt lgkmcnt(0)')
    srd(a, 24, 46, WS_SIZE)
    a('s_cmp_ge_u32 s32, 8')
    a(f's_cbranch_scc1 L_{name}_fnet')
    Q=4; C=8; S=[24,40]; O=56; K=[72,76]; V0=[80,88]; V1=[84,92]; ADDR=96; IDX=3
    a('s_lshl_b32 s42, s41, 3')
    a('s_add_u32 s42, s42, s32')
    a('s_lshl_b32 s43, s40, 16')
    a('s_lshl_b32 s44, s42, 10')
    a('s_add_u32 s43, s43, s44')
    a(f'buffer_load_dwordx4 v[{Q}:{Q+3}], v2, s[24:27], s43 offen')
    a('s_lshl_b32 s43, s40, 17')
    a(f's_add_u32 s43, s43, {WS_KV}')
    a('s_lshl_b32 s44, s32, 11')
    if 'kvrot' in EXPT:
        a('s_lshl_b32 s46, s41, 3')
        a('s_add_u32 s46, s46, s32')
    else: a('s_mov_b32 s46, s32')
    for i in range(8):
        a(f's_add_u32 m0, s44, {i*8*2048}')
        a('s_and_b32 s46, s46, 63')
        a('s_lshl_b32 s45, s46, 11')
        a('s_add_u32 s45, s45, s43')
        a('buffer_load_dwordx4 v2, s[24:27], s45 offen lds')
        a('buffer_load_dwordx4 v2, s[24:27], s45 offen offset:1024 lds')
        a('s_add_u32 s46, s46, 8')
    a(f'v_mov_b32 v{IDX}, 0xdddddddd')
    if 'allones' in EXPT:
        for r in range(80,96): a(f'v_mov_b32 v{r}, 0x3f803f80')
    else:
        a('v_mov_b32 v97, 0')
        a('v_mov_b32 v98, 0x3f803f80')
        a('s_mov_b32 s52, 0x00110000')
        a('s_mov_b32 s53, 0x00110000')
        a('v_cndmask_b32 v97, v97, v98, s[52:53]')
        for r in range(80,96): a(f'v_mov_b32 v{r}, v97')
    a('s_mov_b32 s48, 0x0000ffff')
    a('s_mov_b32 s49, 0x0000ffff')
    a('s_mov_b32 s50, 0')
    a('s_cmp_lt_u32 s32, 4')
    a(f's_cselect_b32 s54, {PR[0]}, {PR[1]}')
    a(f's_cselect_b32 s55, {PR[2]}, {PR[3]}')
    a('s_setprio 2')
    a('s_waitcnt vmcnt(12)')
    a('s_barrier')
    stamp(a,1)
    a(f'ds_read_b128 v[{K[0]}:{K[0]+3}], v2')
    a('s_waitcnt lgkmcnt(0)')
    a(f'v_mfma_f32_32x32x16_bf16 v[{S[0]}:{S[0]+15}], v[{K[0]}:{K[0]+3}], v[{Q}:{Q+3}], 0')
    a('s_nop 15')
    s0=S[0]
    a(f'v_max3_f32 v97, v{s0}, v{s0+1}, v{s0+2}')
    for r in range(3,15,2): a(f'v_max3_f32 v97, v97, v{s0+r}, v{s0+r+1}')
    a(f'v_max_f32 v97, v97, v{s0+15}')
    a.label(f'L_{name}_havemax')
    a('v_mov_b32 v98, v97')
    a('s_nop 1')
    a('v_permlane32_swap_b32 v97, v98')
    a('s_nop 1')
    a('v_max_f32 v97, v97, v98')
    for r in range(16): a(f'v_sub_f32 v{C+r}, 0, v97')
    for r in range(16): a(f'v_mov_b32 v{O+r}, 0')
    for r in range(8,16): a(f'v_mov_b32 v{S[1]+r}, 0')
    a(f'v_mov_b32 v{ADDR}, v2')
    a(f'ds_read_b128 v[{K[0]}:{K[0]+3}], v2')
    a(f'ds_read_b128 v[{K[1]}:{K[1]+3}], v2 offset:2048')
    a('s_mov_b64 exec, s[48:49]')
    a(f'ds_read_b128 v[{V0[0]}:{V0[0]+3}], v2 offset:1024')
    a(f'ds_read_b128 v[{V1[0]}:{V1[0]+3}], v2 offset:1280')
    a('s_mov_b64 exec, -1')
    a('s_waitcnt lgkmcnt(0)')
    a(f'v_mfma_f32_32x32x16_bf16 v[{S[0]}:{S[0]+15}], v[{K[0]}:{K[0]+3}], v[{Q}:{Q+3}], v[{C}:{C+15}]')
    a('s_mov_b32 s51, 0')
    if STAMPS: a('s_memtime s[74:75]')
    a('s_nop 15')
    a.raw('.p2align 6')
    a.label(f'L_{name}_loop')
    for i in range(4):
        cur=S[i%2]; prev=S[(i+1)%2]
        def e(x,y):
            for j in range(x,y):
                if 'noexp' in EXPT: a(f'v_mov_b32 v{cur+j}, v{cur+j}')
                else: a(f'v_exp_f32 v{cur+j}, v{cur+j}')
        a('s_waitcnt lgkmcnt(0)')
        e(0,2)
        if 'nopv' not in EXPT: a(f'v_smfmac_f32_32x32x32_bf16 v[{O}:{O+15}], v[{V1[(i+1)%2]}:{V1[(i+1)%2]+3}], v[{prev+8}:{prev+15}], v{IDX}')
        if 'nolds' not in EXPT:
            a(f'ds_read_b128 v[{K[i%2]}:{K[i%2]+3}], v{ADDR} offset:{(i+2)*2048}')
            a('s_mov_b64 exec, s[48:49]')
            a(f'ds_read_b128 v[{V0[(i+1)%2]}:{V0[(i+1)%2]+3}], v{ADDR} offset:{(i+1)*2048+1024}')
            a(f'ds_read_b128 v[{V1[(i+1)%2]}:{V1[(i+1)%2]+3}], v{ADDR} offset:{(i+1)*2048+1280}')
            a('s_mov_b64 exec, -1')
        e(2,7)
        a(f'v_mfma_f32_32x32x16_bf16 v[{prev}:{prev+15}], v[{K[(i+1)%2]}:{K[(i+1)%2]+3}], v[{Q}:{Q+3}], v[{C}:{C+15}]')
        e(7,12)
        if 'nopv' not in EXPT: a(f'v_smfmac_f32_32x32x32_bf16 v[{O}:{O+15}], v[{V0[i%2]}:{V0[i%2]+3}], v[{cur}:{cur+7}], v{IDX}')
        e(12,16)
    a(f'v_add_u32 v{ADDR}, 8192, v{ADDR}')
    a('s_add_u32 s51, s51, 1')
    a('s_cmp_eq_u32 s51, 3')
    a(f's_cbranch_scc1 L_{name}_ev3')
    a('s_cmp_eq_u32 s51, s54')
    a(f's_cbranch_scc1 L_{name}_ev10')
    a('s_cmp_eq_u32 s51, s55')
    a(f's_cbranch_scc1 L_{name}_ev14')
    a('s_cmp_lt_u32 s51, 16')
    a(f's_cbranch_scc1 L_{name}_loop')
    a(f's_branch L_{name}_done')
    a.label(f'L_{name}_ev3')
    a('s_cmp_eq_u32 s50, 0')
    a(f's_cbranch_scc0 L_{name}_loop')
    stamp(a,3)
    a('s_waitcnt vmcnt(0)')
    a('s_barrier')
    stamp(a,4)
    a(f's_branch L_{name}_loop')
    a.label(f'L_{name}_ev10')
    stamp(a,5)
    a('s_setprio 1')
    a(f's_branch L_{name}_loop')
    a.label(f'L_{name}_ev14')
    a('s_setprio 0')
    a(f's_branch L_{name}_loop')
    a.label(f'L_{name}_done')
    a('s_nop 1')
    a(f'v_smfmac_f32_32x32x32_bf16 v[{O}:{O+15}], v[{V1[1]}:{V1[1]+3}], v[{S[1]+8}:{S[1]+15}], v{IDX}')
    a('s_waitcnt lgkmcnt(0)')
    a('s_nop 15')
    stamp(a,2)
    if STAMPS:
        a('s_memtime s[76:77]')
        a('s_waitcnt lgkmcnt(0)')
        a('s_sub_u32 s78, s76, s74')
    a(f's_mov_b32 s52, {hex(f2u(2.0**60))}')
    a(f'v_cmp_gt_f32 vcc, s52, v{O+8}')
    if 'nopv' in EXPT or 'noexp' in EXPT: a('s_mov_b32 s50, 1')
    a('s_nop 3')
    a('s_cmp_eq_u64 vcc, -1')
    a(f's_cbranch_scc1 L_{name}_ok')
    a('s_cmp_eq_u32 s50, 0')
    a(f's_cbranch_scc0 L_{name}_ok')
    a('s_mov_b32 s50, 1')
    a('s_setprio 2')
    a('v_mov_b32 v97, 0xff800000')
    a(f'v_mov_b32 v{ADDR}, v2')
    a('s_mov_b32 s51, 0')
    a.label(f'L_{name}_fb')
    a(f'ds_read_b128 v[{K[0]}:{K[0]+3}], v{ADDR}')
    a('s_waitcnt lgkmcnt(0)')
    a(f'v_mfma_f32_32x32x16_bf16 v[{S[0]}:{S[0]+15}], v[{K[0]}:{K[0]+3}], v[{Q}:{Q+3}], 0')
    a('s_nop 15')
    for r in range(0,16,2): a(f'v_max3_f32 v97, v97, v{s0+r}, v{s0+r+1}')
    a(f'v_add_u32 v{ADDR}, 2048, v{ADDR}')
    a('s_add_u32 s51, s51, 1')
    a('s_cmp_lt_u32 s51, 64')
    a(f's_cbranch_scc1 L_{name}_fb')
    a(f's_branch L_{name}_havemax')
    a.label(f'L_{name}_ok')
    a(f'v_rcp_f32 v97, v{O+8}')
    a('s_nop 0')
    for r in range(8): a(f'v_mul_f32 v{O+r}, v97, v{O+r}')
    for q in range(4): a(f'v_cvt_pk_bf16_f32 v{100+q}, v{O+2*q}, v{O+2*q+1}')
    a('s_lshl_b32 s43, s42, 15')
    a('s_lshl_b32 s44, s40, 10')
    a('s_add_u32 s43, s43, s44')
    a(f's_add_u32 s43, s43, {WS_O}')
    a('buffer_store_dwordx4 v[100:103], v2, s[24:27], s43 offen')
    if fused:
        a('s_waitcnt vmcnt(0)')
        a(f's_branch L_{name}_endB')
    else:
        a(f's_branch L_{name}_fin')

    a.label(f'L_{name}_fnet')
    a('s_setprio 3')
    a('s_sub_u32 s35, s32, 8')
    srd(a, 8, 36, 0x800000)
    srd(a, 12, 38, 0x800000)
    for r in range(4,8): a(f'v_mov_b32 v{r}, 0')
    a(f'v_mov_b32 v8, {K2_CNT}')
    a('ds_write_b128 v8, v[4:7]')
    a('s_waitcnt lgkmcnt(0)')
    a('s_barrier')
    stamp(a,1)
    if NOFNET:
        a('s_barrier')
        a(f's_branch L_{name}_fin')
    a('v_and_b32 v9, 31, v1')
    a('v_lshrrev_b32 v10, 5, v1')
    stamp(a,2)
    a('s_mov_b32 s60, 0')
    a('s_mov_b32 s61, 0')
    a('s_lshr_b32 s62, s35, 1')
    a('s_and_b32 s63, s35, 1')
    a('s_cmp_eq_u32 s62, 0')
    a('s_cselect_b32 s16, s8, s12')
    a('s_cselect_b32 s17, s9, s13')
    a('s_mov_b32 s18, 0x800000')
    a('s_mov_b32 s19, 0x20000')
    a.label(f'L_{name}_job')
    a('s_cmp_eq_u32 s60, 0')
    a(f's_cbranch_scc1 L_{name}_dojob')
    a('s_mov_b32 s16, s8')
    a('s_mov_b32 s17, s9')
    a('s_mov_b32 s62, 0')
    a.label(f'L_{name}_dojob')
    a('s_and_b32 s66, s40, 1')
    a('s_lshr_b32 s42, s40, 1')
    a('s_lshl_b32 s42, s42, 6')
    a('s_add_u32 s42, s42, s66')
    a('v_lshl_add_u32 v11, v9, 1, s42')
    a('v_mov_b32 v8, v11')
    a('v_lshlrev_b32 v11, 12, v11')
    a('v_lshl_add_u32 v11, v10, 4, v11')
    a('s_lshl_b32 s43, s66, 1')
    a('s_add_u32 s43, s43, s62')
    a(f's_mul_i32 s43, s43, {T_ARR}')
    a(f's_mul_i32 s44, s41, {T_ET}')
    a('s_add_u32 s43, s43, s44')
    a(f's_add_u32 s43, s43, {WS_T}')
    a(f's_add_u32 s67, s43, {32*1024}')
    a('s_lshl_b32 s45, s63, 4')
    a('s_lshl_b32 s46, s35, 3')
    a('s_cmp_eq_u32 s60, 0')
    a('s_cselect_b32 s49, s45, s46')
    a('s_lshl_b32 s45, s49, 10')
    a('s_add_u32 s43, s43, s45')
    a('s_lshl_b32 s45, s49, 5')
    ACCF=16
    for r in range(16): a(f'v_mov_b32 v{ACCF+r}, 0')
    SET=[32,96]
    a('s_cmp_eq_u32 s60, 0')
    a('s_cselect_b32 s58, 1, 0')
    a('s_and_b32 s59, s41, s58')
    def issue(setb, b):
        a(f's_xor_b32 s64, s59, {b}')
        a('s_lshl_b32 s65, s64, 8')
        a('s_add_u32 s65, s65, s45')
        a('s_lshl_b32 s64, s64, 13')
        a('s_add_u32 s64, s64, s43')
        for k in range(8):
            ra=setb+8*k
            a(f'buffer_load_dwordx4 v[{ra}:{ra+3}], v11, s[16:19], s65 offen offset:{k*32}')
            if k==4: a('s_add_u32 s64, s64, 4096')
            a(f'buffer_load_dwordx4 v[{ra+4}:{ra+7}], v2, s[24:27], s64 offen offset:{(k%4)*1024}')
    def mm(setb, first_wait):
        for k in range(8):
            ra=setb+8*k
            a(f's_waitcnt vmcnt({first_wait-2*k-2})')
            a(f'v_mfma_f32_32x32x16_bf16 v[{ACCF}:{ACCF+15}], v[{ra+4}:{ra+7}], v[{ra}:{ra+3}], v[{ACCF}:{ACCF+15}]')
    issue(SET[0],0)
    a('s_cmp_eq_u32 s61, 0')
    a(f's_cbranch_scc0 L_{name}_nob2')
    a('s_mov_b32 s61, 1')
    stamp(a,3)
    a('s_barrier')
    stamp(a,4)
    a.label(f'L_{name}_nob2')
    a('s_cmp_eq_u32 s62, s66')
    a('s_cselect_b32 s68, 1, 0')
    a('s_cmp_eq_u32 s60, 0')
    a('s_cselect_b32 s69, s63, 0')
    a('s_cmp_eq_u32 s35, 3')
    a('s_cselect_b32 s70, 1, 0')
    a('s_cmp_eq_u32 s60, 0')
    a('s_cselect_b32 s69, s69, s70')
    a('s_and_b32 s68, s68, s69')
    a('s_cmp_eq_u32 s60, 0')
    a(f's_cbranch_scc0 L_{name}_short')
    issue(SET[1],1)
    mm(SET[0],32)
    mm(SET[1],16)
    a(f's_branch L_{name}_mmd')
    a.label(f'L_{name}_short')
    mm(SET[0],16)
    a.label(f'L_{name}_mmd')
    a('s_cmp_eq_u32 s68, 1')
    a(f's_cbranch_scc0 L_{name}_nox')
    a('s_mov_b32 s45, 1024')
    a(f'buffer_load_dwordx4 v[32:35], v11, s[16:19], s45 offen')
    a(f'buffer_load_dwordx4 v[36:39], v2, s[24:27], s67 offen')
    a('s_waitcnt vmcnt(0)')
    a(f'v_mfma_f32_32x32x16_bf16 v[{ACCF}:{ACCF+15}], v[36:39], v[32:35], v[{ACCF}:{ACCF+15}]')
    a.label(f'L_{name}_nox')
    a('s_nop 15')
    a('s_cmp_eq_u32 s60, 0')
    a(f's_cbranch_scc1 L_{name}_nospin')
    a(f'v_mov_b32 v12, {K2_CNT+8}')
    a.label(f'L_{name}_spin')
    a('ds_read_b32 v13, v12')
    a('s_waitcnt lgkmcnt(0)')
    a('v_readfirstlane_b32 s47, v13')
    a('s_nop 3')
    a('s_cmp_eq_u32 s47, 0')
    a(f's_cbranch_scc0 L_{name}_nospin')
    a('s_sleep 2')
    a(f's_branch L_{name}_spin')
    a.label(f'L_{name}_nospin')
    a('s_lshl_b32 s45, s35, 12')
    a(f's_add_u32 s45, s45, {K2_SUM}')
    a('v_add_u32 v12, s45, v2')
    for g in range(4): a(f'ds_write_b128 v12, v[{ACCF+4*g}:{ACCF+4*g+3}] offset:{g*1024}')
    stamp(a,5)
    a('s_waitcnt lgkmcnt(0)')
    a('s_lshl_b32 s45, s60, 2')
    a(f's_add_u32 s45, s45, {K2_CNT}')
    a('v_mov_b32 v12, s45')
    a('v_mov_b32 v13, 1')
    a('s_mov_b64 exec, 1')
    a('ds_add_rtn_u32 v14, v12, v13')
    a('s_waitcnt lgkmcnt(0)')
    a('s_mov_b64 exec, -1')
    a('v_readfirstlane_b32 s47, v14')
    a('s_nop 3')
    a('s_cmp_eq_u32 s47, 3')
    a(f's_cbranch_scc0 L_{name}_nextjob')
    a(f'v_add_u32 v12, {K2_SUM}, v2')
    for g in range(4): a(f'ds_read_b128 v[{32+4*g}:{35+4*g}], v12 offset:{g*1024}')
    for g in range(4): a(f'ds_read_b128 v[{80+4*g}:{83+4*g}], v12 offset:{4096+g*1024}')
    for g in range(4): a(f'ds_read_b128 v[{48+4*g}:{51+4*g}], v12 offset:{8192+g*1024}')
    a('s_waitcnt lgkmcnt(8)')
    for g in range(4): a(f'ds_read_b128 v[{96+4*g}:{99+4*g}], v12 offset:{12288+g*1024}')
    a('s_waitcnt lgkmcnt(0)')
    a(f'v_mov_b32 v12, {K2_CNT+8}')
    a('v_mov_b32 v13, 1')
    a('ds_write_b32 v12, v13')
    for r in range(16): a(f'v_add_f32 v{48+r}, v{48+r}, v{96+r}')
    for r in range(16): a(f'v_add_f32 v{32+r}, v{32+r}, v{80+r}')
    a('s_cmp_eq_u32 s60, 0')
    a(f's_cbranch_scc1 L_{name}_haveq')
    for r in range(16):
        a(f'v_add_f32 v{32+r}, v{32+r}, v{48+r}')
        a(f'v_mov_b32 v{48+r}, 0')
    a.label(f'L_{name}_haveq')
    for r in range(16):
        a(f'v_sub_f32 v{64+r}, v{32+r}, v{48+r}')
        a(f'v_add_f32 v{32+r}, v{32+r}, v{48+r}')
    for q in range(8):
        a(f'v_cvt_pk_bf16_f32 v{80+q}, v{64+2*q}, v{64+2*q+1}')
        a(f'v_cvt_pk_bf16_f32 v{88+q}, v{32+2*q}, v{32+2*q+1}')
    a(f'v_mul_u32_u24 v13, {YQ_PITCH}, v8')
    a('v_lshl_add_u32 v13, v10, 3, v13')
    a('s_lshl_b32 s42, s41, 6')
    a(f's_add_u32 s42, s42, {WS_Y}')
    a(f's_add_u32 s43, s42, 0x100000')
    for b in range(4):
        a(f'buffer_store_dwordx2 v[{80+2*b}:{81+2*b}], v13, s[24:27], s42 offen offset:{b*16} sc1')
        a(f'buffer_store_dwordx2 v[{88+2*b}:{89+2*b}], v13, s[24:27], s43 offen offset:{b*16} sc1')
    if fused:
        a('s_waitcnt vmcnt(0)')
        a('v_lshlrev_b32 v12, 7, v1')
        a(f'v_add_u32 v12, {WS_FLAG+4}, v12')
        a('v_mov_b32 v13, 1')
        a('s_mov_b64 exec, 0xff')
        a('global_atomic_add v12, v13, s[24:25] sc1')
        a('s_mov_b64 exec, -1')
    a.label(f'L_{name}_nextjob')
    a('s_add_u32 s60, s60, 1')
    a('s_cmp_eq_u32 s60, 1')
    a(f's_cbranch_scc0 L_{name}_fin')
    a('s_cmp_ge_u32 s2, 224')
    a(f's_cbranch_scc1 L_{name}_edgec')
    a('s_sub_u32 s42, s2, 192')
    a('s_cmp_lt_u32 s42, 9')
    a(f's_cbranch_scc0 L_{name}_fin')
    a('s_mov_b32 s40, 32')
    a('s_mov_b32 s41, s42')
    a(f's_branch L_{name}_job')
    a.label(f'L_{name}_edgec')
    a('s_mov_b32 s41, 8')
    a(f's_branch L_{name}_job')
    a.label(f'L_{name}_fin')
    if fused:
        a('s_setprio 0')
        srd(a, 8, 56, 0x80000)
        a('v_lshrrev_b32 v3, 3, v1')
        a('v_bfe_u32 v4, v1, 4, 1')
        a('v_lshlrev_b32 v4, 2, v4')
        a('v_and_b32 v5, 7, v1')
        a('v_xor_b32 v4, v4, v5')
        a('v_lshlrev_b32 v4, 4, v4')
        a('v_lshl_add_u32 v3, v3, 10, v4')
        a('s_lshl_b32 s45, s35, 17')
        a('s_lshr_b32 s48, s2, 5')
        a('s_lshl_b32 s48, s48, 7')
        a('s_add_u32 s45, s45, s48')
        for i in range(16):
            a(f's_add_u32 s49, s45, {i*8192}')
            a(f'buffer_load_dwordx4 v[{32+4*i}:{35+4*i}], v3, s[8:11], s49 offen')
        a('s_lshl_b32 s45, s35, 14')
        a('v_add_u32 v4, s45, v2')
        a('s_waitcnt vmcnt(0)')
        a('s_barrier')
        for i in range(16): a(f'ds_write_b128 v4, v[{32+4*i}:{35+4*i}] offset:{i*1024}')
        a('s_waitcnt lgkmcnt(0)')
        a('s_barrier')
        stamp_flush(a, 6, 24, 32, 12, 1, vtmp=104, extra=78)
        a(f's_branch L_{name}_end')
        a.label(f'L_{name}_endB')
        a('s_setprio 0')
        a('s_barrier')
        stamp_flush(a, 6, 24, 32, 12, 1, vtmp=104, extra=78)
        if STAMPS: a('s_mov_b64 exec, -1')
        a('s_cmp_ge_u32 s32, 4')
        a(f's_cbranch_scc1 L_{name}_w47')
        phase_c(a, name)
        a(f's_branch L_{name}_end')
        a.label(f'L_{name}_w47')
        a('s_barrier')
    else:
        stamp_flush(a, 6, 24, 32, 12, 1, vtmp=104, extra=78)
    a.label(f'L_{name}_end')
    a('s_endpgm')
    return 168


K3_X=65536
K3_LDS=K3_X+16384
def gen_k3(a, name):
    a.stflag=''
    kernel_header(a, name)
    a('s_cmp_ge_u32 s2, 256')
    a(f's_cbranch_scc1 L_{name}_end')
    stamp(a,0)
    a('s_load_dwordx2 s[46:47], s[0:1], 88')
    a('v_lshrrev_b32 v2, 6, v0')
    a('v_and_b32 v1, 63, v0')
    a('v_readfirstlane_b32 s32, v2')
    a('v_lshlrev_b32 v2, 4, v1')
    a('s_and_b32 s33, s2, 7')
    a('s_lshr_b32 s34, s2, 3')
    a('s_and_b32 s35, s34, 3')
    a('s_lshl_b32 s40, s33, 2')
    a('s_add_u32 s40, s40, s35')
    a('s_lshr_b32 s41, s2, 5')
    a('s_and_b32 s42, s32, 1')
    a('s_lshr_b32 s43, s32, 1')
    a('s_lshl_b32 s44, s40, 1')
    a('s_add_u32 s44, s44, s42')
    a('s_add_u32 s50, s41, s35')
    a('s_and_b32 s50, s50, 3')
    a('v_lshrrev_b32 v3, 3, v1')
    a('v_bfe_u32 v4, v1, 4, 1')
    a('v_lshlrev_b32 v4, 2, v4')
    a('v_and_b32 v5, 7, v1')
    a('v_xor_b32 v4, v4, v5')
    a('v_lshlrev_b32 v4, 4, v4')
    a('v_lshl_add_u32 v3, v3, 10, v4')
    a('s_lshl_b32 s45, s43, 8')
    a('s_lshl_b32 s48, s42, 5')
    a('s_add_u32 s45, s45, s48')
    a('s_lshl_b32 s48, s41, 7')
    a('s_lshl_b32 s51, s44, 15')
    a('s_lshl_b32 s52, s43, 14')
    a('s_add_u32 s51, s51, s52')
    a(f's_add_u32 s51, s51, {WS_O}')
    a('s_waitcnt lgkmcnt(0)')
    srd(a, 8, 36, 0x80000)
    srd(a, 24, 46, WS_SIZE)
    OF=32
    def issue(st):
        a(f's_add_u32 s53, s50, {st}')
        a('s_and_b32 s53, s53, 3')
        a('s_lshl_b32 s54, s53, 6')
        a('s_add_u32 s54, s54, s45')
        a('s_lshl_b32 s55, s54, 7')
        a('s_lshl_b32 s56, s54, 10')
        a('s_add_u32 s56, s56, s48')
        for i in range(4):
            a(f's_add_u32 m0, s55, {i*1024}')
            a(f's_add_u32 s57, s56, {i*8192}')
            a('buffer_load_dwordx4 v3, s[8:11], s57 offen lds')
        a('s_lshl_b32 s56, s53, 12')
        a('s_add_u32 s56, s56, s51')
        for i in range(4):
            a(f'buffer_load_dwordx4 v[{OF+16*st+4*i}:{OF+16*st+4*i+3}], v2, s[24:27], s56 offen offset:{i*1024}')
    issue(0); issue(1)
    srd(a, 12, 38, 0x200000)
    a('v_and_b32 v8, 31, v1')
    a('v_lshrrev_b32 v9, 5, v1')
    a('s_lshl_b32 s58, s44, 5')
    a('v_add_u32 v10, s58, v8')
    a('v_and_b32 v12, 511, v10')
    a('s_lshr_b32 s58, s44, 4')
    a('s_cmp_eq_u32 s58, 0')
    a('s_cselect_b32 s59, 0, 1024')
    a('s_cmp_eq_u32 s58, 1')
    a('s_cselect_b32 s59, 2048, s59')
    a('s_and_b32 s61, s58, 1')
    a('s_cmp_eq_u32 s58, 1')
    a('s_cselect_b32 s62, 1, 0')
    a('s_cmp_eq_u32 s58, 2')
    a('s_cselect_b32 s62, 1, s62')
    a('v_add_u32 v10, s59, v12')
    a('v_sub_u32 v11, s59, v12')
    a('s_cmp_eq_u32 s62, 1')
    a('s_cselect_b64 vcc, -1, 0')
    a('v_cndmask_b32 v10, v10, v11, vcc')
    a('s_cmp_lt_u32 s58, 2')
    a('s_cselect_b64 vcc, -1, 0')
    a('v_sub_u32 v11, 1024, v12')
    a('v_cndmask_b32 v13, v11, v12, vcc')
    a('s_lshl_b32 s61, s61, 20')
    a('v_mov_b32 v106, s61')
    a('s_lshr_b32 s62, s58, 1')
    a('s_lshl_b32 s63, s62, 10')
    a('s_add_u32 s63, s63, 512')
    a('s_lshl_b32 s62, s62, 20')
    a('s_and_b32 s59, s58, 1')
    a('s_cmp_eq_u32 s59, 1')
    a('s_cselect_b64 s[64:65], -1, 0')
    a('v_cmp_eq_u32 vcc, 0, v12')
    a('s_nop 1')
    a('s_and_b64 vcc, vcc, s[64:65]')
    a('v_mov_b32 v11, s63')
    a('v_cndmask_b32 v10, v10, v11, vcc')
    a('v_mov_b32 v11, 512')
    a('v_cndmask_b32 v13, v13, v11, vcc')
    a('v_mov_b32 v11, s62')
    a('v_cndmask_b32 v106, v106, v11, vcc')
    a('v_lshlrev_b32 v11, 10, v10')
    a('v_lshl_add_u32 v11, v9, 3, v11')
    a('s_lshl_b32 s58, s41, 7')
    a('s_lshl_b32 s59, s43, 6')
    a('s_add_u32 s58, s58, s59')
    a('v_add_u32 v11, s58, v11')
    a(f'v_mul_u32_u24 v13, {YQ_PITCH}, v13')
    a('v_lshlrev_b32 v12, 3, v9')
    a('s_cmp_lt_u32 s41, 4')
    a(f's_cbranch_scc0 L_{name}_ym')
    a('v_add_u32 v13, v13, v12')
    a('v_add_u32 v13, s58, v13')
    a(f's_branch L_{name}_ymd')
    a.label(f'L_{name}_ym')
    a('v_sub_u32 v13, v13, v12')
    a('s_sub_u32 s59, 1018-48, s58')
    a('v_add_u32 v13, s59, v13')
    a.label(f'L_{name}_ymd')
    a('s_lshr_b32 s59, s41, 2')
    a('s_lshl_b32 s59, s59, 20')
    a('v_xor_b32 v106, s59, v106')
    a('v_add_u32 v13, v13, v106')
    a(f's_mov_b32 s60, {WS_Y}')
    a('v_lshlrev_b32 v105, 2, v10')
    a('v_bfe_u32 v5, v1, 2, 2')
    a('v_lshl_add_u32 v6, v9, 2, v5')
    a('v_lshlrev_b32 v6, 7, v6')
    a('v_bfe_u32 v7, v1, 3, 1')
    a('v_lshlrev_b32 v7, 6, v7')
    a('v_bfe_u32 v12, v1, 4, 1')
    a('v_lshl_add_u32 v6, v12, 5, v6')
    a('v_bfe_u32 v12, v1, 1, 1')
    a('v_lshl_add_u32 v6, v12, 4, v6')
    a('v_and_b32 v12, 1, v1')
    a('v_lshl_add_u32 v6, v12, 3, v6')
    a('v_add_u32 v14, v6, v7')
    a('s_lshl_b32 s58, s43, 15')
    a('v_add_u32 v14, s58, v14')
    ACC=[16,112]
    FW=[128,136]
    stamp(a,1)
    first=True
    waits={0:8, 1:8, 2:13, 3:5}
    for st in range(4):
        a(f's_add_u32 s53, s50, {st}')
        a('s_and_b32 s53, s53, 3')
        a('s_lshl_b32 s53, s53, 13')
        a('v_add_u32 v6, s53, v14')
        a('v_xor_b32 v7, 64, v6')
        a(f's_waitcnt vmcnt({waits[st]})')
        a('s_barrier')
        if st==0: stamp(a,2)
        def reads(i):
            s_=i%2
            for j in range(2):
                a(f'ds_read_b64_tr_b16 v[{FW[s_]+4*j}:{FW[s_]+4*j+1}], v{6+j} offset:{i*2048}')
                a(f'ds_read_b64_tr_b16 v[{FW[s_]+4*j+2}:{FW[s_]+4*j+3}], v{6+j} offset:{i*2048+1024}')
        reads(0)
        if st==0: issue(2)
        if st==1:
            issue(3)
            for b in range(4): a(f'buffer_load_dwordx2 v[{96+2*b}:{97+2*b}], v13, s[24:27], s60 offen offset:{b*16}')
            a(f's_mov_b32 s59, {WS_G}')
            a('buffer_load_dword v104, v105, s[24:27], s59 offen')
        for i in range(4):
            if i<3: reads(i+1); a('s_waitcnt lgkmcnt(4)')
            else: a('s_waitcnt lgkmcnt(0)')
            s_=i%2
            for j in range(2):
                c = '0' if first else f'v[{ACC[j]}:{ACC[j]+15}]'
                a(f'v_mfma_f32_32x32x16_bf16 v[{ACC[j]}:{ACC[j]+15}], v[{FW[s_]+4*j}:{FW[s_]+4*j+3}], v[{OF+16*st+4*i}:{OF+16*st+4*i+3}], {c}')
            first=False
    stamp(a,3)
    a('s_lshl_b32 s48, s42, 13')
    a('s_xor_b32 s49, s43, 1')
    a('s_lshl_b32 s49, s49, 12')
    a('s_add_u32 s49, s49, s48')
    a(f's_add_u32 s49, s49, {K3_X}')
    a('v_add_u32 v5, s49, v2')
    a('s_lshl_b32 s49, s43, 12')
    a('s_add_u32 s49, s49, s48')
    a(f's_add_u32 s49, s49, {K3_X}')
    a('v_add_u32 v6, s49, v2')
    a('s_nop 7')
    a('s_cmp_eq_u32 s43, 0')
    a(f's_cbranch_scc0 L_{name}_kw1')
    for g in range(4): a(f'ds_write_b128 v5, v[{ACC[1]+4*g}:{ACC[1]+4*g+3}] offset:{g*1024}')
    a(f's_branch L_{name}_x')
    a.label(f'L_{name}_kw1')
    for g in range(4): a(f'ds_write_b128 v5, v[{ACC[0]+4*g}:{ACC[0]+4*g+3}] offset:{g*1024}')
    a('s_nop 1')
    for r in range(16): a(f'v_mov_b32 v{ACC[0]+r}, v{ACC[1]+r}')
    a.label(f'L_{name}_x')
    a('s_waitcnt vmcnt(0) lgkmcnt(0)')
    a('s_barrier')
    for g in range(4): a(f'ds_read_b128 v[{32+4*g}:{35+4*g}], v6 offset:{g*1024}')
    a('v_sub_f32 v105, 1.0, v104')
    a('s_cmp_lt_u32 s41, 4')
    a(f's_cbranch_scc0 L_{name}_um')
    for b in range(4):
        for q in range(2):
            src=96+2*b+q
            a(f'v_lshlrev_b32 v{48+4*b+2*q}, 16, v{src}')
            a(f'v_and_b32 v{48+4*b+2*q+1}, 0xffff0000, v{src}')
    a(f's_branch L_{name}_umd')
    a.label(f'L_{name}_um')
    for b in range(4):
        g=3-b
        d0=96+2*b; d1=97+2*b
        a(f'v_and_b32 v{48+4*g+0}, 0xffff0000, v{d1}')
        a(f'v_lshlrev_b32 v{48+4*g+1}, 16, v{d1}')
        a(f'v_and_b32 v{48+4*g+2}, 0xffff0000, v{d0}')
        a(f'v_lshlrev_b32 v{48+4*g+3}, 16, v{d0}')
    a.label(f'L_{name}_umd')
    for r in range(16): a(f'v_mul_f32 v{48+r}, v104, v{48+r}')
    a('s_waitcnt lgkmcnt(0)')
    for r in range(16):
        a(f'v_add_f32 v{16+r}, v{16+r}, v{32+r}')
    for r in range(16):
        a(f'v_fmac_f32 v{48+r}, v105, v{16+r}')
    for b in range(4):
        a(f'v_cvt_pk_bf16_f32 v{64+2*b}, v{48+4*b}, v{48+4*b+1}')
        a(f'v_cvt_pk_bf16_f32 v{65+2*b}, v{48+4*b+2}, v{48+4*b+3}')
    for b in range(4):
        a(f'buffer_store_dwordx2 v[{64+2*b}:{65+2*b}], v11, s[12:15], 0 offen offset:{b*16}')
    stamp_flush(a, 4, 24, 32, 4, 2, vtmp=106)
    a.label(f'L_{name}_end')
    a('s_endpgm')
    return 144

def build(kernels):
    a=Asm()
    hdr = """; Kernarg layout (96 bytes): A_x, dft_seq_re, dft_seq_im, dft_hid_re, dft_hid_im, B_x, wqkv, wo, gate_w, out, debug, ws
"""
    descs=''
    body=Asm()
    for (name, fn, grid, block, lds) in kernels:
        hdr += f'; @launch kernel={name} grid=({grid},1,1) block=({block},1,1) lds={lds}\n'
    body.raw('.amdgcn_target "amdgcn-amd-amdhsa--gfx950"')
    body.raw('.text')
    for (name, fn, grid, block, lds) in kernels:
        v=fn(body,name)
        descs += kernel_desc(name, v)
    return hdr + body.text() + '.section .rodata,"a"\n' + descs

if __name__=='__main__':
    which = sys.argv[1] if len(sys.argv)>1 else 'k1'
    ks=[]
    ks.append(('k1_qkv_kernel', gen_k1, 256, 512, K1_LDS))
    if which in ('k2','all'): ks.append(('k2_attn_kernel', gen_k2, 256, 768, K2_LDS))
    if which=='f23': ks.append(('k2_attn_kernel', gen_k23, 256, 768, K2_LDS))
    if which=='all': ks.append(('k3_out_kernel', gen_k3, 256, 256, K3_LDS))
    txt=build(ks)
    out = sys.argv[2] if len(sys.argv)>2 else 'out.s'
    open(out,'w').write(txt)
```

```python
import sys, os
NAME='gated_mix__spectral_fnet__mha_block__prompt'
WS_Q=0; WS_KV=0x200000; WS_O=0x600000; WS_Y=0x800000; WS_T1=0xA00000; WS_T2=0xB00000; WS_G=0xC00000
WS_FLAG=0xC80000
WS_SIZE=0xD00000
YQ_PITCH=576; YQ_SZ=0x98000
T1_ET=65*1024; T2_ET=64*1024
WS_T=0xA00000; T_ET=33*1024; T_ARR=0x50000
C_SCALE=0.25*1.4426950408889634
import struct
def f2u(x): return struct.unpack('<I',struct.pack('<f',x))[0]

STAMPS = os.environ.get('STAMPS','0')=='1'
NOFNET = os.environ.get('NOFNET','0')=='1'
NOPRIO = os.environ.get('NOPRIO','0')=='1'
FAKEA = os.environ.get('FAKEA','0')=='1'
EXPT = os.environ.get('EXPT','')
FPRIO = int(os.environ.get('FPRIO','3'))
PR = [int(x) for x in os.environ.get('PR','9,10,15,63').split(',')]
class Asm:
    def __init__(self): self.L=[]; self.noload=False; self.stflag=''
    def __call__(self, s):
        for line in s.strip('\n').split('\n'):
            if self.noload and line.strip().endswith(' lds'): continue
            if NOPRIO and line.strip().startswith('s_setprio'): continue
            if line.strip().startswith('buffer_store_dwordx4') and self.stflag:
                if self.stflag=='none': continue
                line = line.strip()+' '+self.stflag
            self.L.append('    '+line.strip())
    def label(self, s): self.L.append(s+':')
    def raw(self, s): self.L.append(s)
    def text(self): return '\n'.join(self.L)+'\n'

def srd(a, d, lo, size):
    a(f's_mov_b32 s{d}, s{lo}')
    a(f's_mov_b32 s{d+1}, s{lo+1}')
    a(f's_mov_b32 s{d+2}, {hex(size)}')
    a(f's_mov_b32 s{d+3}, 0x20000')

def pi_perm(a, dst, src, tmp):
    a(f'v_and_b32 v{dst}, 0x13, v{src}')
    a(f'v_and_b32 v{tmp}, 4, v{src}')
    a(f'v_lshl_or_b32 v{dst}, v{tmp}, 1, v{dst}')
    a(f'v_and_b32 v{tmp}, 8, v{src}')
    a(f'v_lshrrev_b32 v{tmp}, 1, v{tmp}')
    a(f'v_or_b32 v{dst}, v{dst}, v{tmp}')

WS_STAMP=0x1000000
def stamp(a, i):
    if STAMPS:
        a(f's_memrealtime s[{80+2*i}:{81+2*i}]')
def stamp_flush(a, n, wsreg, widreg, wpw, kidx, vtmp=100, extra=None):
    if not STAMPS: return
    a('s_waitcnt vmcnt(0) lgkmcnt(0)')
    a(f's_memrealtime s[{80+2*n}:{81+2*n}]')
    a('s_waitcnt lgkmcnt(0)')
    a(f's_mul_i32 s98, s2, {wpw}')
    a(f's_add_u32 s98, s98, s{widreg}')
    a('s_lshl_b32 s98, s98, 5')
    a(f's_add_u32 s98, s98, {WS_STAMP+kidx*0x40000}')
    a(f's_mov_b32 s{wsreg+2}, 0x2000000')
    a('s_mov_b64 exec, 1')
    a(f'v_mov_b32 v{vtmp+1}, 0')
    for i in range(n+1):
        a(f'v_mov_b32 v{vtmp}, s{80+2*i}')
        a(f'buffer_store_dword v{vtmp}, v{vtmp+1}, s[{wsreg}:{wsreg+3}], s98 offen offset:{4*i}')
        a('s_nop 1')
    if extra is not None:
        a(f'v_mov_b32 v{vtmp}, s{extra}')
        a(f'buffer_store_dword v{vtmp}, v{vtmp+1}, s[{wsreg}:{wsreg+3}], s98 offen offset:28')

def kernel_header(a, name):
    a.raw(f'.globl {name}')
    a.raw('.p2align 8')
    a.raw(f'.type {name},@function')
    a.label(name)

def kernel_desc(name, vgpr, sgpr=102):
    acc = (vgpr+3)//4*4
    return f""".p2align 6
.amdhsa_kernel {name}
  .amdhsa_next_free_vgpr {vgpr}
  .amdhsa_next_free_sgpr {sgpr}
  .amdhsa_accum_offset {acc}
  .amdhsa_group_segment_fixed_size 0
  .amdhsa_kernarg_size 96
  .amdhsa_user_sgpr_count 2
  .amdhsa_user_sgpr_kernarg_segment_ptr 1
  .amdhsa_system_sgpr_workgroup_id_x 1
.end_amdhsa_kernel
"""

K1_SLOT=32768
K1_NS=4
K1_X=0; K1_WQK=16384; K1_WV=24576; K1_WD=28672
K1_LDS=163840

def gen_k1(a, name):
    WR=131072
    a.noload = 'noload' in EXPT
    a.stflag = 'sc1' if 'st_sc1' in EXPT else 'nt' if 'st_nt' in EXPT else 'none' if 'st_none' in EXPT else 'sc0 sc1' if 'st_sc01' in EXPT else '' if 'st_plain' in EXPT else 'sc1'
    kernel_header(a, name)
    a('s_cmp_ge_u32 s2, 256')
    a(f's_cbranch_scc1 L_{name}_end')
    stamp(a,0)
    a('s_load_dwordx2 s[4:5], s[0:1], 0')
    a('s_load_dwordx4 s[36:39], s[0:1], 24')
    a('s_load_dwordx2 s[42:43], s[0:1], 48')
    a('s_load_dwordx2 s[44:45], s[0:1], 64')
    a('s_load_dwordx2 s[46:47], s[0:1], 88')
    a('v_lshrrev_b32 v2, 6, v0')
    a('v_and_b32 v1, 63, v0')
    a('v_readfirstlane_b32 s32, v2')
    a('s_and_b32 s33, s2, 7')
    a('s_lshr_b32 s34, s2, 3')
    a('s_lshr_b32 s54, s33, 1')
    a('s_lshl_b32 s54, s54, 2')
    a('s_and_b32 s55, s34, 3')
    a('s_add_u32 s54, s54, s55')
    a('s_and_b32 s55, s33, 1')
    a('s_lshl_b32 s55, s55, 3')
    a('s_lshr_b32 s56, s34, 2')
    a('s_add_u32 s55, s55, s56')
    a('s_cmp_lt_u32 s32, 4')
    a(f's_cbranch_scc1 L_{name}_comp')
    a('s_sub_u32 s35, s32, 4')
    a('v_lshrrev_b32 v2, 3, v1')
    a('v_and_b32 v3, 7, v1')
    a('v_lshrrev_b32 v4, 4, v1')
    a('v_xor_b32 v5, v3, v4')
    a('v_lshlrev_b32 v5, 4, v5')
    a('s_and_b32 s57, s35, 1')
    a('s_lshl_b32 s56, s54, 5')
    a('v_add_u32 v11, s56, v2')
    a('s_lshr_b32 s58, s35, 1')
    a('s_lshl_b32 s58, s58, 10')
    a('s_cmp_eq_u32 s35, 0')
    a(f's_cbranch_scc1 L_{name}_plus')
    a('s_cmp_eq_u32 s35, 3')
    a(f's_cbranch_scc1 L_{name}_plus')
    a('s_sub_u32 s59, 2048, s58')
    a('v_sub_u32 v12, s59, v11')
    a('v_lshl_add_u32 v16, v12, 10, v5')
    a('v_subrev_u32 v17, 8192, v16')
    a('v_subrev_u32 v18, 16384, v16')
    a('v_subrev_u32 v19, 24576, v16')
    a(f's_branch L_{name}_mird')
    a.label(f'L_{name}_plus')
    a('v_add_u32 v12, s58, v11')
    a('v_lshl_add_u32 v16, v12, 10, v5')
    a('v_add_u32 v17, 8192, v16')
    a('v_add_u32 v18, 16384, v16')
    a('v_add_u32 v19, 24576, v16')
    a.label(f'L_{name}_mird')
    a('s_add_u32 s58, s58, 512')
    a('v_mov_b32 v13, s58')
    a('v_lshl_add_u32 v13, v13, 10, v5')
    a('v_cmp_eq_u32 vcc, 0, v11')
    a('s_cmp_eq_u32 s57, 1')
    a('s_cselect_b64 s[58:59], -1, 0')
    a('s_and_b64 vcc, vcc, s[58:59]')
    a('v_cndmask_b32 v16, v16, v13, vcc')
    a('v_xor_b32 v17, 64, v17')
    a('v_xor_b32 v19, 64, v19')
    a('v_bfe_u32 v6, v1, 4, 1')
    a('v_lshlrev_b32 v6, 2, v6')
    a('v_xor_b32 v6, v6, v3')
    a('v_lshlrev_b32 v6, 4, v6')
    a('v_mul_u32_u24 v7, 3072, v2')
    a('v_add_u32 v6, v6, v7')
    a('s_lshl_b32 s58, s55, 7')
    a('v_add_u32 v20, s58, v6')
    a('v_add_u32 v21, 8*3072, v20')
    a('v_lshrrev_b32 v6, 2, v1')
    a('v_mul_u32_u24 v6, 3072, v6')
    a('v_and_b32 v7, 3, v1')
    a('v_lshl_add_u32 v6, v7, 4, v6')
    a('s_lshl_b32 s58, s55, 6')
    a('s_add_u32 s58, s58, 2048')
    a('v_add_u32 v22, s58, v6')
    a('s_lshl_b32 s56, s55, 4')
    a('s_lshl_b32 s58, s57, 3')
    a('s_add_u32 s56, s56, s58')
    a('v_add_u32 v11, s56, v2')
    a('v_lshl_add_u32 v23, v11, 10, v5')
    a('s_lshl_b32 s58, s57, 6')
    a('v_xor_b32 v23, s58, v23')
    a('s_mul_i32 s71, s35, 16*3072')
    if 'norot' in EXPT: a('s_mov_b32 s70, 0')
    else:
        a('s_lshr_b32 s70, s34, 2')
        a('s_and_b32 s72, s34, 3')
        a('s_lshl_b32 s72, s72, 1')
        a('s_add_u32 s70, s70, s72')
        a('s_and_b32 s70, s70, 7')
    a('s_lshl_b32 s56, s70, 7')
    a(f's_mul_i32 s57, s70, {64*3072}')
    a('s_add_u32 s57, s57, s71')
    a('s_lshl_b32 s61, s35, 12')
    a('s_lshl_b32 s62, s35, 11')
    a('s_lshl_b32 s63, s35, 10')
    a('s_waitcnt lgkmcnt(0)')
    if STAMPS:
        a('s_memrealtime s[76:77]')
        a('s_waitcnt lgkmcnt(0)')
        a('s_sub_u32 s78, s76, s80')
    srd(a, 8, 4, 0x200000)
    srd(a, 16, 42, 0x180000)
    a('s_cmp_lt_u32 s35, 2')
    a('s_cselect_b32 s20, s36, s38')
    a('s_cselect_b32 s21, s37, s39')
    a('s_mov_b32 s22, 0x80000')
    a('s_mov_b32 s23, 0x20000')
    a('s_mov_b32 s50, 0')
    a.label(f'L_{name}_issue')
    a('s_and_b32 s52, s50, 3')
    a('s_lshl_b32 s52, s52, 13')
    a(f's_add_u32 s52, s52, {WR}')
    a('s_cmp_lt_u32 s50, 8')
    a(f's_cbranch_scc0 L_{name}_issue2')
    a('s_lshl_b32 s65, s50, 14')
    a('s_add_u32 s65, s65, s61')
    for i in range(4):
        a(f's_add_u32 m0, s65, {i*1024}')
        a('s_nop 0')
        a(f'buffer_load_dwordx4 v{16+i}, s[8:11], s56 offen lds')
    a('s_add_u32 s65, s52, s62')
    for i in range(2):
        a(f's_add_u32 m0, s65, {i*1024}')
        a('s_nop 0')
        a(f'buffer_load_dwordx4 v{20+i}, s[16:19], s57 offen lds')
    a(f's_branch L_{name}_issued')
    a.label(f'L_{name}_issue2')
    a('s_add_u32 s65, s52, s63')
    a('s_mov_b32 m0, s65')
    a('s_nop 0')
    a(f'buffer_load_dwordx4 v22, s[16:19], s57 offen lds')
    a('s_add_u32 m0, s65, 4096')
    a('s_nop 0')
    a(f'buffer_load_dwordx4 v23, s[20:23], s56 offen lds')
    a.label(f'L_{name}_issued')
    a('s_add_u32 s70, s70, 1')
    a('s_and_b32 s70, s70, 7')
    a('s_lshl_b32 s56, s70, 7')
    a(f's_mul_i32 s57, s70, {64*3072}')
    a('s_add_u32 s57, s57, s71')
    a('s_add_u32 s50, s50, 1')
    a('s_cmp_lt_u32 s50, 2')
    a(f's_cbranch_scc1 L_{name}_issue')
    if STAMPS:
        a('s_cmp_eq_u32 s50, 2')
        a(f's_cbranch_scc0 L_{name}_ns1')
        stamp(a,1)
        a.label(f'L_{name}_ns1')
    a('s_cmp_eq_u32 s50, 16')
    a(f's_cbranch_scc1 L_{name}_ld16')
    a('s_cmp_lt_u32 s50, 9')
    a(f's_cbranch_scc1 L_{name}_w6')
    a('s_waitcnt vmcnt(2)')
    a(f's_branch L_{name}_wd')
    a.label(f'L_{name}_w6')
    a('s_waitcnt vmcnt(6)')
    a.label(f'L_{name}_wd')
    a('s_barrier')
    if STAMPS:
        a('s_cmp_eq_u32 s50, 2')
        a(f's_cbranch_scc0 L_{name}_ns2')
        stamp(a,2)
        a.label(f'L_{name}_ns2')
    a(f's_branch L_{name}_issue')
    a.label(f'L_{name}_ld16')
    srd(a, 28, 44, 1024)
    a('s_lshl_b32 s48, s2, 3')
    a('s_lshl_b32 s49, s35, 1')
    a('s_add_u32 s48, s48, s49')
    a('s_lshl_b32 s49, s48, 10')
    a('v_lshlrev_b32 v12, 4, v1')
    a('buffer_load_dwordx4 v[24:27], v12, s[8:11], s49 offen')
    a('buffer_load_dwordx4 v[28:31], v12, s[8:11], s49 offen offset:1024')
    a('buffer_load_dwordx4 v[32:35], v12, s[28:31], 0 offen')
    a('s_waitcnt vmcnt(5)')
    a('s_barrier')
    a('s_waitcnt vmcnt(3)')
    a('s_barrier')
    stamp(a,3)
    a('s_barrier')
    srd(a, 24, 46, WS_SIZE)
    a('v_mov_b32 v16, 0'); a('v_mov_b32 v17, 0')
    a('s_waitcnt vmcnt(0)')
    for q in range(4):
        a(f'v_dot2_f32_bf16 v16, v{24+q}, v{32+q}, v16')
        a(f'v_dot2_f32_bf16 v17, v{28+q}, v{32+q}, v17')
    a('s_nop 2')
    def dpp(op):
        a('s_nop 0')
        a(f'v_add_f32_dpp v16, v16, v16 {op}')
        a(f'v_add_f32_dpp v17, v17, v17 {op}')
    for sh in (1,2,4,8): dpp(f'row_shr:{sh} row_mask:0xf bank_mask:0xf')
    dpp('row_bcast:15 row_mask:0xa bank_mask:0xf')
    dpp('row_bcast:31 row_mask:0xc bank_mask:0xf')
    for r in (16,17): a(f'v_mul_f32 v{r}, {hex(f2u(-1.4426950408889634))}, v{r}')
    for r in (16,17): a(f'v_exp_f32 v{r}, v{r}')
    a('s_nop 0')
    for r in (16,17): a(f'v_add_f32 v{r}, 1.0, v{r}')
    for r in (16,17): a(f'v_rcp_f32 v{r}, v{r}')
    a('s_lshl_b32 s49, s48, 2')
    a(f's_add_u32 s49, s49, {WS_G}')
    a('v_mov_b32 v18, 0')
    a('s_mov_b32 exec_lo, 0')
    a('s_mov_b32 exec_hi, 0x80000000')
    a('buffer_store_dwordx2 v[16:17], v18, s[24:27], s49 offen')
    a('s_mov_b64 exec, -1')
    if 'nopf' not in EXPT:
        a('s_cmp_lt_u32 s2, 16')
        a(f's_cbranch_scc0 L_{name}_nopf')
        a('s_cmp_eq_u32 s32, 7')
        a(f's_cbranch_scc0 L_{name}_nopf')
        a('s_getpc_b64 s[72:73]')
        a.label(f'L_{name}_pc')
        a(f's_add_u32 s72, s72, k2_attn_kernel-L_{name}_pc')
        a('s_addc_u32 s73, s73, 0')
        a('v_lshlrev_b32 v18, 4, v1')
        for i in range(6):
            a(f'global_load_dwordx4 v[{36+4*i}:{39+4*i}], v18, s[72:73]')
            a('v_add_u32 v18, 1024, v18')
        a('v_lshlrev_b32 v18, 4, v1')
        a('v_add_u32 v18, L_k2_attn_kernel_end-k2_attn_kernel-1024, v18')
        a('global_load_dwordx4 v[60:63], v18, s[72:73]')
        a.label(f'L_{name}_nopf')
    a('s_cmp_eq_u32 s2, 0')
    a(f's_cbranch_scc0 L_{name}_fin')
    a('s_cmp_eq_u32 s32, 4')
    a(f's_cbranch_scc0 L_{name}_fin')
    for r in range(20,24): a(f'v_mov_b32 v{r}, 0')
    a('v_lshlrev_b32 v18, 4, v1')
    a(f's_mov_b32 s49, {WS_FLAG}')
    a('buffer_store_dwordx4 v[20:23], v18, s[24:27], s49 offen')
    a(f's_branch L_{name}_fin')

    a.label(f'L_{name}_comp')
    a('s_lshr_b32 s35, s32, 1')
    a('s_and_b32 s40, s32, 1')
    a('v_and_b32 v8, 31, v1')
    a('v_lshrrev_b32 v9, 5, v1')
    pi_perm(a, 10, 8, 11)
    def frag_addr(dst0, rowreg, base_off, tmp):
        a(f'v_lshrrev_b32 v{tmp}, 1, v{rowreg}')
        a(f'v_and_b32 v{tmp}, 7, v{tmp}')
        a(f'v_xor_b32 v{tmp}, v{tmp}, v9')
        a(f'v_lshlrev_b32 v{tmp}, 4, v{tmp}')
        a(f'v_lshl_add_u32 v{dst0}, v{rowreg}, 7, v{tmp}')
        if base_off: a(f'v_add_u32 v{dst0}, {base_off}, v{dst0}')
        for ks in range(1,4): a(f'v_xor_b32 v{dst0+ks}, {ks*32}, v{dst0}')
    a('s_lshl_b32 s63, s35, 6')
    a('v_add_u32 v11, s63, v10')
    frag_addr(16, 11, 0, 15)
    a('v_bfe_u32 v11, v1, 2, 2')
    a('v_lshl_add_u32 v11, v9, 3, v11')
    a('v_bfe_u32 v12, v1, 4, 1')
    a('v_and_b32 v13, 3, v1')
    a('v_lshlrev_b32 v20, 7, v11')
    a('v_bfe_u32 v14, v1, 3, 1')
    a('v_xor_b32 v14, s40, v14')
    a('v_lshl_add_u32 v20, v14, 6, v20')
    a('v_lshl_add_u32 v20, v12, 5, v20')
    a('v_lshrrev_b32 v14, 1, v13')
    a('v_lshl_add_u32 v20, v14, 4, v20')
    a('v_and_b32 v14, 1, v13')
    a('v_lshl_add_u32 v20, v14, 3, v20')
    a('v_lshlrev_b32 v22, 6, v11')
    a('v_lshl_add_u32 v22, v12, 5, v22')
    a('v_lshl_add_u32 v22, v13, 3, v22')
    frag_addr(24, 8, 4096, 15)
    a('s_cmp_eq_u32 s55, 0')
    a('s_cselect_b32 s66, 0x10000, 0')
    a('s_mov_b32 s67, s66')
    a('v_mov_b32 v14, 0xbf803f80')
    A1=[32,48]; A2=[64,80]
    FS=[96,108,120,132]
    XA=28; WA=21; DA=4
    a('s_mov_b32 s50, 0')
    def mf(d,A,B,zero=False):
        c='0' if zero else f'v[{d}:{d+15}]'
        return f'v_mfma_f32_32x32x16_bf16 v[{d}:{d+15}], v[{A}:{A+3}], v[{B}:{B+3}], {c}'
    def setaddr(kind):
        L=[]
        L.append('s_and_b32 s52, s51, 7'); L.append('s_lshl_b32 s52, s52, 14')
        L.append('s_and_b32 s53, s51, 3'); L.append('s_lshl_b32 s53, s53, 13'); L.append(f's_add_u32 s53, s53, {WR}')
        for ks in range(4): L.append(f'v_add_u32 v{XA+ks}, s52, v{16+ks}')
        if kind=='QK': L.append(f'v_add_u32 v{WA}, s53, v20')
        elif kind=='V': L.append(f'v_add_u32 v{WA}, s53, v22')
        else:
            for ks in range(4): L.append(f'v_add_u32 v{DA+ks}, s53, v{24+ks}')
        return L
    def reads(kind, ks):
        F=FS[ks]
        L=[f'ds_read_b128 v[{F}:{F+3}], v{XA+ks}', f'ds_read_b128 v[{F+4}:{F+7}], v{XA+ks} offset:4096']
        if kind=='QK':
            L+= [f'ds_read_b64_tr_b16 v[{F+8}:{F+9}], v{WA} offset:{ks*2048}', f'ds_read_b64_tr_b16 v[{F+10}:{F+11}], v{WA} offset:{ks*2048+512}']
        elif kind=='V':
            L+= [f'ds_read_b64_tr_b16 v[{F+8}:{F+9}], v{WA} offset:{ks*1024}', f'ds_read_b64_tr_b16 v[{F+10}:{F+11}], v{WA} offset:{ks*1024+256}']
        else:
            L+= [f'ds_read_b128 v[{F+8}:{F+11}], v{DA+ks}']
        return L
    def nreads(kind): return 3 if kind=='F' else 4
    def mfmas(kind, ks, zero=False):
        F=FS[ks]
        if kind=='QK': return [], [mf(A1[t], F+8, F+4*t, zero) for t in range(2)]
        pre=[f'v_cndmask_b32 v{F+8+q}, v{F+8+q}, v14, s[66:67]' for q in range(4)] if kind=='F' else []
        return pre, [mf(A2[t], F+4*t, F+8, zero) for t in range(2)]
    def body(kind, nxt, zero=False, extra=None, last=False):
        extra=list(extra or [])
        ex_per = -(-len(extra)//8) if extra else 0
        def take():
            nonlocal extra
            t=extra[:ex_per]; extra=extra[ex_per:]; return t
        n=nreads(kind); nn=nreads(nxt) if nxt else 0
        for ks in range(4):
            cnt=0
            for d in (1,2):
                k2=ks+d
                if k2<4: cnt+=n
                elif nxt: cnt+=nn
            if ks==0: pass
            a(f's_waitcnt lgkmcnt({min(cnt,15)})')
            pre,mm=mfmas(kind,ks,zero and ks==0)
            if ks==0: rd=reads(kind,3)
            elif nxt: rd=reads(nxt,ks-1)
            else: rd=[]
            for x in pre: a(x)
            if pre: a('s_nop 0')
            h1=rd[:2]; h2=rd[2:]
            a(mm[0])
            for x in h1: a(x)
            for x in take(): a(x)
            a(mm[1])
            for x in h2: a(x)
            for x in take(): a(x)
            if ks==0 and nxt:
                a('s_add_u32 s51, s50, 1')
                for x in setaddr(nxt): a(x)
                a('s_barrier')
        for x in extra: a(x)
        a('s_add_u32 s50, s50, 1')
    for r in range(32,64): a(f'v_mov_b32 v{r}, 0')
    stamp(a,1)
    a('s_waitcnt lgkmcnt(0)')
    a('s_barrier')
    stamp(a,2)
    if STAMPS: a('s_memtime s[74:75]')
    a('s_mov_b32 s51, 0')
    for x in setaddr('QK'): a(x)
    for ks in range(3):
        for x in reads('QK',ks): a(x)
    a.label(f'L_{name}_p1')
    body('QK','QK')
    a('s_cmp_lt_u32 s50, 7')
    a(f's_cbranch_scc1 L_{name}_p1')
    srd(a, 24, 46, WS_SIZE)
    a('s_lshl_b32 s57, s35, 5')
    a('s_add_u32 s56, s54, s57')
    a('s_cmp_ge_u32 s55, 8')
    a('s_cselect_b32 s57, 17, 16')
    a('s_cselect_b32 s58, 11, 10')
    a(f's_cselect_b32 s59, {WS_KV}, {WS_Q}')
    a(f's_cselect_b32 s60, 1.0, {hex(f2u(C_SCALE))}')
    a('s_lshl_b32 s57, 1, s57')
    a('s_lshl_b32 s61, s56, s58')
    a('s_add_u32 s59, s59, s61')
    a('s_lshl_b32 s63, 16, s58')
    a('s_and_b32 s62, s55, 7')
    a('s_lshl_b32 s62, s62, 2')
    a('s_lshl_b32 s64, s40, 1')
    a('s_add_u32 s62, s62, s64')
    a('s_mul_i32 s62, s62, s57')
    a('s_add_u32 s59, s59, s62')
    a('s_add_u32 s68, s59, s57')
    a('s_add_u32 s69, s59, s63')
    a('s_add_u32 s70, s68, s63')
    a('v_lshlrev_b32 v11, 9, v9')
    a('v_lshl_add_u32 v11, v10, 4, v11')
    def ep1(t):
        L=[]
        for hb in range(2):
            base=A1[t]+8*hb; d=144+8*t+4*hb
            for r in range(8): L.append(f'v_mul_f32 v{base+r}, s60, v{base+r}')
            for q in range(4): L.append(f'v_cvt_pk_bf16_f32 v{d+q}, v{base+2*q}, v{base+2*q+1}')
            so=[['s59','s68'],['s69','s70']][t][hb]
            L.append(f'buffer_store_dwordx4 v[{d}:{d+3}], v11, s[24:27], {so} offen')
        return L
    a('s_cmp_eq_u32 s40, 0')
    a(f's_cbranch_scc0 L_{name}_roleF')
    for role in ('V','F'):
        if role=='F': a.label(f'L_{name}_roleF')
        body('QK',role)
        stamp(a,1)
        body(role,role,zero=True,extra=['s_nop 7','s_nop 3']+ep1(0))
        body(role,role,extra=ep1(1))
        a.label(f'L_{name}_p2{role}')
        body(role,role)
        a('s_cmp_lt_u32 s50, 15')
        a(f's_cbranch_scc1 L_{name}_p2{role}')
        body(role,None)
        if STAMPS:
            a('s_memtime s[76:77]')
            a('s_waitcnt lgkmcnt(0)')
            a('s_sub_u32 s78, s76, s74')
        stamp(a,3)
        a('s_nop 15')
        if role=='V':
            a('s_barrier')
            a('s_lshl_b32 s57, s35, 5')
            a('s_add_u32 s58, s54, s57')
            a('v_lshrrev_b32 v19, 4, v8')
            a('v_lshlrev_b32 v19, 17, v19')
            a('v_lshl_add_u32 v19, v9, 9, v19')
            a('v_and_b32 v13, 15, v8')
            a('v_lshl_add_u32 v19, v13, 4, v19')
            a('s_lshl_b32 s61, s55, 18')
            a('s_lshl_b32 s62, s58, 11')
            a('s_add_u32 s61, s61, s62')
            a(f's_add_u32 s61, s61, {WS_KV+1024}')
            for t in range(2):
                for mfi in range(2):
                    base=A2[t]+8*mfi
                    d=96+8*t+4*mfi
                    for q in range(4): a(f'v_cvt_pk_bf16_f32 v{d+q}, v{base+2*q}, v{base+2*q+1}')
                    a(f'buffer_store_dwordx4 v[{d}:{d+3}], v19, s[24:27], s61 offen offset:{mfi*256}')
                if t==0: a('s_add_u32 s61, s61, 32768')
            a(f's_branch L_{name}_fin')
    ACC=[[0,A2[0]],[0,A2[1]]]
    XCH = 0
    a('v_mov_b32 v12, -1.0')
    a('v_mov_b32 v13, 1.0')
    a('v_cmp_gt_u32 vcc, 16, v8')
    a('s_nop 1')
    a('v_cndmask_b32 v12, v12, v13, vcc')
    a('v_cndmask_b32 v12, v12, v13, s[66:67]')
    a('s_cmp_eq_u32 s54, 0')
    a('s_cselect_b32 s68, -1, 0')
    a('s_mov_b32 s69, 0')
    A0=ACC[0][1]; A1=ACC[1][1]
    a(f'v_mov_b32 v15, v{A1}')
    a('v_mov_b32 v13, 0')
    a(f'v_cndmask_b32 v{A1}, v{A1}, v13, s[68:69]')
    for r in range(16): a(f'v_fma_f32 v{A0+r}, v{A1+r}, v12, v{A0+r}')
    a('v_lshlrev_b32 v11, 4, v1')
    a('s_mul_i32 s63, s35, 5120')
    a(f's_add_u32 s63, s63, {XCH}')
    a('v_add_u32 v16, s63, v11')
    a('s_xor_b32 s63, s35, 1')
    a('s_mul_i32 s63, s63, 5120')
    a(f's_add_u32 s63, s63, {XCH}')
    a('v_add_u32 v17, s63, v11')
    for g in range(4): a(f'ds_write_b128 v16, v[{A0+4*g}:{A0+4*g+3}] offset:{g*1024}')
    a('v_lshlrev_b32 v18, 2, v1')
    a('s_mul_i32 s63, s35, 5120')
    a(f's_add_u32 s63, s63, {XCH+4096}')
    a('v_add_u32 v18, s63, v18')
    a('ds_write_b32 v18, v15')
    a('s_waitcnt lgkmcnt(0)')
    a('s_barrier')
    for g in range(4): a(f'ds_read_b128 v[{112+4*g}:{115+4*g}], v17 offset:{g*1024}')
    a('v_lshlrev_b32 v18, 2, v1')
    a('s_xor_b32 s63, s35, 1')
    a('s_mul_i32 s63, s63, 5120')
    a(f's_add_u32 s63, s63, {XCH+4096}')
    a('v_add_u32 v18, s63, v18')
    a('ds_read_b32 v14, v18')
    a('s_waitcnt lgkmcnt(0)')
    a('s_cmp_eq_u32 s35, 0')
    a(f's_cbranch_scc0 L_{name}_odd')
    for r in range(16): a(f'v_fma_f32 v{A0+r}, v{112+r}, v12, v{A0+r}')
    a('v_fma_f32 v15, v14, v12, v15')
    a(f's_branch L_{name}_oddd')
    a.label(f'L_{name}_odd')
    a('v_sub_f32 v13, 0, v12')
    for r in range(16): a(f'v_fma_f32 v{A0+r}, v{A0+r}, v13, v{112+r}')
    a('v_fma_f32 v15, v15, v12, v14')
    a.label(f'L_{name}_oddd')
    for q in range(8): a(f'v_cvt_pk_bf16_f32 v{144+q}, v{A0+2*q}, v{A0+2*q+1}')
    a('s_lshr_b32 s57, s55, 1')
    a(f's_mul_i32 s58, s57, {T_ET}')
    a(f's_mul_i32 s59, s35, {2*T_ARR}')
    a('s_add_u32 s58, s58, s59')
    a(f's_add_u32 s58, s58, {WS_T}')
    a(f's_add_u32 s60, s58, {T_ARR}')
    a('s_and_b32 s62, s55, 1')
    a('s_lshl_b32 s62, s62, 8')
    a('v_and_b32 v16, 15, v8')
    a('v_lshlrev_b32 v16, 4, v16')
    a('v_lshl_add_u32 v16, v9, 9, v16')
    a('v_add_u32 v16, s62, v16')
    a('v_mov_b32 v17, s60')
    a('v_mov_b32 v18, s58')
    a('v_cmp_gt_u32 vcc, 16, v8')
    a('s_nop 1')
    a('v_cndmask_b32 v17, v17, v18, vcc')
    a('v_add_u32 v17, v17, v16')
    a(f's_add_u32 s59, s59, {WS_T+8*T_ET}')
    a('v_mov_b32 v18, s59')
    a('v_lshl_add_u32 v18, v9, 9, v18')
    a('v_cndmask_b32 v19, v17, v18, s[66:67]')
    a('s_lshl_b32 s63, s54, 11')
    for c in range(2):
        a(f'buffer_store_dwordx4 v[{144+4*c}:{147+4*c}], v19, s[24:27], s63 offen offset:{c*1024}')
    a('s_cmp_eq_u32 s55, 0')
    a(f's_cbranch_scc0 L_{name}_nz')
    for r in range(4): a(f'v_mov_b32 v{104+r}, 0')
    a('s_mov_b64 exec, s[66:67]')
    for q in range(2): a(f'buffer_store_dwordx4 v[104:107], v17, s[24:27], s63 offen offset:{q*1024}')
    a(f's_mov_b32 s64, {32*1024}')
    a('buffer_store_dwordx4 v[104:107], v17, s[24:27], s64 offen')
    a('s_mov_b64 exec, -1')
    a.label(f'L_{name}_nz')
    a('s_cmp_eq_u32 s54, 0')
    a(f's_cbranch_scc0 L_{name}_fin')
    a('v_mov_b32 v13, 0')
    a('v_cndmask_b32 v15, v13, v15, s[68:69]')
    a('v_cvt_pk_bf16_f32 v108, v15, v13')
    a('v_mov_b32 v109, 0'); a('v_mov_b32 v110, 0'); a('v_mov_b32 v111, 0')
    a('s_mov_b32 s70, 0x0000ffff')
    a('s_mov_b32 s71, 0x0000ffff')
    a('s_or_b64 s[70:71], s[70:71], s[66:67]')
    a('s_not_b64 s[72:73], s[70:71]')
    a('s_cmp_eq_u32 s35, 0')
    a('s_cselect_b64 s[70:71], s[70:71], s[72:73]')
    a('s_mov_b64 exec, s[70:71]')
    a(f's_mov_b32 s63, {32*1024}')
    a('buffer_store_dwordx4 v[108:111], v19, s[24:27], s63 offen')
    a('s_mov_b64 exec, -1')
    a.label(f'L_{name}_fin')
    if STAMPS: srd(a, 24, 46, WS_SIZE)
    stamp_flush(a, 4, 24, 32, 8, 0, vtmp=170, extra=78)
    a.label(f'L_{name}_end')
    a('s_endpgm')
    return 176


SPIN_MAX=400000
SLEEP=int(os.environ.get('SLEEP','2'))
def poll(a, tag, addr_v, exp_v, nl, base='s[56:57]', tmp=12):
    a(f's_mov_b32 s61, 0')
    a(f's_mov_b64 exec, {(1<<nl)-1}')
    a.label(f'L_{tag}_poll')
    a(f'global_load_dword v{tmp}, v{addr_v}, {base} sc1')
    a('s_waitcnt vmcnt(0)')
    a(f'v_cmp_eq_u32 vcc, v{tmp}, v{exp_v}')
    a('s_add_u32 s61, s61, 1')
    a('s_nop 2')
    a(f's_cmp_eq_u64 vcc, exec')
    a(f's_cbranch_scc1 L_{tag}_polld')
    a(f's_cmp_ge_u32 s61, {SPIN_MAX}')
    a(f's_cbranch_scc1 L_{tag}_polld')
    a(f's_sleep {SLEEP}')
    a(f's_branch L_{tag}_poll')
    a.label(f'L_{tag}_polld')
    a('s_mov_b64 exec, -1')

def phase_c(a, name):
    stamp(a,0)
    a('s_cmp_eq_u32 s32, 0')
    a(f's_cbranch_scc0 L_{name}_nosig')
    a('s_lshr_b32 s33, s2, 5')
    a('s_lshl_b32 s33, s33, 7')
    a(f's_add_u32 s33, s33, {WS_FLAG}')
    a('v_mov_b32 v12, s33')
    a('v_mov_b32 v13, 1')
    a('s_mov_b64 exec, 1')
    a('global_atomic_add v12, v13, s[24:25] sc1')
    a('s_mov_b64 exec, -1')
    a.label(f'L_{name}_nosig')
    a('s_and_b32 s33, s2, 7')
    a('s_lshr_b32 s34, s2, 3')
    a('s_and_b32 s35, s34, 3')
    a('s_lshl_b32 s40, s33, 2')
    a('s_add_u32 s40, s40, s35')
    a('s_lshr_b32 s41, s2, 5')
    a('s_and_b32 s42, s32, 1')
    a('s_lshr_b32 s43, s32, 1')
    a('s_lshl_b32 s44, s40, 1')
    a('s_add_u32 s44, s44, s42')
    srd(a, 12, 72, 0x200000)
    a('v_and_b32 v8, 31, v1')
    a('v_lshrrev_b32 v9, 5, v1')
    a('s_lshl_b32 s58, s44, 5')
    a('v_add_u32 v10, s58, v8')
    a('v_and_b32 v12, 511, v10')
    a('s_lshr_b32 s58, s44, 4')
    a('s_cmp_eq_u32 s58, 0')
    a('s_cselect_b32 s59, 0, 1024')
    a('s_cmp_eq_u32 s58, 1')
    a('s_cselect_b32 s59, 2048, s59')
    a('s_and_b32 s61, s58, 1')
    a('s_cmp_eq_u32 s58, 1')
    a('s_cselect_b32 s62, 1, 0')
    a('s_cmp_eq_u32 s58, 2')
    a('s_cselect_b32 s62, 1, s62')
    a('v_add_u32 v10, s59, v12')
    a('v_sub_u32 v11, s59, v12')
    a('s_cmp_eq_u32 s62, 1')
    a('s_cselect_b64 vcc, -1, 0')
    a('v_cndmask_b32 v10, v10, v11, vcc')
    a('s_cmp_lt_u32 s58, 2')
    a('s_cselect_b64 vcc, -1, 0')
    a('v_sub_u32 v11, 1024, v12')
    a('v_cndmask_b32 v13, v11, v12, vcc')
    a('s_lshl_b32 s61, s61, 20')
    a('v_mov_b32 v106, s61')
    a('s_lshr_b32 s62, s58, 1')
    a('s_lshl_b32 s63, s62, 10')
    a('s_add_u32 s63, s63, 512')
    a('s_lshl_b32 s62, s62, 20')
    a('s_and_b32 s59, s58, 1')
    a('s_cmp_eq_u32 s59, 1')
    a('s_cselect_b64 s[64:65], -1, 0')
    a('v_cmp_eq_u32 vcc, 0, v12')
    a('s_nop 1')
    a('s_and_b64 vcc, vcc, s[64:65]')
    a('v_mov_b32 v11, s63')
    a('v_cndmask_b32 v10, v10, v11, vcc')
    a('v_mov_b32 v11, 512')
    a('v_cndmask_b32 v13, v13, v11, vcc')
    a('v_mov_b32 v11, s62')
    a('v_cndmask_b32 v106, v106, v11, vcc')
    a('v_lshlrev_b32 v11, 10, v10')
    a('v_lshl_add_u32 v11, v9, 3, v11')
    a('s_lshl_b32 s58, s41, 7')
    a('s_lshl_b32 s59, s43, 6')
    a('s_add_u32 s58, s58, s59')
    a('v_add_u32 v11, s58, v11')
    a(f'v_mul_u32_u24 v13, {YQ_PITCH}, v13')
    a('v_lshlrev_b32 v12, 3, v9')
    a('s_cmp_lt_u32 s41, 4')
    a(f's_cbranch_scc0 L_{name}_ym')
    a('v_add_u32 v13, v13, v12')
    a('v_add_u32 v13, s58, v13')
    a(f's_branch L_{name}_ymd')
    a.label(f'L_{name}_ym')
    a('v_sub_u32 v13, v13, v12')
    a('s_sub_u32 s59, 1018-48, s58')
    a('v_add_u32 v13, s59, v13')
    a.label(f'L_{name}_ymd')
    a('s_lshr_b32 s59, s41, 2')
    a('s_lshl_b32 s59, s59, 20')
    a('v_xor_b32 v106, s59, v106')
    a('v_add_u32 v13, v13, v106')
    a(f's_mov_b32 s60, {WS_Y}')
    a('v_lshlrev_b32 v105, 2, v10')
    a('v_bfe_u32 v5, v1, 2, 2')
    a('v_lshl_add_u32 v6, v9, 2, v5')
    a('v_lshlrev_b32 v6, 7, v6')
    a('v_bfe_u32 v7, v1, 3, 1')
    a('v_lshlrev_b32 v7, 6, v7')
    a('v_bfe_u32 v16, v1, 4, 1')
    a('v_lshl_add_u32 v6, v16, 5, v6')
    a('v_bfe_u32 v16, v1, 1, 1')
    a('v_lshl_add_u32 v6, v16, 4, v6')
    a('v_and_b32 v16, 1, v1')
    a('v_lshl_add_u32 v6, v16, 3, v6')
    a('v_add_u32 v14, v6, v7')
    a('s_lshl_b32 s58, s43, 15')
    a('v_add_u32 v14, s58, v14')
    a('v_xor_b32 v15, 64, v14')
    a(f's_mov_b32 s59, {WS_G}')
    a('buffer_load_dword v104, v105, s[24:27], s59 offen')
    stamp(a,1)
    a('s_cmp_eq_u32 s32, 0')
    a(f's_cbranch_scc0 L_{name}_nopoll')
    a('s_lshl_b32 s58, s33, 7')
    a(f's_add_u32 s58, s58, {WS_FLAG}')
    a('v_lshlrev_b32 v16, 2, v1')
    a('v_add_u32 v16, s58, v16')
    a('v_mov_b32 v17, 32')
    a('v_mov_b32 v19, 297')
    a('v_cmp_eq_u32 vcc, 1, v1')
    a('s_nop 1')
    a('v_cndmask_b32 v17, v17, v19, vcc')
    poll(a, name+'_c', 16, 17, 2, base='s[24:25]', tmp=18)
    a.label(f'L_{name}_nopoll')
    a('s_barrier')
    stamp(a,2)
    OF=32
    a('s_lshl_b32 s51, s44, 15')
    a('s_lshl_b32 s52, s43, 14')
    a('s_add_u32 s51, s51, s52')
    a(f's_add_u32 s51, s51, {WS_O}')
    for i in range(16):
        if i%4==0 and i: a('s_add_u32 s51, s51, 4096')
        a(f'buffer_load_dwordx4 v[{OF+4*i}:{OF+4*i+3}], v2, s[24:27], s51 offen offset:{(i%4)*1024} sc1')
    for b in range(4): a(f'buffer_load_dwordx2 v[{96+2*b}:{97+2*b}], v13, s[24:27], s60 offen offset:{b*16} sc1')
    ACC=[16,112]; FW=[128,136]
    def reads(i):
        s_=i%2
        for j in range(2):
            a(f'ds_read_b64_tr_b16 v[{FW[s_]+4*j}:{FW[s_]+4*j+1}], v{14+j} offset:{i*2048}')
            a(f'ds_read_b64_tr_b16 v[{FW[s_]+4*j+2}:{FW[s_]+4*j+3}], v{14+j} offset:{i*2048+1024}')
    reads(0)
    for i in range(16):
        if i<15: reads(i+1); a(f's_waitcnt vmcnt({4+15-i}) lgkmcnt(4)')
        else: a('s_waitcnt vmcnt(4) lgkmcnt(0)')
        s_=i%2
        for j in range(2):
            c = '0' if i==0 else f'v[{ACC[j]}:{ACC[j]+15}]'
            a(f'v_mfma_f32_32x32x16_bf16 v[{ACC[j]}:{ACC[j]+15}], v[{FW[s_]+4*j}:{FW[s_]+4*j+3}], v[{OF+4*i}:{OF+4*i+3}], {c}')
    stamp(a,3)
    K3X=65536
    a('s_lshl_b32 s48, s42, 13')
    a('s_xor_b32 s49, s43, 1')
    a('s_lshl_b32 s49, s49, 12')
    a('s_add_u32 s49, s49, s48')
    a(f's_add_u32 s49, s49, {K3X}')
    a('v_add_u32 v5, s49, v2')
    a('s_lshl_b32 s49, s43, 12')
    a('s_add_u32 s49, s49, s48')
    a(f's_add_u32 s49, s49, {K3X}')
    a('v_add_u32 v6, s49, v2')
    a('s_nop 7')
    a('s_cmp_eq_u32 s43, 0')
    a(f's_cbranch_scc0 L_{name}_kw1')
    for g in range(4): a(f'ds_write_b128 v5, v[{ACC[1]+4*g}:{ACC[1]+4*g+3}] offset:{g*1024}')
    a(f's_branch L_{name}_x')
    a.label(f'L_{name}_kw1')
    for g in range(4): a(f'ds_write_b128 v5, v[{ACC[0]+4*g}:{ACC[0]+4*g+3}] offset:{g*1024}')
    a('s_nop 1')
    for r in range(16): a(f'v_mov_b32 v{ACC[0]+r}, v{ACC[1]+r}')
    a.label(f'L_{name}_x')
    a('s_waitcnt vmcnt(0) lgkmcnt(0)')
    a('s_barrier')
    for g in range(4): a(f'ds_read_b128 v[{32+4*g}:{35+4*g}], v6 offset:{g*1024}')
    a('v_sub_f32 v105, 1.0, v104')
    a('s_cmp_lt_u32 s41, 4')
    a(f's_cbranch_scc0 L_{name}_um')
    for b in range(4):
        for q in range(2):
            src=96+2*b+q
            a(f'v_lshlrev_b32 v{48+4*b+2*q}, 16, v{src}')
            a(f'v_and_b32 v{48+4*b+2*q+1}, 0xffff0000, v{src}')
    a(f's_branch L_{name}_umd')
    a.label(f'L_{name}_um')
    for b in range(4):
        g=3-b
        d0=96+2*b; d1=97+2*b
        a(f'v_and_b32 v{48+4*g+0}, 0xffff0000, v{d1}')
        a(f'v_lshlrev_b32 v{48+4*g+1}, 16, v{d1}')
        a(f'v_and_b32 v{48+4*g+2}, 0xffff0000, v{d0}')
        a(f'v_lshlrev_b32 v{48+4*g+3}, 16, v{d0}')
    a.label(f'L_{name}_umd')
    for r in range(16): a(f'v_mul_f32 v{48+r}, v104, v{48+r}')
    a('s_waitcnt lgkmcnt(0)')
    for r in range(16): a(f'v_add_f32 v{16+r}, v{16+r}, v{32+r}')
    for r in range(16): a(f'v_fmac_f32 v{48+r}, v105, v{16+r}')
    for b in range(4):
        a(f'v_cvt_pk_bf16_f32 v{64+2*b}, v{48+4*b}, v{48+4*b+1}')
        a(f'v_cvt_pk_bf16_f32 v{65+2*b}, v{48+4*b+2}, v{48+4*b+3}')
    a('v_lshl_add_u32 v11, v9, 3, v11')
    for b in (0,2):
        a(f'v_permlane32_swap_b32 v{64+2*b}, v{66+2*b}')
        a(f'v_permlane32_swap_b32 v{65+2*b}, v{67+2*b}')
    sv=a.stflag; a.stflag='sc1' if 'outsc1' in EXPT else ''
    for b in (0,2):
        a(f'buffer_store_dwordx4 v[{64+2*b}:{67+2*b}], v11, s[12:15], 0 offen offset:{b*16}')
    a.stflag=sv
    stamp_flush(a, 4, 24, 32, 4, 2, vtmp=106)

K2_SUM=131072
K2_CNT=K2_SUM+16384
K2_LDS=K2_CNT+64
def gen_k23(a, name):
    return gen_k2(a, name, fused=True)

def gen_k2(a, name, fused=False):
    a.noload=False
    kernel_header(a, name)
    a('s_cmp_ge_u32 s2, 256')
    a(f's_cbranch_scc1 L_{name}_end')
    stamp(a,0)
    a('s_load_dwordx4 s[36:39], s[0:1], 8')
    a('s_load_dwordx2 s[46:47], s[0:1], 88')
    a('s_load_dwordx2 s[56:57], s[0:1], 56')
    a('s_load_dwordx2 s[72:73], s[0:1], 72')
    a('v_lshrrev_b32 v2, 6, v0')
    a('v_and_b32 v1, 63, v0')
    a('v_readfirstlane_b32 s32, v2')
    a('v_lshlrev_b32 v2, 4, v1')
    a('s_and_b32 s33, s2, 7')
    a('s_lshr_b32 s34, s2, 3')
    a('s_and_b32 s35, s34, 3')
    a('s_lshl_b32 s40, s33, 2')
    a('s_add_u32 s40, s40, s35')
    a('s_lshr_b32 s41, s2, 5')
    a('s_waitcnt lgkmcnt(0)')
    srd(a, 24, 46, WS_SIZE)
    a('s_cmp_ge_u32 s32, 8')
    a(f's_cbranch_scc1 L_{name}_fnet')
    Q=4; C=8; S=[24,40]; O=56; K=[72,76]; V0=[80,88]; V1=[84,92]; ADDR=96; IDX=3
    a('s_lshl_b32 s42, s41, 3')
    a('s_add_u32 s42, s42, s32')
    a('s_lshl_b32 s43, s40, 16')
    a('s_lshl_b32 s44, s42, 10')
    a('s_add_u32 s43, s43, s44')
    a(f'buffer_load_dwordx4 v[{Q}:{Q+3}], v2, s[24:27], s43 offen')
    a('s_lshl_b32 s43, s40, 17')
    a(f's_add_u32 s43, s43, {WS_KV}')
    a('s_lshl_b32 s44, s32, 11')
    if 'kvrot' in EXPT:
        a('s_lshl_b32 s46, s41, 3')
        a('s_add_u32 s46, s46, s32')
    else: a('s_mov_b32 s46, s32')
    for i in range(8):
        a(f's_add_u32 m0, s44, {i*8*2048}')
        a('s_and_b32 s46, s46, 63')
        a('s_lshl_b32 s45, s46, 11')
        a('s_add_u32 s45, s45, s43')
        a('buffer_load_dwordx4 v2, s[24:27], s45 offen lds')
        a('buffer_load_dwordx4 v2, s[24:27], s45 offen offset:1024 lds')
        a('s_add_u32 s46, s46, 8')
    a(f'v_mov_b32 v{IDX}, 0xdddddddd')
    if 'allones' in EXPT:
        for r in range(80,96): a(f'v_mov_b32 v{r}, 0x3f803f80')
    else:
        a('v_mov_b32 v97, 0')
        a('v_mov_b32 v98, 0x3f803f80')
        a('s_mov_b32 s52, 0x00110000')
        a('s_mov_b32 s53, 0x00110000')
        a('v_cndmask_b32 v97, v97, v98, s[52:53]')
        for r in range(80,96): a(f'v_mov_b32 v{r}, v97')
    a('s_mov_b32 s48, 0x0000ffff')
    a('s_mov_b32 s49, 0x0000ffff')
    a('s_mov_b32 s50, 0')
    a('s_cmp_lt_u32 s32, 4')
    a(f's_cselect_b32 s54, {PR[0]}, {PR[1]}')
    a(f's_cselect_b32 s55, {PR[2]}, {PR[3]}')
    a('s_setprio 2')
    for r in range(16): a(f'v_mov_b32 v{O+r}, 0')
    for r in range(8,16): a(f'v_mov_b32 v{S[1]+r}, 0')
    a(f'v_mov_b32 v{ADDR}, v2')
    a('s_waitcnt vmcnt(14)' if 'b1b' in EXPT else 's_waitcnt vmcnt(12)')
    a('s_barrier')
    stamp(a,1)
    a(f'ds_read_b128 v[{K[0]}:{K[0]+3}], v2')
    a(f'ds_read_b128 v[{K[1]}:{K[1]+3}], v2 offset:2048')
    a('s_mov_b64 exec, s[48:49]')
    a(f'ds_read_b128 v[{V0[0]}:{V0[0]+3}], v2 offset:1024')
    a(f'ds_read_b128 v[{V1[0]}:{V1[0]+3}], v2 offset:1280')
    a('s_mov_b64 exec, -1')
    a('s_waitcnt lgkmcnt(3)')
    a(f'v_mfma_f32_32x32x16_bf16 v[{S[0]}:{S[0]+15}], v[{K[0]}:{K[0]+3}], v[{Q}:{Q+3}], 0')
    a('s_nop 15')
    s0=S[0]
    a(f'v_max3_f32 v97, v{s0}, v{s0+1}, v{s0+2}')
    for r in range(3,15,2): a(f'v_max3_f32 v97, v97, v{s0+r}, v{s0+r+1}')
    a(f'v_max_f32 v97, v97, v{s0+15}')
    a.label(f'L_{name}_havemax')
    a('v_mov_b32 v98, v97')
    a('s_nop 1')
    a('v_permlane32_swap_b32 v97, v98')
    a('s_nop 1')
    a('v_max_f32 v97, v97, v98')
    for r in range(16): a(f'v_sub_f32 v{C+r}, 0, v97')
    a('s_waitcnt lgkmcnt(0)')
    a(f'v_mfma_f32_32x32x16_bf16 v[{S[0]}:{S[0]+15}], v[{K[0]}:{K[0]+3}], v[{Q}:{Q+3}], v[{C}:{C+15}]')
    a('s_mov_b32 s51, 0')
    if STAMPS: a('s_memtime s[74:75]')
    a('s_nop 15')
    a.raw('.p2align 6')
    a.label(f'L_{name}_loop')
    for i in range(4):
        cur=S[i%2]; prev=S[(i+1)%2]
        def e(x,y):
            for j in range(x,y):
                if 'noexp' in EXPT: a(f'v_mov_b32 v{cur+j}, v{cur+j}')
                else: a(f'v_exp_f32 v{cur+j}, v{cur+j}')
        a('s_waitcnt lgkmcnt(0)')
        e(0,2)
        if 'nopv' not in EXPT: a(f'v_smfmac_f32_32x32x32_bf16 v[{O}:{O+15}], v[{V1[(i+1)%2]}:{V1[(i+1)%2]+3}], v[{prev+8}:{prev+15}], v{IDX}')
        if 'nolds' not in EXPT:
            a(f'ds_read_b128 v[{K[i%2]}:{K[i%2]+3}], v{ADDR} offset:{(i+2)*2048}')
            a('s_mov_b64 exec, s[48:49]')
            a(f'ds_read_b128 v[{V0[(i+1)%2]}:{V0[(i+1)%2]+3}], v{ADDR} offset:{(i+1)*2048+1024}')
            a(f'ds_read_b128 v[{V1[(i+1)%2]}:{V1[(i+1)%2]+3}], v{ADDR} offset:{(i+1)*2048+1280}')
            a('s_mov_b64 exec, -1')
        e(2,7)
        a(f'v_mfma_f32_32x32x16_bf16 v[{prev}:{prev+15}], v[{K[(i+1)%2]}:{K[(i+1)%2]+3}], v[{Q}:{Q+3}], v[{C}:{C+15}]')
        e(7,12)
        if 'nopv' not in EXPT: a(f'v_smfmac_f32_32x32x32_bf16 v[{O}:{O+15}], v[{V0[i%2]}:{V0[i%2]+3}], v[{cur}:{cur+7}], v{IDX}')
        e(12,16)
    a(f'v_add_u32 v{ADDR}, 8192, v{ADDR}')
    a('s_add_u32 s51, s51, 1')
    if 'b1b' in EXPT:
        a('s_cmp_eq_u32 s51, 1')
        a(f's_cbranch_scc1 L_{name}_ev1')
    a('s_cmp_eq_u32 s51, 3')
    a(f's_cbranch_scc1 L_{name}_ev3')
    a('s_cmp_eq_u32 s51, s54')
    a(f's_cbranch_scc1 L_{name}_ev10')
    a('s_cmp_eq_u32 s51, s55')
    a(f's_cbranch_scc1 L_{name}_ev14')
    a('s_cmp_lt_u32 s51, 16')
    a(f's_cbranch_scc1 L_{name}_loop')
    a(f's_branch L_{name}_done')
    a.label(f'L_{name}_ev1')
    a('s_cmp_eq_u32 s50, 0')
    a(f's_cbranch_scc0 L_{name}_loop')
    a('s_waitcnt vmcnt(12)')
    a('s_barrier')
    a(f's_branch L_{name}_loop')
    a.label(f'L_{name}_ev3')
    a('s_cmp_eq_u32 s50, 0')
    a(f's_cbranch_scc0 L_{name}_loop')
    stamp(a,3)
    a('s_waitcnt vmcnt(0)')
    a('s_barrier')
    stamp(a,4)
    a(f's_branch L_{name}_loop')
    a.label(f'L_{name}_ev10')
    stamp(a,5)
    a('s_setprio 1')
    a(f's_branch L_{name}_loop')
    a.label(f'L_{name}_ev14')
    a('s_setprio 0')
    a(f's_branch L_{name}_loop')
    a.label(f'L_{name}_done')
    a('s_nop 1')
    a(f'v_smfmac_f32_32x32x32_bf16 v[{O}:{O+15}], v[{V1[1]}:{V1[1]+3}], v[{S[1]+8}:{S[1]+15}], v{IDX}')
    a('s_waitcnt lgkmcnt(0)')
    a('s_nop 15')
    stamp(a,2)
    if STAMPS:
        a('s_memtime s[76:77]')
        a('s_waitcnt lgkmcnt(0)')
        a('s_sub_u32 s78, s76, s74')
    THR = -1.0 if 'forcefb' in EXPT else 2.0**60
    a(f's_mov_b32 s52, {hex(f2u(THR))}')
    a(f'v_cmp_gt_f32 vcc, s52, v{O+8}')
    if 'nopv' in EXPT or 'noexp' in EXPT: a('s_mov_b32 s50, 1')
    a('s_nop 3')
    a('s_cmp_eq_u64 vcc, -1')
    a(f's_cbranch_scc1 L_{name}_ok')
    a('s_cmp_eq_u32 s50, 0')
    a(f's_cbranch_scc0 L_{name}_ok')
    a('s_mov_b32 s50, 1')
    a('s_setprio 2')
    a('v_mov_b32 v97, 0xff800000')
    a(f'v_mov_b32 v{ADDR}, v2')
    a('s_mov_b32 s51, 0')
    a.label(f'L_{name}_fb')
    a(f'ds_read_b128 v[{K[0]}:{K[0]+3}], v{ADDR}')
    a('s_waitcnt lgkmcnt(0)')
    a(f'v_mfma_f32_32x32x16_bf16 v[{S[0]}:{S[0]+15}], v[{K[0]}:{K[0]+3}], v[{Q}:{Q+3}], 0')
    a('s_nop 15')
    for r in range(0,16,2): a(f'v_max3_f32 v97, v97, v{s0+r}, v{s0+r+1}')
    a(f'v_add_u32 v{ADDR}, 2048, v{ADDR}')
    a('s_add_u32 s51, s51, 1')
    a('s_cmp_lt_u32 s51, 64')
    a(f's_cbranch_scc1 L_{name}_fb')
    for r in range(16): a(f'v_mov_b32 v{O+r}, 0')
    for r in range(8,16): a(f'v_mov_b32 v{S[1]+r}, 0')
    a(f'v_mov_b32 v{ADDR}, v2')
    a(f'ds_read_b128 v[{K[0]}:{K[0]+3}], v2')
    a(f'ds_read_b128 v[{K[1]}:{K[1]+3}], v2 offset:2048')
    a('s_mov_b64 exec, s[48:49]')
    a(f'ds_read_b128 v[{V0[0]}:{V0[0]+3}], v2 offset:1024')
    a(f'ds_read_b128 v[{V1[0]}:{V1[0]+3}], v2 offset:1280')
    a('s_mov_b64 exec, -1')
    a(f's_branch L_{name}_havemax')
    a.label(f'L_{name}_ok')
    a(f'v_rcp_f32 v97, v{O+8}')
    a('s_nop 0')
    for r in range(8): a(f'v_mul_f32 v{O+r}, v97, v{O+r}')
    for q in range(4): a(f'v_cvt_pk_bf16_f32 v{100+q}, v{O+2*q}, v{O+2*q+1}')
    a('s_lshl_b32 s43, s42, 15')
    a('s_lshl_b32 s44, s40, 10')
    a('s_add_u32 s43, s43, s44')
    a(f's_add_u32 s43, s43, {WS_O}')
    a('buffer_store_dwordx4 v[100:103], v2, s[24:27], s43 offen')
    if fused:
        a('s_waitcnt vmcnt(0)')
        a(f's_branch L_{name}_endB')
    else:
        a(f's_branch L_{name}_fin')

    a.label(f'L_{name}_fnet')
    a(f's_setprio {FPRIO}')
    a('s_sub_u32 s35, s32, 8')
    srd(a, 8, 36, 0x800000)
    srd(a, 12, 38, 0x800000)
    for r in range(4,8): a(f'v_mov_b32 v{r}, 0')
    a(f'v_mov_b32 v8, {K2_CNT}')
    a('ds_write_b128 v8, v[4:7]')
    a('s_waitcnt lgkmcnt(0)')
    a('s_barrier')
    stamp(a,1)
    if 'b1b' in EXPT: a('s_barrier')
    if NOFNET:
        a('s_barrier')
        a(f's_branch L_{name}_fin')
    a('v_and_b32 v9, 31, v1')
    a('v_lshrrev_b32 v10, 5, v1')
    stamp(a,2)
    a('s_mov_b32 s60, 0')
    a('s_mov_b32 s61, 0')
    a('s_lshr_b32 s62, s35, 1')
    a('s_and_b32 s63, s35, 1')
    a('s_cmp_eq_u32 s62, 0')
    a('s_cselect_b32 s16, s8, s12')
    a('s_cselect_b32 s17, s9, s13')
    a('s_mov_b32 s18, 0x800000')
    a('s_mov_b32 s19, 0x20000')
    a.label(f'L_{name}_job')
    a('s_cmp_eq_u32 s60, 0')
    a(f's_cbranch_scc1 L_{name}_dojob')
    a('s_mov_b32 s16, s8')
    a('s_mov_b32 s17, s9')
    a('s_mov_b32 s62, 0')
    a.label(f'L_{name}_dojob')
    a('s_and_b32 s66, s40, 1')
    a('s_lshr_b32 s42, s40, 1')
    a('s_lshl_b32 s42, s42, 6')
    a('s_add_u32 s42, s42, s66')
    a('v_lshl_add_u32 v11, v9, 1, s42')
    a('v_mov_b32 v8, v11')
    a('v_lshlrev_b32 v11, 12, v11')
    a('v_lshl_add_u32 v11, v10, 4, v11')
    a('s_lshl_b32 s43, s66, 1')
    a('s_add_u32 s43, s43, s62')
    a(f's_mul_i32 s43, s43, {T_ARR}')
    a(f's_mul_i32 s44, s41, {T_ET}')
    a('s_add_u32 s43, s43, s44')
    a(f's_add_u32 s43, s43, {WS_T}')
    a(f's_add_u32 s67, s43, {32*1024}')
    a('s_lshl_b32 s45, s63, 4')
    a('s_lshl_b32 s46, s35, 3')
    a('s_cmp_eq_u32 s60, 0')
    a('s_cselect_b32 s49, s45, s46')
    a('s_lshl_b32 s45, s49, 10')
    a('s_add_u32 s43, s43, s45')
    a('s_lshl_b32 s45, s49, 5')
    ACCF=16
    for r in range(16): a(f'v_mov_b32 v{ACCF+r}, 0')
    SET=[32,96]
    a('s_cmp_eq_u32 s60, 0')
    a('s_cselect_b32 s58, 1, 0')
    a('s_and_b32 s59, s41, s58')
    def issue(setb, b):
        a(f's_xor_b32 s64, s59, {b}')
        a('s_lshl_b32 s65, s64, 8')
        a('s_add_u32 s65, s65, s45')
        a('s_lshl_b32 s64, s64, 13')
        a('s_add_u32 s64, s64, s43')
        for k in range(8):
            ra=setb+8*k
            a(f'buffer_load_dwordx4 v[{ra}:{ra+3}], v11, s[16:19], s65 offen offset:{k*32}')
            if k==4: a('s_add_u32 s64, s64, 4096')
            a(f'buffer_load_dwordx4 v[{ra+4}:{ra+7}], v2, s[24:27], s64 offen offset:{(k%4)*1024}')
    def mm(setb, first_wait):
        for k in range(8):
            ra=setb+8*k
            a(f's_waitcnt vmcnt({first_wait-2*k-2})')
            a(f'v_mfma_f32_32x32x16_bf16 v[{ACCF}:{ACCF+15}], v[{ra+4}:{ra+7}], v[{ra}:{ra+3}], v[{ACCF}:{ACCF+15}]')
    issue(SET[0],0)
    a('s_cmp_eq_u32 s61, 0')
    a(f's_cbranch_scc0 L_{name}_nob2')
    a('s_mov_b32 s61, 1')
    stamp(a,3)
    a('s_barrier')
    stamp(a,4)
    a.label(f'L_{name}_nob2')
    a('s_cmp_eq_u32 s62, s66')
    a('s_cselect_b32 s68, 1, 0')
    a('s_cmp_eq_u32 s60, 0')
    a('s_cselect_b32 s69, s63, 0')
    a('s_cmp_eq_u32 s35, 3')
    a('s_cselect_b32 s70, 1, 0')
    a('s_cmp_eq_u32 s60, 0')
    a('s_cselect_b32 s69, s69, s70')
    a('s_and_b32 s68, s68, s69')
    a('s_cmp_eq_u32 s60, 0')
    a(f's_cbranch_scc0 L_{name}_short')
    issue(SET[1],1)
    mm(SET[0],32)
    mm(SET[1],16)
    a(f's_branch L_{name}_mmd')
    a.label(f'L_{name}_short')
    mm(SET[0],16)
    a.label(f'L_{name}_mmd')
    a('s_cmp_eq_u32 s68, 1')
    a(f's_cbranch_scc0 L_{name}_nox')
    a('s_mov_b32 s45, 1024')
    a(f'buffer_load_dwordx4 v[32:35], v11, s[16:19], s45 offen')
    a(f'buffer_load_dwordx4 v[36:39], v2, s[24:27], s67 offen')
    a('s_waitcnt vmcnt(0)')
    a(f'v_mfma_f32_32x32x16_bf16 v[{ACCF}:{ACCF+15}], v[36:39], v[32:35], v[{ACCF}:{ACCF+15}]')
    a.label(f'L_{name}_nox')
    a('s_nop 15')
    a('s_cmp_eq_u32 s60, 0')
    a(f's_cbranch_scc1 L_{name}_nospin')
    a(f'v_mov_b32 v12, {K2_CNT+8}')
    a.label(f'L_{name}_spin')
    a('ds_read_b32 v13, v12')
    a('s_waitcnt lgkmcnt(0)')
    a('v_readfirstlane_b32 s47, v13')
    a('s_nop 3')
    a('s_cmp_eq_u32 s47, 0')
    a(f's_cbranch_scc0 L_{name}_nospin')
    a('s_sleep 2')
    a(f's_branch L_{name}_spin')
    a.label(f'L_{name}_nospin')
    a('s_lshl_b32 s45, s35, 12')
    a(f's_add_u32 s45, s45, {K2_SUM}')
    a('v_add_u32 v12, s45, v2')
    for g in range(4): a(f'ds_write_b128 v12, v[{ACCF+4*g}:{ACCF+4*g+3}] offset:{g*1024}')
    stamp(a,5)
    a('s_waitcnt lgkmcnt(0)')
    a('s_lshl_b32 s45, s60, 2')
    a(f's_add_u32 s45, s45, {K2_CNT}')
    a('v_mov_b32 v12, s45')
    a('v_mov_b32 v13, 1')
    a('s_mov_b64 exec, 1')
    a('ds_add_rtn_u32 v14, v12, v13')
    a('s_waitcnt lgkmcnt(0)')
    a('s_mov_b64 exec, -1')
    a('v_readfirstlane_b32 s47, v14')
    a('s_nop 3')
    a('s_cmp_eq_u32 s47, 3')
    a(f's_cbranch_scc0 L_{name}_nextjob')
    a(f'v_add_u32 v12, {K2_SUM}, v2')
    for g in range(4): a(f'ds_read_b128 v[{32+4*g}:{35+4*g}], v12 offset:{g*1024}')
    for g in range(4): a(f'ds_read_b128 v[{80+4*g}:{83+4*g}], v12 offset:{4096+g*1024}')
    for g in range(4): a(f'ds_read_b128 v[{48+4*g}:{51+4*g}], v12 offset:{8192+g*1024}')
    a('s_waitcnt lgkmcnt(8)')
    for g in range(4): a(f'ds_read_b128 v[{96+4*g}:{99+4*g}], v12 offset:{12288+g*1024}')
    a('s_waitcnt lgkmcnt(0)')
    a(f'v_mov_b32 v12, {K2_CNT+8}')
    a('v_mov_b32 v13, 1')
    a('ds_write_b32 v12, v13')
    for r in range(16): a(f'v_add_f32 v{48+r}, v{48+r}, v{96+r}')
    for r in range(16): a(f'v_add_f32 v{32+r}, v{32+r}, v{80+r}')
    a('s_cmp_eq_u32 s60, 0')
    a(f's_cbranch_scc1 L_{name}_haveq')
    for r in range(16):
        a(f'v_add_f32 v{32+r}, v{32+r}, v{48+r}')
        a(f'v_mov_b32 v{48+r}, 0')
    a.label(f'L_{name}_haveq')
    for r in range(16):
        a(f'v_sub_f32 v{64+r}, v{32+r}, v{48+r}')
        a(f'v_add_f32 v{32+r}, v{32+r}, v{48+r}')
    for q in range(8):
        a(f'v_cvt_pk_bf16_f32 v{80+q}, v{64+2*q}, v{64+2*q+1}')
        a(f'v_cvt_pk_bf16_f32 v{88+q}, v{32+2*q}, v{32+2*q+1}')
    a(f'v_mul_u32_u24 v13, {YQ_PITCH}, v8')
    a('v_lshl_add_u32 v13, v10, 3, v13')
    a('s_lshl_b32 s42, s41, 6')
    a(f's_add_u32 s42, s42, {WS_Y}')
    a(f's_add_u32 s43, s42, 0x100000')
    for b in range(4):
        a(f'buffer_store_dwordx2 v[{80+2*b}:{81+2*b}], v13, s[24:27], s42 offen offset:{b*16} sc1')
        a(f'buffer_store_dwordx2 v[{88+2*b}:{89+2*b}], v13, s[24:27], s43 offen offset:{b*16} sc1')
    if fused:
        a('s_waitcnt vmcnt(0)')
        a('v_lshlrev_b32 v12, 7, v1')
        a(f'v_add_u32 v12, {WS_FLAG+4}, v12')
        a('v_mov_b32 v13, 1')
        a('s_mov_b64 exec, 0xff')
        a('global_atomic_add v12, v13, s[24:25] sc1')
        a('s_mov_b64 exec, -1')
    a.label(f'L_{name}_nextjob')
    a('s_add_u32 s60, s60, 1')
    a('s_cmp_eq_u32 s60, 1')
    a(f's_cbranch_scc0 L_{name}_fin')
    a('s_cmp_ge_u32 s2, 224')
    a(f's_cbranch_scc1 L_{name}_edgec')
    a('s_sub_u32 s42, s2, 192')
    a('s_cmp_lt_u32 s42, 9')
    a(f's_cbranch_scc0 L_{name}_fin')
    a('s_mov_b32 s40, 32')
    a('s_mov_b32 s41, s42')
    a(f's_branch L_{name}_job')
    a.label(f'L_{name}_edgec')
    a('s_mov_b32 s41, 8')
    a(f's_branch L_{name}_job')
    a.label(f'L_{name}_fin')
    if fused:
        a('s_setprio 0')
        srd(a, 8, 56, 0x80000)
        a('v_lshrrev_b32 v3, 3, v1')
        a('v_bfe_u32 v4, v1, 4, 1')
        a('v_lshlrev_b32 v4, 2, v4')
        a('v_and_b32 v5, 7, v1')
        a('v_xor_b32 v4, v4, v5')
        a('v_lshlrev_b32 v4, 4, v4')
        a('v_lshl_add_u32 v3, v3, 10, v4')
        a('s_lshl_b32 s45, s35, 17')
        a('s_lshr_b32 s48, s2, 5')
        a('s_lshl_b32 s48, s48, 7')
        a('s_add_u32 s45, s45, s48')
        for i in range(16):
            a(f's_add_u32 s49, s45, {i*8192}')
            a(f'buffer_load_dwordx4 v[{32+4*i}:{35+4*i}], v3, s[8:11], s49 offen')
        a('s_lshl_b32 s45, s35, 14')
        a('v_add_u32 v4, s45, v2')
        a('s_waitcnt vmcnt(0)')
        a('s_barrier')
        for i in range(16): a(f'ds_write_b128 v4, v[{32+4*i}:{35+4*i}] offset:{i*1024}')
        a('s_waitcnt lgkmcnt(0)')
        a('s_barrier')
        stamp_flush(a, 6, 24, 32, 12, 1, vtmp=104, extra=78)
        a(f's_branch L_{name}_end')
        a.label(f'L_{name}_endB')
        a('s_setprio 0')
        a('s_barrier')
        stamp_flush(a, 6, 24, 32, 12, 1, vtmp=104, extra=78)
        if STAMPS: a('s_mov_b64 exec, -1')
        a('s_cmp_ge_u32 s32, 4')
        a(f's_cbranch_scc1 L_{name}_w47')
        phase_c(a, name)
        a(f's_branch L_{name}_end')
        a.label(f'L_{name}_w47')
        a('s_barrier')
    else:
        stamp_flush(a, 6, 24, 32, 12, 1, vtmp=104, extra=78)
    a.label(f'L_{name}_end')
    a('s_endpgm')
    return 168


K3_X=65536
K3_LDS=K3_X+16384
def gen_k3(a, name):
    a.stflag=''
    kernel_header(a, name)
    a('s_cmp_ge_u32 s2, 256')
    a(f's_cbranch_scc1 L_{name}_end')
    stamp(a,0)
    a('s_load_dwordx2 s[46:47], s[0:1], 88')
    a('v_lshrrev_b32 v2, 6, v0')
    a('v_and_b32 v1, 63, v0')
    a('v_readfirstlane_b32 s32, v2')
    a('v_lshlrev_b32 v2, 4, v1')
    a('s_and_b32 s33, s2, 7')
    a('s_lshr_b32 s34, s2, 3')
    a('s_and_b32 s35, s34, 3')
    a('s_lshl_b32 s40, s33, 2')
    a('s_add_u32 s40, s40, s35')
    a('s_lshr_b32 s41, s2, 5')
    a('s_and_b32 s42, s32, 1')
    a('s_lshr_b32 s43, s32, 1')
    a('s_lshl_b32 s44, s40, 1')
    a('s_add_u32 s44, s44, s42')
    a('s_add_u32 s50, s41, s35')
    a('s_and_b32 s50, s50, 3')
    a('v_lshrrev_b32 v3, 3, v1')
    a('v_bfe_u32 v4, v1, 4, 1')
    a('v_lshlrev_b32 v4, 2, v4')
    a('v_and_b32 v5, 7, v1')
    a('v_xor_b32 v4, v4, v5')
    a('v_lshlrev_b32 v4, 4, v4')
    a('v_lshl_add_u32 v3, v3, 10, v4')
    a('s_lshl_b32 s45, s43, 8')
    a('s_lshl_b32 s48, s42, 5')
    a('s_add_u32 s45, s45, s48')
    a('s_lshl_b32 s48, s41, 7')
    a('s_lshl_b32 s51, s44, 15')
    a('s_lshl_b32 s52, s43, 14')
    a('s_add_u32 s51, s51, s52')
    a(f's_add_u32 s51, s51, {WS_O}')
    a('s_waitcnt lgkmcnt(0)')
    srd(a, 8, 36, 0x80000)
    srd(a, 24, 46, WS_SIZE)
    OF=32
    def issue(st):
        a(f's_add_u32 s53, s50, {st}')
        a('s_and_b32 s53, s53, 3')
        a('s_lshl_b32 s54, s53, 6')
        a('s_add_u32 s54, s54, s45')
        a('s_lshl_b32 s55, s54, 7')
        a('s_lshl_b32 s56, s54, 10')
        a('s_add_u32 s56, s56, s48')
        for i in range(4):
            a(f's_add_u32 m0, s55, {i*1024}')
            a(f's_add_u32 s57, s56, {i*8192}')
            a('buffer_load_dwordx4 v3, s[8:11], s57 offen lds')
        a('s_lshl_b32 s56, s53, 12')
        a('s_add_u32 s56, s56, s51')
        for i in range(4):
            a(f'buffer_load_dwordx4 v[{OF+16*st+4*i}:{OF+16*st+4*i+3}], v2, s[24:27], s56 offen offset:{i*1024}')
    issue(0); issue(1)
    srd(a, 12, 38, 0x200000)
    a('v_and_b32 v8, 31, v1')
    a('v_lshrrev_b32 v9, 5, v1')
    a('s_lshl_b32 s58, s44, 5')
    a('v_add_u32 v10, s58, v8')
    a('v_and_b32 v12, 511, v10')
    a('s_lshr_b32 s58, s44, 4')
    a('s_cmp_eq_u32 s58, 0')
    a('s_cselect_b32 s59, 0, 1024')
    a('s_cmp_eq_u32 s58, 1')
    a('s_cselect_b32 s59, 2048, s59')
    a('s_and_b32 s61, s58, 1')
    a('s_cmp_eq_u32 s58, 1')
    a('s_cselect_b32 s62, 1, 0')
    a('s_cmp_eq_u32 s58, 2')
    a('s_cselect_b32 s62, 1, s62')
    a('v_add_u32 v10, s59, v12')
    a('v_sub_u32 v11, s59, v12')
    a('s_cmp_eq_u32 s62, 1')
    a('s_cselect_b64 vcc, -1, 0')
    a('v_cndmask_b32 v10, v10, v11, vcc')
    a('s_cmp_lt_u32 s58, 2')
    a('s_cselect_b64 vcc, -1, 0')
    a('v_sub_u32 v11, 1024, v12')
    a('v_cndmask_b32 v13, v11, v12, vcc')
    a('s_lshl_b32 s61, s61, 20')
    a('v_mov_b32 v106, s61')
    a('s_lshr_b32 s62, s58, 1')
    a('s_lshl_b32 s63, s62, 10')
    a('s_add_u32 s63, s63, 512')
    a('s_lshl_b32 s62, s62, 20')
    a('s_and_b32 s59, s58, 1')
    a('s_cmp_eq_u32 s59, 1')
    a('s_cselect_b64 s[64:65], -1, 0')
    a('v_cmp_eq_u32 vcc, 0, v12')
    a('s_nop 1')
    a('s_and_b64 vcc, vcc, s[64:65]')
    a('v_mov_b32 v11, s63')
    a('v_cndmask_b32 v10, v10, v11, vcc')
    a('v_mov_b32 v11, 512')
    a('v_cndmask_b32 v13, v13, v11, vcc')
    a('v_mov_b32 v11, s62')
    a('v_cndmask_b32 v106, v106, v11, vcc')
    a('v_lshlrev_b32 v11, 10, v10')
    a('v_lshl_add_u32 v11, v9, 3, v11')
    a('s_lshl_b32 s58, s41, 7')
    a('s_lshl_b32 s59, s43, 6')
    a('s_add_u32 s58, s58, s59')
    a('v_add_u32 v11, s58, v11')
    a(f'v_mul_u32_u24 v13, {YQ_PITCH}, v13')
    a('v_lshlrev_b32 v12, 3, v9')
    a('s_cmp_lt_u32 s41, 4')
    a(f's_cbranch_scc0 L_{name}_ym')
    a('v_add_u32 v13, v13, v12')
    a('v_add_u32 v13, s58, v13')
    a(f's_branch L_{name}_ymd')
    a.label(f'L_{name}_ym')
    a('v_sub_u32 v13, v13, v12')
    a('s_sub_u32 s59, 1018-48, s58')
    a('v_add_u32 v13, s59, v13')
    a.label(f'L_{name}_ymd')
    a('s_lshr_b32 s59, s41, 2')
    a('s_lshl_b32 s59, s59, 20')
    a('v_xor_b32 v106, s59, v106')
    a('v_add_u32 v13, v13, v106')
    a(f's_mov_b32 s60, {WS_Y}')
    a('v_lshlrev_b32 v105, 2, v10')
    a('v_bfe_u32 v5, v1, 2, 2')
    a('v_lshl_add_u32 v6, v9, 2, v5')
    a('v_lshlrev_b32 v6, 7, v6')
    a('v_bfe_u32 v7, v1, 3, 1')
    a('v_lshlrev_b32 v7, 6, v7')
    a('v_bfe_u32 v12, v1, 4, 1')
    a('v_lshl_add_u32 v6, v12, 5, v6')
    a('v_bfe_u32 v12, v1, 1, 1')
    a('v_lshl_add_u32 v6, v12, 4, v6')
    a('v_and_b32 v12, 1, v1')
    a('v_lshl_add_u32 v6, v12, 3, v6')
    a('v_add_u32 v14, v6, v7')
    a('s_lshl_b32 s58, s43, 15')
    a('v_add_u32 v14, s58, v14')
    ACC=[16,112]
    FW=[128,136]
    stamp(a,1)
    first=True
    waits={0:8, 1:8, 2:13, 3:5}
    for st in range(4):
        a(f's_add_u32 s53, s50, {st}')
        a('s_and_b32 s53, s53, 3')
        a('s_lshl_b32 s53, s53, 13')
        a('v_add_u32 v6, s53, v14')
        a('v_xor_b32 v7, 64, v6')
        a(f's_waitcnt vmcnt({waits[st]})')
        a('s_barrier')
        if st==0: stamp(a,2)
        def reads(i):
            s_=i%2
            for j in range(2):
                a(f'ds_read_b64_tr_b16 v[{FW[s_]+4*j}:{FW[s_]+4*j+1}], v{6+j} offset:{i*2048}')
                a(f'ds_read_b64_tr_b16 v[{FW[s_]+4*j+2}:{FW[s_]+4*j+3}], v{6+j} offset:{i*2048+1024}')
        reads(0)
        if st==0: issue(2)
        if st==1:
            issue(3)
            for b in range(4): a(f'buffer_load_dwordx2 v[{96+2*b}:{97+2*b}], v13, s[24:27], s60 offen offset:{b*16}')
            a(f's_mov_b32 s59, {WS_G}')
            a('buffer_load_dword v104, v105, s[24:27], s59 offen')
        for i in range(4):
            if i<3: reads(i+1); a('s_waitcnt lgkmcnt(4)')
            else: a('s_waitcnt lgkmcnt(0)')
            s_=i%2
            for j in range(2):
                c = '0' if first else f'v[{ACC[j]}:{ACC[j]+15}]'
                a(f'v_mfma_f32_32x32x16_bf16 v[{ACC[j]}:{ACC[j]+15}], v[{FW[s_]+4*j}:{FW[s_]+4*j+3}], v[{OF+16*st+4*i}:{OF+16*st+4*i+3}], {c}')
            first=False
    stamp(a,3)
    a('s_lshl_b32 s48, s42, 13')
    a('s_xor_b32 s49, s43, 1')
    a('s_lshl_b32 s49, s49, 12')
    a('s_add_u32 s49, s49, s48')
    a(f's_add_u32 s49, s49, {K3_X}')
    a('v_add_u32 v5, s49, v2')
    a('s_lshl_b32 s49, s43, 12')
    a('s_add_u32 s49, s49, s48')
    a(f's_add_u32 s49, s49, {K3_X}')
    a('v_add_u32 v6, s49, v2')
    a('s_nop 7')
    a('s_cmp_eq_u32 s43, 0')
    a(f's_cbranch_scc0 L_{name}_kw1')
    for g in range(4): a(f'ds_write_b128 v5, v[{ACC[1]+4*g}:{ACC[1]+4*g+3}] offset:{g*1024}')
    a(f's_branch L_{name}_x')
    a.label(f'L_{name}_kw1')
    for g in range(4): a(f'ds_write_b128 v5, v[{ACC[0]+4*g}:{ACC[0]+4*g+3}] offset:{g*1024}')
    a('s_nop 1')
    for r in range(16): a(f'v_mov_b32 v{ACC[0]+r}, v{ACC[1]+r}')
    a.label(f'L_{name}_x')
    a('s_waitcnt vmcnt(0) lgkmcnt(0)')
    a('s_barrier')
    for g in range(4): a(f'ds_read_b128 v[{32+4*g}:{35+4*g}], v6 offset:{g*1024}')
    a('v_sub_f32 v105, 1.0, v104')
    a('s_cmp_lt_u32 s41, 4')
    a(f's_cbranch_scc0 L_{name}_um')
    for b in range(4):
        for q in range(2):
            src=96+2*b+q
            a(f'v_lshlrev_b32 v{48+4*b+2*q}, 16, v{src}')
            a(f'v_and_b32 v{48+4*b+2*q+1}, 0xffff0000, v{src}')
    a(f's_branch L_{name}_umd')
    a.label(f'L_{name}_um')
    for b in range(4):
        g=3-b
        d0=96+2*b; d1=97+2*b
        a(f'v_and_b32 v{48+4*g+0}, 0xffff0000, v{d1}')
        a(f'v_lshlrev_b32 v{48+4*g+1}, 16, v{d1}')
        a(f'v_and_b32 v{48+4*g+2}, 0xffff0000, v{d0}')
        a(f'v_lshlrev_b32 v{48+4*g+3}, 16, v{d0}')
    a.label(f'L_{name}_umd')
    for r in range(16): a(f'v_mul_f32 v{48+r}, v104, v{48+r}')
    a('s_waitcnt lgkmcnt(0)')
    for r in range(16):
        a(f'v_add_f32 v{16+r}, v{16+r}, v{32+r}')
    for r in range(16):
        a(f'v_fmac_f32 v{48+r}, v105, v{16+r}')
    for b in range(4):
        a(f'v_cvt_pk_bf16_f32 v{64+2*b}, v{48+4*b}, v{48+4*b+1}')
        a(f'v_cvt_pk_bf16_f32 v{65+2*b}, v{48+4*b+2}, v{48+4*b+3}')
    for b in range(4):
        a(f'buffer_store_dwordx2 v[{64+2*b}:{65+2*b}], v11, s[12:15], 0 offen offset:{b*16}')
    stamp_flush(a, 4, 24, 32, 4, 2, vtmp=106)
    a.label(f'L_{name}_end')
    a('s_endpgm')
    return 144

def build(kernels):
    a=Asm()
    hdr = """; Kernarg layout (96 bytes): A_x, dft_seq_re, dft_seq_im, dft_hid_re, dft_hid_im, B_x, wqkv, wo, gate_w, out, debug, ws
"""
    descs=''
    body=Asm()
    for (name, fn, grid, block, lds) in kernels:
        hdr += f'; @launch kernel={name} grid=({grid},1,1) block=({block},1,1) lds={lds}\n'
    body.raw('.amdgcn_target "amdgcn-amd-amdhsa--gfx950"')
    body.raw('.text')
    for (name, fn, grid, block, lds) in kernels:
        v=fn(body,name)
        descs += kernel_desc(name, v)
    return hdr + body.text() + '.section .rodata,"a"\n' + descs

if __name__=='__main__':
    which = sys.argv[1] if len(sys.argv)>1 else 'k1'
    ks=[]
    ks.append(('k1_qkv_kernel', gen_k1, 256, 512, K1_LDS))
    if which in ('k2','all'): ks.append(('k2_attn_kernel', gen_k2, 256, 768, K2_LDS))
    if which=='f23': ks.append(('k2_attn_kernel', gen_k23, 256, 768, K2_LDS))
    if which=='all': ks.append(('k3_out_kernel', gen_k3, 256, 256, K3_LDS))
    txt=build(ks)
    out = sys.argv[2] if len(sys.argv)>2 else 'out.s'
    open(out,'w').write(txt)
```

```python
import sys, os
NAME='gated_mix__spectral_fnet__mha_block__prompt'
WS_Q=0; WS_KV=0x200000; WS_O=0x600000; WS_Y=0x800000; WS_T1=0xA00000; WS_T2=0xB00000; WS_G=0xC00000
WS_FLAG=0xC80000
WS_SIZE=0xD00000
YQ_PITCH=576; YQ_SZ=0x98000
T1_ET=65*1024; T2_ET=64*1024
WS_T=0xA00000; T_ET=33*1024; T_ARR=0x50000
C_SCALE=0.25*1.4426950408889634
import struct
def f2u(x): return struct.unpack('<I',struct.pack('<f',x))[0]

STAMPS = os.environ.get('STAMPS','0')=='1'
NOFNET = os.environ.get('NOFNET','0')=='1'
NOPRIO = os.environ.get('NOPRIO','0')=='1'
FAKEA = os.environ.get('FAKEA','0')=='1'
EXPT = os.environ.get('EXPT','')
FPRIO = int(os.environ.get('FPRIO','3'))
PR = [int(x) for x in os.environ.get('PR','9,10,15,63').split(',')]
class Asm:
    def __init__(self): self.L=[]; self.noload=False; self.stflag=''
    def __call__(self, s):
        for line in s.strip('\n').split('\n'):
            if self.noload and line.strip().endswith(' lds'): continue
            if NOPRIO and line.strip().startswith('s_setprio'): continue
            if line.strip().startswith('buffer_store_dwordx4') and self.stflag:
                if self.stflag=='none': continue
                line = line.strip()+' '+self.stflag
            self.L.append('    '+line.strip())
    def label(self, s): self.L.append(s+':')
    def raw(self, s): self.L.append(s)
    def text(self): return '\n'.join(self.L)+'\n'

def srd(a, d, lo, size):
    a(f's_mov_b32 s{d}, s{lo}')
    a(f's_mov_b32 s{d+1}, s{lo+1}')
    a(f's_mov_b32 s{d+2}, {hex(size)}')
    a(f's_mov_b32 s{d+3}, 0x20000')

def pi_perm(a, dst, src, tmp):
    a(f'v_and_b32 v{dst}, 0x13, v{src}')
    a(f'v_and_b32 v{tmp}, 4, v{src}')
    a(f'v_lshl_or_b32 v{dst}, v{tmp}, 1, v{dst}')
    a(f'v_and_b32 v{tmp}, 8, v{src}')
    a(f'v_lshrrev_b32 v{tmp}, 1, v{tmp}')
    a(f'v_or_b32 v{dst}, v{dst}, v{tmp}')

WS_STAMP=0x1000000
def stamp(a, i):
    if STAMPS:
        a(f's_memrealtime s[{80+2*i}:{81+2*i}]')
def stamp_flush(a, n, wsreg, widreg, wpw, kidx, vtmp=100, extra=None):
    if not STAMPS: return
    a('s_waitcnt vmcnt(0) lgkmcnt(0)')
    a(f's_memrealtime s[{80+2*n}:{81+2*n}]')
    a('s_waitcnt lgkmcnt(0)')
    a(f's_mul_i32 s98, s2, {wpw}')
    a(f's_add_u32 s98, s98, s{widreg}')
    a('s_lshl_b32 s98, s98, 5')
    a(f's_add_u32 s98, s98, {WS_STAMP+kidx*0x40000}')
    a(f's_mov_b32 s{wsreg+2}, 0x2000000')
    a('s_mov_b64 exec, 1')
    a(f'v_mov_b32 v{vtmp+1}, 0')
    for i in range(n+1):
        a(f'v_mov_b32 v{vtmp}, s{80+2*i}')
        a(f'buffer_store_dword v{vtmp}, v{vtmp+1}, s[{wsreg}:{wsreg+3}], s98 offen offset:{4*i}')
        a('s_nop 1')
    if extra is not None:
        a(f'v_mov_b32 v{vtmp}, s{extra}')
        a(f'buffer_store_dword v{vtmp}, v{vtmp+1}, s[{wsreg}:{wsreg+3}], s98 offen offset:28')

def kernel_header(a, name):
    a.raw(f'.globl {name}')
    a.raw('.p2align 8')
    a.raw(f'.type {name},@function')
    a.label(name)

def kernel_desc(name, vgpr, sgpr=102):
    acc = (vgpr+3)//4*4
    return f""".p2align 6
.amdhsa_kernel {name}
  .amdhsa_next_free_vgpr {vgpr}
  .amdhsa_next_free_sgpr {sgpr}
  .amdhsa_accum_offset {acc}
  .amdhsa_group_segment_fixed_size 0
  .amdhsa_kernarg_size 96
  .amdhsa_user_sgpr_count 2
  .amdhsa_user_sgpr_kernarg_segment_ptr 1
  .amdhsa_system_sgpr_workgroup_id_x 1
.end_amdhsa_kernel
"""

K1_SLOT=32768
K1_NS=4
K1_X=0; K1_WQK=16384; K1_WV=24576; K1_WD=28672
K1_LDS=163840

def gen_k1(a, name):
    WR=131072
    a.noload = 'noload' in EXPT
    a.stflag = 'sc1' if 'st_sc1' in EXPT else 'nt' if 'st_nt' in EXPT else 'none' if 'st_none' in EXPT else 'sc0 sc1' if 'st_sc01' in EXPT else '' if 'st_plain' in EXPT else 'sc1'
    kernel_header(a, name)
    a('s_cmp_ge_u32 s2, 256')
    a(f's_cbranch_scc1 L_{name}_end')
    stamp(a,0)
    a('s_load_dwordx2 s[4:5], s[0:1], 0')
    a('s_load_dwordx4 s[36:39], s[0:1], 24')
    a('s_load_dwordx2 s[42:43], s[0:1], 48')
    a('s_load_dwordx2 s[44:45], s[0:1], 64')
    a('s_load_dwordx2 s[46:47], s[0:1], 88')
    a('v_lshrrev_b32 v2, 6, v0')
    a('v_and_b32 v1, 63, v0')
    a('v_readfirstlane_b32 s32, v2')
    a('s_and_b32 s33, s2, 7')
    a('s_lshr_b32 s34, s2, 3')
    a('s_lshr_b32 s54, s33, 1')
    a('s_lshl_b32 s54, s54, 2')
    a('s_and_b32 s55, s34, 3')
    a('s_add_u32 s54, s54, s55')
    a('s_and_b32 s55, s33, 1')
    a('s_lshl_b32 s55, s55, 3')
    a('s_lshr_b32 s56, s34, 2')
    a('s_add_u32 s55, s55, s56')
    a('s_cmp_lt_u32 s32, 4')
    a(f's_cbranch_scc1 L_{name}_comp')
    a('s_sub_u32 s35, s32, 4')
    a('v_lshrrev_b32 v2, 3, v1')
    a('v_and_b32 v3, 7, v1')
    a('v_lshrrev_b32 v4, 4, v1')
    a('v_xor_b32 v5, v3, v4')
    a('v_lshlrev_b32 v5, 4, v5')
    a('s_and_b32 s57, s35, 1')
    a('s_lshl_b32 s56, s54, 5')
    a('v_add_u32 v11, s56, v2')
    a('s_lshr_b32 s58, s35, 1')
    a('s_lshl_b32 s58, s58, 10')
    a('s_cmp_eq_u32 s35, 0')
    a(f's_cbranch_scc1 L_{name}_plus')
    a('s_cmp_eq_u32 s35, 3')
    a(f's_cbranch_scc1 L_{name}_plus')
    a('s_sub_u32 s59, 2048, s58')
    a('v_sub_u32 v12, s59, v11')
    a('v_lshl_add_u32 v16, v12, 10, v5')
    a('v_subrev_u32 v17, 8192, v16')
    a('v_subrev_u32 v18, 16384, v16')
    a('v_subrev_u32 v19, 24576, v16')
    a(f's_branch L_{name}_mird')
    a.label(f'L_{name}_plus')
    a('v_add_u32 v12, s58, v11')
    a('v_lshl_add_u32 v16, v12, 10, v5')
    a('v_add_u32 v17, 8192, v16')
    a('v_add_u32 v18, 16384, v16')
    a('v_add_u32 v19, 24576, v16')
    a.label(f'L_{name}_mird')
    a('s_add_u32 s58, s58, 512')
    a('v_mov_b32 v13, s58')
    a('v_lshl_add_u32 v13, v13, 10, v5')
    a('v_cmp_eq_u32 vcc, 0, v11')
    a('s_cmp_eq_u32 s57, 1')
    a('s_cselect_b64 s[58:59], -1, 0')
    a('s_and_b64 vcc, vcc, s[58:59]')
    a('v_cndmask_b32 v16, v16, v13, vcc')
    a('v_xor_b32 v17, 64, v17')
    a('v_xor_b32 v19, 64, v19')
    a('v_bfe_u32 v6, v1, 4, 1')
    a('v_lshlrev_b32 v6, 2, v6')
    a('v_xor_b32 v6, v6, v3')
    a('v_lshlrev_b32 v6, 4, v6')
    a('v_mul_u32_u24 v7, 3072, v2')
    a('v_add_u32 v6, v6, v7')
    a('s_lshl_b32 s58, s55, 7')
    a('v_add_u32 v20, s58, v6')
    a('v_add_u32 v21, 8*3072, v20')
    a('v_lshrrev_b32 v6, 2, v1')
    a('v_mul_u32_u24 v6, 3072, v6')
    a('v_and_b32 v7, 3, v1')
    a('v_lshl_add_u32 v6, v7, 4, v6')
    a('s_lshl_b32 s58, s55, 6')
    a('s_add_u32 s58, s58, 2048')
    a('v_add_u32 v22, s58, v6')
    a('s_lshl_b32 s56, s55, 4')
    a('s_lshl_b32 s58, s57, 3')
    a('s_add_u32 s56, s56, s58')
    a('v_add_u32 v11, s56, v2')
    a('v_lshl_add_u32 v23, v11, 10, v5')
    a('s_lshl_b32 s58, s57, 6')
    a('v_xor_b32 v23, s58, v23')
    a('s_mul_i32 s71, s35, 16*3072')
    if 'norot' in EXPT: a('s_mov_b32 s70, 0')
    else:
        a('s_lshr_b32 s70, s34, 2')
        a('s_and_b32 s72, s34, 3')
        a('s_lshl_b32 s72, s72, 1')
        a('s_add_u32 s70, s70, s72')
        a('s_and_b32 s70, s70, 7')
    a('s_lshl_b32 s56, s70, 7')
    a(f's_mul_i32 s57, s70, {64*3072}')
    a('s_add_u32 s57, s57, s71')
    a('s_lshl_b32 s61, s35, 12')
    a('s_lshl_b32 s62, s35, 11')
    a('s_lshl_b32 s63, s35, 10')
    a('s_waitcnt lgkmcnt(0)')
    if STAMPS:
        a('s_memrealtime s[76:77]')
        a('s_waitcnt lgkmcnt(0)')
        a('s_sub_u32 s78, s76, s80')
    srd(a, 8, 4, 0x200000)
    srd(a, 16, 42, 0x180000)
    a('s_cmp_lt_u32 s35, 2')
    a('s_cselect_b32 s20, s36, s38')
    a('s_cselect_b32 s21, s37, s39')
    a('s_mov_b32 s22, 0x80000')
    a('s_mov_b32 s23, 0x20000')
    a('s_mov_b32 s50, 0')
    a('s_mov_b32 s72, 0')
    a('s_mov_b32 s73, s56')
    def issue_x():
        a('s_lshl_b32 s65, s72, 14')
        a('s_add_u32 s65, s65, s61')
        for i in range(4):
            a(f's_add_u32 m0, s65, {i*1024}')
            a('s_nop 0')
            a(f'buffer_load_dwordx4 v{16+i}, s[8:11], s73 offen lds')
        a('s_add_u32 s73, s73, 128')
        a('s_and_b32 s73, s73, 1023')
        a('s_add_u32 s72, s72, 1')
    def adv():
        a('s_add_u32 s70, s70, 1')
        a('s_and_b32 s70, s70, 7')
        a('s_lshl_b32 s56, s70, 7')
        a(f's_mul_i32 s57, s70, {64*3072}')
        a('s_add_u32 s57, s57, s71')
        a('s_add_u32 s50, s50, 1')
    def slot():
        a('s_and_b32 s52, s50, 3')
        a('s_lshl_b32 s52, s52, 13')
        a(f's_add_u32 s52, s52, {WR}')
    def issue_w1():
        slot()
        a('s_add_u32 s65, s52, s62')
        for i in range(2):
            a(f's_add_u32 m0, s65, {i*1024}')
            a('s_nop 0')
            a(f'buffer_load_dwordx4 v{20+i}, s[16:19], s57 offen lds')
        adv()
    issue_x(); issue_w1(); issue_x(); issue_w1(); issue_x()
    stamp(a,1)
    a('s_waitcnt vmcnt(10)')
    a('s_barrier')
    stamp(a,2)
    a.label(f'L_{name}_l1')
    issue_w1(); issue_x()
    a('s_waitcnt vmcnt(10)')
    a('s_barrier')
    a('s_cmp_lt_u32 s50, 7')
    a(f's_cbranch_scc1 L_{name}_l1')
    issue_w1()
    a('s_waitcnt vmcnt(6)')
    a('s_barrier')
    a.label(f'L_{name}_issue2')
    slot()
    a('s_add_u32 s65, s52, s63')
    a('s_mov_b32 m0, s65')
    a('s_nop 0')
    a(f'buffer_load_dwordx4 v22, s[16:19], s57 offen lds')
    a('s_add_u32 m0, s65, 4096')
    a('s_nop 0')
    a(f'buffer_load_dwordx4 v23, s[20:23], s56 offen lds')
    adv()
    a('s_cmp_eq_u32 s50, 16')
    a(f's_cbranch_scc1 L_{name}_ld16')
    a('s_waitcnt vmcnt(2)')
    a('s_barrier')
    a(f's_branch L_{name}_issue2')
    a.label(f'L_{name}_ld16')
    srd(a, 28, 44, 1024)
    a('s_lshl_b32 s48, s2, 3')
    a('s_lshl_b32 s49, s35, 1')
    a('s_add_u32 s48, s48, s49')
    a('s_lshl_b32 s49, s48, 10')
    a('v_lshlrev_b32 v12, 4, v1')
    a('buffer_load_dwordx4 v[24:27], v12, s[8:11], s49 offen')
    a('buffer_load_dwordx4 v[28:31], v12, s[8:11], s49 offen offset:1024')
    a('buffer_load_dwordx4 v[32:35], v12, s[28:31], 0 offen')
    a('s_waitcnt vmcnt(5)')
    a('s_barrier')
    a('s_waitcnt vmcnt(3)')
    a('s_barrier')
    stamp(a,3)
    a('s_barrier')
    srd(a, 24, 46, WS_SIZE)
    a('v_mov_b32 v16, 0'); a('v_mov_b32 v17, 0')
    a('s_waitcnt vmcnt(0)')
    for q in range(4):
        a(f'v_dot2_f32_bf16 v16, v{24+q}, v{32+q}, v16')
        a(f'v_dot2_f32_bf16 v17, v{28+q}, v{32+q}, v17')
    a('s_nop 2')
    def dpp(op):
        a('s_nop 0')
        a(f'v_add_f32_dpp v16, v16, v16 {op}')
        a(f'v_add_f32_dpp v17, v17, v17 {op}')
    for sh in (1,2,4,8): dpp(f'row_shr:{sh} row_mask:0xf bank_mask:0xf')
    dpp('row_bcast:15 row_mask:0xa bank_mask:0xf')
    dpp('row_bcast:31 row_mask:0xc bank_mask:0xf')
    for r in (16,17): a(f'v_mul_f32 v{r}, {hex(f2u(-1.4426950408889634))}, v{r}')
    for r in (16,17): a(f'v_exp_f32 v{r}, v{r}')
    a('s_nop 0')
    for r in (16,17): a(f'v_add_f32 v{r}, 1.0, v{r}')
    for r in (16,17): a(f'v_rcp_f32 v{r}, v{r}')
    a('s_lshl_b32 s49, s48, 2')
    a(f's_add_u32 s49, s49, {WS_G}')
    a('v_mov_b32 v18, 0')
    a('s_mov_b32 exec_lo, 0')
    a('s_mov_b32 exec_hi, 0x80000000')
    a('buffer_store_dwordx2 v[16:17], v18, s[24:27], s49 offen')
    a('s_mov_b64 exec, -1')
    if 'nopf' not in EXPT:
        a('s_cmp_lt_u32 s2, 16')
        a(f's_cbranch_scc0 L_{name}_nopf')
        a('s_cmp_eq_u32 s32, 7')
        a(f's_cbranch_scc0 L_{name}_nopf')
        a('s_getpc_b64 s[72:73]')
        a.label(f'L_{name}_pc')
        a(f's_add_u32 s72, s72, k2_attn_kernel-L_{name}_pc')
        a('s_addc_u32 s73, s73, 0')
        a('v_lshlrev_b32 v18, 4, v1')
        for i in range(6):
            a(f'global_load_dwordx4 v[{36+4*i}:{39+4*i}], v18, s[72:73]')
            a('v_add_u32 v18, 1024, v18')
        a('v_lshlrev_b32 v18, 4, v1')
        a('v_add_u32 v18, L_k2_attn_kernel_end-k2_attn_kernel-1024, v18')
        a('global_load_dwordx4 v[60:63], v18, s[72:73]')
        a.label(f'L_{name}_nopf')
    a('s_cmp_eq_u32 s2, 0')
    a(f's_cbranch_scc0 L_{name}_fin')
    a('s_cmp_eq_u32 s32, 4')
    a(f's_cbranch_scc0 L_{name}_fin')
    for r in range(20,24): a(f'v_mov_b32 v{r}, 0')
    a('v_lshlrev_b32 v18, 4, v1')
    a(f's_mov_b32 s49, {WS_FLAG}')
    a('buffer_store_dwordx4 v[20:23], v18, s[24:27], s49 offen')
    a(f's_branch L_{name}_fin')

    a.label(f'L_{name}_comp')
    a('s_lshr_b32 s35, s32, 1')
    a('s_and_b32 s40, s32, 1')
    a('v_and_b32 v8, 31, v1')
    a('v_lshrrev_b32 v9, 5, v1')
    pi_perm(a, 10, 8, 11)
    def frag_addr(dst0, rowreg, base_off, tmp):
        a(f'v_lshrrev_b32 v{tmp}, 1, v{rowreg}')
        a(f'v_and_b32 v{tmp}, 7, v{tmp}')
        a(f'v_xor_b32 v{tmp}, v{tmp}, v9')
        a(f'v_lshlrev_b32 v{tmp}, 4, v{tmp}')
        a(f'v_lshl_add_u32 v{dst0}, v{rowreg}, 7, v{tmp}')
        if base_off: a(f'v_add_u32 v{dst0}, {base_off}, v{dst0}')
        for ks in range(1,4): a(f'v_xor_b32 v{dst0+ks}, {ks*32}, v{dst0}')
    a('s_lshl_b32 s63, s35, 6')
    a('v_add_u32 v11, s63, v10')
    frag_addr(16, 11, 0, 15)
    a('v_bfe_u32 v11, v1, 2, 2')
    a('v_lshl_add_u32 v11, v9, 3, v11')
    a('v_bfe_u32 v12, v1, 4, 1')
    a('v_and_b32 v13, 3, v1')
    a('v_lshlrev_b32 v20, 7, v11')
    a('v_bfe_u32 v14, v1, 3, 1')
    a('v_xor_b32 v14, s40, v14')
    a('v_lshl_add_u32 v20, v14, 6, v20')
    a('v_lshl_add_u32 v20, v12, 5, v20')
    a('v_lshrrev_b32 v14, 1, v13')
    a('v_lshl_add_u32 v20, v14, 4, v20')
    a('v_and_b32 v14, 1, v13')
    a('v_lshl_add_u32 v20, v14, 3, v20')
    a('v_lshlrev_b32 v22, 6, v11')
    a('v_lshl_add_u32 v22, v12, 5, v22')
    a('v_lshl_add_u32 v22, v13, 3, v22')
    frag_addr(24, 8, 4096, 15)
    a('s_cmp_eq_u32 s55, 0')
    a('s_cselect_b32 s66, 0x10000, 0')
    a('s_mov_b32 s67, s66')
    a('v_mov_b32 v14, 0xbf803f80')
    A1=[32,48]; A2=[64,80]
    FS=[96,108,120,132]
    XA=28; WA=21; DA=4
    a('s_mov_b32 s50, 0')
    def mf(d,A,B,zero=False):
        c='0' if zero else f'v[{d}:{d+15}]'
        return f'v_mfma_f32_32x32x16_bf16 v[{d}:{d+15}], v[{A}:{A+3}], v[{B}:{B+3}], {c}'
    def setaddr(kind):
        L=[]
        L.append('s_and_b32 s52, s51, 7'); L.append('s_lshl_b32 s52, s52, 14')
        L.append('s_and_b32 s53, s51, 3'); L.append('s_lshl_b32 s53, s53, 13'); L.append(f's_add_u32 s53, s53, {WR}')
        for ks in range(4): L.append(f'v_add_u32 v{XA+ks}, s52, v{16+ks}')
        if kind=='QK': L.append(f'v_add_u32 v{WA}, s53, v20')
        elif kind=='V': L.append(f'v_add_u32 v{WA}, s53, v22')
        else:
            for ks in range(4): L.append(f'v_add_u32 v{DA+ks}, s53, v{24+ks}')
        return L
    def reads(kind, ks):
        F=FS[ks]
        L=[f'ds_read_b128 v[{F}:{F+3}], v{XA+ks}', f'ds_read_b128 v[{F+4}:{F+7}], v{XA+ks} offset:4096']
        if kind=='QK':
            L+= [f'ds_read_b64_tr_b16 v[{F+8}:{F+9}], v{WA} offset:{ks*2048}', f'ds_read_b64_tr_b16 v[{F+10}:{F+11}], v{WA} offset:{ks*2048+512}']
        elif kind=='V':
            L+= [f'ds_read_b64_tr_b16 v[{F+8}:{F+9}], v{WA} offset:{ks*1024}', f'ds_read_b64_tr_b16 v[{F+10}:{F+11}], v{WA} offset:{ks*1024+256}']
        else:
            L+= [f'ds_read_b128 v[{F+8}:{F+11}], v{DA+ks}']
        return L
    def nreads(kind): return 3 if kind=='F' else 4
    def mfmas(kind, ks, zero=False):
        F=FS[ks]
        if kind=='QK': return [], [mf(A1[t], F+8, F+4*t, zero) for t in range(2)]
        pre=[f'v_cndmask_b32 v{F+8+q}, v{F+8+q}, v14, s[66:67]' for q in range(4)] if kind=='F' else []
        return pre, [mf(A2[t], F+4*t, F+8, zero) for t in range(2)]
    def body(kind, nxt, zero=False, extra=None, last=False):
        extra=list(extra or [])
        ex_per = -(-len(extra)//8) if extra else 0
        def take():
            nonlocal extra
            t=extra[:ex_per]; extra=extra[ex_per:]; return t
        n=nreads(kind); nn=nreads(nxt) if nxt else 0
        for ks in range(4):
            cnt=0
            for d in (1,2):
                k2=ks+d
                if k2<4: cnt+=n
                elif nxt: cnt+=nn
            if ks==0: pass
            a(f's_waitcnt lgkmcnt({min(cnt,15)})')
            pre,mm=mfmas(kind,ks,zero and ks==0)
            if ks==0: rd=reads(kind,3)
            elif nxt: rd=reads(nxt,ks-1)
            else: rd=[]
            for x in pre: a(x)
            if pre: a('s_nop 1')
            h1=rd[:2]; h2=rd[2:]
            a(mm[0])
            for x in h1: a(x)
            for x in take(): a(x)
            a(mm[1])
            for x in h2: a(x)
            for x in take(): a(x)
            if ks==0 and nxt:
                a('s_add_u32 s51, s50, 1')
                for x in setaddr(nxt): a(x)
                a('s_barrier')
        for x in extra: a(x)
        a('s_add_u32 s50, s50, 1')
    for r in range(32,64): a(f'v_mov_b32 v{r}, 0')
    stamp(a,1)
    a('s_waitcnt lgkmcnt(0)')
    a('s_barrier')
    stamp(a,2)
    if STAMPS: a('s_memtime s[74:75]')
    a('s_mov_b32 s51, 0')
    for x in setaddr('QK'): a(x)
    for ks in range(3):
        for x in reads('QK',ks): a(x)
    a.label(f'L_{name}_p1')
    body('QK','QK')
    a('s_cmp_lt_u32 s50, 7')
    a(f's_cbranch_scc1 L_{name}_p1')
    srd(a, 24, 46, WS_SIZE)
    a('s_lshl_b32 s57, s35, 5')
    a('s_add_u32 s56, s54, s57')
    a('s_cmp_ge_u32 s55, 8')
    a('s_cselect_b32 s57, 17, 16')
    a('s_cselect_b32 s58, 11, 10')
    a(f's_cselect_b32 s59, {WS_KV}, {WS_Q}')
    a(f's_cselect_b32 s60, 1.0, {hex(f2u(C_SCALE))}')
    a('s_lshl_b32 s57, 1, s57')
    a('s_lshl_b32 s61, s56, s58')
    a('s_add_u32 s59, s59, s61')
    a('s_lshl_b32 s63, 16, s58')
    a('s_and_b32 s62, s55, 7')
    a('s_lshl_b32 s62, s62, 2')
    a('s_lshl_b32 s64, s40, 1')
    a('s_add_u32 s62, s62, s64')
    a('s_mul_i32 s62, s62, s57')
    a('s_add_u32 s59, s59, s62')
    a('s_add_u32 s68, s59, s57')
    a('s_add_u32 s69, s59, s63')
    a('s_add_u32 s70, s68, s63')
    a('v_lshlrev_b32 v11, 9, v9')
    a('v_lshl_add_u32 v11, v10, 4, v11')
    def ep1(t):
        L=[]
        for hb in range(2):
            base=A1[t]+8*hb; d=144+8*t+4*hb
            for r in range(8): L.append(f'v_mul_f32 v{base+r}, s60, v{base+r}')
            for q in range(4): L.append(f'v_cvt_pk_bf16_f32 v{d+q}, v{base+2*q}, v{base+2*q+1}')
            so=[['s59','s68'],['s69','s70']][t][hb]
            L.append(f'buffer_store_dwordx4 v[{d}:{d+3}], v11, s[24:27], {so} offen')
        return L
    a('s_cmp_eq_u32 s40, 0')
    a(f's_cbranch_scc0 L_{name}_roleF')
    for role in ('V','F'):
        if role=='F': a.label(f'L_{name}_roleF')
        body('QK',role)
        stamp(a,1)
        body(role,role,zero=True,extra=['s_nop 7','s_nop 3']+ep1(0))
        body(role,role,extra=ep1(1))
        a.label(f'L_{name}_p2{role}')
        body(role,role)
        a('s_cmp_lt_u32 s50, 15')
        a(f's_cbranch_scc1 L_{name}_p2{role}')
        body(role,None)
        if STAMPS:
            a('s_memtime s[76:77]')
            a('s_waitcnt lgkmcnt(0)')
            a('s_sub_u32 s78, s76, s74')
        stamp(a,3)
        a('s_nop 15')
        if role=='V':
            a('s_barrier')
            a('s_lshl_b32 s57, s35, 5')
            a('s_add_u32 s58, s54, s57')
            a('v_lshrrev_b32 v19, 4, v8')
            a('v_lshlrev_b32 v19, 17, v19')
            a('v_lshl_add_u32 v19, v9, 9, v19')
            a('v_and_b32 v13, 15, v8')
            a('v_lshl_add_u32 v19, v13, 4, v19')
            a('s_lshl_b32 s61, s55, 18')
            a('s_lshl_b32 s62, s58, 11')
            a('s_add_u32 s61, s61, s62')
            a(f's_add_u32 s61, s61, {WS_KV+1024}')
            for t in range(2):
                for mfi in range(2):
                    base=A2[t]+8*mfi
                    d=96+8*t+4*mfi
                    for q in range(4): a(f'v_cvt_pk_bf16_f32 v{d+q}, v{base+2*q}, v{base+2*q+1}')
                    a(f'buffer_store_dwordx4 v[{d}:{d+3}], v19, s[24:27], s61 offen offset:{mfi*256}')
                if t==0: a('s_add_u32 s61, s61, 32768')
            a(f's_branch L_{name}_fin')
    ACC=[[0,A2[0]],[0,A2[1]]]
    XCH = 0
    a('v_mov_b32 v12, -1.0')
    a('v_mov_b32 v13, 1.0')
    a('v_cmp_gt_u32 vcc, 16, v8')
    a('s_nop 1')
    a('v_cndmask_b32 v12, v12, v13, vcc')
    a('v_cndmask_b32 v12, v12, v13, s[66:67]')
    a('s_cmp_eq_u32 s54, 0')
    a('s_cselect_b32 s68, -1, 0')
    a('s_mov_b32 s69, 0')
    A0=ACC[0][1]; A1=ACC[1][1]
    a(f'v_mov_b32 v15, v{A1}')
    a('v_mov_b32 v13, 0')
    a(f'v_cndmask_b32 v{A1}, v{A1}, v13, s[68:69]')
    for r in range(16): a(f'v_fma_f32 v{A0+r}, v{A1+r}, v12, v{A0+r}')
    a('v_lshlrev_b32 v11, 4, v1')
    a('s_mul_i32 s63, s35, 5120')
    a(f's_add_u32 s63, s63, {XCH}')
    a('v_add_u32 v16, s63, v11')
    a('s_xor_b32 s63, s35, 1')
    a('s_mul_i32 s63, s63, 5120')
    a(f's_add_u32 s63, s63, {XCH}')
    a('v_add_u32 v17, s63, v11')
    for g in range(4): a(f'ds_write_b128 v16, v[{A0+4*g}:{A0+4*g+3}] offset:{g*1024}')
    a('v_lshlrev_b32 v18, 2, v1')
    a('s_mul_i32 s63, s35, 5120')
    a(f's_add_u32 s63, s63, {XCH+4096}')
    a('v_add_u32 v18, s63, v18')
    a('ds_write_b32 v18, v15')
    a('s_waitcnt lgkmcnt(0)')
    a('s_barrier')
    for g in range(4): a(f'ds_read_b128 v[{112+4*g}:{115+4*g}], v17 offset:{g*1024}')
    a('v_lshlrev_b32 v18, 2, v1')
    a('s_xor_b32 s63, s35, 1')
    a('s_mul_i32 s63, s63, 5120')
    a(f's_add_u32 s63, s63, {XCH+4096}')
    a('v_add_u32 v18, s63, v18')
    a('ds_read_b32 v14, v18')
    a('s_waitcnt lgkmcnt(0)')
    a('s_cmp_eq_u32 s35, 0')
    a(f's_cbranch_scc0 L_{name}_odd')
    for r in range(16): a(f'v_fma_f32 v{A0+r}, v{112+r}, v12, v{A0+r}')
    a('v_fma_f32 v15, v14, v12, v15')
    a(f's_branch L_{name}_oddd')
    a.label(f'L_{name}_odd')
    a('v_sub_f32 v13, 0, v12')
    for r in range(16): a(f'v_fma_f32 v{A0+r}, v{A0+r}, v13, v{112+r}')
    a('v_fma_f32 v15, v15, v12, v14')
    a.label(f'L_{name}_oddd')
    for q in range(8): a(f'v_cvt_pk_bf16_f32 v{144+q}, v{A0+2*q}, v{A0+2*q+1}')
    a('s_lshr_b32 s57, s55, 1')
    a(f's_mul_i32 s58, s57, {T_ET}')
    a(f's_mul_i32 s59, s35, {2*T_ARR}')
    a('s_add_u32 s58, s58, s59')
    a(f's_add_u32 s58, s58, {WS_T}')
    a(f's_add_u32 s60, s58, {T_ARR}')
    a('s_and_b32 s62, s55, 1')
    a('s_lshl_b32 s62, s62, 8')
    a('v_and_b32 v16, 15, v8')
    a('v_lshlrev_b32 v16, 4, v16')
    a('v_lshl_add_u32 v16, v9, 9, v16')
    a('v_add_u32 v16, s62, v16')
    a('v_mov_b32 v17, s60')
    a('v_mov_b32 v18, s58')
    a('v_cmp_gt_u32 vcc, 16, v8')
    a('s_nop 1')
    a('v_cndmask_b32 v17, v17, v18, vcc')
    a('v_add_u32 v17, v17, v16')
    a(f's_add_u32 s59, s59, {WS_T+8*T_ET}')
    a('v_mov_b32 v18, s59')
    a('v_lshl_add_u32 v18, v9, 9, v18')
    a('v_cndmask_b32 v19, v17, v18, s[66:67]')
    a('s_lshl_b32 s63, s54, 11')
    for c in range(2):
        a(f'buffer_store_dwordx4 v[{144+4*c}:{147+4*c}], v19, s[24:27], s63 offen offset:{c*1024}')
    a('s_cmp_eq_u32 s55, 0')
    a(f's_cbranch_scc0 L_{name}_nz')
    for r in range(4): a(f'v_mov_b32 v{104+r}, 0')
    a('s_mov_b64 exec, s[66:67]')
    for q in range(2): a(f'buffer_store_dwordx4 v[104:107], v17, s[24:27], s63 offen offset:{q*1024}')
    a(f's_mov_b32 s64, {32*1024}')
    a('buffer_store_dwordx4 v[104:107], v17, s[24:27], s64 offen')
    a('s_mov_b64 exec, -1')
    a.label(f'L_{name}_nz')
    a('s_cmp_eq_u32 s54, 0')
    a(f's_cbranch_scc0 L_{name}_fin')
    a('v_mov_b32 v13, 0')
    a('v_cndmask_b32 v15, v13, v15, s[68:69]')
    a('v_cvt_pk_bf16_f32 v108, v15, v13')
    a('v_mov_b32 v109, 0'); a('v_mov_b32 v110, 0'); a('v_mov_b32 v111, 0')
    a('s_mov_b32 s70, 0x0000ffff')
    a('s_mov_b32 s71, 0x0000ffff')
    a('s_or_b64 s[70:71], s[70:71], s[66:67]')
    a('s_not_b64 s[72:73], s[70:71]')
    a('s_cmp_eq_u32 s35, 0')
    a('s_cselect_b64 s[70:71], s[70:71], s[72:73]')
    a('s_mov_b64 exec, s[70:71]')
    a(f's_mov_b32 s63, {32*1024}')
    a('buffer_store_dwordx4 v[108:111], v19, s[24:27], s63 offen')
    a('s_mov_b64 exec, -1')
    a.label(f'L_{name}_fin')
    if STAMPS: srd(a, 24, 46, WS_SIZE)
    stamp_flush(a, 4, 24, 32, 8, 0, vtmp=170, extra=78)
    a.label(f'L_{name}_end')
    a('s_endpgm')
    return 176


SPIN_MAX=400000
SLEEP=int(os.environ.get('SLEEP','2'))
def poll(a, tag, addr_v, exp_v, nl, base='s[56:57]', tmp=12):
    a(f's_mov_b32 s61, 0')
    a(f's_mov_b64 exec, {(1<<nl)-1}')
    a.label(f'L_{tag}_poll')
    a(f'global_load_dword v{tmp}, v{addr_v}, {base} sc1')
    a('s_waitcnt vmcnt(0)')
    a(f'v_cmp_eq_u32 vcc, v{tmp}, v{exp_v}')
    a('s_add_u32 s61, s61, 1')
    a('s_nop 2')
    a(f's_cmp_eq_u64 vcc, exec')
    a(f's_cbranch_scc1 L_{tag}_polld')
    a(f's_cmp_ge_u32 s61, {SPIN_MAX}')
    a(f's_cbranch_scc1 L_{tag}_polld')
    a(f's_sleep {SLEEP}')
    a(f's_branch L_{tag}_poll')
    a.label(f'L_{tag}_polld')
    a('s_mov_b64 exec, -1')

def phase_c(a, name):
    stamp(a,0)
    a('s_cmp_eq_u32 s32, 0')
    a(f's_cbranch_scc0 L_{name}_nosig')
    a('s_lshr_b32 s33, s2, 5')
    a('s_lshl_b32 s33, s33, 7')
    a(f's_add_u32 s33, s33, {WS_FLAG}')
    a('v_mov_b32 v12, s33')
    a('v_mov_b32 v13, 1')
    a('s_mov_b64 exec, 1')
    a('global_atomic_add v12, v13, s[24:25] sc1')
    a('s_mov_b64 exec, -1')
    a.label(f'L_{name}_nosig')
    a('s_and_b32 s33, s2, 7')
    a('s_lshr_b32 s34, s2, 3')
    a('s_and_b32 s35, s34, 3')
    a('s_lshl_b32 s40, s33, 2')
    a('s_add_u32 s40, s40, s35')
    a('s_lshr_b32 s41, s2, 5')
    a('s_and_b32 s42, s32, 1')
    a('s_lshr_b32 s43, s32, 1')
    a('s_lshl_b32 s44, s40, 1')
    a('s_add_u32 s44, s44, s42')
    srd(a, 12, 72, 0x200000)
    a('v_and_b32 v8, 31, v1')
    a('v_lshrrev_b32 v9, 5, v1')
    a('s_lshl_b32 s58, s44, 5')
    a('v_add_u32 v10, s58, v8')
    a('v_and_b32 v12, 511, v10')
    a('s_lshr_b32 s58, s44, 4')
    a('s_cmp_eq_u32 s58, 0')
    a('s_cselect_b32 s59, 0, 1024')
    a('s_cmp_eq_u32 s58, 1')
    a('s_cselect_b32 s59, 2048, s59')
    a('s_and_b32 s61, s58, 1')
    a('s_cmp_eq_u32 s58, 1')
    a('s_cselect_b32 s62, 1, 0')
    a('s_cmp_eq_u32 s58, 2')
    a('s_cselect_b32 s62, 1, s62')
    a('v_add_u32 v10, s59, v12')
    a('v_sub_u32 v11, s59, v12')
    a('s_cmp_eq_u32 s62, 1')
    a('s_cselect_b64 vcc, -1, 0')
    a('v_cndmask_b32 v10, v10, v11, vcc')
    a('s_cmp_lt_u32 s58, 2')
    a('s_cselect_b64 vcc, -1, 0')
    a('v_sub_u32 v11, 1024, v12')
    a('v_cndmask_b32 v13, v11, v12, vcc')
    a('s_lshl_b32 s61, s61, 20')
    a('v_mov_b32 v106, s61')
    a('s_lshr_b32 s62, s58, 1')
    a('s_lshl_b32 s63, s62, 10')
    a('s_add_u32 s63, s63, 512')
    a('s_lshl_b32 s62, s62, 20')
    a('s_and_b32 s59, s58, 1')
    a('s_cmp_eq_u32 s59, 1')
    a('s_cselect_b64 s[64:65], -1, 0')
    a('v_cmp_eq_u32 vcc, 0, v12')
    a('s_nop 1')
    a('s_and_b64 vcc, vcc, s[64:65]')
    a('v_mov_b32 v11, s63')
    a('v_cndmask_b32 v10, v10, v11, vcc')
    a('v_mov_b32 v11, 512')
    a('v_cndmask_b32 v13, v13, v11, vcc')
    a('v_mov_b32 v11, s62')
    a('v_cndmask_b32 v106, v106, v11, vcc')
    a('v_lshlrev_b32 v11, 10, v10')
    a('v_lshl_add_u32 v11, v9, 3, v11')
    a('s_lshl_b32 s58, s41, 7')
    a('s_lshl_b32 s59, s43, 6')
    a('s_add_u32 s58, s58, s59')
    a('v_add_u32 v11, s58, v11')
    a(f'v_mul_u32_u24 v13, {YQ_PITCH}, v13')
    a('v_lshlrev_b32 v12, 3, v9')
    a('s_cmp_lt_u32 s41, 4')
    a(f's_cbranch_scc0 L_{name}_ym')
    a('v_add_u32 v13, v13, v12')
    a('v_add_u32 v13, s58, v13')
    a(f's_branch L_{name}_ymd')
    a.label(f'L_{name}_ym')
    a('v_sub_u32 v13, v13, v12')
    a('s_sub_u32 s59, 1018-48, s58')
    a('v_add_u32 v13, s59, v13')
    a.label(f'L_{name}_ymd')
    a('s_lshr_b32 s59, s41, 2')
    a('s_lshl_b32 s59, s59, 20')
    a('v_xor_b32 v106, s59, v106')
    a('v_add_u32 v13, v13, v106')
    a(f's_mov_b32 s60, {WS_Y}')
    a('v_lshlrev_b32 v105, 2, v10')
    a('v_bfe_u32 v5, v1, 2, 2')
    a('v_lshl_add_u32 v6, v9, 2, v5')
    a('v_lshlrev_b32 v6, 7, v6')
    a('v_bfe_u32 v7, v1, 3, 1')
    a('v_lshlrev_b32 v7, 6, v7')
    a('v_bfe_u32 v16, v1, 4, 1')
    a('v_lshl_add_u32 v6, v16, 5, v6')
    a('v_bfe_u32 v16, v1, 1, 1')
    a('v_lshl_add_u32 v6, v16, 4, v6')
    a('v_and_b32 v16, 1, v1')
    a('v_lshl_add_u32 v6, v16, 3, v6')
    a('v_add_u32 v14, v6, v7')
    a('s_lshl_b32 s58, s43, 15')
    a('v_add_u32 v14, s58, v14')
    a('v_xor_b32 v15, 64, v14')
    a(f's_mov_b32 s59, {WS_G}')
    a('buffer_load_dword v104, v105, s[24:27], s59 offen')
    stamp(a,1)
    a('s_cmp_eq_u32 s32, 0')
    a(f's_cbranch_scc0 L_{name}_nopoll')
    a('s_lshl_b32 s58, s33, 7')
    a(f's_add_u32 s58, s58, {WS_FLAG}')
    a('v_lshlrev_b32 v16, 2, v1')
    a('v_add_u32 v16, s58, v16')
    a('v_mov_b32 v17, 32')
    a('v_mov_b32 v19, 297')
    a('v_cmp_eq_u32 vcc, 1, v1')
    a('s_nop 1')
    a('v_cndmask_b32 v17, v17, v19, vcc')
    poll(a, name+'_c', 16, 17, 2, base='s[24:25]', tmp=18)
    a.label(f'L_{name}_nopoll')
    a('s_barrier')
    stamp(a,2)
    OF=32
    a('s_lshl_b32 s51, s44, 15')
    a('s_lshl_b32 s52, s43, 14')
    a('s_add_u32 s51, s51, s52')
    a(f's_add_u32 s51, s51, {WS_O}')
    for i in range(16):
        if i%4==0 and i: a('s_add_u32 s51, s51, 4096')
        a(f'buffer_load_dwordx4 v[{OF+4*i}:{OF+4*i+3}], v2, s[24:27], s51 offen offset:{(i%4)*1024} sc1')
    for b in range(4): a(f'buffer_load_dwordx2 v[{96+2*b}:{97+2*b}], v13, s[24:27], s60 offen offset:{b*16} sc1')
    ACC=[16,112]; FW=[128,136]
    def reads(i):
        s_=i%2
        for j in range(2):
            a(f'ds_read_b64_tr_b16 v[{FW[s_]+4*j}:{FW[s_]+4*j+1}], v{14+j} offset:{i*2048}')
            a(f'ds_read_b64_tr_b16 v[{FW[s_]+4*j+2}:{FW[s_]+4*j+3}], v{14+j} offset:{i*2048+1024}')
    reads(0)
    for i in range(16):
        if i<15: reads(i+1); a(f's_waitcnt vmcnt({4+15-i}) lgkmcnt(4)')
        else: a('s_waitcnt vmcnt(4) lgkmcnt(0)')
        s_=i%2
        for j in range(2):
            c = '0' if i==0 else f'v[{ACC[j]}:{ACC[j]+15}]'
            a(f'v_mfma_f32_32x32x16_bf16 v[{ACC[j]}:{ACC[j]+15}], v[{FW[s_]+4*j}:{FW[s_]+4*j+3}], v[{OF+4*i}:{OF+4*i+3}], {c}')
    stamp(a,3)
    K3X=65536
    a('s_lshl_b32 s48, s42, 13')
    a('s_xor_b32 s49, s43, 1')
    a('s_lshl_b32 s49, s49, 12')
    a('s_add_u32 s49, s49, s48')
    a(f's_add_u32 s49, s49, {K3X}')
    a('v_add_u32 v5, s49, v2')
    a('s_lshl_b32 s49, s43, 12')
    a('s_add_u32 s49, s49, s48')
    a(f's_add_u32 s49, s49, {K3X}')
    a('v_add_u32 v6, s49, v2')
    a('s_nop 7')
    a('s_cmp_eq_u32 s43, 0')
    a(f's_cbranch_scc0 L_{name}_kw1')
    for g in range(4): a(f'ds_write_b128 v5, v[{ACC[1]+4*g}:{ACC[1]+4*g+3}] offset:{g*1024}')
    a(f's_branch L_{name}_x')
    a.label(f'L_{name}_kw1')
    for g in range(4): a(f'ds_write_b128 v5, v[{ACC[0]+4*g}:{ACC[0]+4*g+3}] offset:{g*1024}')
    a('s_nop 1')
    for r in range(16): a(f'v_mov_b32 v{ACC[0]+r}, v{ACC[1]+r}')
    a.label(f'L_{name}_x')
    a('s_waitcnt vmcnt(0) lgkmcnt(0)')
    a('s_barrier')
    for g in range(4): a(f'ds_read_b128 v[{32+4*g}:{35+4*g}], v6 offset:{g*1024}')
    a('v_sub_f32 v105, 1.0, v104')
    a('s_cmp_lt_u32 s41, 4')
    a(f's_cbranch_scc0 L_{name}_um')
    for b in range(4):
        for q in range(2):
            src=96+2*b+q
            a(f'v_lshlrev_b32 v{48+4*b+2*q}, 16, v{src}')
            a(f'v_and_b32 v{48+4*b+2*q+1}, 0xffff0000, v{src}')
    a(f's_branch L_{name}_umd')
    a.label(f'L_{name}_um')
    for b in range(4):
        g=3-b
        d0=96+2*b; d1=97+2*b
        a(f'v_and_b32 v{48+4*g+0}, 0xffff0000, v{d1}')
        a(f'v_lshlrev_b32 v{48+4*g+1}, 16, v{d1}')
        a(f'v_and_b32 v{48+4*g+2}, 0xffff0000, v{d0}')
        a(f'v_lshlrev_b32 v{48+4*g+3}, 16, v{d0}')
    a.label(f'L_{name}_umd')
    for r in range(16): a(f'v_mul_f32 v{48+r}, v104, v{48+r}')
    a('s_waitcnt lgkmcnt(0)')
    for r in range(16): a(f'v_add_f32 v{16+r}, v{16+r}, v{32+r}')
    for r in range(16): a(f'v_fmac_f32 v{48+r}, v105, v{16+r}')
    for b in range(4):
        a(f'v_cvt_pk_bf16_f32 v{64+2*b}, v{48+4*b}, v{48+4*b+1}')
        a(f'v_cvt_pk_bf16_f32 v{65+2*b}, v{48+4*b+2}, v{48+4*b+3}')
    a('v_lshl_add_u32 v11, v9, 3, v11')
    for b in (0,2):
        a(f'v_permlane32_swap_b32 v{64+2*b}, v{66+2*b}')
        a(f'v_permlane32_swap_b32 v{65+2*b}, v{67+2*b}')
    sv=a.stflag; a.stflag='sc1' if 'outsc1' in EXPT else ''
    for b in (0,2):
        a(f'buffer_store_dwordx4 v[{64+2*b}:{67+2*b}], v11, s[12:15], 0 offen offset:{b*16}')
    a.stflag=sv
    stamp_flush(a, 4, 24, 32, 4, 2, vtmp=106)

K2_SUM=131072
K2_CNT=K2_SUM+16384
K2_LDS=K2_CNT+64
def gen_k23(a, name):
    return gen_k2(a, name, fused=True)

def gen_k2(a, name, fused=False):
    a.noload=False
    kernel_header(a, name)
    a('s_cmp_ge_u32 s2, 256')
    a(f's_cbranch_scc1 L_{name}_end')
    stamp(a,0)
    a('s_load_dwordx4 s[36:39], s[0:1], 8')
    a('s_load_dwordx2 s[46:47], s[0:1], 88')
    a('s_load_dwordx2 s[56:57], s[0:1], 56')
    a('s_load_dwordx2 s[72:73], s[0:1], 72')
    a('v_lshrrev_b32 v2, 6, v0')
    a('v_and_b32 v1, 63, v0')
    a('v_readfirstlane_b32 s32, v2')
    a('v_lshlrev_b32 v2, 4, v1')
    a('s_and_b32 s33, s2, 7')
    a('s_lshr_b32 s34, s2, 3')
    a('s_and_b32 s35, s34, 3')
    a('s_lshl_b32 s40, s33, 2')
    a('s_add_u32 s40, s40, s35')
    a('s_lshr_b32 s41, s2, 5')
    a('s_waitcnt lgkmcnt(0)')
    srd(a, 24, 46, WS_SIZE)
    a('s_cmp_ge_u32 s32, 8')
    a(f's_cbranch_scc1 L_{name}_fnet')
    Q=4; C=8; S=[24,40]; O=56; K=[72,76]; V0=[80,88]; V1=[84,92]; ADDR=96; IDX=3
    a('s_lshl_b32 s42, s41, 3')
    a('s_add_u32 s42, s42, s32')
    a('s_lshl_b32 s43, s40, 16')
    a('s_lshl_b32 s44, s42, 10')
    a('s_add_u32 s43, s43, s44')
    a(f'buffer_load_dwordx4 v[{Q}:{Q+3}], v2, s[24:27], s43 offen')
    a('s_lshl_b32 s43, s40, 17')
    a(f's_add_u32 s43, s43, {WS_KV}')
    a('s_lshl_b32 s44, s32, 11')
    if 'kvrot' in EXPT:
        a('s_lshl_b32 s46, s41, 3')
        a('s_add_u32 s46, s46, s32')
    else: a('s_mov_b32 s46, s32')
    for i in range(8):
        a(f's_add_u32 m0, s44, {i*8*2048}')
        a('s_and_b32 s46, s46, 63')
        a('s_lshl_b32 s45, s46, 11')
        a('s_add_u32 s45, s45, s43')
        a('buffer_load_dwordx4 v2, s[24:27], s45 offen lds')
        a('buffer_load_dwordx4 v2, s[24:27], s45 offen offset:1024 lds')
        a('s_add_u32 s46, s46, 8')
    a(f'v_mov_b32 v{IDX}, 0xdddddddd')
    if 'allones' in EXPT:
        for r in range(80,96): a(f'v_mov_b32 v{r}, 0x3f803f80')
    else:
        a('v_mov_b32 v97, 0')
        a('v_mov_b32 v98, 0x3f803f80')
        a('s_mov_b32 s52, 0x00110000')
        a('s_mov_b32 s53, 0x00110000')
        a('v_cndmask_b32 v97, v97, v98, s[52:53]')
        for r in range(80,96): a(f'v_mov_b32 v{r}, v97')
    a('s_mov_b32 s48, 0x0000ffff')
    a('s_mov_b32 s49, 0x0000ffff')
    a('s_mov_b32 s50, 0')
    a('s_cmp_lt_u32 s32, 4')
    a(f's_cselect_b32 s54, {PR[0]}, {PR[1]}')
    a(f's_cselect_b32 s55, {PR[2]}, {PR[3]}')
    a('s_setprio 2')
    for r in range(16): a(f'v_mov_b32 v{O+r}, 0')
    for r in range(8,16): a(f'v_mov_b32 v{S[1]+r}, 0')
    a(f'v_mov_b32 v{ADDR}, v2')
    a('s_waitcnt vmcnt(14)' if 'b1b' in EXPT else 's_waitcnt vmcnt(12)')
    a('s_barrier')
    stamp(a,1)
    a(f'ds_read_b128 v[{K[0]}:{K[0]+3}], v2')
    a(f'ds_read_b128 v[{K[1]}:{K[1]+3}], v2 offset:2048')
    a('s_mov_b64 exec, s[48:49]')
    a(f'ds_read_b128 v[{V0[0]}:{V0[0]+3}], v2 offset:1024')
    a(f'ds_read_b128 v[{V1[0]}:{V1[0]+3}], v2 offset:1280')
    a('s_mov_b64 exec, -1')
    a('s_waitcnt lgkmcnt(3)')
    a(f'v_mfma_f32_32x32x16_bf16 v[{S[0]}:{S[0]+15}], v[{K[0]}:{K[0]+3}], v[{Q}:{Q+3}], 0')
    a('s_nop 15')
    s0=S[0]
    a(f'v_max3_f32 v97, v{s0}, v{s0+1}, v{s0+2}')
    for r in range(3,15,2): a(f'v_max3_f32 v97, v97, v{s0+r}, v{s0+r+1}')
    a(f'v_max_f32 v97, v97, v{s0+15}')
    a.label(f'L_{name}_havemax')
    a('v_mov_b32 v98, v97')
    a('s_nop 1')
    a('v_permlane32_swap_b32 v97, v98')
    a('s_nop 1')
    a('v_max_f32 v97, v97, v98')
    for r in range(16): a(f'v_sub_f32 v{C+r}, 0, v97')
    a('s_waitcnt lgkmcnt(0)')
    a(f'v_mfma_f32_32x32x16_bf16 v[{S[0]}:{S[0]+15}], v[{K[0]}:{K[0]+3}], v[{Q}:{Q+3}], v[{C}:{C+15}]')
    a('s_mov_b32 s51, 0')
    if STAMPS: a('s_memtime s[74:75]')
    a('s_nop 15')
    a.raw('.p2align 6')
    a.label(f'L_{name}_loop')
    for i in range(4):
        cur=S[i%2]; prev=S[(i+1)%2]
        def e(x,y):
            for j in range(x,y):
                if 'noexp' in EXPT: a(f'v_mov_b32 v{cur+j}, v{cur+j}')
                else: a(f'v_exp_f32 v{cur+j}, v{cur+j}')
        a('s_waitcnt lgkmcnt(0)')
        e(0,2)
        if 'nopv' not in EXPT: a(f'v_smfmac_f32_32x32x32_bf16 v[{O}:{O+15}], v[{V1[(i+1)%2]}:{V1[(i+1)%2]+3}], v[{prev+8}:{prev+15}], v{IDX}')
        if 'nolds' not in EXPT:
            a(f'ds_read_b128 v[{K[i%2]}:{K[i%2]+3}], v{ADDR} offset:{(i+2)*2048}')
            a('s_mov_b64 exec, s[48:49]')
            a(f'ds_read_b128 v[{V0[(i+1)%2]}:{V0[(i+1)%2]+3}], v{ADDR} offset:{(i+1)*2048+1024}')
            a(f'ds_read_b128 v[{V1[(i+1)%2]}:{V1[(i+1)%2]+3}], v{ADDR} offset:{(i+1)*2048+1280}')
            a('s_mov_b64 exec, -1')
        e(2,7)
        a(f'v_mfma_f32_32x32x16_bf16 v[{prev}:{prev+15}], v[{K[(i+1)%2]}:{K[(i+1)%2]+3}], v[{Q}:{Q+3}], v[{C}:{C+15}]')
        e(7,12)
        if 'nopv' not in EXPT: a(f'v_smfmac_f32_32x32x32_bf16 v[{O}:{O+15}], v[{V0[i%2]}:{V0[i%2]+3}], v[{cur}:{cur+7}], v{IDX}')
        e(12,16)
    a(f'v_add_u32 v{ADDR}, 8192, v{ADDR}')
    a('s_add_u32 s51, s51, 1')
    if 'b1b' in EXPT:
        a('s_cmp_eq_u32 s51, 1')
        a(f's_cbranch_scc1 L_{name}_ev1')
    a('s_cmp_eq_u32 s51, 3')
    a(f's_cbranch_scc1 L_{name}_ev3')
    a('s_cmp_eq_u32 s51, s54')
    a(f's_cbranch_scc1 L_{name}_ev10')
    a('s_cmp_eq_u32 s51, s55')
    a(f's_cbranch_scc1 L_{name}_ev14')
    a('s_cmp_lt_u32 s51, 16')
    a(f's_cbranch_scc1 L_{name}_loop')
    a(f's_branch L_{name}_done')
    a.label(f'L_{name}_ev1')
    a('s_cmp_eq_u32 s50, 0')
    a(f's_cbranch_scc0 L_{name}_loop')
    a('s_waitcnt vmcnt(12)')
    a('s_barrier')
    a(f's_branch L_{name}_loop')
    a.label(f'L_{name}_ev3')
    a('s_cmp_eq_u32 s50, 0')
    a(f's_cbranch_scc0 L_{name}_loop')
    stamp(a,3)
    a('s_waitcnt vmcnt(0)')
    a('s_barrier')
    stamp(a,4)
    a(f's_branch L_{name}_loop')
    a.label(f'L_{name}_ev10')
    stamp(a,5)
    a('s_setprio 1')
    a(f's_branch L_{name}_loop')
    a.label(f'L_{name}_ev14')
    a('s_setprio 0')
    a(f's_branch L_{name}_loop')
    a.label(f'L_{name}_done')
    a('s_nop 1')
    a(f'v_smfmac_f32_32x32x32_bf16 v[{O}:{O+15}], v[{V1[1]}:{V1[1]+3}], v[{S[1]+8}:{S[1]+15}], v{IDX}')
    a('s_waitcnt lgkmcnt(0)')
    a('s_nop 15')
    stamp(a,2)
    if STAMPS:
        a('s_memtime s[76:77]')
        a('s_waitcnt lgkmcnt(0)')
        a('s_sub_u32 s78, s76, s74')
    THR = -1.0 if 'forcefb' in EXPT else 2.0**60
    a(f's_mov_b32 s52, {hex(f2u(THR))}')
    a(f'v_cmp_gt_f32 vcc, s52, v{O+8}')
    if 'nopv' in EXPT or 'noexp' in EXPT: a('s_mov_b32 s50, 1')
    a('s_nop 3')
    a('s_cmp_eq_u64 vcc, -1')
    a(f's_cbranch_scc1 L_{name}_ok')
    a('s_cmp_eq_u32 s50, 0')
    a(f's_cbranch_scc0 L_{name}_ok')
    a('s_mov_b32 s50, 1')
    a('s_setprio 2')
    a('v_mov_b32 v97, 0xff800000')
    a(f'v_mov_b32 v{ADDR}, v2')
    a('s_mov_b32 s51, 0')
    a.label(f'L_{name}_fb')
    a(f'ds_read_b128 v[{K[0]}:{K[0]+3}], v{ADDR}')
    a('s_waitcnt lgkmcnt(0)')
    a(f'v_mfma_f32_32x32x16_bf16 v[{S[0]}:{S[0]+15}], v[{K[0]}:{K[0]+3}], v[{Q}:{Q+3}], 0')
    a('s_nop 15')
    for r in range(0,16,2): a(f'v_max3_f32 v97, v97, v{s0+r}, v{s0+r+1}')
    a(f'v_add_u32 v{ADDR}, 2048, v{ADDR}')
    a('s_add_u32 s51, s51, 1')
    a('s_cmp_lt_u32 s51, 64')
    a(f's_cbranch_scc1 L_{name}_fb')
    for r in range(16): a(f'v_mov_b32 v{O+r}, 0')
    for r in range(8,16): a(f'v_mov_b32 v{S[1]+r}, 0')
    a(f'v_mov_b32 v{ADDR}, v2')
    a(f'ds_read_b128 v[{K[0]}:{K[0]+3}], v2')
    a(f'ds_read_b128 v[{K[1]}:{K[1]+3}], v2 offset:2048')
    a('s_mov_b64 exec, s[48:49]')
    a(f'ds_read_b128 v[{V0[0]}:{V0[0]+3}], v2 offset:1024')
    a(f'ds_read_b128 v[{V1[0]}:{V1[0]+3}], v2 offset:1280')
    a('s_mov_b64 exec, -1')
    a(f's_branch L_{name}_havemax')
    a.label(f'L_{name}_ok')
    a(f'v_rcp_f32 v97, v{O+8}')
    a('s_nop 0')
    for r in range(8): a(f'v_mul_f32 v{O+r}, v97, v{O+r}')
    for q in range(4): a(f'v_cvt_pk_bf16_f32 v{100+q}, v{O+2*q}, v{O+2*q+1}')
    a('s_lshl_b32 s43, s42, 15')
    a('s_lshl_b32 s44, s40, 10')
    a('s_add_u32 s43, s43, s44')
    a(f's_add_u32 s43, s43, {WS_O}')
    a('buffer_store_dwordx4 v[100:103], v2, s[24:27], s43 offen')
    if fused:
        a('s_waitcnt vmcnt(0)')
        a(f's_branch L_{name}_endB')
    else:
        a(f's_branch L_{name}_fin')

    a.label(f'L_{name}_fnet')
    a(f's_setprio {FPRIO}')
    a('s_sub_u32 s35, s32, 8')
    srd(a, 8, 36, 0x800000)
    srd(a, 12, 38, 0x800000)
    for r in range(4,8): a(f'v_mov_b32 v{r}, 0')
    a(f'v_mov_b32 v8, {K2_CNT}')
    a('ds_write_b128 v8, v[4:7]')
    a('s_waitcnt lgkmcnt(0)')
    a('s_barrier')
    stamp(a,1)
    if 'b1b' in EXPT: a('s_barrier')
    if NOFNET:
        a('s_barrier')
        a(f's_branch L_{name}_fin')
    a('v_and_b32 v9, 31, v1')
    a('v_lshrrev_b32 v10, 5, v1')
    stamp(a,2)
    a('s_mov_b32 s60, 0')
    a('s_mov_b32 s61, 0')
    a('s_lshr_b32 s62, s35, 1')
    a('s_and_b32 s63, s35, 1')
    a('s_cmp_eq_u32 s62, 0')
    a('s_cselect_b32 s16, s8, s12')
    a('s_cselect_b32 s17, s9, s13')
    a('s_mov_b32 s18, 0x800000')
    a('s_mov_b32 s19, 0x20000')
    a.label(f'L_{name}_job')
    a('s_cmp_eq_u32 s60, 0')
    a(f's_cbranch_scc1 L_{name}_dojob')
    a('s_mov_b32 s16, s8')
    a('s_mov_b32 s17, s9')
    a('s_mov_b32 s62, 0')
    a.label(f'L_{name}_dojob')
    a('s_and_b32 s66, s40, 1')
    a('s_lshr_b32 s42, s40, 1')
    a('s_lshl_b32 s42, s42, 6')
    a('s_add_u32 s42, s42, s66')
    a('v_lshl_add_u32 v11, v9, 1, s42')
    a('v_mov_b32 v8, v11')
    a('v_lshlrev_b32 v11, 12, v11')
    a('v_lshl_add_u32 v11, v10, 4, v11')
    a('s_lshl_b32 s43, s66, 1')
    a('s_add_u32 s43, s43, s62')
    a(f's_mul_i32 s43, s43, {T_ARR}')
    a(f's_mul_i32 s44, s41, {T_ET}')
    a('s_add_u32 s43, s43, s44')
    a(f's_add_u32 s43, s43, {WS_T}')
    a(f's_add_u32 s67, s43, {32*1024}')
    a('s_lshl_b32 s45, s63, 4')
    a('s_lshl_b32 s46, s35, 3')
    a('s_cmp_eq_u32 s60, 0')
    a('s_cselect_b32 s49, s45, s46')
    a('s_lshl_b32 s45, s49, 10')
    a('s_add_u32 s43, s43, s45')
    a('s_lshl_b32 s45, s49, 5')
    ACCF=16
    for r in range(16): a(f'v_mov_b32 v{ACCF+r}, 0')
    SET=[32,96]
    a('s_cmp_eq_u32 s60, 0')
    a('s_cselect_b32 s58, 1, 0')
    a('s_and_b32 s59, s41, s58')
    def issue(setb, b):
        a(f's_xor_b32 s64, s59, {b}')
        a('s_lshl_b32 s65, s64, 8')
        a('s_add_u32 s65, s65, s45')
        a('s_lshl_b32 s64, s64, 13')
        a('s_add_u32 s64, s64, s43')
        for k in range(8):
            ra=setb+8*k
            a(f'buffer_load_dwordx4 v[{ra}:{ra+3}], v11, s[16:19], s65 offen offset:{k*32}')
            if k==4: a('s_add_u32 s64, s64, 4096')
            a(f'buffer_load_dwordx4 v[{ra+4}:{ra+7}], v2, s[24:27], s64 offen offset:{(k%4)*1024}')
    def mm(setb, first_wait):
        for k in range(8):
            ra=setb+8*k
            a(f's_waitcnt vmcnt({first_wait-2*k-2})')
            a(f'v_mfma_f32_32x32x16_bf16 v[{ACCF}:{ACCF+15}], v[{ra+4}:{ra+7}], v[{ra}:{ra+3}], v[{ACCF}:{ACCF+15}]')
    issue(SET[0],0)
    a('s_cmp_eq_u32 s61, 0')
    a(f's_cbranch_scc0 L_{name}_nob2')
    a('s_mov_b32 s61, 1')
    stamp(a,3)
    a('s_barrier')
    stamp(a,4)
    a.label(f'L_{name}_nob2')
    a('s_cmp_eq_u32 s62, s66')
    a('s_cselect_b32 s68, 1, 0')
    a('s_cmp_eq_u32 s60, 0')
    a('s_cselect_b32 s69, s63, 0')
    a('s_cmp_eq_u32 s35, 3')
    a('s_cselect_b32 s70, 1, 0')
    a('s_cmp_eq_u32 s60, 0')
    a('s_cselect_b32 s69, s69, s70')
    a('s_and_b32 s68, s68, s69')
    a('s_cmp_eq_u32 s60, 0')
    a(f's_cbranch_scc0 L_{name}_short')
    issue(SET[1],1)
    mm(SET[0],32)
    mm(SET[1],16)
    a(f's_branch L_{name}_mmd')
    a.label(f'L_{name}_short')
    mm(SET[0],16)
    a.label(f'L_{name}_mmd')
    a('s_cmp_eq_u32 s68, 1')
    a(f's_cbranch_scc0 L_{name}_nox')
    a('s_mov_b32 s45, 1024')
    a(f'buffer_load_dwordx4 v[32:35], v11, s[16:19], s45 offen')
    a(f'buffer_load_dwordx4 v[36:39], v2, s[24:27], s67 offen')
    a('s_waitcnt vmcnt(0)')
    a(f'v_mfma_f32_32x32x16_bf16 v[{ACCF}:{ACCF+15}], v[36:39], v[32:35], v[{ACCF}:{ACCF+15}]')
    a.label(f'L_{name}_nox')
    a('s_nop 15')
    a('s_cmp_eq_u32 s60, 0')
    a(f's_cbranch_scc1 L_{name}_nospin')
    a(f'v_mov_b32 v12, {K2_CNT+8}')
    a.label(f'L_{name}_spin')
    a('ds_read_b32 v13, v12')
    a('s_waitcnt lgkmcnt(0)')
    a('v_readfirstlane_b32 s47, v13')
    a('s_nop 3')
    a('s_cmp_eq_u32 s47, 0')
    a(f's_cbranch_scc0 L_{name}_nospin')
    a('s_sleep 2')
    a(f's_branch L_{name}_spin')
    a.label(f'L_{name}_nospin')
    a('s_lshl_b32 s45, s35, 12')
    a(f's_add_u32 s45, s45, {K2_SUM}')
    a('v_add_u32 v12, s45, v2')
    for g in range(4): a(f'ds_write_b128 v12, v[{ACCF+4*g}:{ACCF+4*g+3}] offset:{g*1024}')
    stamp(a,5)
    a('s_waitcnt lgkmcnt(0)')
    a('s_lshl_b32 s45, s60, 2')
    a(f's_add_u32 s45, s45, {K2_CNT}')
    a('v_mov_b32 v12, s45')
    a('v_mov_b32 v13, 1')
    a('s_mov_b64 exec, 1')
    a('ds_add_rtn_u32 v14, v12, v13')
    a('s_waitcnt lgkmcnt(0)')
    a('s_mov_b64 exec, -1')
    a('v_readfirstlane_b32 s47, v14')
    a('s_nop 3')
    a('s_cmp_eq_u32 s47, 3')
    a(f's_cbranch_scc0 L_{name}_nextjob')
    a(f'v_add_u32 v12, {K2_SUM}, v2')
    for g in range(4): a(f'ds_read_b128 v[{32+4*g}:{35+4*g}], v12 offset:{g*1024}')
    for g in range(4): a(f'ds_read_b128 v[{80+4*g}:{83+4*g}], v12 offset:{4096+g*1024}')
    for g in range(4): a(f'ds_read_b128 v[{48+4*g}:{51+4*g}], v12 offset:{8192+g*1024}')
    a('s_waitcnt lgkmcnt(8)')
    for g in range(4): a(f'ds_read_b128 v[{96+4*g}:{99+4*g}], v12 offset:{12288+g*1024}')
    a('s_waitcnt lgkmcnt(0)')
    a(f'v_mov_b32 v12, {K2_CNT+8}')
    a('v_mov_b32 v13, 1')
    a('ds_write_b32 v12, v13')
    for r in range(16): a(f'v_add_f32 v{48+r}, v{48+r}, v{96+r}')
    for r in range(16): a(f'v_add_f32 v{32+r}, v{32+r}, v{80+r}')
    a('s_cmp_eq_u32 s60, 0')
    a(f's_cbranch_scc1 L_{name}_haveq')
    for r in range(16):
        a(f'v_add_f32 v{32+r}, v{32+r}, v{48+r}')
        a(f'v_mov_b32 v{48+r}, 0')
    a.label(f'L_{name}_haveq')
    for r in range(16):
        a(f'v_sub_f32 v{64+r}, v{32+r}, v{48+r}')
        a(f'v_add_f32 v{32+r}, v{32+r}, v{48+r}')
    for q in range(8):
        a(f'v_cvt_pk_bf16_f32 v{80+q}, v{64+2*q}, v{64+2*q+1}')
        a(f'v_cvt_pk_bf16_f32 v{88+q}, v{32+2*q}, v{32+2*q+1}')
    a(f'v_mul_u32_u24 v13, {YQ_PITCH}, v8')
    a('v_lshl_add_u32 v13, v10, 3, v13')
    a('s_lshl_b32 s42, s41, 6')
    a(f's_add_u32 s42, s42, {WS_Y}')
    a(f's_add_u32 s43, s42, 0x100000')
    for b in range(4):
        a(f'buffer_store_dwordx2 v[{80+2*b}:{81+2*b}], v13, s[24:27], s42 offen offset:{b*16} sc1')
        a(f'buffer_store_dwordx2 v[{88+2*b}:{89+2*b}], v13, s[24:27], s43 offen offset:{b*16} sc1')
    if fused:
        a('s_waitcnt vmcnt(0)')
        a('v_lshlrev_b32 v12, 7, v1')
        a(f'v_add_u32 v12, {WS_FLAG+4}, v12')
        a('v_mov_b32 v13, 1')
        a('s_mov_b64 exec, 0xff')
        a('global_atomic_add v12, v13, s[24:25] sc1')
        a('s_mov_b64 exec, -1')
    a.label(f'L_{name}_nextjob')
    a('s_add_u32 s60, s60, 1')
    a('s_cmp_eq_u32 s60, 1')
    a(f's_cbranch_scc0 L_{name}_fin')
    a('s_cmp_ge_u32 s2, 224')
    a(f's_cbranch_scc1 L_{name}_edgec')
    a('s_sub_u32 s42, s2, 192')
    a('s_cmp_lt_u32 s42, 9')
    a(f's_cbranch_scc0 L_{name}_fin')
    a('s_mov_b32 s40, 32')
    a('s_mov_b32 s41, s42')
    a(f's_branch L_{name}_job')
    a.label(f'L_{name}_edgec')
    a('s_mov_b32 s41, 8')
    a(f's_branch L_{name}_job')
    a.label(f'L_{name}_fin')
    if fused:
        a('s_setprio 0')
        srd(a, 8, 56, 0x80000)
        a('v_lshrrev_b32 v3, 3, v1')
        a('v_bfe_u32 v4, v1, 4, 1')
        a('v_lshlrev_b32 v4, 2, v4')
        a('v_and_b32 v5, 7, v1')
        a('v_xor_b32 v4, v4, v5')
        a('v_lshlrev_b32 v4, 4, v4')
        a('v_lshl_add_u32 v3, v3, 10, v4')
        a('s_lshl_b32 s45, s35, 17')
        a('s_lshr_b32 s48, s2, 5')
        a('s_lshl_b32 s48, s48, 7')
        a('s_add_u32 s45, s45, s48')
        for i in range(16):
            a(f's_add_u32 s49, s45, {i*8192}')
            a(f'buffer_load_dwordx4 v[{32+4*i}:{35+4*i}], v3, s[8:11], s49 offen')
        a('s_lshl_b32 s45, s35, 14')
        a('v_add_u32 v4, s45, v2')
        a('s_waitcnt vmcnt(0)')
        a('s_barrier')
        for i in range(16): a(f'ds_write_b128 v4, v[{32+4*i}:{35+4*i}] offset:{i*1024}')
        a('s_waitcnt lgkmcnt(0)')
        a('s_barrier')
        stamp_flush(a, 6, 24, 32, 12, 1, vtmp=104, extra=78)
        a(f's_branch L_{name}_end')
        a.label(f'L_{name}_endB')
        a('s_setprio 0')
        a('s_barrier')
        stamp_flush(a, 6, 24, 32, 12, 1, vtmp=104, extra=78)
        if STAMPS: a('s_mov_b64 exec, -1')
        a('s_cmp_ge_u32 s32, 4')
        a(f's_cbranch_scc1 L_{name}_w47')
        phase_c(a, name)
        a(f's_branch L_{name}_end')
        a.label(f'L_{name}_w47')
        a('s_barrier')
    else:
        stamp_flush(a, 6, 24, 32, 12, 1, vtmp=104, extra=78)
    a.label(f'L_{name}_end')
    a('s_endpgm')
    return 168


K3_X=65536
K3_LDS=K3_X+16384
def gen_k3(a, name):
    a.stflag=''
    kernel_header(a, name)
    a('s_cmp_ge_u32 s2, 256')
    a(f's_cbranch_scc1 L_{name}_end')
    stamp(a,0)
    a('s_load_dwordx2 s[46:47], s[0:1], 88')
    a('v_lshrrev_b32 v2, 6, v0')
    a('v_and_b32 v1, 63, v0')
    a('v_readfirstlane_b32 s32, v2')
    a('v_lshlrev_b32 v2, 4, v1')
    a('s_and_b32 s33, s2, 7')
    a('s_lshr_b32 s34, s2, 3')
    a('s_and_b32 s35, s34, 3')
    a('s_lshl_b32 s40, s33, 2')
    a('s_add_u32 s40, s40, s35')
    a('s_lshr_b32 s41, s2, 5')
    a('s_and_b32 s42, s32, 1')
    a('s_lshr_b32 s43, s32, 1')
    a('s_lshl_b32 s44, s40, 1')
    a('s_add_u32 s44, s44, s42')
    a('s_add_u32 s50, s41, s35')
    a('s_and_b32 s50, s50, 3')
    a('v_lshrrev_b32 v3, 3, v1')
    a('v_bfe_u32 v4, v1, 4, 1')
    a('v_lshlrev_b32 v4, 2, v4')
    a('v_and_b32 v5, 7, v1')
    a('v_xor_b32 v4, v4, v5')
    a('v_lshlrev_b32 v4, 4, v4')
    a('v_lshl_add_u32 v3, v3, 10, v4')
    a('s_lshl_b32 s45, s43, 8')
    a('s_lshl_b32 s48, s42, 5')
    a('s_add_u32 s45, s45, s48')
    a('s_lshl_b32 s48, s41, 7')
    a('s_lshl_b32 s51, s44, 15')
    a('s_lshl_b32 s52, s43, 14')
    a('s_add_u32 s51, s51, s52')
    a(f's_add_u32 s51, s51, {WS_O}')
    a('s_waitcnt lgkmcnt(0)')
    srd(a, 8, 36, 0x80000)
    srd(a, 24, 46, WS_SIZE)
    OF=32
    def issue(st):
        a(f's_add_u32 s53, s50, {st}')
        a('s_and_b32 s53, s53, 3')
        a('s_lshl_b32 s54, s53, 6')
        a('s_add_u32 s54, s54, s45')
        a('s_lshl_b32 s55, s54, 7')
        a('s_lshl_b32 s56, s54, 10')
        a('s_add_u32 s56, s56, s48')
        for i in range(4):
            a(f's_add_u32 m0, s55, {i*1024}')
            a(f's_add_u32 s57, s56, {i*8192}')
            a('buffer_load_dwordx4 v3, s[8:11], s57 offen lds')
        a('s_lshl_b32 s56, s53, 12')
        a('s_add_u32 s56, s56, s51')
        for i in range(4):
            a(f'buffer_load_dwordx4 v[{OF+16*st+4*i}:{OF+16*st+4*i+3}], v2, s[24:27], s56 offen offset:{i*1024}')
    issue(0); issue(1)
    srd(a, 12, 38, 0x200000)
    a('v_and_b32 v8, 31, v1')
    a('v_lshrrev_b32 v9, 5, v1')
    a('s_lshl_b32 s58, s44, 5')
    a('v_add_u32 v10, s58, v8')
    a('v_and_b32 v12, 511, v10')
    a('s_lshr_b32 s58, s44, 4')
    a('s_cmp_eq_u32 s58, 0')
    a('s_cselect_b32 s59, 0, 1024')
    a('s_cmp_eq_u32 s58, 1')
    a('s_cselect_b32 s59, 2048, s59')
    a('s_and_b32 s61, s58, 1')
    a('s_cmp_eq_u32 s58, 1')
    a('s_cselect_b32 s62, 1, 0')
    a('s_cmp_eq_u32 s58, 2')
    a('s_cselect_b32 s62, 1, s62')
    a('v_add_u32 v10, s59, v12')
    a('v_sub_u32 v11, s59, v12')
    a('s_cmp_eq_u32 s62, 1')
    a('s_cselect_b64 vcc, -1, 0')
    a('v_cndmask_b32 v10, v10, v11, vcc')
    a('s_cmp_lt_u32 s58, 2')
    a('s_cselect_b64 vcc, -1, 0')
    a('v_sub_u32 v11, 1024, v12')
    a('v_cndmask_b32 v13, v11, v12, vcc')
    a('s_lshl_b32 s61, s61, 20')
    a('v_mov_b32 v106, s61')
    a('s_lshr_b32 s62, s58, 1')
    a('s_lshl_b32 s63, s62, 10')
    a('s_add_u32 s63, s63, 512')
    a('s_lshl_b32 s62, s62, 20')
    a('s_and_b32 s59, s58, 1')
    a('s_cmp_eq_u32 s59, 1')
    a('s_cselect_b64 s[64:65], -1, 0')
    a('v_cmp_eq_u32 vcc, 0, v12')
    a('s_nop 1')
    a('s_and_b64 vcc, vcc, s[64:65]')
    a('v_mov_b32 v11, s63')
    a('v_cndmask_b32 v10, v10, v11, vcc')
    a('v_mov_b32 v11, 512')
    a('v_cndmask_b32 v13, v13, v11, vcc')
    a('v_mov_b32 v11, s62')
    a('v_cndmask_b32 v106, v106, v11, vcc')
    a('v_lshlrev_b32 v11, 10, v10')
    a('v_lshl_add_u32 v11, v9, 3, v11')
    a('s_lshl_b32 s58, s41, 7')
    a('s_lshl_b32 s59, s43, 6')
    a('s_add_u32 s58, s58, s59')
    a('v_add_u32 v11, s58, v11')
    a(f'v_mul_u32_u24 v13, {YQ_PITCH}, v13')
    a('v_lshlrev_b32 v12, 3, v9')
    a('s_cmp_lt_u32 s41, 4')
    a(f's_cbranch_scc0 L_{name}_ym')
    a('v_add_u32 v13, v13, v12')
    a('v_add_u32 v13, s58, v13')
    a(f's_branch L_{name}_ymd')
    a.label(f'L_{name}_ym')
    a('v_sub_u32 v13, v13, v12')
    a('s_sub_u32 s59, 1018-48, s58')
    a('v_add_u32 v13, s59, v13')
    a.label(f'L_{name}_ymd')
    a('s_lshr_b32 s59, s41, 2')
    a('s_lshl_b32 s59, s59, 20')
    a('v_xor_b32 v106, s59, v106')
    a('v_add_u32 v13, v13, v106')
    a(f's_mov_b32 s60, {WS_Y}')
    a('v_lshlrev_b32 v105, 2, v10')
    a('v_bfe_u32 v5, v1, 2, 2')
    a('v_lshl_add_u32 v6, v9, 2, v5')
    a('v_lshlrev_b32 v6, 7, v6')
    a('v_bfe_u32 v7, v1, 3, 1')
    a('v_lshlrev_b32 v7, 6, v7')
    a('v_bfe_u32 v12, v1, 4, 1')
    a('v_lshl_add_u32 v6, v12, 5, v6')
    a('v_bfe_u32 v12, v1, 1, 1')
    a('v_lshl_add_u32 v6, v12, 4, v6')
    a('v_and_b32 v12, 1, v1')
    a('v_lshl_add_u32 v6, v12, 3, v6')
    a('v_add_u32 v14, v6, v7')
    a('s_lshl_b32 s58, s43, 15')
    a('v_add_u32 v14, s58, v14')
    ACC=[16,112]
    FW=[128,136]
    stamp(a,1)
    first=True
    waits={0:8, 1:8, 2:13, 3:5}
    for st in range(4):
        a(f's_add_u32 s53, s50, {st}')
        a('s_and_b32 s53, s53, 3')
        a('s_lshl_b32 s53, s53, 13')
        a('v_add_u32 v6, s53, v14')
        a('v_xor_b32 v7, 64, v6')
        a(f's_waitcnt vmcnt({waits[st]})')
        a('s_barrier')
        if st==0: stamp(a,2)
        def reads(i):
            s_=i%2
            for j in range(2):
                a(f'ds_read_b64_tr_b16 v[{FW[s_]+4*j}:{FW[s_]+4*j+1}], v{6+j} offset:{i*2048}')
                a(f'ds_read_b64_tr_b16 v[{FW[s_]+4*j+2}:{FW[s_]+4*j+3}], v{6+j} offset:{i*2048+1024}')
        reads(0)
        if st==0: issue(2)
        if st==1:
            issue(3)
            for b in range(4): a(f'buffer_load_dwordx2 v[{96+2*b}:{97+2*b}], v13, s[24:27], s60 offen offset:{b*16}')
            a(f's_mov_b32 s59, {WS_G}')
            a('buffer_load_dword v104, v105, s[24:27], s59 offen')
        for i in range(4):
            if i<3: reads(i+1); a('s_waitcnt lgkmcnt(4)')
            else: a('s_waitcnt lgkmcnt(0)')
            s_=i%2
            for j in range(2):
                c = '0' if first else f'v[{ACC[j]}:{ACC[j]+15}]'
                a(f'v_mfma_f32_32x32x16_bf16 v[{ACC[j]}:{ACC[j]+15}], v[{FW[s_]+4*j}:{FW[s_]+4*j+3}], v[{OF+16*st+4*i}:{OF+16*st+4*i+3}], {c}')
            first=False
    stamp(a,3)
    a('s_lshl_b32 s48, s42, 13')
    a('s_xor_b32 s49, s43, 1')
    a('s_lshl_b32 s49, s49, 12')
    a('s_add_u32 s49, s49, s48')
    a(f's_add_u32 s49, s49, {K3_X}')
    a('v_add_u32 v5, s49, v2')
    a('s_lshl_b32 s49, s43, 12')
    a('s_add_u32 s49, s49, s48')
    a(f's_add_u32 s49, s49, {K3_X}')
    a('v_add_u32 v6, s49, v2')
    a('s_nop 7')
    a('s_cmp_eq_u32 s43, 0')
    a(f's_cbranch_scc0 L_{name}_kw1')
    for g in range(4): a(f'ds_write_b128 v5, v[{ACC[1]+4*g}:{ACC[1]+4*g+3}] offset:{g*1024}')
    a(f's_branch L_{name}_x')
    a.label(f'L_{name}_kw1')
    for g in range(4): a(f'ds_write_b128 v5, v[{ACC[0]+4*g}:{ACC[0]+4*g+3}] offset:{g*1024}')
    a('s_nop 1')
    for r in range(16): a(f'v_mov_b32 v{ACC[0]+r}, v{ACC[1]+r}')
    a.label(f'L_{name}_x')
    a('s_waitcnt vmcnt(0) lgkmcnt(0)')
    a('s_barrier')
    for g in range(4): a(f'ds_read_b128 v[{32+4*g}:{35+4*g}], v6 offset:{g*1024}')
    a('v_sub_f32 v105, 1.0, v104')
    a('s_cmp_lt_u32 s41, 4')
    a(f's_cbranch_scc0 L_{name}_um')
    for b in range(4):
        for q in range(2):
            src=96+2*b+q
            a(f'v_lshlrev_b32 v{48+4*b+2*q}, 16, v{src}')
            a(f'v_and_b32 v{48+4*b+2*q+1}, 0xffff0000, v{src}')
    a(f's_branch L_{name}_umd')
    a.label(f'L_{name}_um')
    for b in range(4):
        g=3-b
        d0=96+2*b; d1=97+2*b
        a(f'v_and_b32 v{48+4*g+0}, 0xffff0000, v{d1}')
        a(f'v_lshlrev_b32 v{48+4*g+1}, 16, v{d1}')
        a(f'v_and_b32 v{48+4*g+2}, 0xffff0000, v{d0}')
        a(f'v_lshlrev_b32 v{48+4*g+3}, 16, v{d0}')
    a.label(f'L_{name}_umd')
    for r in range(16): a(f'v_mul_f32 v{48+r}, v104, v{48+r}')
    a('s_waitcnt lgkmcnt(0)')
    for r in range(16):
        a(f'v_add_f32 v{16+r}, v{16+r}, v{32+r}')
    for r in range(16):
        a(f'v_fmac_f32 v{48+r}, v105, v{16+r}')
    for b in range(4):
        a(f'v_cvt_pk_bf16_f32 v{64+2*b}, v{48+4*b}, v{48+4*b+1}')
        a(f'v_cvt_pk_bf16_f32 v{65+2*b}, v{48+4*b+2}, v{48+4*b+3}')
    for b in range(4):
        a(f'buffer_store_dwordx2 v[{64+2*b}:{65+2*b}], v11, s[12:15], 0 offen offset:{b*16}')
    stamp_flush(a, 4, 24, 32, 4, 2, vtmp=106)
    a.label(f'L_{name}_end')
    a('s_endpgm')
    return 144

def build(kernels):
    a=Asm()
    hdr = """; Kernarg layout (96 bytes): A_x, dft_seq_re, dft_seq_im, dft_hid_re, dft_hid_im, B_x, wqkv, wo, gate_w, out, debug, ws
"""
    descs=''
    body=Asm()
    for (name, fn, grid, block, lds) in kernels:
        hdr += f'; @launch kernel={name} grid=({grid},1,1) block=({block},1,1) lds={lds}\n'
    body.raw('.amdgcn_target "amdgcn-amd-amdhsa--gfx950"')
    body.raw('.text')
    for (name, fn, grid, block, lds) in kernels:
        v=fn(body,name)
        descs += kernel_desc(name, v)
    return hdr + body.text() + '.section .rodata,"a"\n' + descs

if __name__=='__main__':
    which = sys.argv[1] if len(sys.argv)>1 else 'k1'
    ks=[]
    ks.append(('k1_qkv_kernel', gen_k1, 256, 512, K1_LDS))
    if which in ('k2','all'): ks.append(('k2_attn_kernel', gen_k2, 256, 768, K2_LDS))
    if which=='f23': ks.append(('k2_attn_kernel', gen_k23, 256, 768, K2_LDS))
    if which=='all': ks.append(('k3_out_kernel', gen_k3, 256, 256, K3_LDS))
    txt=build(ks)
    out = sys.argv[2] if len(sys.argv)>2 else 'out.s'
    open(out,'w').write(txt)
```

```python
import sys, os
NAME='gated_mix__spectral_fnet__mha_block__prompt'
WS_Q=0; WS_KV=0x200000; WS_O=0x600000; WS_Y=0x800000; WS_T1=0xA00000; WS_T2=0xB00000; WS_G=0xC00000
WS_FLAG=0xC80000
WS_SIZE=0xD00000
YQ_PITCH=576; YQ_SZ=0x98000
T1_ET=65*1024; T2_ET=64*1024
WS_T=0xA00000; T_ET=33*1024; T_ARR=0x50000
C_SCALE=0.25*1.4426950408889634
import struct
def f2u(x): return struct.unpack('<I',struct.pack('<f',x))[0]

STAMPS = os.environ.get('STAMPS','0')=='1'
NOFNET = os.environ.get('NOFNET','0')=='1'
NOPRIO = os.environ.get('NOPRIO','0')=='1'
FAKEA = os.environ.get('FAKEA','0')=='1'
EXPT = os.environ.get('EXPT','')
FPRIO = int(os.environ.get('FPRIO','3'))
PR = [int(x) for x in os.environ.get('PR','9,10,15,63').split(',')]
class Asm:
    def __init__(self): self.L=[]; self.noload=False; self.stflag=''
    def __call__(self, s):
        for line in s.strip('\n').split('\n'):
            if self.noload and line.strip().endswith(' lds'): continue
            if NOPRIO and line.strip().startswith('s_setprio'): continue
            if line.strip().startswith('buffer_store_dwordx4') and self.stflag:
                if self.stflag=='none': continue
                line = line.strip()+' '+self.stflag
            self.L.append('    '+line.strip())
    def label(self, s): self.L.append(s+':')
    def raw(self, s): self.L.append(s)
    def text(self): return '\n'.join(self.L)+'\n'

def srd(a, d, lo, size):
    a(f's_mov_b32 s{d}, s{lo}')
    a(f's_mov_b32 s{d+1}, s{lo+1}')
    a(f's_mov_b32 s{d+2}, {hex(size)}')
    a(f's_mov_b32 s{d+3}, 0x20000')

def pi_perm(a, dst, src, tmp):
    a(f'v_and_b32 v{dst}, 0x13, v{src}')
    a(f'v_and_b32 v{tmp}, 4, v{src}')
    a(f'v_lshl_or_b32 v{dst}, v{tmp}, 1, v{dst}')
    a(f'v_and_b32 v{tmp}, 8, v{src}')
    a(f'v_lshrrev_b32 v{tmp}, 1, v{tmp}')
    a(f'v_or_b32 v{dst}, v{dst}, v{tmp}')

WS_STAMP=0x1000000
def stamp(a, i):
    if STAMPS:
        a(f's_memrealtime s[{80+2*i}:{81+2*i}]')
def stamp_flush(a, n, wsreg, widreg, wpw, kidx, vtmp=100, extra=None):
    if not STAMPS: return
    a('s_waitcnt vmcnt(0) lgkmcnt(0)')
    a(f's_memrealtime s[{80+2*n}:{81+2*n}]')
    a('s_waitcnt lgkmcnt(0)')
    a(f's_mul_i32 s98, s2, {wpw}')
    a(f's_add_u32 s98, s98, s{widreg}')
    a('s_lshl_b32 s98, s98, 5')
    a(f's_add_u32 s98, s98, {WS_STAMP+kidx*0x40000}')
    a(f's_mov_b32 s{wsreg+2}, 0x2000000')
    a('s_mov_b64 exec, 1')
    a(f'v_mov_b32 v{vtmp+1}, 0')
    for i in range(n+1):
        a(f'v_mov_b32 v{vtmp}, s{80+2*i}')
        a(f'buffer_store_dword v{vtmp}, v{vtmp+1}, s[{wsreg}:{wsreg+3}], s98 offen offset:{4*i}')
        a('s_nop 1')
    if extra is not None:
        a(f'v_mov_b32 v{vtmp}, s{extra}')
        a(f'buffer_store_dword v{vtmp}, v{vtmp+1}, s[{wsreg}:{wsreg+3}], s98 offen offset:28')

def kernel_header(a, name):
    a.raw(f'.globl {name}')
    a.raw('.p2align 8')
    a.raw(f'.type {name},@function')
    a.label(name)

def kernel_desc(name, vgpr, sgpr=102):
    acc = (vgpr+3)//4*4
    return f""".p2align 6
.amdhsa_kernel {name}
  .amdhsa_next_free_vgpr {vgpr}
  .amdhsa_next_free_sgpr {sgpr}
  .amdhsa_accum_offset {acc}
  .amdhsa_group_segment_fixed_size 0
  .amdhsa_kernarg_size 96
  .amdhsa_user_sgpr_count 2
  .amdhsa_user_sgpr_kernarg_segment_ptr 1
  .amdhsa_system_sgpr_workgroup_id_x 1
.end_amdhsa_kernel
"""

K1_SLOT=32768
K1_NS=4
K1_X=0; K1_WQK=16384; K1_WV=24576; K1_WD=28672
K1_LDS=163840

SELF_KB=int(os.environ.get('SELF_KB','7'))
def gen_k1(a, name):
    WR=131072
    a.noload = 'noload' in EXPT
    a.stflag = 'sc1' if 'st_sc1' in EXPT else 'nt' if 'st_nt' in EXPT else 'none' if 'st_none' in EXPT else 'sc0 sc1' if 'st_sc01' in EXPT else '' if 'st_plain' in EXPT else 'sc1'
    kernel_header(a, name)
    a('s_cmp_ge_u32 s2, 256')
    a(f's_cbranch_scc1 L_{name}_end')
    stamp(a,0)
    a('s_load_dwordx2 s[4:5], s[0:1], 0')
    a('s_load_dwordx4 s[36:39], s[0:1], 24')
    a('s_load_dwordx2 s[42:43], s[0:1], 48')
    a('s_load_dwordx2 s[44:45], s[0:1], 64')
    a('s_load_dwordx2 s[46:47], s[0:1], 88')
    a('v_lshrrev_b32 v2, 6, v0')
    a('v_and_b32 v1, 63, v0')
    a('v_readfirstlane_b32 s32, v2')
    a('s_and_b32 s33, s2, 7')
    a('s_lshr_b32 s34, s2, 3')
    a('s_lshr_b32 s54, s33, 1')
    a('s_lshl_b32 s54, s54, 2')
    a('s_and_b32 s55, s34, 3')
    a('s_add_u32 s54, s54, s55')
    a('s_and_b32 s55, s33, 1')
    a('s_lshl_b32 s55, s55, 3')
    a('s_lshr_b32 s56, s34, 2')
    a('s_add_u32 s55, s55, s56')
    a('s_cmp_lt_u32 s32, 4')
    a(f's_cbranch_scc1 L_{name}_comp')
    a('s_sub_u32 s35, s32, 4')
    a('v_lshrrev_b32 v2, 3, v1')
    a('v_and_b32 v3, 7, v1')
    a('v_lshrrev_b32 v4, 4, v1')
    a('v_xor_b32 v5, v3, v4')
    a('v_lshlrev_b32 v5, 4, v5')
    a('s_and_b32 s57, s35, 1')
    a('s_lshl_b32 s56, s54, 5')
    a('v_add_u32 v11, s56, v2')
    a('s_lshr_b32 s58, s35, 1')
    a('s_lshl_b32 s58, s58, 10')
    a('s_cmp_eq_u32 s35, 0')
    a(f's_cbranch_scc1 L_{name}_plus')
    a('s_cmp_eq_u32 s35, 3')
    a(f's_cbranch_scc1 L_{name}_plus')
    a('s_sub_u32 s59, 2048, s58')
    a('v_sub_u32 v12, s59, v11')
    a('v_lshl_add_u32 v16, v12, 10, v5')
    a('v_subrev_u32 v17, 8192, v16')
    a('v_subrev_u32 v18, 16384, v16')
    a('v_subrev_u32 v19, 24576, v16')
    a(f's_branch L_{name}_mird')
    a.label(f'L_{name}_plus')
    a('v_add_u32 v12, s58, v11')
    a('v_lshl_add_u32 v16, v12, 10, v5')
    a('v_add_u32 v17, 8192, v16')
    a('v_add_u32 v18, 16384, v16')
    a('v_add_u32 v19, 24576, v16')
    a.label(f'L_{name}_mird')
    a('s_add_u32 s58, s58, 512')
    a('v_mov_b32 v13, s58')
    a('v_lshl_add_u32 v13, v13, 10, v5')
    a('v_cmp_eq_u32 vcc, 0, v11')
    a('s_cmp_eq_u32 s57, 1')
    a('s_cselect_b64 s[58:59], -1, 0')
    a('s_and_b64 vcc, vcc, s[58:59]')
    a('v_cndmask_b32 v16, v16, v13, vcc')
    a('v_xor_b32 v17, 64, v17')
    a('v_xor_b32 v19, 64, v19')
    a('v_bfe_u32 v6, v1, 4, 1')
    a('v_lshlrev_b32 v6, 2, v6')
    a('v_xor_b32 v6, v6, v3')
    a('v_lshlrev_b32 v6, 4, v6')
    a('v_mul_u32_u24 v7, 3072, v2')
    a('v_add_u32 v6, v6, v7')
    a('s_lshl_b32 s58, s55, 7')
    a('v_add_u32 v20, s58, v6')
    a('v_add_u32 v21, 8*3072, v20')
    a('v_lshrrev_b32 v6, 2, v1')
    a('v_mul_u32_u24 v6, 3072, v6')
    a('v_and_b32 v7, 3, v1')
    a('v_lshl_add_u32 v6, v7, 4, v6')
    a('s_lshl_b32 s58, s55, 6')
    a('s_add_u32 s58, s58, 2048')
    a('v_add_u32 v22, s58, v6')
    a('s_lshl_b32 s56, s55, 4')
    a('s_lshl_b32 s58, s57, 3')
    a('s_add_u32 s56, s56, s58')
    a('v_add_u32 v11, s56, v2')
    a('v_lshl_add_u32 v23, v11, 10, v5')
    a('s_lshl_b32 s58, s57, 6')
    a('v_xor_b32 v23, s58, v23')
    a('s_mul_i32 s71, s35, 16*3072')
    if 'norot' in EXPT: a('s_mov_b32 s70, 0')
    else:
        a('s_lshr_b32 s70, s34, 2')
        a('s_and_b32 s72, s34, 3')
        a('s_lshl_b32 s72, s72, 1')
        a('s_add_u32 s70, s70, s72')
        a('s_and_b32 s70, s70, 7')
    a('s_lshl_b32 s56, s70, 7')
    a(f's_mul_i32 s57, s70, {64*3072}')
    a('s_add_u32 s57, s57, s71')
    a('s_lshl_b32 s61, s35, 12')
    a('s_lshl_b32 s62, s35, 11')
    a('s_lshl_b32 s63, s35, 10')
    a('s_waitcnt lgkmcnt(0)')
    if STAMPS:
        a('s_memrealtime s[76:77]')
        a('s_waitcnt lgkmcnt(0)')
        a('s_sub_u32 s78, s76, s80')
    srd(a, 8, 4, 0x200000)
    srd(a, 16, 42, 0x180000)
    a('s_cmp_lt_u32 s35, 2')
    a('s_cselect_b32 s20, s36, s38')
    a('s_cselect_b32 s21, s37, s39')
    a('s_mov_b32 s22, 0x80000')
    a('s_mov_b32 s23, 0x20000')
    a('s_mov_b32 s50, 0')
    a('s_mov_b32 s72, 0')
    a('s_mov_b32 s73, s56')
    def issue_x():
        a('s_lshl_b32 s65, s72, 14')
        a('s_add_u32 s65, s65, s61')
        for i in range(4):
            a(f's_add_u32 m0, s65, {i*1024}')
            a('s_nop 0')
            a(f'buffer_load_dwordx4 v{16+i}, s[8:11], s73 offen lds')
        a('s_add_u32 s73, s73, 128')
        a('s_and_b32 s73, s73, 1023')
        a('s_add_u32 s72, s72, 1')
    def adv():
        a('s_add_u32 s70, s70, 1')
        a('s_and_b32 s70, s70, 7')
        a('s_lshl_b32 s56, s70, 7')
        a(f's_mul_i32 s57, s70, {64*3072}')
        a('s_add_u32 s57, s57, s71')
        a('s_add_u32 s50, s50, 1')
    def slot():
        a('s_and_b32 s52, s50, 3')
        a('s_lshl_b32 s52, s52, 13')
        a(f's_add_u32 s52, s52, {WR}')
    def issue_w1():
        slot()
        a('s_add_u32 s65, s52, s62')
        for i in range(2):
            a(f's_add_u32 m0, s65, {i*1024}')
            a('s_nop 0')
            a(f'buffer_load_dwordx4 v{20+i}, s[16:19], s57 offen lds')
        adv()
    XA_=int(os.environ.get('XAHEAD','1'))
    seq=[('x',0),('w',0),('x',1),('w',1)]+[('x',2+i) for i in range(XA_)]+[('b',0)]
    nx=2+XA_
    for j in range(1,7):
        seq.append(('w',j+1))
        if nx<8: seq.append(('x',nx)); nx+=1
        seq.append(('b',j))
    def cnt(o): return 4 if o[0]=='x' else 2
    ticks=[]; cur={}
    order={'w':0,'x':1,'b':2}
    last=-1
    for i,o in enumerate(seq):
        if order[o[0]]<=last:
            ticks.append(cur); cur={}
        if o[0]=='b':
            j=o[1]; pos=max(seq.index(('x',j)), seq.index(('w',j)))
            cur['b']=sum(cnt(q) for q in seq[pos+1:i] if q[0]!='b')
        else: cur[o[0]]=1
        last=order[o[0]]
    ticks.append(cur)
    mW=sum(1<<i for i,t in enumerate(ticks) if 'w' in t)
    mX=sum(1<<i for i,t in enumerate(ticks) if 'x' in t)
    waits=sorted(set(t['b'] for t in ticks if 'b' in t))
    a(f's_mov_b32 s74, 0')
    a(f's_mov_b32 s75, {mW}')
    a(f's_mov_b32 s76, {mX}')
    for k,wv in enumerate(waits):
        a(f's_mov_b32 s{84+k}, {sum(1<<i for i,t in enumerate(ticks) if t.get("b")==wv)}')
    a.label(f'L_{name}_tick')
    a('s_bitcmp1_b32 s75, s74')
    a(f's_cbranch_scc0 L_{name}_tk1')
    issue_w1()
    a.label(f'L_{name}_tk1')
    a('s_bitcmp1_b32 s76, s74')
    a(f's_cbranch_scc0 L_{name}_tk2')
    issue_x()
    a.label(f'L_{name}_tk2')
    for k,wv in enumerate(waits):
        a(f's_bitcmp1_b32 s{84+k}, s74')
        a(f's_cbranch_scc0 L_{name}_tw{k}')
        a(f's_waitcnt vmcnt({wv})')
        a('s_barrier')
        a.label(f'L_{name}_tw{k}')
    a('s_add_u32 s74, s74, 1')
    a(f's_cmp_lt_u32 s74, {len(ticks)}')
    a(f's_cbranch_scc1 L_{name}_tick')
    a.label(f'L_{name}_issue2')
    slot()
    a('s_add_u32 s65, s52, s63')
    a('s_mov_b32 m0, s65')
    a('s_nop 0')
    a(f'buffer_load_dwordx4 v22, s[16:19], s57 offen lds')
    a('s_add_u32 m0, s65, 4096')
    a('s_nop 0')
    a(f'buffer_load_dwordx4 v23, s[20:23], s56 offen lds')
    adv()
    a('s_cmp_eq_u32 s50, 16')
    a(f's_cbranch_scc1 L_{name}_ld16')
    a('s_waitcnt vmcnt(2)')
    a('s_barrier')
    a(f's_branch L_{name}_issue2')
    a.label(f'L_{name}_ld16')
    srd(a, 28, 44, 1024)
    a('s_lshl_b32 s48, s2, 3')
    a('s_lshl_b32 s49, s35, 1')
    a('s_add_u32 s48, s48, s49')
    a('s_lshl_b32 s49, s48, 10')
    a('v_lshlrev_b32 v12, 4, v1')
    a('buffer_load_dwordx4 v[24:27], v12, s[8:11], s49 offen')
    a('buffer_load_dwordx4 v[28:31], v12, s[8:11], s49 offen offset:1024')
    a('buffer_load_dwordx4 v[32:35], v12, s[28:31], 0 offen')
    a('s_waitcnt vmcnt(5)')
    a('s_barrier')
    a('s_waitcnt vmcnt(3)')
    a('s_barrier')
    stamp(a,3)
    a('s_barrier')
    srd(a, 24, 46, WS_SIZE)
    a('v_mov_b32 v16, 0'); a('v_mov_b32 v17, 0')
    a('s_waitcnt vmcnt(0)')
    for q in range(4):
        a(f'v_dot2_f32_bf16 v16, v{24+q}, v{32+q}, v16')
        a(f'v_dot2_f32_bf16 v17, v{28+q}, v{32+q}, v17')
    a('s_nop 2')
    def dpp(op):
        a('s_nop 0')
        a(f'v_add_f32_dpp v16, v16, v16 {op}')
        a(f'v_add_f32_dpp v17, v17, v17 {op}')
    for sh in (1,2,4,8): dpp(f'row_shr:{sh} row_mask:0xf bank_mask:0xf')
    dpp('row_bcast:15 row_mask:0xa bank_mask:0xf')
    dpp('row_bcast:31 row_mask:0xc bank_mask:0xf')
    for r in (16,17): a(f'v_mul_f32 v{r}, {hex(f2u(-1.4426950408889634))}, v{r}')
    for r in (16,17): a(f'v_exp_f32 v{r}, v{r}')
    a('s_nop 0')
    for r in (16,17): a(f'v_add_f32 v{r}, 1.0, v{r}')
    for r in (16,17): a(f'v_rcp_f32 v{r}, v{r}')
    a('s_lshl_b32 s49, s48, 2')
    a(f's_add_u32 s49, s49, {WS_G}')
    a('v_mov_b32 v18, 0')
    a('s_mov_b32 exec_lo, 0')
    a('s_mov_b32 exec_hi, 0x80000000')
    a('buffer_store_dwordx2 v[16:17], v18, s[24:27], s49 offen')
    a('s_mov_b64 exec, -1')
    if 'nopf' not in EXPT:
        a('s_cmp_lt_u32 s2, 16')
        a(f's_cbranch_scc0 L_{name}_nopf')
        a('s_cmp_eq_u32 s32, 7')
        a(f's_cbranch_scc0 L_{name}_nopf')
        a('s_getpc_b64 s[72:73]')
        a.label(f'L_{name}_pc')
        a(f's_add_u32 s72, s72, k2_attn_kernel-L_{name}_pc')
        a('s_addc_u32 s73, s73, 0')
        a('v_lshlrev_b32 v18, 4, v1')
        for i in range(6):
            a(f'global_load_dwordx4 v[{36+4*i}:{39+4*i}], v18, s[72:73]')
            a('v_add_u32 v18, 1024, v18')
        a('v_lshlrev_b32 v18, 4, v1')
        a('v_add_u32 v18, L_k2_attn_kernel_end-k2_attn_kernel-1024, v18')
        a('global_load_dwordx4 v[60:63], v18, s[72:73]')
        a.label(f'L_{name}_nopf')
    a('s_cmp_eq_u32 s2, 0')
    a(f's_cbranch_scc0 L_{name}_fin')
    a('s_cmp_eq_u32 s32, 4')
    a(f's_cbranch_scc0 L_{name}_fin')
    for r in range(20,24): a(f'v_mov_b32 v{r}, 0')
    a('v_lshlrev_b32 v18, 4, v1')
    a(f's_mov_b32 s49, {WS_FLAG}')
    a('buffer_store_dwordx4 v[20:23], v18, s[24:27], s49 offen')
    a(f's_branch L_{name}_fin')

    a.label(f'L_{name}_comp')
    if 'noselfpf' not in EXPT:
        a('s_cmp_lt_u32 s2, 16')
        a(f's_cbranch_scc0 L_{name}_nspf')
        a('s_cmp_eq_u32 s32, 3')
        a(f's_cbranch_scc0 L_{name}_nspf')
        a('s_getpc_b64 s[72:73]')
        a.label(f'L_{name}_pc0')
        a(f's_sub_u32 s72, s72, L_{name}_pc0-{name}')
        a('s_subb_u32 s73, s73, 0')
        a('v_lshlrev_b32 v18, 4, v1')
        for i in range(SELF_KB):
            a(f'global_load_dwordx4 v[{144+4*i}:{147+4*i}], v18, s[72:73]')
            a('v_add_u32 v18, 1024, v18')
        a.label(f'L_{name}_nspf')
    a('s_lshr_b32 s35, s32, 1')
    a('s_and_b32 s40, s32, 1')
    a('v_and_b32 v8, 31, v1')
    a('v_lshrrev_b32 v9, 5, v1')
    pi_perm(a, 10, 8, 11)
    def frag_addr(dst0, rowreg, base_off, tmp):
        a(f'v_lshrrev_b32 v{tmp}, 1, v{rowreg}')
        a(f'v_and_b32 v{tmp}, 7, v{tmp}')
        a(f'v_xor_b32 v{tmp}, v{tmp}, v9')
        a(f'v_lshlrev_b32 v{tmp}, 4, v{tmp}')
        a(f'v_lshl_add_u32 v{dst0}, v{rowreg}, 7, v{tmp}')
        if base_off: a(f'v_add_u32 v{dst0}, {base_off}, v{dst0}')
        for ks in range(1,4): a(f'v_xor_b32 v{dst0+ks}, {ks*32}, v{dst0}')
    a('s_lshl_b32 s63, s35, 6')
    a('v_add_u32 v11, s63, v10')
    frag_addr(16, 11, 0, 15)
    a('v_bfe_u32 v11, v1, 2, 2')
    a('v_lshl_add_u32 v11, v9, 3, v11')
    a('v_bfe_u32 v12, v1, 4, 1')
    a('v_and_b32 v13, 3, v1')
    a('v_lshlrev_b32 v20, 7, v11')
    a('v_bfe_u32 v14, v1, 3, 1')
    a('v_xor_b32 v14, s40, v14')
    a('v_lshl_add_u32 v20, v14, 6, v20')
    a('v_lshl_add_u32 v20, v12, 5, v20')
    a('v_lshrrev_b32 v14, 1, v13')
    a('v_lshl_add_u32 v20, v14, 4, v20')
    a('v_and_b32 v14, 1, v13')
    a('v_lshl_add_u32 v20, v14, 3, v20')
    a('v_lshlrev_b32 v22, 6, v11')
    a('v_lshl_add_u32 v22, v12, 5, v22')
    a('v_lshl_add_u32 v22, v13, 3, v22')
    frag_addr(24, 8, 4096, 15)
    a('s_cmp_eq_u32 s55, 0')
    a('s_cselect_b32 s66, 0x10000, 0')
    a('s_mov_b32 s67, s66')
    a('v_mov_b32 v14, 0xbf803f80')
    A1=[32,48]; A2=[64,80]
    FS=[96,108,120,132]
    XA=28; WA=21; DA=4
    a('s_mov_b32 s50, 0')
    def mf(d,A,B,zero=False):
        c='0' if zero else f'v[{d}:{d+15}]'
        return f'v_mfma_f32_32x32x16_bf16 v[{d}:{d+15}], v[{A}:{A+3}], v[{B}:{B+3}], {c}'
    def setaddr(kind):
        L=[]
        L.append('s_and_b32 s52, s51, 7'); L.append('s_lshl_b32 s52, s52, 14')
        L.append('s_and_b32 s53, s51, 3'); L.append('s_lshl_b32 s53, s53, 13'); L.append(f's_add_u32 s53, s53, {WR}')
        for ks in range(4): L.append(f'v_add_u32 v{XA+ks}, s52, v{16+ks}')
        if kind=='QK': L.append(f'v_add_u32 v{WA}, s53, v20')
        elif kind=='V': L.append(f'v_add_u32 v{WA}, s53, v22')
        else:
            for ks in range(4): L.append(f'v_add_u32 v{DA+ks}, s53, v{24+ks}')
        return L
    def reads(kind, ks):
        F=FS[ks]
        L=[f'ds_read_b128 v[{F}:{F+3}], v{XA+ks}', f'ds_read_b128 v[{F+4}:{F+7}], v{XA+ks} offset:4096']
        if kind=='QK':
            L+= [f'ds_read_b64_tr_b16 v[{F+8}:{F+9}], v{WA} offset:{ks*2048}', f'ds_read_b64_tr_b16 v[{F+10}:{F+11}], v{WA} offset:{ks*2048+512}']
        elif kind=='V':
            L+= [f'ds_read_b64_tr_b16 v[{F+8}:{F+9}], v{WA} offset:{ks*1024}', f'ds_read_b64_tr_b16 v[{F+10}:{F+11}], v{WA} offset:{ks*1024+256}']
        else:
            L+= [f'ds_read_b128 v[{F+8}:{F+11}], v{DA+ks}']
        return L
    def nreads(kind): return 3 if kind=='F' else 4
    def mfmas(kind, ks, zero=False):
        F=FS[ks]
        if kind=='QK': return [], [mf(A1[t], F+8, F+4*t, zero) for t in range(2)]
        pre=[f'v_cndmask_b32 v{F+8+q}, v{F+8+q}, v14, s[66:67]' for q in range(4)] if kind=='F' else []
        return pre, [mf(A2[t], F+4*t, F+8, zero) for t in range(2)]
    def body(kind, nxt, zero=False, extra=None, last=False):
        extra=list(extra or [])
        ex_per = -(-len(extra)//8) if extra else 0
        def take():
            nonlocal extra
            t=extra[:ex_per]; extra=extra[ex_per:]; return t
        n=nreads(kind); nn=nreads(nxt) if nxt else 0
        for ks in range(4):
            cnt=0
            for d in (1,2):
                k2=ks+d
                if k2<4: cnt+=n
                elif nxt: cnt+=nn
            if ks==0: pass
            a(f's_waitcnt lgkmcnt({min(cnt,15)})')
            pre,mm=mfmas(kind,ks,zero and ks==0)
            if ks==0: rd=reads(kind,3)
            elif nxt: rd=reads(nxt,ks-1)
            else: rd=[]
            for x in pre: a(x)
            if pre: a('s_nop 1')
            h1=rd[:2]; h2=rd[2:]
            a(mm[0])
            for x in h1: a(x)
            for x in take(): a(x)
            a(mm[1])
            for x in h2: a(x)
            for x in take(): a(x)
            if ks==0 and nxt:
                a('s_add_u32 s51, s50, 1')
                for x in setaddr(nxt): a(x)
                a('s_barrier')
        for x in extra: a(x)
        a('s_add_u32 s50, s50, 1')
    for r in range(32,64): a(f'v_mov_b32 v{r}, 0')
    stamp(a,1)
    a('s_waitcnt vmcnt(0) lgkmcnt(0)')
    a('s_barrier')
    stamp(a,2)
    if STAMPS: a('s_memtime s[74:75]')
    a('s_mov_b32 s51, 0')
    for x in setaddr('QK'): a(x)
    for ks in range(3):
        for x in reads('QK',ks): a(x)
    a.label(f'L_{name}_p1')
    body('QK','QK')
    a('s_cmp_lt_u32 s50, 7')
    a(f's_cbranch_scc1 L_{name}_p1')
    srd(a, 24, 46, WS_SIZE)
    a('s_lshl_b32 s57, s35, 5')
    a('s_add_u32 s56, s54, s57')
    a('s_cmp_ge_u32 s55, 8')
    a('s_cselect_b32 s57, 17, 16')
    a('s_cselect_b32 s58, 11, 10')
    a(f's_cselect_b32 s59, {WS_KV}, {WS_Q}')
    a(f's_cselect_b32 s60, 1.0, {hex(f2u(C_SCALE))}')
    a('s_lshl_b32 s57, 1, s57')
    a('s_lshl_b32 s61, s56, s58')
    a('s_add_u32 s59, s59, s61')
    a('s_lshl_b32 s63, 16, s58')
    a('s_and_b32 s62, s55, 7')
    a('s_lshl_b32 s62, s62, 2')
    a('s_lshl_b32 s64, s40, 1')
    a('s_add_u32 s62, s62, s64')
    a('s_mul_i32 s62, s62, s57')
    a('s_add_u32 s59, s59, s62')
    a('s_add_u32 s68, s59, s57')
    a('s_add_u32 s69, s59, s63')
    a('s_add_u32 s70, s68, s63')
    a('v_lshlrev_b32 v11, 9, v9')
    a('v_lshl_add_u32 v11, v10, 4, v11')
    def ep1(t):
        L=[]
        for hb in range(2):
            base=A1[t]+8*hb; d=144+8*t+4*hb
            for r in range(8): L.append(f'v_mul_f32 v{base+r}, s60, v{base+r}')
            for q in range(4): L.append(f'v_cvt_pk_bf16_f32 v{d+q}, v{base+2*q}, v{base+2*q+1}')
            so=[['s59','s68'],['s69','s70']][t][hb]
            L.append(f'buffer_store_dwordx4 v[{d}:{d+3}], v11, s[24:27], {so} offen')
        return L
    a('s_cmp_eq_u32 s40, 0')
    a(f's_cbranch_scc0 L_{name}_roleF')
    for role in ('V','F'):
        if role=='F': a.label(f'L_{name}_roleF')
        body('QK',role)
        stamp(a,1)
        body(role,role,zero=True,extra=['s_nop 7','s_nop 3']+ep1(0))
        body(role,role,extra=ep1(1))
        a.label(f'L_{name}_p2{role}')
        body(role,role)
        a('s_cmp_lt_u32 s50, 15')
        a(f's_cbranch_scc1 L_{name}_p2{role}')
        body(role,None)
        if STAMPS:
            a('s_memtime s[76:77]')
            a('s_waitcnt lgkmcnt(0)')
            a('s_sub_u32 s78, s76, s74')
        stamp(a,3)
        a('s_nop 15')
        if role=='V':
            a('s_barrier')
            a('s_lshl_b32 s57, s35, 5')
            a('s_add_u32 s58, s54, s57')
            a('v_lshrrev_b32 v19, 4, v8')
            a('v_lshlrev_b32 v19, 17, v19')
            a('v_lshl_add_u32 v19, v9, 9, v19')
            a('v_and_b32 v13, 15, v8')
            a('v_lshl_add_u32 v19, v13, 4, v19')
            a('s_lshl_b32 s61, s55, 18')
            a('s_lshl_b32 s62, s58, 11')
            a('s_add_u32 s61, s61, s62')
            a(f's_add_u32 s61, s61, {WS_KV+1024}')
            for t in range(2):
                for mfi in range(2):
                    base=A2[t]+8*mfi
                    d=96+8*t+4*mfi
                    for q in range(4): a(f'v_cvt_pk_bf16_f32 v{d+q}, v{base+2*q}, v{base+2*q+1}')
                    a(f'buffer_store_dwordx4 v[{d}:{d+3}], v19, s[24:27], s61 offen offset:{mfi*256}')
                if t==0: a('s_add_u32 s61, s61, 32768')
            a(f's_branch L_{name}_fin')
    ACC=[[0,A2[0]],[0,A2[1]]]
    XCH = 0
    a('v_mov_b32 v12, -1.0')
    a('v_mov_b32 v13, 1.0')
    a('v_cmp_gt_u32 vcc, 16, v8')
    a('s_nop 1')
    a('v_cndmask_b32 v12, v12, v13, vcc')
    a('v_cndmask_b32 v12, v12, v13, s[66:67]')
    a('s_cmp_eq_u32 s54, 0')
    a('s_cselect_b32 s68, -1, 0')
    a('s_mov_b32 s69, 0')
    A0=ACC[0][1]; A1=ACC[1][1]
    a(f'v_mov_b32 v15, v{A1}')
    a('v_mov_b32 v13, 0')
    a(f'v_cndmask_b32 v{A1}, v{A1}, v13, s[68:69]')
    for r in range(16): a(f'v_fma_f32 v{A0+r}, v{A1+r}, v12, v{A0+r}')
    a('v_lshlrev_b32 v11, 4, v1')
    a('s_mul_i32 s63, s35, 5120')
    a(f's_add_u32 s63, s63, {XCH}')
    a('v_add_u32 v16, s63, v11')
    a('s_xor_b32 s63, s35, 1')
    a('s_mul_i32 s63, s63, 5120')
    a(f's_add_u32 s63, s63, {XCH}')
    a('v_add_u32 v17, s63, v11')
    for g in range(4): a(f'ds_write_b128 v16, v[{A0+4*g}:{A0+4*g+3}] offset:{g*1024}')
    a('v_lshlrev_b32 v18, 2, v1')
    a('s_mul_i32 s63, s35, 5120')
    a(f's_add_u32 s63, s63, {XCH+4096}')
    a('v_add_u32 v18, s63, v18')
    a('ds_write_b32 v18, v15')
    a('s_waitcnt lgkmcnt(0)')
    a('s_barrier')
    for g in range(4): a(f'ds_read_b128 v[{112+4*g}:{115+4*g}], v17 offset:{g*1024}')
    a('v_lshlrev_b32 v18, 2, v1')
    a('s_xor_b32 s63, s35, 1')
    a('s_mul_i32 s63, s63, 5120')
    a(f's_add_u32 s63, s63, {XCH+4096}')
    a('v_add_u32 v18, s63, v18')
    a('ds_read_b32 v14, v18')
    a('s_waitcnt lgkmcnt(0)')
    a('s_cmp_eq_u32 s35, 0')
    a(f's_cbranch_scc0 L_{name}_odd')
    for r in range(16): a(f'v_fma_f32 v{A0+r}, v{112+r}, v12, v{A0+r}')
    a('v_fma_f32 v15, v14, v12, v15')
    a(f's_branch L_{name}_oddd')
    a.label(f'L_{name}_odd')
    a('v_sub_f32 v13, 0, v12')
    for r in range(16): a(f'v_fma_f32 v{A0+r}, v{A0+r}, v13, v{112+r}')
    a('v_fma_f32 v15, v15, v12, v14')
    a.label(f'L_{name}_oddd')
    for q in range(8): a(f'v_cvt_pk_bf16_f32 v{144+q}, v{A0+2*q}, v{A0+2*q+1}')
    a('s_lshr_b32 s57, s55, 1')
    a(f's_mul_i32 s58, s57, {T_ET}')
    a(f's_mul_i32 s59, s35, {2*T_ARR}')
    a('s_add_u32 s58, s58, s59')
    a(f's_add_u32 s58, s58, {WS_T}')
    a(f's_add_u32 s60, s58, {T_ARR}')
    a('s_and_b32 s62, s55, 1')
    a('s_lshl_b32 s62, s62, 8')
    a('v_and_b32 v16, 15, v8')
    a('v_lshlrev_b32 v16, 4, v16')
    a('v_lshl_add_u32 v16, v9, 9, v16')
    a('v_add_u32 v16, s62, v16')
    a('v_mov_b32 v17, s60')
    a('v_mov_b32 v18, s58')
    a('v_cmp_gt_u32 vcc, 16, v8')
    a('s_nop 1')
    a('v_cndmask_b32 v17, v17, v18, vcc')
    a('v_add_u32 v17, v17, v16')
    a(f's_add_u32 s59, s59, {WS_T+8*T_ET}')
    a('v_mov_b32 v18, s59')
    a('v_lshl_add_u32 v18, v9, 9, v18')
    a('v_cndmask_b32 v19, v17, v18, s[66:67]')
    a('s_lshl_b32 s63, s54, 11')
    for c in range(2):
        a(f'buffer_store_dwordx4 v[{144+4*c}:{147+4*c}], v19, s[24:27], s63 offen offset:{c*1024}')
    a('s_cmp_eq_u32 s55, 0')
    a(f's_cbranch_scc0 L_{name}_nz')
    for r in range(4): a(f'v_mov_b32 v{104+r}, 0')
    a('s_mov_b64 exec, s[66:67]')
    for q in range(2): a(f'buffer_store_dwordx4 v[104:107], v17, s[24:27], s63 offen offset:{q*1024}')
    a(f's_mov_b32 s64, {32*1024}')
    a('buffer_store_dwordx4 v[104:107], v17, s[24:27], s64 offen')
    a('s_mov_b64 exec, -1')
    a.label(f'L_{name}_nz')
    a('s_cmp_eq_u32 s54, 0')
    a(f's_cbranch_scc0 L_{name}_fin')
    a('v_mov_b32 v13, 0')
    a('v_cndmask_b32 v15, v13, v15, s[68:69]')
    a('v_cvt_pk_bf16_f32 v108, v15, v13')
    a('v_mov_b32 v109, 0'); a('v_mov_b32 v110, 0'); a('v_mov_b32 v111, 0')
    a('s_mov_b32 s70, 0x0000ffff')
    a('s_mov_b32 s71, 0x0000ffff')
    a('s_or_b64 s[70:71], s[70:71], s[66:67]')
    a('s_not_b64 s[72:73], s[70:71]')
    a('s_cmp_eq_u32 s35, 0')
    a('s_cselect_b64 s[70:71], s[70:71], s[72:73]')
    a('s_mov_b64 exec, s[70:71]')
    a(f's_mov_b32 s63, {32*1024}')
    a('buffer_store_dwordx4 v[108:111], v19, s[24:27], s63 offen')
    a('s_mov_b64 exec, -1')
    a.label(f'L_{name}_fin')
    if STAMPS: srd(a, 24, 46, WS_SIZE)
    stamp_flush(a, 4, 24, 32, 8, 0, vtmp=170, extra=78)
    a.label(f'L_{name}_end')
    a('s_endpgm')
    return 176


SPIN_MAX=400000
SLEEP=int(os.environ.get('SLEEP','2'))
def poll(a, tag, addr_v, exp_v, nl, base='s[56:57]', tmp=12):
    a(f's_mov_b32 s61, 0')
    a(f's_mov_b64 exec, {(1<<nl)-1}')
    a.label(f'L_{tag}_poll')
    a(f'global_load_dword v{tmp}, v{addr_v}, {base} sc1')
    a('s_waitcnt vmcnt(0)')
    a(f'v_cmp_eq_u32 vcc, v{tmp}, v{exp_v}')
    a('s_add_u32 s61, s61, 1')
    a('s_nop 2')
    a(f's_cmp_eq_u64 vcc, exec')
    a(f's_cbranch_scc1 L_{tag}_polld')
    a(f's_cmp_ge_u32 s61, {SPIN_MAX}')
    a(f's_cbranch_scc1 L_{tag}_polld')
    a(f's_sleep {SLEEP}')
    a(f's_branch L_{tag}_poll')
    a.label(f'L_{tag}_polld')
    a('s_mov_b64 exec, -1')

def phase_c(a, name):
    stamp(a,0)
    a('s_cmp_eq_u32 s32, 0')
    a(f's_cbranch_scc0 L_{name}_nosig')
    a('s_lshr_b32 s33, s2, 5')
    a('s_lshl_b32 s33, s33, 7')
    a(f's_add_u32 s33, s33, {WS_FLAG}')
    a('v_mov_b32 v12, s33')
    a('v_mov_b32 v13, 1')
    a('s_mov_b64 exec, 1')
    a('global_atomic_add v12, v13, s[24:25] sc1')
    a('s_mov_b64 exec, -1')
    a.label(f'L_{name}_nosig')
    a('s_and_b32 s33, s2, 7')
    a('s_lshr_b32 s34, s2, 3')
    a('s_and_b32 s35, s34, 3')
    a('s_lshl_b32 s40, s33, 2')
    a('s_add_u32 s40, s40, s35')
    a('s_lshr_b32 s41, s2, 5')
    a('s_and_b32 s42, s32, 1')
    a('s_lshr_b32 s43, s32, 1')
    a('s_lshl_b32 s44, s40, 1')
    a('s_add_u32 s44, s44, s42')
    srd(a, 12, 72, 0x200000)
    a('v_and_b32 v8, 31, v1')
    a('v_lshrrev_b32 v9, 5, v1')
    a('s_lshl_b32 s58, s44, 5')
    a('v_add_u32 v10, s58, v8')
    a('v_and_b32 v12, 511, v10')
    a('s_lshr_b32 s58, s44, 4')
    a('s_cmp_eq_u32 s58, 0')
    a('s_cselect_b32 s59, 0, 1024')
    a('s_cmp_eq_u32 s58, 1')
    a('s_cselect_b32 s59, 2048, s59')
    a('s_and_b32 s61, s58, 1')
    a('s_cmp_eq_u32 s58, 1')
    a('s_cselect_b32 s62, 1, 0')
    a('s_cmp_eq_u32 s58, 2')
    a('s_cselect_b32 s62, 1, s62')
    a('v_add_u32 v10, s59, v12')
    a('v_sub_u32 v11, s59, v12')
    a('s_cmp_eq_u32 s62, 1')
    a('s_cselect_b64 vcc, -1, 0')
    a('v_cndmask_b32 v10, v10, v11, vcc')
    a('s_cmp_lt_u32 s58, 2')
    a('s_cselect_b64 vcc, -1, 0')
    a('v_sub_u32 v11, 1024, v12')
    a('v_cndmask_b32 v13, v11, v12, vcc')
    a('s_lshl_b32 s61, s61, 20')
    a('v_mov_b32 v106, s61')
    a('s_lshr_b32 s62, s58, 1')
    a('s_lshl_b32 s63, s62, 10')
    a('s_add_u32 s63, s63, 512')
    a('s_lshl_b32 s62, s62, 20')
    a('s_and_b32 s59, s58, 1')
    a('s_cmp_eq_u32 s59, 1')
    a('s_cselect_b64 s[64:65], -1, 0')
    a('v_cmp_eq_u32 vcc, 0, v12')
    a('s_nop 1')
    a('s_and_b64 vcc, vcc, s[64:65]')
    a('v_mov_b32 v11, s63')
    a('v_cndmask_b32 v10, v10, v11, vcc')
    a('v_mov_b32 v11, 512')
    a('v_cndmask_b32 v13, v13, v11, vcc')
    a('v_mov_b32 v11, s62')
    a('v_cndmask_b32 v106, v106, v11, vcc')
    a('v_lshlrev_b32 v11, 10, v10')
    a('v_lshl_add_u32 v11, v9, 3, v11')
    a('s_lshl_b32 s58, s41, 7')
    a('s_lshl_b32 s59, s43, 6')
    a('s_add_u32 s58, s58, s59')
    a('v_add_u32 v11, s58, v11')
    a(f'v_mul_u32_u24 v13, {YQ_PITCH}, v13')
    a('v_lshlrev_b32 v12, 3, v9')
    a('s_cmp_lt_u32 s41, 4')
    a(f's_cbranch_scc0 L_{name}_ym')
    a('v_add_u32 v13, v13, v12')
    a('v_add_u32 v13, s58, v13')
    a(f's_branch L_{name}_ymd')
    a.label(f'L_{name}_ym')
    a('v_sub_u32 v13, v13, v12')
    a('s_sub_u32 s59, 1018-48, s58')
    a('v_add_u32 v13, s59, v13')
    a.label(f'L_{name}_ymd')
    a('s_lshr_b32 s59, s41, 2')
    a('s_lshl_b32 s59, s59, 20')
    a('v_xor_b32 v106, s59, v106')
    a('v_add_u32 v13, v13, v106')
    a(f's_mov_b32 s60, {WS_Y}')
    a('v_lshlrev_b32 v105, 2, v10')
    a('v_bfe_u32 v5, v1, 2, 2')
    a('v_lshl_add_u32 v6, v9, 2, v5')
    a('v_lshlrev_b32 v6, 7, v6')
    a('v_bfe_u32 v7, v1, 3, 1')
    a('v_lshlrev_b32 v7, 6, v7')
    a('v_bfe_u32 v16, v1, 4, 1')
    a('v_lshl_add_u32 v6, v16, 5, v6')
    a('v_bfe_u32 v16, v1, 1, 1')
    a('v_lshl_add_u32 v6, v16, 4, v6')
    a('v_and_b32 v16, 1, v1')
    a('v_lshl_add_u32 v6, v16, 3, v6')
    a('v_add_u32 v14, v6, v7')
    a('s_lshl_b32 s58, s43, 15')
    a('v_add_u32 v14, s58, v14')
    a('v_xor_b32 v15, 64, v14')
    a(f's_mov_b32 s59, {WS_G}')
    a('buffer_load_dword v104, v105, s[24:27], s59 offen')
    stamp(a,1)
    a('s_cmp_eq_u32 s32, 0')
    a(f's_cbranch_scc0 L_{name}_nopoll')
    a('s_lshl_b32 s58, s33, 7')
    a(f's_add_u32 s58, s58, {WS_FLAG}')
    a('v_lshlrev_b32 v16, 2, v1')
    a('v_add_u32 v16, s58, v16')
    a('v_mov_b32 v17, 32')
    a('v_mov_b32 v19, 297')
    a('v_cmp_eq_u32 vcc, 1, v1')
    a('s_nop 1')
    a('v_cndmask_b32 v17, v17, v19, vcc')
    poll(a, name+'_c', 16, 17, 2, base='s[24:25]', tmp=18)
    a.label(f'L_{name}_nopoll')
    a('s_barrier')
    stamp(a,2)
    OF=32
    a('s_lshl_b32 s51, s44, 15')
    a('s_lshl_b32 s52, s43, 14')
    a('s_add_u32 s51, s51, s52')
    a(f's_add_u32 s51, s51, {WS_O}')
    for i in range(16):
        if i%4==0 and i: a('s_add_u32 s51, s51, 4096')
        a(f'buffer_load_dwordx4 v[{OF+4*i}:{OF+4*i+3}], v2, s[24:27], s51 offen offset:{(i%4)*1024} sc1')
    for b in range(4): a(f'buffer_load_dwordx2 v[{96+2*b}:{97+2*b}], v13, s[24:27], s60 offen offset:{b*16} sc1')
    ACC=[16,112]; FW=[128,136]
    def reads(i):
        s_=i%2
        for j in range(2):
            a(f'ds_read_b64_tr_b16 v[{FW[s_]+4*j}:{FW[s_]+4*j+1}], v{14+j} offset:{i*2048}')
            a(f'ds_read_b64_tr_b16 v[{FW[s_]+4*j+2}:{FW[s_]+4*j+3}], v{14+j} offset:{i*2048+1024}')
    reads(0)
    for i in range(16):
        if i<15: reads(i+1); a(f's_waitcnt vmcnt({4+15-i}) lgkmcnt(4)')
        else: a('s_waitcnt vmcnt(4) lgkmcnt(0)')
        s_=i%2
        for j in range(2):
            c = '0' if i==0 else f'v[{ACC[j]}:{ACC[j]+15}]'
            a(f'v_mfma_f32_32x32x16_bf16 v[{ACC[j]}:{ACC[j]+15}], v[{FW[s_]+4*j}:{FW[s_]+4*j+3}], v[{OF+4*i}:{OF+4*i+3}], {c}')
    stamp(a,3)
    K3X=65536
    a('s_lshl_b32 s48, s42, 13')
    a('s_xor_b32 s49, s43, 1')
    a('s_lshl_b32 s49, s49, 12')
    a('s_add_u32 s49, s49, s48')
    a(f's_add_u32 s49, s49, {K3X}')
    a('v_add_u32 v5, s49, v2')
    a('s_lshl_b32 s49, s43, 12')
    a('s_add_u32 s49, s49, s48')
    a(f's_add_u32 s49, s49, {K3X}')
    a('v_add_u32 v6, s49, v2')
    a('s_nop 7')
    a('s_cmp_eq_u32 s43, 0')
    a(f's_cbranch_scc0 L_{name}_kw1')
    for g in range(4): a(f'ds_write_b128 v5, v[{ACC[1]+4*g}:{ACC[1]+4*g+3}] offset:{g*1024}')
    a(f's_branch L_{name}_x')
    a.label(f'L_{name}_kw1')
    for g in range(4): a(f'ds_write_b128 v5, v[{ACC[0]+4*g}:{ACC[0]+4*g+3}] offset:{g*1024}')
    a('s_nop 1')
    for r in range(16): a(f'v_mov_b32 v{ACC[0]+r}, v{ACC[1]+r}')
    a.label(f'L_{name}_x')
    a('s_waitcnt vmcnt(0) lgkmcnt(0)')
    a('s_barrier')
    for g in range(4): a(f'ds_read_b128 v[{32+4*g}:{35+4*g}], v6 offset:{g*1024}')
    a('v_sub_f32 v105, 1.0, v104')
    a('s_cmp_lt_u32 s41, 4')
    a(f's_cbranch_scc0 L_{name}_um')
    for b in range(4):
        for q in range(2):
            src=96+2*b+q
            a(f'v_lshlrev_b32 v{48+4*b+2*q}, 16, v{src}')
            a(f'v_and_b32 v{48+4*b+2*q+1}, 0xffff0000, v{src}')
    a(f's_branch L_{name}_umd')
    a.label(f'L_{name}_um')
    for b in range(4):
        g=3-b
        d0=96+2*b; d1=97+2*b
        a(f'v_and_b32 v{48+4*g+0}, 0xffff0000, v{d1}')
        a(f'v_lshlrev_b32 v{48+4*g+1}, 16, v{d1}')
        a(f'v_and_b32 v{48+4*g+2}, 0xffff0000, v{d0}')
        a(f'v_lshlrev_b32 v{48+4*g+3}, 16, v{d0}')
    a.label(f'L_{name}_umd')
    for r in range(16): a(f'v_mul_f32 v{48+r}, v104, v{48+r}')
    a('s_waitcnt lgkmcnt(0)')
    for r in range(16): a(f'v_add_f32 v{16+r}, v{16+r}, v{32+r}')
    for r in range(16): a(f'v_fmac_f32 v{48+r}, v105, v{16+r}')
    for b in range(4):
        a(f'v_cvt_pk_bf16_f32 v{64+2*b}, v{48+4*b}, v{48+4*b+1}')
        a(f'v_cvt_pk_bf16_f32 v{65+2*b}, v{48+4*b+2}, v{48+4*b+3}')
    a('v_lshl_add_u32 v11, v9, 3, v11')
    for b in (0,2):
        a(f'v_permlane32_swap_b32 v{64+2*b}, v{66+2*b}')
        a(f'v_permlane32_swap_b32 v{65+2*b}, v{67+2*b}')
    sv=a.stflag; a.stflag='sc1' if 'outsc1' in EXPT else ''
    for b in (0,2):
        a(f'buffer_store_dwordx4 v[{64+2*b}:{67+2*b}], v11, s[12:15], 0 offen offset:{b*16}')
    a.stflag=sv
    stamp_flush(a, 4, 24, 32, 4, 2, vtmp=106)

K2_SUM=131072
K2_CNT=K2_SUM+16384
K2_LDS=K2_CNT+64
def gen_k23(a, name):
    return gen_k2(a, name, fused=True)

def gen_k2(a, name, fused=False):
    a.noload=False
    kernel_header(a, name)
    a('s_cmp_ge_u32 s2, 256')
    a(f's_cbranch_scc1 L_{name}_end')
    stamp(a,0)
    a('s_load_dwordx4 s[36:39], s[0:1], 8')
    a('s_load_dwordx2 s[46:47], s[0:1], 88')
    a('s_load_dwordx2 s[56:57], s[0:1], 56')
    a('s_load_dwordx2 s[72:73], s[0:1], 72')
    a('v_lshrrev_b32 v2, 6, v0')
    a('v_and_b32 v1, 63, v0')
    a('v_readfirstlane_b32 s32, v2')
    a('v_lshlrev_b32 v2, 4, v1')
    a('s_and_b32 s33, s2, 7')
    a('s_lshr_b32 s34, s2, 3')
    a('s_and_b32 s35, s34, 3')
    a('s_lshl_b32 s40, s33, 2')
    a('s_add_u32 s40, s40, s35')
    a('s_lshr_b32 s41, s2, 5')
    a('s_waitcnt lgkmcnt(0)')
    srd(a, 24, 46, WS_SIZE)
    a('s_cmp_ge_u32 s32, 8')
    a(f's_cbranch_scc1 L_{name}_fnet')
    Q=4; C=8; S=[24,40]; O=56; K=[72,76]; V0=[80,88]; V1=[84,92]; ADDR=96; IDX=3
    a('s_lshl_b32 s42, s41, 3')
    a('s_add_u32 s42, s42, s32')
    a('s_lshl_b32 s43, s40, 16')
    a('s_lshl_b32 s44, s42, 10')
    a('s_add_u32 s43, s43, s44')
    a(f'buffer_load_dwordx4 v[{Q}:{Q+3}], v2, s[24:27], s43 offen')
    a('s_lshl_b32 s43, s40, 17')
    a(f's_add_u32 s43, s43, {WS_KV}')
    a('s_lshl_b32 s44, s32, 11')
    if 'kvrot' in EXPT:
        a('s_lshl_b32 s46, s41, 3')
        a('s_add_u32 s46, s46, s32')
    else: a('s_mov_b32 s46, s32')
    for i in range(8):
        a(f's_add_u32 m0, s44, {i*8*2048}')
        a('s_and_b32 s46, s46, 63')
        a('s_lshl_b32 s45, s46, 11')
        a('s_add_u32 s45, s45, s43')
        a('buffer_load_dwordx4 v2, s[24:27], s45 offen lds')
        a('buffer_load_dwordx4 v2, s[24:27], s45 offen offset:1024 lds')
        a('s_add_u32 s46, s46, 8')
    a(f'v_mov_b32 v{IDX}, 0xdddddddd')
    if 'allones' in EXPT:
        for r in range(80,96): a(f'v_mov_b32 v{r}, 0x3f803f80')
    else:
        a('v_mov_b32 v97, 0')
        a('v_mov_b32 v98, 0x3f803f80')
        a('s_mov_b32 s52, 0x00110000')
        a('s_mov_b32 s53, 0x00110000')
        a('v_cndmask_b32 v97, v97, v98, s[52:53]')
        for r in range(80,96): a(f'v_mov_b32 v{r}, v97')
    a('s_mov_b32 s48, 0x0000ffff')
    a('s_mov_b32 s49, 0x0000ffff')
    a('s_mov_b32 s50, 0')
    a('s_cmp_lt_u32 s32, 4')
    a(f's_cselect_b32 s54, {PR[0]}, {PR[1]}')
    a(f's_cselect_b32 s55, {PR[2]}, {PR[3]}')
    a('s_setprio 2')
    for r in range(16): a(f'v_mov_b32 v{O+r}, 0')
    for r in range(8,16): a(f'v_mov_b32 v{S[1]+r}, 0')
    a(f'v_mov_b32 v{ADDR}, v2')
    a('s_waitcnt vmcnt(14)' if 'b1b' in EXPT else 's_waitcnt vmcnt(12)')
    a('s_barrier')
    stamp(a,1)
    a(f'ds_read_b128 v[{K[0]}:{K[0]+3}], v2')
    a(f'ds_read_b128 v[{K[1]}:{K[1]+3}], v2 offset:2048')
    a('s_mov_b64 exec, s[48:49]')
    a(f'ds_read_b128 v[{V0[0]}:{V0[0]+3}], v2 offset:1024')
    a(f'ds_read_b128 v[{V1[0]}:{V1[0]+3}], v2 offset:1280')
    a('s_mov_b64 exec, -1')
    a('s_waitcnt lgkmcnt(3)')
    a(f'v_mfma_f32_32x32x16_bf16 v[{S[0]}:{S[0]+15}], v[{K[0]}:{K[0]+3}], v[{Q}:{Q+3}], 0')
    a('s_nop 15')
    s0=S[0]
    a(f'v_max3_f32 v97, v{s0}, v{s0+1}, v{s0+2}')
    for r in range(3,15,2): a(f'v_max3_f32 v97, v97, v{s0+r}, v{s0+r+1}')
    a(f'v_max_f32 v97, v97, v{s0+15}')
    a.label(f'L_{name}_havemax')
    a('v_mov_b32 v98, v97')
    a('s_nop 1')
    a('v_permlane32_swap_b32 v97, v98')
    a('s_nop 1')
    a('v_max_f32 v97, v97, v98')
    for r in range(16): a(f'v_sub_f32 v{C+r}, 0, v97')
    a('s_waitcnt lgkmcnt(0)')
    a(f'v_mfma_f32_32x32x16_bf16 v[{S[0]}:{S[0]+15}], v[{K[0]}:{K[0]+3}], v[{Q}:{Q+3}], v[{C}:{C+15}]')
    a('s_mov_b32 s51, 0')
    if STAMPS: a('s_memtime s[74:75]')
    a('s_nop 15')
    a.raw('.p2align 6')
    a.label(f'L_{name}_loop')
    for i in range(4):
        cur=S[i%2]; prev=S[(i+1)%2]
        def e(x,y):
            for j in range(x,y):
                if 'noexp' in EXPT: a(f'v_mov_b32 v{cur+j}, v{cur+j}')
                else: a(f'v_exp_f32 v{cur+j}, v{cur+j}')
        a('s_waitcnt lgkmcnt(0)')
        e(0,2)
        if 'nopv' not in EXPT: a(f'v_smfmac_f32_32x32x32_bf16 v[{O}:{O+15}], v[{V1[(i+1)%2]}:{V1[(i+1)%2]+3}], v[{prev+8}:{prev+15}], v{IDX}')
        if 'nolds' not in EXPT:
            a(f'ds_read_b128 v[{K[i%2]}:{K[i%2]+3}], v{ADDR} offset:{(i+2)*2048}')
            a('s_mov_b64 exec, s[48:49]')
            a(f'ds_read_b128 v[{V0[(i+1)%2]}:{V0[(i+1)%2]+3}], v{ADDR} offset:{(i+1)*2048+1024}')
            a(f'ds_read_b128 v[{V1[(i+1)%2]}:{V1[(i+1)%2]+3}], v{ADDR} offset:{(i+1)*2048+1280}')
            a('s_mov_b64 exec, -1')
        e(2,7)
        a(f'v_mfma_f32_32x32x16_bf16 v[{prev}:{prev+15}], v[{K[(i+1)%2]}:{K[(i+1)%2]+3}], v[{Q}:{Q+3}], v[{C}:{C+15}]')
        e(7,12)
        if 'nopv' not in EXPT: a(f'v_smfmac_f32_32x32x32_bf16 v[{O}:{O+15}], v[{V0[i%2]}:{V0[i%2]+3}], v[{cur}:{cur+7}], v{IDX}')
        e(12,16)
    a(f'v_add_u32 v{ADDR}, 8192, v{ADDR}')
    a('s_add_u32 s51, s51, 1')
    if 'b1b' in EXPT:
        a('s_cmp_eq_u32 s51, 1')
        a(f's_cbranch_scc1 L_{name}_ev1')
    a('s_cmp_eq_u32 s51, 3')
    a(f's_cbranch_scc1 L_{name}_ev3')
    a('s_cmp_eq_u32 s51, s54')
    a(f's_cbranch_scc1 L_{name}_ev10')
    a('s_cmp_eq_u32 s51, s55')
    a(f's_cbranch_scc1 L_{name}_ev14')
    a('s_cmp_lt_u32 s51, 16')
    a(f's_cbranch_scc1 L_{name}_loop')
    a(f's_branch L_{name}_done')
    a.label(f'L_{name}_ev1')
    a('s_cmp_eq_u32 s50, 0')
    a(f's_cbranch_scc0 L_{name}_loop')
    a('s_waitcnt vmcnt(12)')
    a('s_barrier')
    a(f's_branch L_{name}_loop')
    a.label(f'L_{name}_ev3')
    a('s_cmp_eq_u32 s50, 0')
    a(f's_cbranch_scc0 L_{name}_loop')
    stamp(a,3)
    a('s_waitcnt vmcnt(0)')
    a('s_barrier')
    stamp(a,4)
    a(f's_branch L_{name}_loop')
    a.label(f'L_{name}_ev10')
    stamp(a,5)
    a('s_setprio 1')
    a(f's_branch L_{name}_loop')
    a.label(f'L_{name}_ev14')
    a('s_setprio 0')
    a(f's_branch L_{name}_loop')
    a.label(f'L_{name}_done')
    a('s_nop 1')
    a(f'v_smfmac_f32_32x32x32_bf16 v[{O}:{O+15}], v[{V1[1]}:{V1[1]+3}], v[{S[1]+8}:{S[1]+15}], v{IDX}')
    a('s_waitcnt lgkmcnt(0)')
    a('s_nop 15')
    stamp(a,2)
    if STAMPS:
        a('s_memtime s[76:77]')
        a('s_waitcnt lgkmcnt(0)')
        a('s_sub_u32 s78, s76, s74')
    THR = -1.0 if 'forcefb' in EXPT else 2.0**60
    a(f's_mov_b32 s52, {hex(f2u(THR))}')
    a(f'v_cmp_gt_f32 vcc, s52, v{O+8}')
    if 'nopv' in EXPT or 'noexp' in EXPT: a('s_mov_b32 s50, 1')
    a('s_nop 3')
    a('s_cmp_eq_u64 vcc, -1')
    a(f's_cbranch_scc1 L_{name}_ok')
    a('s_cmp_eq_u32 s50, 0')
    a(f's_cbranch_scc0 L_{name}_ok')
    a('s_mov_b32 s50, 1')
    a('s_setprio 2')
    a('v_mov_b32 v97, 0xff800000')
    a(f'v_mov_b32 v{ADDR}, v2')
    a('s_mov_b32 s51, 0')
    a.label(f'L_{name}_fb')
    a(f'ds_read_b128 v[{K[0]}:{K[0]+3}], v{ADDR}')
    a('s_waitcnt lgkmcnt(0)')
    a(f'v_mfma_f32_32x32x16_bf16 v[{S[0]}:{S[0]+15}], v[{K[0]}:{K[0]+3}], v[{Q}:{Q+3}], 0')
    a('s_nop 15')
    for r in range(0,16,2): a(f'v_max3_f32 v97, v97, v{s0+r}, v{s0+r+1}')
    a(f'v_add_u32 v{ADDR}, 2048, v{ADDR}')
    a('s_add_u32 s51, s51, 1')
    a('s_cmp_lt_u32 s51, 64')
    a(f's_cbranch_scc1 L_{name}_fb')
    for r in range(16): a(f'v_mov_b32 v{O+r}, 0')
    for r in range(8,16): a(f'v_mov_b32 v{S[1]+r}, 0')
    a(f'v_mov_b32 v{ADDR}, v2')
    a(f'ds_read_b128 v[{K[0]}:{K[0]+3}], v2')
    a(f'ds_read_b128 v[{K[1]}:{K[1]+3}], v2 offset:2048')
    a('s_mov_b64 exec, s[48:49]')
    a(f'ds_read_b128 v[{V0[0]}:{V0[0]+3}], v2 offset:1024')
    a(f'ds_read_b128 v[{V1[0]}:{V1[0]+3}], v2 offset:1280')
    a('s_mov_b64 exec, -1')
    a(f's_branch L_{name}_havemax')
    a.label(f'L_{name}_ok')
    a(f'v_rcp_f32 v97, v{O+8}')
    a('s_nop 0')
    for r in range(8): a(f'v_mul_f32 v{O+r}, v97, v{O+r}')
    for q in range(4): a(f'v_cvt_pk_bf16_f32 v{100+q}, v{O+2*q}, v{O+2*q+1}')
    a('s_lshl_b32 s43, s42, 15')
    a('s_lshl_b32 s44, s40, 10')
    a('s_add_u32 s43, s43, s44')
    a(f's_add_u32 s43, s43, {WS_O}')
    a('buffer_store_dwordx4 v[100:103], v2, s[24:27], s43 offen')
    if fused:
        a('s_waitcnt vmcnt(0)')
        a(f's_branch L_{name}_endB')
    else:
        a(f's_branch L_{name}_fin')

    a.label(f'L_{name}_fnet')
    a(f's_setprio {FPRIO}')
    a('s_sub_u32 s35, s32, 8')
    srd(a, 8, 36, 0x800000)
    srd(a, 12, 38, 0x800000)
    for r in range(4,8): a(f'v_mov_b32 v{r}, 0')
    a(f'v_mov_b32 v8, {K2_CNT}')
    a('ds_write_b128 v8, v[4:7]')
    a('s_waitcnt lgkmcnt(0)')
    a('s_barrier')
    stamp(a,1)
    if 'b1b' in EXPT: a('s_barrier')
    if NOFNET:
        a('s_barrier')
        a(f's_branch L_{name}_fin')
    a('v_and_b32 v9, 31, v1')
    a('v_lshrrev_b32 v10, 5, v1')
    stamp(a,2)
    a('s_mov_b32 s60, 0')
    a('s_mov_b32 s61, 0')
    a('s_lshr_b32 s62, s35, 1')
    a('s_and_b32 s63, s35, 1')
    a('s_cmp_eq_u32 s62, 0')
    a('s_cselect_b32 s16, s8, s12')
    a('s_cselect_b32 s17, s9, s13')
    a('s_mov_b32 s18, 0x800000')
    a('s_mov_b32 s19, 0x20000')
    a.label(f'L_{name}_job')
    a('s_cmp_eq_u32 s60, 0')
    a(f's_cbranch_scc1 L_{name}_dojob')
    a('s_mov_b32 s16, s8')
    a('s_mov_b32 s17, s9')
    a('s_mov_b32 s62, 0')
    a.label(f'L_{name}_dojob')
    a('s_and_b32 s66, s40, 1')
    a('s_lshr_b32 s42, s40, 1')
    a('s_lshl_b32 s42, s42, 6')
    a('s_add_u32 s42, s42, s66')
    a('v_lshl_add_u32 v11, v9, 1, s42')
    a('v_mov_b32 v8, v11')
    a('v_lshlrev_b32 v11, 12, v11')
    a('v_lshl_add_u32 v11, v10, 4, v11')
    a('s_lshl_b32 s43, s66, 1')
    a('s_add_u32 s43, s43, s62')
    a(f's_mul_i32 s43, s43, {T_ARR}')
    a(f's_mul_i32 s44, s41, {T_ET}')
    a('s_add_u32 s43, s43, s44')
    a(f's_add_u32 s43, s43, {WS_T}')
    a(f's_add_u32 s67, s43, {32*1024}')
    a('s_lshl_b32 s45, s63, 4')
    a('s_lshl_b32 s46, s35, 3')
    a('s_cmp_eq_u32 s60, 0')
    a('s_cselect_b32 s49, s45, s46')
    a('s_lshl_b32 s45, s49, 10')
    a('s_add_u32 s43, s43, s45')
    a('s_lshl_b32 s45, s49, 5')
    ACCF=16
    for r in range(16): a(f'v_mov_b32 v{ACCF+r}, 0')
    SET=[32,96]
    a('s_cmp_eq_u32 s60, 0')
    a('s_cselect_b32 s58, 1, 0')
    a('s_and_b32 s59, s41, s58')
    def issue(setb, b):
        a(f's_xor_b32 s64, s59, {b}')
        a('s_lshl_b32 s65, s64, 8')
        a('s_add_u32 s65, s65, s45')
        a('s_lshl_b32 s64, s64, 13')
        a('s_add_u32 s64, s64, s43')
        for k in range(8):
            ra=setb+8*k
            a(f'buffer_load_dwordx4 v[{ra}:{ra+3}], v11, s[16:19], s65 offen offset:{k*32}')
            if k==4: a('s_add_u32 s64, s64, 4096')
            a(f'buffer_load_dwordx4 v[{ra+4}:{ra+7}], v2, s[24:27], s64 offen offset:{(k%4)*1024}')
    def mm(setb, first_wait):
        for k in range(8):
            ra=setb+8*k
            a(f's_waitcnt vmcnt({first_wait-2*k-2})')
            a(f'v_mfma_f32_32x32x16_bf16 v[{ACCF}:{ACCF+15}], v[{ra+4}:{ra+7}], v[{ra}:{ra+3}], v[{ACCF}:{ACCF+15}]')
    issue(SET[0],0)
    a('s_cmp_eq_u32 s61, 0')
    a(f's_cbranch_scc0 L_{name}_nob2')
    a('s_mov_b32 s61, 1')
    stamp(a,3)
    a('s_barrier')
    stamp(a,4)
    a.label(f'L_{name}_nob2')
    a('s_cmp_eq_u32 s62, s66')
    a('s_cselect_b32 s68, 1, 0')
    a('s_cmp_eq_u32 s60, 0')
    a('s_cselect_b32 s69, s63, 0')
    a('s_cmp_eq_u32 s35, 3')
    a('s_cselect_b32 s70, 1, 0')
    a('s_cmp_eq_u32 s60, 0')
    a('s_cselect_b32 s69, s69, s70')
    a('s_and_b32 s68, s68, s69')
    a('s_cmp_eq_u32 s60, 0')
    a(f's_cbranch_scc0 L_{name}_short')
    issue(SET[1],1)
    mm(SET[0],32)
    mm(SET[1],16)
    a(f's_branch L_{name}_mmd')
    a.label(f'L_{name}_short')
    mm(SET[0],16)
    a.label(f'L_{name}_mmd')
    a('s_cmp_eq_u32 s68, 1')
    a(f's_cbranch_scc0 L_{name}_nox')
    a('s_mov_b32 s45, 1024')
    a(f'buffer_load_dwordx4 v[32:35], v11, s[16:19], s45 offen')
    a(f'buffer_load_dwordx4 v[36:39], v2, s[24:27], s67 offen')
    a('s_waitcnt vmcnt(0)')
    a(f'v_mfma_f32_32x32x16_bf16 v[{ACCF}:{ACCF+15}], v[36:39], v[32:35], v[{ACCF}:{ACCF+15}]')
    a.label(f'L_{name}_nox')
    a('s_nop 15')
    a('s_cmp_eq_u32 s60, 0')
    a(f's_cbranch_scc1 L_{name}_nospin')
    a(f'v_mov_b32 v12, {K2_CNT+8}')
    a.label(f'L_{name}_spin')
    a('ds_read_b32 v13, v12')
    a('s_waitcnt lgkmcnt(0)')
    a('v_readfirstlane_b32 s47, v13')
    a('s_nop 3')
    a('s_cmp_eq_u32 s47, 0')
    a(f's_cbranch_scc0 L_{name}_nospin')
    a('s_sleep 2')
    a(f's_branch L_{name}_spin')
    a.label(f'L_{name}_nospin')
    a('s_lshl_b32 s45, s35, 12')
    a(f's_add_u32 s45, s45, {K2_SUM}')
    a('v_add_u32 v12, s45, v2')
    for g in range(4): a(f'ds_write_b128 v12, v[{ACCF+4*g}:{ACCF+4*g+3}] offset:{g*1024}')
    stamp(a,5)
    a('s_waitcnt lgkmcnt(0)')
    a('s_lshl_b32 s45, s60, 2')
    a(f's_add_u32 s45, s45, {K2_CNT}')
    a('v_mov_b32 v12, s45')
    a('v_mov_b32 v13, 1')
    a('s_mov_b64 exec, 1')
    a('ds_add_rtn_u32 v14, v12, v13')
    a('s_waitcnt lgkmcnt(0)')
    a('s_mov_b64 exec, -1')
    a('v_readfirstlane_b32 s47, v14')
    a('s_nop 3')
    a('s_cmp_eq_u32 s47, 3')
    a(f's_cbranch_scc0 L_{name}_nextjob')
    a(f'v_add_u32 v12, {K2_SUM}, v2')
    for g in range(4): a(f'ds_read_b128 v[{32+4*g}:{35+4*g}], v12 offset:{g*1024}')
    for g in range(4): a(f'ds_read_b128 v[{80+4*g}:{83+4*g}], v12 offset:{4096+g*1024}')
    for g in range(4): a(f'ds_read_b128 v[{48+4*g}:{51+4*g}], v12 offset:{8192+g*1024}')
    a('s_waitcnt lgkmcnt(8)')
    for g in range(4): a(f'ds_read_b128 v[{96+4*g}:{99+4*g}], v12 offset:{12288+g*1024}')
    a('s_waitcnt lgkmcnt(0)')
    a(f'v_mov_b32 v12, {K2_CNT+8}')
    a('v_mov_b32 v13, 1')
    a('ds_write_b32 v12, v13')
    for r in range(16): a(f'v_add_f32 v{48+r}, v{48+r}, v{96+r}')
    for r in range(16): a(f'v_add_f32 v{32+r}, v{32+r}, v{80+r}')
    a('s_cmp_eq_u32 s60, 0')
    a(f's_cbranch_scc1 L_{name}_haveq')
    for r in range(16):
        a(f'v_add_f32 v{32+r}, v{32+r}, v{48+r}')
        a(f'v_mov_b32 v{48+r}, 0')
    a.label(f'L_{name}_haveq')
    for r in range(16):
        a(f'v_sub_f32 v{64+r}, v{32+r}, v{48+r}')
        a(f'v_add_f32 v{32+r}, v{32+r}, v{48+r}')
    for q in range(8):
        a(f'v_cvt_pk_bf16_f32 v{80+q}, v{64+2*q}, v{64+2*q+1}')
        a(f'v_cvt_pk_bf16_f32 v{88+q}, v{32+2*q}, v{32+2*q+1}')
    a(f'v_mul_u32_u24 v13, {YQ_PITCH}, v8')
    a('v_lshl_add_u32 v13, v10, 3, v13')
    a('s_lshl_b32 s42, s41, 6')
    a(f's_add_u32 s42, s42, {WS_Y}')
    a(f's_add_u32 s43, s42, 0x100000')
    for b in range(4):
        a(f'buffer_store_dwordx2 v[{80+2*b}:{81+2*b}], v13, s[24:27], s42 offen offset:{b*16} sc1')
        a(f'buffer_store_dwordx2 v[{88+2*b}:{89+2*b}], v13, s[24:27], s43 offen offset:{b*16} sc1')
    if fused:
        a('s_waitcnt vmcnt(0)')
        a('v_lshlrev_b32 v12, 7, v1')
        a(f'v_add_u32 v12, {WS_FLAG+4}, v12')
        a('v_mov_b32 v13, 1')
        a('s_mov_b64 exec, 0xff')
        a('global_atomic_add v12, v13, s[24:25] sc1')
        a('s_mov_b64 exec, -1')
    a.label(f'L_{name}_nextjob')
    a('s_add_u32 s60, s60, 1')
    a('s_cmp_eq_u32 s60, 1')
    a(f's_cbranch_scc0 L_{name}_fin')
    a('s_cmp_ge_u32 s2, 224')
    a(f's_cbranch_scc1 L_{name}_edgec')
    a('s_sub_u32 s42, s2, 192')
    a('s_cmp_lt_u32 s42, 9')
    a(f's_cbranch_scc0 L_{name}_fin')
    a('s_mov_b32 s40, 32')
    a('s_mov_b32 s41, s42')
    a(f's_branch L_{name}_job')
    a.label(f'L_{name}_edgec')
    a('s_mov_b32 s41, 8')
    a(f's_branch L_{name}_job')
    a.label(f'L_{name}_fin')
    if fused:
        a('s_setprio 0')
        srd(a, 8, 56, 0x80000)
        a('v_lshrrev_b32 v3, 3, v1')
        a('v_bfe_u32 v4, v1, 4, 1')
        a('v_lshlrev_b32 v4, 2, v4')
        a('v_and_b32 v5, 7, v1')
        a('v_xor_b32 v4, v4, v5')
        a('v_lshlrev_b32 v4, 4, v4')
        a('v_lshl_add_u32 v3, v3, 10, v4')
        a('s_lshl_b32 s45, s35, 17')
        a('s_lshr_b32 s48, s2, 5')
        a('s_lshl_b32 s48, s48, 7')
        a('s_add_u32 s45, s45, s48')
        for i in range(16):
            a(f's_add_u32 s49, s45, {i*8192}')
            a(f'buffer_load_dwordx4 v[{32+4*i}:{35+4*i}], v3, s[8:11], s49 offen')
        a('s_lshl_b32 s45, s35, 14')
        a('v_add_u32 v4, s45, v2')
        a('s_waitcnt vmcnt(0)')
        a('s_barrier')
        for i in range(16): a(f'ds_write_b128 v4, v[{32+4*i}:{35+4*i}] offset:{i*1024}')
        a('s_waitcnt lgkmcnt(0)')
        a('s_barrier')
        stamp_flush(a, 6, 24, 32, 12, 1, vtmp=104, extra=78)
        a(f's_branch L_{name}_end')
        a.label(f'L_{name}_endB')
        a('s_setprio 0')
        a('s_barrier')
        stamp_flush(a, 6, 24, 32, 12, 1, vtmp=104, extra=78)
        if STAMPS: a('s_mov_b64 exec, -1')
        a('s_cmp_ge_u32 s32, 4')
        a(f's_cbranch_scc1 L_{name}_w47')
        phase_c(a, name)
        a(f's_branch L_{name}_end')
        a.label(f'L_{name}_w47')
        a('s_barrier')
    else:
        stamp_flush(a, 6, 24, 32, 12, 1, vtmp=104, extra=78)
    a.label(f'L_{name}_end')
    a('s_endpgm')
    return 168


K3_X=65536
K3_LDS=K3_X+16384
def gen_k3(a, name):
    a.stflag=''
    kernel_header(a, name)
    a('s_cmp_ge_u32 s2, 256')
    a(f's_cbranch_scc1 L_{name}_end')
    stamp(a,0)
    a('s_load_dwordx2 s[46:47], s[0:1], 88')
    a('v_lshrrev_b32 v2, 6, v0')
    a('v_and_b32 v1, 63, v0')
    a('v_readfirstlane_b32 s32, v2')
    a('v_lshlrev_b32 v2, 4, v1')
    a('s_and_b32 s33, s2, 7')
    a('s_lshr_b32 s34, s2, 3')
    a('s_and_b32 s35, s34, 3')
    a('s_lshl_b32 s40, s33, 2')
    a('s_add_u32 s40, s40, s35')
    a('s_lshr_b32 s41, s2, 5')
    a('s_and_b32 s42, s32, 1')
    a('s_lshr_b32 s43, s32, 1')
    a('s_lshl_b32 s44, s40, 1')
    a('s_add_u32 s44, s44, s42')
    a('s_add_u32 s50, s41, s35')
    a('s_and_b32 s50, s50, 3')
    a('v_lshrrev_b32 v3, 3, v1')
    a('v_bfe_u32 v4, v1, 4, 1')
    a('v_lshlrev_b32 v4, 2, v4')
    a('v_and_b32 v5, 7, v1')
    a('v_xor_b32 v4, v4, v5')
    a('v_lshlrev_b32 v4, 4, v4')
    a('v_lshl_add_u32 v3, v3, 10, v4')
    a('s_lshl_b32 s45, s43, 8')
    a('s_lshl_b32 s48, s42, 5')
    a('s_add_u32 s45, s45, s48')
    a('s_lshl_b32 s48, s41, 7')
    a('s_lshl_b32 s51, s44, 15')
    a('s_lshl_b32 s52, s43, 14')
    a('s_add_u32 s51, s51, s52')
    a(f's_add_u32 s51, s51, {WS_O}')
    a('s_waitcnt lgkmcnt(0)')
    srd(a, 8, 36, 0x80000)
    srd(a, 24, 46, WS_SIZE)
    OF=32
    def issue(st):
        a(f's_add_u32 s53, s50, {st}')
        a('s_and_b32 s53, s53, 3')
        a('s_lshl_b32 s54, s53, 6')
        a('s_add_u32 s54, s54, s45')
        a('s_lshl_b32 s55, s54, 7')
        a('s_lshl_b32 s56, s54, 10')
        a('s_add_u32 s56, s56, s48')
        for i in range(4):
            a(f's_add_u32 m0, s55, {i*1024}')
            a(f's_add_u32 s57, s56, {i*8192}')
            a('buffer_load_dwordx4 v3, s[8:11], s57 offen lds')
        a('s_lshl_b32 s56, s53, 12')
        a('s_add_u32 s56, s56, s51')
        for i in range(4):
            a(f'buffer_load_dwordx4 v[{OF+16*st+4*i}:{OF+16*st+4*i+3}], v2, s[24:27], s56 offen offset:{i*1024}')
    issue(0); issue(1)
    srd(a, 12, 38, 0x200000)
    a('v_and_b32 v8, 31, v1')
    a('v_lshrrev_b32 v9, 5, v1')
    a('s_lshl_b32 s58, s44, 5')
    a('v_add_u32 v10, s58, v8')
    a('v_and_b32 v12, 511, v10')
    a('s_lshr_b32 s58, s44, 4')
    a('s_cmp_eq_u32 s58, 0')
    a('s_cselect_b32 s59, 0, 1024')
    a('s_cmp_eq_u32 s58, 1')
    a('s_cselect_b32 s59, 2048, s59')
    a('s_and_b32 s61, s58, 1')
    a('s_cmp_eq_u32 s58, 1')
    a('s_cselect_b32 s62, 1, 0')
    a('s_cmp_eq_u32 s58, 2')
    a('s_cselect_b32 s62, 1, s62')
    a('v_add_u32 v10, s59, v12')
    a('v_sub_u32 v11, s59, v12')
    a('s_cmp_eq_u32 s62, 1')
    a('s_cselect_b64 vcc, -1, 0')
    a('v_cndmask_b32 v10, v10, v11, vcc')
    a('s_cmp_lt_u32 s58, 2')
    a('s_cselect_b64 vcc, -1, 0')
    a('v_sub_u32 v11, 1024, v12')
    a('v_cndmask_b32 v13, v11, v12, vcc')
    a('s_lshl_b32 s61, s61, 20')
    a('v_mov_b32 v106, s61')
    a('s_lshr_b32 s62, s58, 1')
    a('s_lshl_b32 s63, s62, 10')
    a('s_add_u32 s63, s63, 512')
    a('s_lshl_b32 s62, s62, 20')
    a('s_and_b32 s59, s58, 1')
    a('s_cmp_eq_u32 s59, 1')
    a('s_cselect_b64 s[64:65], -1, 0')
    a('v_cmp_eq_u32 vcc, 0, v12')
    a('s_nop 1')
    a('s_and_b64 vcc, vcc, s[64:65]')
    a('v_mov_b32 v11, s63')
    a('v_cndmask_b32 v10, v10, v11, vcc')
    a('v_mov_b32 v11, 512')
    a('v_cndmask_b32 v13, v13, v11, vcc')
    a('v_mov_b32 v11, s62')
    a('v_cndmask_b32 v106, v106, v11, vcc')
    a('v_lshlrev_b32 v11, 10, v10')
    a('v_lshl_add_u32 v11, v9, 3, v11')
    a('s_lshl_b32 s58, s41, 7')
    a('s_lshl_b32 s59, s43, 6')
    a('s_add_u32 s58, s58, s59')
    a('v_add_u32 v11, s58, v11')
    a(f'v_mul_u32_u24 v13, {YQ_PITCH}, v13')
    a('v_lshlrev_b32 v12, 3, v9')
    a('s_cmp_lt_u32 s41, 4')
    a(f's_cbranch_scc0 L_{name}_ym')
    a('v_add_u32 v13, v13, v12')
    a('v_add_u32 v13, s58, v13')
    a(f's_branch L_{name}_ymd')
    a.label(f'L_{name}_ym')
    a('v_sub_u32 v13, v13, v12')
    a('s_sub_u32 s59, 1018-48, s58')
    a('v_add_u32 v13, s59, v13')
    a.label(f'L_{name}_ymd')
    a('s_lshr_b32 s59, s41, 2')
    a('s_lshl_b32 s59, s59, 20')
    a('v_xor_b32 v106, s59, v106')
    a('v_add_u32 v13, v13, v106')
    a(f's_mov_b32 s60, {WS_Y}')
    a('v_lshlrev_b32 v105, 2, v10')
    a('v_bfe_u32 v5, v1, 2, 2')
    a('v_lshl_add_u32 v6, v9, 2, v5')
    a('v_lshlrev_b32 v6, 7, v6')
    a('v_bfe_u32 v7, v1, 3, 1')
    a('v_lshlrev_b32 v7, 6, v7')
    a('v_bfe_u32 v12, v1, 4, 1')
    a('v_lshl_add_u32 v6, v12, 5, v6')
    a('v_bfe_u32 v12, v1, 1, 1')
    a('v_lshl_add_u32 v6, v12, 4, v6')
    a('v_and_b32 v12, 1, v1')
    a('v_lshl_add_u32 v6, v12, 3, v6')
    a('v_add_u32 v14, v6, v7')
    a('s_lshl_b32 s58, s43, 15')
    a('v_add_u32 v14, s58, v14')
    ACC=[16,112]
    FW=[128,136]
    stamp(a,1)
    first=True
    waits={0:8, 1:8, 2:13, 3:5}
    for st in range(4):
        a(f's_add_u32 s53, s50, {st}')
        a('s_and_b32 s53, s53, 3')
        a('s_lshl_b32 s53, s53, 13')
        a('v_add_u32 v6, s53, v14')
        a('v_xor_b32 v7, 64, v6')
        a(f's_waitcnt vmcnt({waits[st]})')
        a('s_barrier')
        if st==0: stamp(a,2)
        def reads(i):
            s_=i%2
            for j in range(2):
                a(f'ds_read_b64_tr_b16 v[{FW[s_]+4*j}:{FW[s_]+4*j+1}], v{6+j} offset:{i*2048}')
                a(f'ds_read_b64_tr_b16 v[{FW[s_]+4*j+2}:{FW[s_]+4*j+3}], v{6+j} offset:{i*2048+1024}')
        reads(0)
        if st==0: issue(2)
        if st==1:
            issue(3)
            for b in range(4): a(f'buffer_load_dwordx2 v[{96+2*b}:{97+2*b}], v13, s[24:27], s60 offen offset:{b*16}')
            a(f's_mov_b32 s59, {WS_G}')
            a('buffer_load_dword v104, v105, s[24:27], s59 offen')
        for i in range(4):
            if i<3: reads(i+1); a('s_waitcnt lgkmcnt(4)')
            else: a('s_waitcnt lgkmcnt(0)')
            s_=i%2
            for j in range(2):
                c = '0' if first else f'v[{ACC[j]}:{ACC[j]+15}]'
                a(f'v_mfma_f32_32x32x16_bf16 v[{ACC[j]}:{ACC[j]+15}], v[{FW[s_]+4*j}:{FW[s_]+4*j+3}], v[{OF+16*st+4*i}:{OF+16*st+4*i+3}], {c}')
            first=False
    stamp(a,3)
    a('s_lshl_b32 s48, s42, 13')
    a('s_xor_b32 s49, s43, 1')
    a('s_lshl_b32 s49, s49, 12')
    a('s_add_u32 s49, s49, s48')
    a(f's_add_u32 s49, s49, {K3_X}')
    a('v_add_u32 v5, s49, v2')
    a('s_lshl_b32 s49, s43, 12')
    a('s_add_u32 s49, s49, s48')
    a(f's_add_u32 s49, s49, {K3_X}')
    a('v_add_u32 v6, s49, v2')
    a('s_nop 7')
    a('s_cmp_eq_u32 s43, 0')
    a(f's_cbranch_scc0 L_{name}_kw1')
    for g in range(4): a(f'ds_write_b128 v5, v[{ACC[1]+4*g}:{ACC[1]+4*g+3}] offset:{g*1024}')
    a(f's_branch L_{name}_x')
    a.label(f'L_{name}_kw1')
    for g in range(4): a(f'ds_write_b128 v5, v[{ACC[0]+4*g}:{ACC[0]+4*g+3}] offset:{g*1024}')
    a('s_nop 1')
    for r in range(16): a(f'v_mov_b32 v{ACC[0]+r}, v{ACC[1]+r}')
    a.label(f'L_{name}_x')
    a('s_waitcnt vmcnt(0) lgkmcnt(0)')
    a('s_barrier')
    for g in range(4): a(f'ds_read_b128 v[{32+4*g}:{35+4*g}], v6 offset:{g*1024}')
    a('v_sub_f32 v105, 1.0, v104')
    a('s_cmp_lt_u32 s41, 4')
    a(f's_cbranch_scc0 L_{name}_um')
    for b in range(4):
        for q in range(2):
            src=96+2*b+q
            a(f'v_lshlrev_b32 v{48+4*b+2*q}, 16, v{src}')
            a(f'v_and_b32 v{48+4*b+2*q+1}, 0xffff0000, v{src}')
    a(f's_branch L_{name}_umd')
    a.label(f'L_{name}_um')
    for b in range(4):
        g=3-b
        d0=96+2*b; d1=97+2*b
        a(f'v_and_b32 v{48+4*g+0}, 0xffff0000, v{d1}')
        a(f'v_lshlrev_b32 v{48+4*g+1}, 16, v{d1}')
        a(f'v_and_b32 v{48+4*g+2}, 0xffff0000, v{d0}')
        a(f'v_lshlrev_b32 v{48+4*g+3}, 16, v{d0}')
    a.label(f'L_{name}_umd')
    for r in range(16): a(f'v_mul_f32 v{48+r}, v104, v{48+r}')
    a('s_waitcnt lgkmcnt(0)')
    for r in range(16):
        a(f'v_add_f32 v{16+r}, v{16+r}, v{32+r}')
    for r in range(16):
        a(f'v_fmac_f32 v{48+r}, v105, v{16+r}')
    for b in range(4):
        a(f'v_cvt_pk_bf16_f32 v{64+2*b}, v{48+4*b}, v{48+4*b+1}')
        a(f'v_cvt_pk_bf16_f32 v{65+2*b}, v{48+4*b+2}, v{48+4*b+3}')
    for b in range(4):
        a(f'buffer_store_dwordx2 v[{64+2*b}:{65+2*b}], v11, s[12:15], 0 offen offset:{b*16}')
    stamp_flush(a, 4, 24, 32, 4, 2, vtmp=106)
    a.label(f'L_{name}_end')
    a('s_endpgm')
    return 144

def build(kernels):
    a=Asm()
    hdr = """; Kernarg layout (96 bytes): A_x, dft_seq_re, dft_seq_im, dft_hid_re, dft_hid_im, B_x, wqkv, wo, gate_w, out, debug, ws
"""
    descs=''
    body=Asm()
    for (name, fn, grid, block, lds) in kernels:
        hdr += f'; @launch kernel={name} grid=({grid},1,1) block=({block},1,1) lds={lds}\n'
    body.raw('.amdgcn_target "amdgcn-amd-amdhsa--gfx950"')
    body.raw('.text')
    for (name, fn, grid, block, lds) in kernels:
        v=fn(body,name)
        descs += kernel_desc(name, v)
    return hdr + body.text() + '.section .rodata,"a"\n' + descs

if __name__=='__main__':
    which = sys.argv[1] if len(sys.argv)>1 else 'k1'
    ks=[]
    ks.append(('k1_qkv_kernel', gen_k1, 256, 512, K1_LDS))
    if which in ('k2','all'): ks.append(('k2_attn_kernel', gen_k2, 256, 768, K2_LDS))
    if which=='f23': ks.append(('k2_attn_kernel', gen_k23, 256, 768, K2_LDS))
    if which=='all': ks.append(('k3_out_kernel', gen_k3, 256, 256, K3_LDS))
    txt=build(ks)
    out = sys.argv[2] if len(sys.argv)>2 else 'out.s'
    open(out,'w').write(txt)
```

```python
import sys, os
NAME='gated_mix__spectral_fnet__mha_block__prompt'
WS_Q=0; WS_KV=0x200000; WS_O=0x600000; WS_Y=0x800000; WS_T1=0xA00000; WS_T2=0xB00000; WS_G=0xC00000
WS_FLAG=0xC80000
WS_SIZE=0xD00000
YQ_PITCH=576; YQ_SZ=0x98000
T1_ET=65*1024; T2_ET=64*1024
WS_T=0xA00000; T_ET=33*1024; T_ARR=0x50000
C_SCALE=0.25*1.4426950408889634
import struct
def f2u(x): return struct.unpack('<I',struct.pack('<f',x))[0]

STAMPS = os.environ.get('STAMPS','0')=='1'
NOFNET = os.environ.get('NOFNET','0')=='1'
NOPRIO = os.environ.get('NOPRIO','0')=='1'
FAKEA = os.environ.get('FAKEA','0')=='1'
EXPT = os.environ.get('EXPT','')
FPRIO = int(os.environ.get('FPRIO','3'))
PR = [int(x) for x in os.environ.get('PR','9,10,15,63').split(',')]
class Asm:
    def __init__(self): self.L=[]; self.noload=False; self.stflag=''
    def __call__(self, s):
        for line in s.strip('\n').split('\n'):
            if self.noload and line.strip().endswith(' lds'): continue
            if NOPRIO and line.strip().startswith('s_setprio'): continue
            if line.strip().startswith('buffer_store_dwordx4') and self.stflag:
                if self.stflag=='none': continue
                line = line.strip()+' '+self.stflag
            self.L.append('    '+line.strip())
    def label(self, s): self.L.append(s+':')
    def raw(self, s): self.L.append(s)
    def text(self): return '\n'.join(self.L)+'\n'

def srd(a, d, lo, size):
    a(f's_mov_b32 s{d}, s{lo}')
    a(f's_mov_b32 s{d+1}, s{lo+1}')
    a(f's_mov_b32 s{d+2}, {hex(size)}')
    a(f's_mov_b32 s{d+3}, 0x20000')

def pi_perm(a, dst, src, tmp):
    a(f'v_and_b32 v{dst}, 0x13, v{src}')
    a(f'v_and_b32 v{tmp}, 4, v{src}')
    a(f'v_lshl_or_b32 v{dst}, v{tmp}, 1, v{dst}')
    a(f'v_and_b32 v{tmp}, 8, v{src}')
    a(f'v_lshrrev_b32 v{tmp}, 1, v{tmp}')
    a(f'v_or_b32 v{dst}, v{dst}, v{tmp}')

WS_STAMP=0x1000000
def stamp(a, i):
    if STAMPS:
        a(f's_memrealtime s[{80+2*i}:{81+2*i}]')
def stamp_flush(a, n, wsreg, widreg, wpw, kidx, vtmp=100, extra=None):
    if not STAMPS: return
    a('s_waitcnt vmcnt(0) lgkmcnt(0)')
    a(f's_memrealtime s[{80+2*n}:{81+2*n}]')
    a('s_waitcnt lgkmcnt(0)')
    a(f's_mul_i32 s98, s2, {wpw}')
    a(f's_add_u32 s98, s98, s{widreg}')
    a('s_lshl_b32 s98, s98, 5')
    a(f's_add_u32 s98, s98, {WS_STAMP+kidx*0x40000}')
    a(f's_mov_b32 s{wsreg+2}, 0x2000000')
    a('s_mov_b64 exec, 1')
    a(f'v_mov_b32 v{vtmp+1}, 0')
    for i in range(n+1):
        a(f'v_mov_b32 v{vtmp}, s{80+2*i}')
        a(f'buffer_store_dword v{vtmp}, v{vtmp+1}, s[{wsreg}:{wsreg+3}], s98 offen offset:{4*i}')
        a('s_nop 1')
    if extra is not None:
        a(f'v_mov_b32 v{vtmp}, s{extra}')
        a(f'buffer_store_dword v{vtmp}, v{vtmp+1}, s[{wsreg}:{wsreg+3}], s98 offen offset:28')

def kernel_header(a, name):
    a.raw(f'.globl {name}')
    a.raw('.p2align 8')
    a.raw(f'.type {name},@function')
    a.label(name)

def kernel_desc(name, vgpr, sgpr=102):
    acc = (vgpr+3)//4*4
    return f""".p2align 6
.amdhsa_kernel {name}
  .amdhsa_next_free_vgpr {vgpr}
  .amdhsa_next_free_sgpr {sgpr}
  .amdhsa_accum_offset {acc}
  .amdhsa_group_segment_fixed_size 0
  .amdhsa_kernarg_size 96
  .amdhsa_user_sgpr_count 2
  .amdhsa_user_sgpr_kernarg_segment_ptr 1
  .amdhsa_system_sgpr_workgroup_id_x 1
.end_amdhsa_kernel
"""

K1_SLOT=32768
K1_NS=4
K1_X=0; K1_WQK=16384; K1_WV=24576; K1_WD=28672
K1_LDS=163840

SELF_KB=int(os.environ.get('SELF_KB','7'))
def gen_k1(a, name):
    WR=131072
    a.noload = 'noload' in EXPT
    a.stflag = 'sc1' if 'st_sc1' in EXPT else 'nt' if 'st_nt' in EXPT else 'none' if 'st_none' in EXPT else 'sc0 sc1' if 'st_sc01' in EXPT else '' if 'st_plain' in EXPT else 'sc1'
    kernel_header(a, name)
    a('s_cmp_ge_u32 s2, 256')
    a(f's_cbranch_scc1 L_{name}_end')
    stamp(a,0)
    a('s_load_dwordx2 s[4:5], s[0:1], 0')
    a('s_load_dwordx4 s[36:39], s[0:1], 24')
    a('s_load_dwordx2 s[42:43], s[0:1], 48')
    a('s_load_dwordx2 s[44:45], s[0:1], 64')
    a('s_load_dwordx2 s[46:47], s[0:1], 88')
    a('v_lshrrev_b32 v2, 6, v0')
    a('v_and_b32 v1, 63, v0')
    a('v_readfirstlane_b32 s32, v2')
    a('s_and_b32 s33, s2, 7')
    a('s_lshr_b32 s34, s2, 3')
    a('s_lshr_b32 s54, s33, 1')
    a('s_lshl_b32 s54, s54, 2')
    a('s_and_b32 s55, s34, 3')
    a('s_add_u32 s54, s54, s55')
    a('s_and_b32 s55, s33, 1')
    a('s_lshl_b32 s55, s55, 3')
    a('s_lshr_b32 s56, s34, 2')
    a('s_add_u32 s55, s55, s56')
    a('s_cmp_lt_u32 s32, 4')
    a(f's_cbranch_scc1 L_{name}_comp')
    a('s_sub_u32 s35, s32, 4')
    a('v_lshrrev_b32 v2, 3, v1')
    a('v_and_b32 v3, 7, v1')
    a('v_lshrrev_b32 v4, 4, v1')
    a('v_xor_b32 v5, v3, v4')
    a('v_lshlrev_b32 v5, 4, v5')
    a('s_and_b32 s57, s35, 1')
    a('s_lshl_b32 s56, s54, 5')
    a('v_add_u32 v11, s56, v2')
    a('s_lshr_b32 s58, s35, 1')
    a('s_lshl_b32 s58, s58, 10')
    a('s_cmp_eq_u32 s35, 0')
    a(f's_cbranch_scc1 L_{name}_plus')
    a('s_cmp_eq_u32 s35, 3')
    a(f's_cbranch_scc1 L_{name}_plus')
    a('s_sub_u32 s59, 2048, s58')
    a('v_sub_u32 v12, s59, v11')
    a('v_lshl_add_u32 v16, v12, 10, v5')
    a('v_subrev_u32 v17, 8192, v16')
    a('v_subrev_u32 v18, 16384, v16')
    a('v_subrev_u32 v19, 24576, v16')
    a(f's_branch L_{name}_mird')
    a.label(f'L_{name}_plus')
    a('v_add_u32 v12, s58, v11')
    a('v_lshl_add_u32 v16, v12, 10, v5')
    a('v_add_u32 v17, 8192, v16')
    a('v_add_u32 v18, 16384, v16')
    a('v_add_u32 v19, 24576, v16')
    a.label(f'L_{name}_mird')
    a('s_add_u32 s58, s58, 512')
    a('v_mov_b32 v13, s58')
    a('v_lshl_add_u32 v13, v13, 10, v5')
    a('v_cmp_eq_u32 vcc, 0, v11')
    a('s_cmp_eq_u32 s57, 1')
    a('s_cselect_b64 s[58:59], -1, 0')
    a('s_and_b64 vcc, vcc, s[58:59]')
    a('v_cndmask_b32 v16, v16, v13, vcc')
    a('v_xor_b32 v17, 64, v17')
    a('v_xor_b32 v19, 64, v19')
    a('v_bfe_u32 v6, v1, 4, 1')
    a('v_lshlrev_b32 v6, 2, v6')
    a('v_xor_b32 v6, v6, v3')
    a('v_lshlrev_b32 v6, 4, v6')
    a('v_mul_u32_u24 v7, 3072, v2')
    a('v_add_u32 v6, v6, v7')
    a('s_lshl_b32 s58, s55, 7')
    a('v_add_u32 v20, s58, v6')
    a('v_add_u32 v21, 8*3072, v20')
    a('v_lshrrev_b32 v6, 2, v1')
    a('v_mul_u32_u24 v6, 3072, v6')
    a('v_and_b32 v7, 3, v1')
    a('v_lshl_add_u32 v6, v7, 4, v6')
    a('s_lshl_b32 s58, s55, 6')
    a('s_add_u32 s58, s58, 2048')
    a('v_add_u32 v22, s58, v6')
    a('s_lshl_b32 s56, s55, 4')
    a('s_lshl_b32 s58, s57, 3')
    a('s_add_u32 s56, s56, s58')
    a('v_add_u32 v11, s56, v2')
    a('v_lshl_add_u32 v23, v11, 10, v5')
    a('s_lshl_b32 s58, s57, 6')
    a('v_xor_b32 v23, s58, v23')
    a('s_mul_i32 s71, s35, 16*3072')
    if 'norot' in EXPT: a('s_mov_b32 s70, 0')
    else:
        a('s_lshr_b32 s70, s34, 2')
        a('s_and_b32 s72, s34, 3')
        a('s_lshl_b32 s72, s72, 1')
        a('s_add_u32 s70, s70, s72')
        a('s_and_b32 s70, s70, 7')
    a('s_lshl_b32 s56, s70, 7')
    a(f's_mul_i32 s57, s70, {64*3072}')
    a('s_add_u32 s57, s57, s71')
    a('s_lshl_b32 s61, s35, 12')
    a('s_lshl_b32 s62, s35, 11')
    a('s_lshl_b32 s63, s35, 10')
    a('s_waitcnt lgkmcnt(0)')
    if STAMPS:
        a('s_memrealtime s[76:77]')
        a('s_waitcnt lgkmcnt(0)')
        a('s_sub_u32 s78, s76, s80')
    srd(a, 8, 4, 0x200000)
    srd(a, 16, 42, 0x180000)
    a('s_cmp_lt_u32 s35, 2')
    a('s_cselect_b32 s20, s36, s38')
    a('s_cselect_b32 s21, s37, s39')
    a('s_mov_b32 s22, 0x80000')
    a('s_mov_b32 s23, 0x20000')
    a('s_mov_b32 s50, 0')
    a('s_mov_b32 s72, 0')
    a('s_mov_b32 s73, s56')
    def issue_x():
        a('s_lshl_b32 s65, s72, 14')
        a('s_add_u32 s65, s65, s61')
        for i in range(4):
            a(f's_add_u32 m0, s65, {i*1024}')
            a('s_nop 0')
            a(f'buffer_load_dwordx4 v{16+i}, s[8:11], s73 offen lds')
        a('s_add_u32 s73, s73, 128')
        a('s_and_b32 s73, s73, 1023')
        a('s_add_u32 s72, s72, 1')
    def adv():
        a('s_add_u32 s70, s70, 1')
        a('s_and_b32 s70, s70, 7')
        a('s_lshl_b32 s56, s70, 7')
        a(f's_mul_i32 s57, s70, {64*3072}')
        a('s_add_u32 s57, s57, s71')
        a('s_add_u32 s50, s50, 1')
    def slot():
        a('s_and_b32 s52, s50, 3')
        a('s_lshl_b32 s52, s52, 13')
        a(f's_add_u32 s52, s52, {WR}')
    def issue_w1():
        slot()
        a('s_add_u32 s65, s52, s62')
        for i in range(2):
            a(f's_add_u32 m0, s65, {i*1024}')
            a('s_nop 0')
            a(f'buffer_load_dwordx4 v{20+i}, s[16:19], s57 offen lds')
        adv()
    XA_=int(os.environ.get('XAHEAD','1'))
    seq=[('x',0),('w',0),('x',1),('w',1)]+[('x',2+i) for i in range(XA_)]+[('b',0)]
    nx=2+XA_
    for j in range(1,7):
        seq.append(('w',j+1))
        if nx<8: seq.append(('x',nx)); nx+=1
        seq.append(('b',j))
    def cnt(o): return 4 if o[0]=='x' else 2
    ticks=[]; cur={}
    order={'w':0,'x':1,'b':2}
    last=-1
    for i,o in enumerate(seq):
        if order[o[0]]<=last:
            ticks.append(cur); cur={}
        if o[0]=='b':
            j=o[1]; pos=max(seq.index(('x',j)), seq.index(('w',j)))
            cur['b']=sum(cnt(q) for q in seq[pos+1:i] if q[0]!='b')
        else: cur[o[0]]=1
        last=order[o[0]]
    ticks.append(cur)
    mW=sum(1<<i for i,t in enumerate(ticks) if 'w' in t)
    mX=sum(1<<i for i,t in enumerate(ticks) if 'x' in t)
    waits=sorted(set(t['b'] for t in ticks if 'b' in t))
    a(f's_mov_b32 s74, 0')
    a(f's_mov_b32 s75, {mW}')
    a(f's_mov_b32 s76, {mX}')
    for k,wv in enumerate(waits):
        a(f's_mov_b32 s{84+k}, {sum(1<<i for i,t in enumerate(ticks) if t.get("b")==wv)}')
    a.label(f'L_{name}_tick')
    a('s_bitcmp1_b32 s75, s74')
    a(f's_cbranch_scc0 L_{name}_tk1')
    issue_w1()
    a.label(f'L_{name}_tk1')
    a('s_bitcmp1_b32 s76, s74')
    a(f's_cbranch_scc0 L_{name}_tk2')
    issue_x()
    a.label(f'L_{name}_tk2')
    for k,wv in enumerate(waits):
        a(f's_bitcmp1_b32 s{84+k}, s74')
        a(f's_cbranch_scc0 L_{name}_tw{k}')
        a(f's_waitcnt vmcnt({wv})')
        a('s_barrier')
        a.label(f'L_{name}_tw{k}')
    a('s_add_u32 s74, s74, 1')
    a(f's_cmp_lt_u32 s74, {len(ticks)}')
    a(f's_cbranch_scc1 L_{name}_tick')
    a.label(f'L_{name}_issue2')
    slot()
    a('s_add_u32 s65, s52, s63')
    a('s_mov_b32 m0, s65')
    a('s_nop 0')
    a(f'buffer_load_dwordx4 v22, s[16:19], s57 offen lds')
    a('s_add_u32 m0, s65, 4096')
    a('s_nop 0')
    a(f'buffer_load_dwordx4 v23, s[20:23], s56 offen lds')
    adv()
    a('s_cmp_eq_u32 s50, 16')
    a(f's_cbranch_scc1 L_{name}_ld16')
    a('s_waitcnt vmcnt(2)')
    a('s_barrier')
    a(f's_branch L_{name}_issue2')
    a.label(f'L_{name}_ld16')
    srd(a, 28, 44, 1024)
    a('s_lshl_b32 s48, s2, 3')
    a('s_lshl_b32 s49, s35, 1')
    a('s_add_u32 s48, s48, s49')
    a('s_lshl_b32 s49, s48, 10')
    a('v_lshlrev_b32 v12, 4, v1')
    a('buffer_load_dwordx4 v[24:27], v12, s[8:11], s49 offen')
    a('buffer_load_dwordx4 v[28:31], v12, s[8:11], s49 offen offset:1024')
    a('buffer_load_dwordx4 v[32:35], v12, s[28:31], 0 offen')
    a('s_waitcnt vmcnt(5)')
    a('s_barrier')
    a('s_waitcnt vmcnt(3)')
    a('s_barrier')
    stamp(a,3)
    a('s_barrier')
    srd(a, 24, 46, WS_SIZE)
    a('v_mov_b32 v16, 0'); a('v_mov_b32 v17, 0')
    a('s_waitcnt vmcnt(0)')
    for q in range(4):
        a(f'v_dot2_f32_bf16 v16, v{24+q}, v{32+q}, v16')
        a(f'v_dot2_f32_bf16 v17, v{28+q}, v{32+q}, v17')
    a('s_nop 2')
    def dpp(op):
        a('s_nop 0')
        a(f'v_add_f32_dpp v16, v16, v16 {op}')
        a(f'v_add_f32_dpp v17, v17, v17 {op}')
    for sh in (1,2,4,8): dpp(f'row_shr:{sh} row_mask:0xf bank_mask:0xf')
    dpp('row_bcast:15 row_mask:0xa bank_mask:0xf')
    dpp('row_bcast:31 row_mask:0xc bank_mask:0xf')
    for r in (16,17): a(f'v_mul_f32 v{r}, {hex(f2u(-1.4426950408889634))}, v{r}')
    for r in (16,17): a(f'v_exp_f32 v{r}, v{r}')
    a('s_nop 0')
    for r in (16,17): a(f'v_add_f32 v{r}, 1.0, v{r}')
    for r in (16,17): a(f'v_rcp_f32 v{r}, v{r}')
    a('s_lshl_b32 s49, s48, 2')
    a(f's_add_u32 s49, s49, {WS_G}')
    a('v_mov_b32 v18, 0')
    a('s_mov_b32 exec_lo, 0')
    a('s_mov_b32 exec_hi, 0x80000000')
    a('buffer_store_dwordx2 v[16:17], v18, s[24:27], s49 offen')
    a('s_mov_b64 exec, -1')
    if 'nopf' not in EXPT:
        a('s_cmp_lt_u32 s2, 16')
        a(f's_cbranch_scc0 L_{name}_nopf')
        a('s_cmp_eq_u32 s32, 7')
        a(f's_cbranch_scc0 L_{name}_nopf')
        a('s_getpc_b64 s[72:73]')
        a.label(f'L_{name}_pc')
        a(f's_add_u32 s72, s72, k2_attn_kernel-L_{name}_pc')
        a('s_addc_u32 s73, s73, 0')
        a('v_lshlrev_b32 v18, 4, v1')
        for i in range(6):
            a(f'global_load_dwordx4 v[{36+4*i}:{39+4*i}], v18, s[72:73]')
            a('v_add_u32 v18, 1024, v18')
        a('v_lshlrev_b32 v18, 4, v1')
        a('v_add_u32 v18, L_k2_attn_kernel_end-k2_attn_kernel-1024, v18')
        a('global_load_dwordx4 v[60:63], v18, s[72:73]')
        a.label(f'L_{name}_nopf')
    a('s_cmp_eq_u32 s2, 0')
    a(f's_cbranch_scc0 L_{name}_fin')
    a('s_cmp_eq_u32 s32, 4')
    a(f's_cbranch_scc0 L_{name}_fin')
    for r in range(20,24): a(f'v_mov_b32 v{r}, 0')
    a('v_lshlrev_b32 v18, 4, v1')
    a(f's_mov_b32 s49, {WS_FLAG}')
    a('buffer_store_dwordx4 v[20:23], v18, s[24:27], s49 offen')
    a(f's_branch L_{name}_fin')

    a.label(f'L_{name}_comp')
    if 'noselfpf' not in EXPT:
        a('s_cmp_lt_u32 s2, 16')
        a(f's_cbranch_scc0 L_{name}_nspf')
        a('s_cmp_eq_u32 s32, 3')
        a(f's_cbranch_scc0 L_{name}_nspf')
        a('s_getpc_b64 s[72:73]')
        a.label(f'L_{name}_pc0')
        a(f's_sub_u32 s72, s72, L_{name}_pc0-{name}')
        a('s_subb_u32 s73, s73, 0')
        a('v_lshlrev_b32 v18, 4, v1')
        for i in range(SELF_KB):
            a(f'global_load_dwordx4 v[{144+4*i}:{147+4*i}], v18, s[72:73]')
            a('v_add_u32 v18, 1024, v18')
        a.label(f'L_{name}_nspf')
    a('s_lshr_b32 s35, s32, 1')
    a('s_and_b32 s40, s32, 1')
    a('v_and_b32 v8, 31, v1')
    a('v_lshrrev_b32 v9, 5, v1')
    pi_perm(a, 10, 8, 11)
    def frag_addr(dst0, rowreg, base_off, tmp):
        a(f'v_lshrrev_b32 v{tmp}, 1, v{rowreg}')
        a(f'v_and_b32 v{tmp}, 7, v{tmp}')
        a(f'v_xor_b32 v{tmp}, v{tmp}, v9')
        a(f'v_lshlrev_b32 v{tmp}, 4, v{tmp}')
        a(f'v_lshl_add_u32 v{dst0}, v{rowreg}, 7, v{tmp}')
        if base_off: a(f'v_add_u32 v{dst0}, {base_off}, v{dst0}')
        for ks in range(1,4): a(f'v_xor_b32 v{dst0+ks}, {ks*32}, v{dst0}')
    a('s_lshl_b32 s63, s35, 6')
    a('v_add_u32 v11, s63, v10')
    frag_addr(16, 11, 0, 15)
    a('v_bfe_u32 v11, v1, 2, 2')
    a('v_lshl_add_u32 v11, v9, 3, v11')
    a('v_bfe_u32 v12, v1, 4, 1')
    a('v_and_b32 v13, 3, v1')
    a('v_lshlrev_b32 v20, 7, v11')
    a('v_bfe_u32 v14, v1, 3, 1')
    a('v_xor_b32 v14, s40, v14')
    a('v_lshl_add_u32 v20, v14, 6, v20')
    a('v_lshl_add_u32 v20, v12, 5, v20')
    a('v_lshrrev_b32 v14, 1, v13')
    a('v_lshl_add_u32 v20, v14, 4, v20')
    a('v_and_b32 v14, 1, v13')
    a('v_lshl_add_u32 v20, v14, 3, v20')
    a('v_lshlrev_b32 v22, 6, v11')
    a('v_lshl_add_u32 v22, v12, 5, v22')
    a('v_lshl_add_u32 v22, v13, 3, v22')
    frag_addr(24, 8, 4096, 15)
    a('s_cmp_eq_u32 s55, 0')
    a('s_cselect_b32 s66, 0x10000, 0')
    a('s_mov_b32 s67, s66')
    a('v_mov_b32 v14, 0xbf803f80')
    A1=[32,48]; A2=[64,80]
    FS=[96,108,120,132]
    XA=28; WA=21; DA=4
    a('s_mov_b32 s50, 0')
    def mf(d,A,B,zero=False):
        c='0' if zero else f'v[{d}:{d+15}]'
        return f'v_mfma_f32_32x32x16_bf16 v[{d}:{d+15}], v[{A}:{A+3}], v[{B}:{B+3}], {c}'
    def setaddr(kind):
        L=[]
        L.append('s_and_b32 s52, s51, 7'); L.append('s_lshl_b32 s52, s52, 14')
        L.append('s_and_b32 s53, s51, 3'); L.append('s_lshl_b32 s53, s53, 13'); L.append(f's_add_u32 s53, s53, {WR}')
        for ks in range(4): L.append(f'v_add_u32 v{XA+ks}, s52, v{16+ks}')
        if kind=='QK': L.append(f'v_add_u32 v{WA}, s53, v20')
        elif kind=='V': L.append(f'v_add_u32 v{WA}, s53, v22')
        else:
            for ks in range(4): L.append(f'v_add_u32 v{DA+ks}, s53, v{24+ks}')
        return L
    def reads(kind, ks):
        F=FS[ks]
        L=[f'ds_read_b128 v[{F}:{F+3}], v{XA+ks}', f'ds_read_b128 v[{F+4}:{F+7}], v{XA+ks} offset:4096']
        if kind=='QK':
            L+= [f'ds_read_b64_tr_b16 v[{F+8}:{F+9}], v{WA} offset:{ks*2048}', f'ds_read_b64_tr_b16 v[{F+10}:{F+11}], v{WA} offset:{ks*2048+512}']
        elif kind=='V':
            L+= [f'ds_read_b64_tr_b16 v[{F+8}:{F+9}], v{WA} offset:{ks*1024}', f'ds_read_b64_tr_b16 v[{F+10}:{F+11}], v{WA} offset:{ks*1024+256}']
        else:
            L+= [f'ds_read_b128 v[{F+8}:{F+11}], v{DA+ks}']
        return L
    def nreads(kind): return 3 if kind=='F' else 4
    def mfmas(kind, ks, zero=False):
        F=FS[ks]
        if kind=='QK': return [], [mf(A1[t], F+8, F+4*t, zero) for t in range(2)]
        pre=[f'v_cndmask_b32 v{F+8+q}, v{F+8+q}, v14, s[66:67]' for q in range(4)] if kind=='F' else []
        return pre, [mf(A2[t], F+4*t, F+8, zero) for t in range(2)]
    def body(kind, nxt, zero=False, extra=None, last=False):
        extra=list(extra or [])
        ex_per = -(-len(extra)//8) if extra else 0
        def take():
            nonlocal extra
            t=extra[:ex_per]; extra=extra[ex_per:]; return t
        n=nreads(kind); nn=nreads(nxt) if nxt else 0
        for ks in range(4):
            cnt=0
            for d in (1,2):
                k2=ks+d
                if k2<4: cnt+=n
                elif nxt: cnt+=nn
            if ks==0: pass
            a(f's_waitcnt lgkmcnt({min(cnt,15)})')
            pre,mm=mfmas(kind,ks,zero and ks==0)
            if ks==0: rd=reads(kind,3)
            elif nxt: rd=reads(nxt,ks-1)
            else: rd=[]
            for x in pre: a(x)
            if pre: a('s_nop 1')
            h1=rd[:2]; h2=rd[2:]
            a(mm[0])
            for x in h1: a(x)
            for x in take(): a(x)
            a(mm[1])
            for x in h2: a(x)
            for x in take(): a(x)
            if ks==0 and nxt:
                a('s_add_u32 s51, s50, 1')
                for x in setaddr(nxt): a(x)
                a('s_barrier')
        for x in extra: a(x)
        a('s_add_u32 s50, s50, 1')
    for r in range(32,64): a(f'v_mov_b32 v{r}, 0')
    stamp(a,1)
    a('s_waitcnt vmcnt(0) lgkmcnt(0)')
    a('s_barrier')
    stamp(a,2)
    if STAMPS: a('s_memtime s[74:75]')
    a('s_mov_b32 s51, 0')
    for x in setaddr('QK'): a(x)
    for ks in range(3):
        for x in reads('QK',ks): a(x)
    a.label(f'L_{name}_p1')
    body('QK','QK')
    a('s_cmp_lt_u32 s50, 7')
    a(f's_cbranch_scc1 L_{name}_p1')
    srd(a, 24, 46, WS_SIZE)
    a('s_lshl_b32 s57, s35, 5')
    a('s_add_u32 s56, s54, s57')
    a('s_cmp_ge_u32 s55, 8')
    a('s_cselect_b32 s57, 17, 16')
    a('s_cselect_b32 s58, 11, 10')
    a(f's_cselect_b32 s59, {WS_KV}, {WS_Q}')
    a(f's_cselect_b32 s60, 1.0, {hex(f2u(C_SCALE))}')
    a('s_lshl_b32 s57, 1, s57')
    a('s_lshl_b32 s61, s56, s58')
    a('s_add_u32 s59, s59, s61')
    a('s_lshl_b32 s63, 16, s58')
    a('s_and_b32 s62, s55, 7')
    a('s_lshl_b32 s62, s62, 2')
    a('s_lshl_b32 s64, s40, 1')
    a('s_add_u32 s62, s62, s64')
    a('s_mul_i32 s62, s62, s57')
    a('s_add_u32 s59, s59, s62')
    a('s_add_u32 s68, s59, s57')
    a('s_add_u32 s69, s59, s63')
    a('s_add_u32 s70, s68, s63')
    a('v_lshlrev_b32 v11, 9, v9')
    a('v_lshl_add_u32 v11, v10, 4, v11')
    def ep1(t):
        L=[]
        for hb in range(2):
            base=A1[t]+8*hb; d=144+8*t+4*hb
            for r in range(8): L.append(f'v_mul_f32 v{base+r}, s60, v{base+r}')
            for q in range(4): L.append(f'v_cvt_pk_bf16_f32 v{d+q}, v{base+2*q}, v{base+2*q+1}')
            so=[['s59','s68'],['s69','s70']][t][hb]
            L.append(f'buffer_store_dwordx4 v[{d}:{d+3}], v11, s[24:27], {so} offen')
        return L
    a('s_cmp_eq_u32 s40, 0')
    a(f's_cbranch_scc0 L_{name}_roleF')
    for role in ('V','F'):
        if role=='F': a.label(f'L_{name}_roleF')
        body('QK',role)
        stamp(a,1)
        body(role,role,zero=True,extra=['s_nop 7','s_nop 3']+ep1(0))
        body(role,role,extra=ep1(1))
        a.label(f'L_{name}_p2{role}')
        body(role,role)
        a('s_cmp_lt_u32 s50, 15')
        a(f's_cbranch_scc1 L_{name}_p2{role}')
        body(role,None)
        if STAMPS:
            a('s_memtime s[76:77]')
            a('s_waitcnt lgkmcnt(0)')
            a('s_sub_u32 s78, s76, s74')
        stamp(a,3)
        a('s_nop 15')
        if role=='V':
            a('s_barrier')
            a('s_lshl_b32 s57, s35, 5')
            a('s_add_u32 s58, s54, s57')
            a('v_lshrrev_b32 v19, 4, v8')
            a('v_lshlrev_b32 v19, 17, v19')
            a('v_lshl_add_u32 v19, v9, 9, v19')
            a('v_and_b32 v13, 15, v8')
            a('v_lshl_add_u32 v19, v13, 4, v19')
            a('s_lshl_b32 s61, s55, 18')
            a('s_lshl_b32 s62, s58, 11')
            a('s_add_u32 s61, s61, s62')
            a(f's_add_u32 s61, s61, {WS_KV+1024}')
            for t in range(2):
                for mfi in range(2):
                    base=A2[t]+8*mfi
                    d=96+8*t+4*mfi
                    for q in range(4): a(f'v_cvt_pk_bf16_f32 v{d+q}, v{base+2*q}, v{base+2*q+1}')
                    a(f'buffer_store_dwordx4 v[{d}:{d+3}], v19, s[24:27], s61 offen offset:{mfi*256}')
                if t==0: a('s_add_u32 s61, s61, 32768')
            a(f's_branch L_{name}_fin')
    ACC=[[0,A2[0]],[0,A2[1]]]
    XCH = 0
    a('v_mov_b32 v12, -1.0')
    a('v_mov_b32 v13, 1.0')
    a('v_cmp_gt_u32 vcc, 16, v8')
    a('s_nop 1')
    a('v_cndmask_b32 v12, v12, v13, vcc')
    a('v_cndmask_b32 v12, v12, v13, s[66:67]')
    a('s_cmp_eq_u32 s54, 0')
    a('s_cselect_b32 s68, -1, 0')
    a('s_mov_b32 s69, 0')
    A0=ACC[0][1]; A1=ACC[1][1]
    a(f'v_mov_b32 v15, v{A1}')
    a('v_mov_b32 v13, 0')
    a(f'v_cndmask_b32 v{A1}, v{A1}, v13, s[68:69]')
    for r in range(16): a(f'v_fma_f32 v{A0+r}, v{A1+r}, v12, v{A0+r}')
    a('v_lshlrev_b32 v11, 4, v1')
    a('s_mul_i32 s63, s35, 5120')
    a(f's_add_u32 s63, s63, {XCH}')
    a('v_add_u32 v16, s63, v11')
    a('s_xor_b32 s63, s35, 1')
    a('s_mul_i32 s63, s63, 5120')
    a(f's_add_u32 s63, s63, {XCH}')
    a('v_add_u32 v17, s63, v11')
    for g in range(4): a(f'ds_write_b128 v16, v[{A0+4*g}:{A0+4*g+3}] offset:{g*1024}')
    a('v_lshlrev_b32 v18, 2, v1')
    a('s_mul_i32 s63, s35, 5120')
    a(f's_add_u32 s63, s63, {XCH+4096}')
    a('v_add_u32 v18, s63, v18')
    a('ds_write_b32 v18, v15')
    a('s_waitcnt lgkmcnt(0)')
    a('s_barrier')
    for g in range(4): a(f'ds_read_b128 v[{112+4*g}:{115+4*g}], v17 offset:{g*1024}')
    a('v_lshlrev_b32 v18, 2, v1')
    a('s_xor_b32 s63, s35, 1')
    a('s_mul_i32 s63, s63, 5120')
    a(f's_add_u32 s63, s63, {XCH+4096}')
    a('v_add_u32 v18, s63, v18')
    a('ds_read_b32 v14, v18')
    a('s_waitcnt lgkmcnt(0)')
    a('s_cmp_eq_u32 s35, 0')
    a(f's_cbranch_scc0 L_{name}_odd')
    for r in range(16): a(f'v_fma_f32 v{A0+r}, v{112+r}, v12, v{A0+r}')
    a('v_fma_f32 v15, v14, v12, v15')
    a(f's_branch L_{name}_oddd')
    a.label(f'L_{name}_odd')
    a('v_sub_f32 v13, 0, v12')
    for r in range(16): a(f'v_fma_f32 v{A0+r}, v{A0+r}, v13, v{112+r}')
    a('v_fma_f32 v15, v15, v12, v14')
    a.label(f'L_{name}_oddd')
    for q in range(8): a(f'v_cvt_pk_bf16_f32 v{144+q}, v{A0+2*q}, v{A0+2*q+1}')
    a('s_lshr_b32 s57, s55, 1')
    a(f's_mul_i32 s58, s57, {T_ET}')
    a(f's_mul_i32 s59, s35, {2*T_ARR}')
    a('s_add_u32 s58, s58, s59')
    a(f's_add_u32 s58, s58, {WS_T}')
    a(f's_add_u32 s60, s58, {T_ARR}')
    a('s_and_b32 s62, s55, 1')
    a('s_lshl_b32 s62, s62, 8')
    a('v_and_b32 v16, 15, v8')
    a('v_lshlrev_b32 v16, 4, v16')
    a('v_lshl_add_u32 v16, v9, 9, v16')
    a('v_add_u32 v16, s62, v16')
    a('v_mov_b32 v17, s60')
    a('v_mov_b32 v18, s58')
    a('v_cmp_gt_u32 vcc, 16, v8')
    a('s_nop 1')
    a('v_cndmask_b32 v17, v17, v18, vcc')
    a('v_add_u32 v17, v17, v16')
    a(f's_add_u32 s59, s59, {WS_T+8*T_ET}')
    a('v_mov_b32 v18, s59')
    a('v_lshl_add_u32 v18, v9, 9, v18')
    a('v_cndmask_b32 v19, v17, v18, s[66:67]')
    a('s_lshl_b32 s63, s54, 11')
    for c in range(2):
        a(f'buffer_store_dwordx4 v[{144+4*c}:{147+4*c}], v19, s[24:27], s63 offen offset:{c*1024}')
    a('s_cmp_eq_u32 s55, 0')
    a(f's_cbranch_scc0 L_{name}_nz')
    for r in range(4): a(f'v_mov_b32 v{104+r}, 0')
    a('s_mov_b64 exec, s[66:67]')
    for q in range(2): a(f'buffer_store_dwordx4 v[104:107], v17, s[24:27], s63 offen offset:{q*1024}')
    a(f's_mov_b32 s64, {32*1024}')
    a('buffer_store_dwordx4 v[104:107], v17, s[24:27], s64 offen')
    a('s_mov_b64 exec, -1')
    a.label(f'L_{name}_nz')
    a('s_cmp_eq_u32 s54, 0')
    a(f's_cbranch_scc0 L_{name}_fin')
    a('v_mov_b32 v13, 0')
    a('v_cndmask_b32 v15, v13, v15, s[68:69]')
    a('v_cvt_pk_bf16_f32 v108, v15, v13')
    a('v_mov_b32 v109, 0'); a('v_mov_b32 v110, 0'); a('v_mov_b32 v111, 0')
    a('s_mov_b32 s70, 0x0000ffff')
    a('s_mov_b32 s71, 0x0000ffff')
    a('s_or_b64 s[70:71], s[70:71], s[66:67]')
    a('s_not_b64 s[72:73], s[70:71]')
    a('s_cmp_eq_u32 s35, 0')
    a('s_cselect_b64 s[70:71], s[70:71], s[72:73]')
    a('s_mov_b64 exec, s[70:71]')
    a(f's_mov_b32 s63, {32*1024}')
    a('buffer_store_dwordx4 v[108:111], v19, s[24:27], s63 offen')
    a('s_mov_b64 exec, -1')
    a.label(f'L_{name}_fin')
    if STAMPS: srd(a, 24, 46, WS_SIZE)
    stamp_flush(a, 4, 24, 32, 8, 0, vtmp=170, extra=78)
    a.label(f'L_{name}_end')
    a('s_endpgm')
    return 176


SPIN_MAX=400000
SLEEP=int(os.environ.get('SLEEP','2'))
def poll(a, tag, addr_v, exp_v, nl, base='s[56:57]', tmp=12):
    a(f's_mov_b32 s61, 0')
    a(f's_mov_b64 exec, {(1<<nl)-1}')
    a.label(f'L_{tag}_poll')
    a(f'global_load_dword v{tmp}, v{addr_v}, {base} sc1')
    a('s_waitcnt vmcnt(0)')
    a(f'v_cmp_eq_u32 vcc, v{tmp}, v{exp_v}')
    a('s_add_u32 s61, s61, 1')
    a('s_nop 2')
    a(f's_cmp_eq_u64 vcc, exec')
    a(f's_cbranch_scc1 L_{tag}_polld')
    a(f's_cmp_ge_u32 s61, {SPIN_MAX}')
    a(f's_cbranch_scc1 L_{tag}_polld')
    a(f's_sleep {SLEEP}')
    a(f's_branch L_{tag}_poll')
    a.label(f'L_{tag}_polld')
    a('s_mov_b64 exec, -1')

def phase_c(a, name):
    stamp(a,0)
    a('s_cmp_eq_u32 s32, 0')
    a(f's_cbranch_scc0 L_{name}_nosig')
    a('s_lshr_b32 s33, s2, 5')
    a('s_lshl_b32 s33, s33, 7')
    a(f's_add_u32 s33, s33, {WS_FLAG}')
    a('v_mov_b32 v12, s33')
    a('v_mov_b32 v13, 1')
    a('s_mov_b64 exec, 1')
    a('global_atomic_add v12, v13, s[24:25] sc1')
    a('s_mov_b64 exec, -1')
    a.label(f'L_{name}_nosig')
    a('s_and_b32 s33, s2, 7')
    a('s_lshr_b32 s34, s2, 3')
    a('s_and_b32 s35, s34, 3')
    a('s_lshl_b32 s40, s33, 2')
    a('s_add_u32 s40, s40, s35')
    a('s_lshr_b32 s41, s2, 5')
    a('s_and_b32 s42, s32, 1')
    a('s_lshr_b32 s43, s32, 1')
    a('s_lshl_b32 s44, s40, 1')
    a('s_add_u32 s44, s44, s42')
    srd(a, 12, 72, 0x200000)
    a('v_and_b32 v8, 31, v1')
    a('v_lshrrev_b32 v9, 5, v1')
    a('s_lshl_b32 s58, s44, 5')
    a('v_add_u32 v10, s58, v8')
    a('v_and_b32 v12, 511, v10')
    a('s_lshr_b32 s58, s44, 4')
    a('s_cmp_eq_u32 s58, 0')
    a('s_cselect_b32 s59, 0, 1024')
    a('s_cmp_eq_u32 s58, 1')
    a('s_cselect_b32 s59, 2048, s59')
    a('s_and_b32 s61, s58, 1')
    a('s_cmp_eq_u32 s58, 1')
    a('s_cselect_b32 s62, 1, 0')
    a('s_cmp_eq_u32 s58, 2')
    a('s_cselect_b32 s62, 1, s62')
    a('v_add_u32 v10, s59, v12')
    a('v_sub_u32 v11, s59, v12')
    a('s_cmp_eq_u32 s62, 1')
    a('s_cselect_b64 vcc, -1, 0')
    a('v_cndmask_b32 v10, v10, v11, vcc')
    a('s_cmp_lt_u32 s58, 2')
    a('s_cselect_b64 vcc, -1, 0')
    a('v_sub_u32 v11, 1024, v12')
    a('v_cndmask_b32 v13, v11, v12, vcc')
    a('s_lshl_b32 s61, s61, 20')
    a('v_mov_b32 v106, s61')
    a('s_lshr_b32 s62, s58, 1')
    a('s_lshl_b32 s63, s62, 10')
    a('s_add_u32 s63, s63, 512')
    a('s_lshl_b32 s62, s62, 20')
    a('s_and_b32 s59, s58, 1')
    a('s_cmp_eq_u32 s59, 1')
    a('s_cselect_b64 s[64:65], -1, 0')
    a('v_cmp_eq_u32 vcc, 0, v12')
    a('s_nop 1')
    a('s_and_b64 vcc, vcc, s[64:65]')
    a('v_mov_b32 v11, s63')
    a('v_cndmask_b32 v10, v10, v11, vcc')
    a('v_mov_b32 v11, 512')
    a('v_cndmask_b32 v13, v13, v11, vcc')
    a('v_mov_b32 v11, s62')
    a('v_cndmask_b32 v106, v106, v11, vcc')
    a('v_lshlrev_b32 v11, 10, v10')
    a('v_lshl_add_u32 v11, v9, 3, v11')
    a('s_lshl_b32 s58, s41, 7')
    a('s_lshl_b32 s59, s43, 6')
    a('s_add_u32 s58, s58, s59')
    a('v_add_u32 v11, s58, v11')
    a(f'v_mul_u32_u24 v13, {YQ_PITCH}, v13')
    a('v_lshlrev_b32 v12, 3, v9')
    a('s_cmp_lt_u32 s41, 4')
    a(f's_cbranch_scc0 L_{name}_ym')
    a('v_add_u32 v13, v13, v12')
    a('v_add_u32 v13, s58, v13')
    a(f's_branch L_{name}_ymd')
    a.label(f'L_{name}_ym')
    a('v_sub_u32 v13, v13, v12')
    a('s_sub_u32 s59, 1018-48, s58')
    a('v_add_u32 v13, s59, v13')
    a.label(f'L_{name}_ymd')
    a('s_lshr_b32 s59, s41, 2')
    a('s_lshl_b32 s59, s59, 20')
    a('v_xor_b32 v106, s59, v106')
    a('v_add_u32 v13, v13, v106')
    a(f's_mov_b32 s60, {WS_Y}')
    a('v_lshlrev_b32 v105, 2, v10')
    a('v_bfe_u32 v5, v1, 2, 2')
    a('v_lshl_add_u32 v6, v9, 2, v5')
    a('v_lshlrev_b32 v6, 7, v6')
    a('v_bfe_u32 v7, v1, 3, 1')
    a('v_lshlrev_b32 v7, 6, v7')
    a('v_bfe_u32 v16, v1, 4, 1')
    a('v_lshl_add_u32 v6, v16, 5, v6')
    a('v_bfe_u32 v16, v1, 1, 1')
    a('v_lshl_add_u32 v6, v16, 4, v6')
    a('v_and_b32 v16, 1, v1')
    a('v_lshl_add_u32 v6, v16, 3, v6')
    a('v_add_u32 v14, v6, v7')
    a('s_lshl_b32 s58, s43, 15')
    a('v_add_u32 v14, s58, v14')
    a('v_xor_b32 v15, 64, v14')
    a(f's_mov_b32 s59, {WS_G}')
    a('buffer_load_dword v104, v105, s[24:27], s59 offen')
    stamp(a,1)
    a('s_cmp_eq_u32 s32, 0')
    a(f's_cbranch_scc0 L_{name}_nopoll')
    a('s_lshl_b32 s58, s33, 7')
    a(f's_add_u32 s58, s58, {WS_FLAG}')
    a('v_lshlrev_b32 v16, 2, v1')
    a('v_add_u32 v16, s58, v16')
    a('v_mov_b32 v17, 32')
    a('v_mov_b32 v19, 297')
    a('v_cmp_eq_u32 vcc, 1, v1')
    a('s_nop 1')
    a('v_cndmask_b32 v17, v17, v19, vcc')
    poll(a, name+'_c', 16, 17, 2, base='s[24:25]', tmp=18)
    a.label(f'L_{name}_nopoll')
    a('s_barrier')
    stamp(a,2)
    OF=32
    a('s_lshl_b32 s51, s44, 15')
    a('s_lshl_b32 s52, s43, 14')
    a('s_add_u32 s51, s51, s52')
    a(f's_add_u32 s51, s51, {WS_O}')
    for i in range(16):
        if i%4==0 and i: a('s_add_u32 s51, s51, 4096')
        a(f'buffer_load_dwordx4 v[{OF+4*i}:{OF+4*i+3}], v2, s[24:27], s51 offen offset:{(i%4)*1024} sc1')
    for b in range(4): a(f'buffer_load_dwordx2 v[{96+2*b}:{97+2*b}], v13, s[24:27], s60 offen offset:{b*16} sc1')
    ACC=[16,112]; FW=[128,136]
    def reads(i):
        s_=i%2
        for j in range(2):
            a(f'ds_read_b64_tr_b16 v[{FW[s_]+4*j}:{FW[s_]+4*j+1}], v{14+j} offset:{i*2048}')
            a(f'ds_read_b64_tr_b16 v[{FW[s_]+4*j+2}:{FW[s_]+4*j+3}], v{14+j} offset:{i*2048+1024}')
    reads(0)
    for i in range(16):
        if i<15: reads(i+1); a(f's_waitcnt vmcnt({4+15-i}) lgkmcnt(4)')
        else: a('s_waitcnt vmcnt(4) lgkmcnt(0)')
        s_=i%2
        for j in range(2):
            c = '0' if i==0 else f'v[{ACC[j]}:{ACC[j]+15}]'
            a(f'v_mfma_f32_32x32x16_bf16 v[{ACC[j]}:{ACC[j]+15}], v[{FW[s_]+4*j}:{FW[s_]+4*j+3}], v[{OF+4*i}:{OF+4*i+3}], {c}')
    stamp(a,3)
    K3X=65536
    a('s_lshl_b32 s48, s42, 13')
    a('s_xor_b32 s49, s43, 1')
    a('s_lshl_b32 s49, s49, 12')
    a('s_add_u32 s49, s49, s48')
    a(f's_add_u32 s49, s49, {K3X}')
    a('v_add_u32 v5, s49, v2')
    a('s_lshl_b32 s49, s43, 12')
    a('s_add_u32 s49, s49, s48')
    a(f's_add_u32 s49, s49, {K3X}')
    a('v_add_u32 v6, s49, v2')
    a('s_nop 7')
    a('s_cmp_eq_u32 s43, 0')
    a(f's_cbranch_scc0 L_{name}_kw1')
    for g in range(4): a(f'ds_write_b128 v5, v[{ACC[1]+4*g}:{ACC[1]+4*g+3}] offset:{g*1024}')
    a(f's_branch L_{name}_x')
    a.label(f'L_{name}_kw1')
    for g in range(4): a(f'ds_write_b128 v5, v[{ACC[0]+4*g}:{ACC[0]+4*g+3}] offset:{g*1024}')
    a('s_nop 1')
    for r in range(16): a(f'v_mov_b32 v{ACC[0]+r}, v{ACC[1]+r}')
    a.label(f'L_{name}_x')
    a('s_waitcnt vmcnt(0) lgkmcnt(0)')
    a('s_barrier')
    for g in range(4): a(f'ds_read_b128 v[{32+4*g}:{35+4*g}], v6 offset:{g*1024}')
    a('v_sub_f32 v105, 1.0, v104')
    a('s_cmp_lt_u32 s41, 4')
    a(f's_cbranch_scc0 L_{name}_um')
    for b in range(4):
        for q in range(2):
            src=96+2*b+q
            a(f'v_lshlrev_b32 v{48+4*b+2*q}, 16, v{src}')
            a(f'v_and_b32 v{48+4*b+2*q+1}, 0xffff0000, v{src}')
    a(f's_branch L_{name}_umd')
    a.label(f'L_{name}_um')
    for b in range(4):
        g=3-b
        d0=96+2*b; d1=97+2*b
        a(f'v_and_b32 v{48+4*g+0}, 0xffff0000, v{d1}')
        a(f'v_lshlrev_b32 v{48+4*g+1}, 16, v{d1}')
        a(f'v_and_b32 v{48+4*g+2}, 0xffff0000, v{d0}')
        a(f'v_lshlrev_b32 v{48+4*g+3}, 16, v{d0}')
    a.label(f'L_{name}_umd')
    for r in range(16): a(f'v_mul_f32 v{48+r}, v104, v{48+r}')
    a('s_waitcnt lgkmcnt(0)')
    for r in range(16): a(f'v_add_f32 v{16+r}, v{16+r}, v{32+r}')
    for r in range(16): a(f'v_fmac_f32 v{48+r}, v105, v{16+r}')
    for b in range(4):
        a(f'v_cvt_pk_bf16_f32 v{64+2*b}, v{48+4*b}, v{48+4*b+1}')
        a(f'v_cvt_pk_bf16_f32 v{65+2*b}, v{48+4*b+2}, v{48+4*b+3}')
    a('v_lshl_add_u32 v11, v9, 3, v11')
    for b in (0,2):
        a(f'v_permlane32_swap_b32 v{64+2*b}, v{66+2*b}')
        a(f'v_permlane32_swap_b32 v{65+2*b}, v{67+2*b}')
    sv=a.stflag; a.stflag='sc1' if 'outsc1' in EXPT else ''
    for b in (0,2):
        a(f'buffer_store_dwordx4 v[{64+2*b}:{67+2*b}], v11, s[12:15], 0 offen offset:{b*16}')
    a.stflag=sv
    stamp_flush(a, 4, 24, 32, 4, 2, vtmp=106)

K2_SUM=131072
K2_CNT=K2_SUM+16384
K2_LDS=K2_CNT+64
def gen_k23(a, name):
    return gen_k2(a, name, fused=True)

def gen_k2(a, name, fused=False):
    a.noload=False
    kernel_header(a, name)
    a('s_cmp_ge_u32 s2, 256')
    a(f's_cbranch_scc1 L_{name}_end')
    stamp(a,0)
    a('s_load_dwordx4 s[36:39], s[0:1], 8')
    a('s_load_dwordx2 s[46:47], s[0:1], 88')
    a('s_load_dwordx2 s[56:57], s[0:1], 56')
    a('s_load_dwordx2 s[72:73], s[0:1], 72')
    a('v_lshrrev_b32 v2, 6, v0')
    a('v_and_b32 v1, 63, v0')
    a('v_readfirstlane_b32 s32, v2')
    a('v_lshlrev_b32 v2, 4, v1')
    a('s_and_b32 s33, s2, 7')
    a('s_lshr_b32 s34, s2, 3')
    a('s_and_b32 s35, s34, 3')
    a('s_lshl_b32 s40, s33, 2')
    a('s_add_u32 s40, s40, s35')
    a('s_lshr_b32 s41, s2, 5')
    a('s_waitcnt lgkmcnt(0)')
    srd(a, 24, 46, WS_SIZE)
    a('s_cmp_ge_u32 s32, 8')
    a(f's_cbranch_scc1 L_{name}_fnet')
    Q=4; C=8; S=[24,40]; O=56; K=[72,76]; V0=[80,88]; V1=[84,92]; ADDR=96; IDX=3
    a('s_lshl_b32 s42, s41, 3')
    a('s_add_u32 s42, s42, s32')
    a('s_lshl_b32 s43, s40, 16')
    a('s_lshl_b32 s44, s42, 10')
    a('s_add_u32 s43, s43, s44')
    a(f'buffer_load_dwordx4 v[{Q}:{Q+3}], v2, s[24:27], s43 offen')
    a('s_lshl_b32 s43, s40, 17')
    a(f's_add_u32 s43, s43, {WS_KV}')
    a('s_lshl_b32 s44, s32, 11')
    if 'kvrot' in EXPT:
        a('s_lshl_b32 s46, s41, 3')
        a('s_add_u32 s46, s46, s32')
    else: a('s_mov_b32 s46, s32')
    a('s_lshl_b32 s45, s46, 11')
    a('s_add_u32 s45, s45, s43')
    a('s_add_u32 s47, s44, 131072')
    a.label(f'L_{name}_kv')
    a('s_mov_b32 m0, s44')
    a('s_add_u32 s44, s44, 16384')
    a('buffer_load_dwordx4 v2, s[24:27], s45 offen lds')
    a('buffer_load_dwordx4 v2, s[24:27], s45 offen offset:1024 lds')
    a('s_add_u32 s45, s45, 16384')
    a('s_cmp_lt_u32 s44, s47')
    a(f's_cbranch_scc1 L_{name}_kv')
    a(f'v_mov_b32 v{IDX}, 0xdddddddd')
    if 'allones' in EXPT:
        for r in range(80,96): a(f'v_mov_b32 v{r}, 0x3f803f80')
    else:
        a('v_mov_b32 v97, 0')
        a('v_mov_b32 v98, 0x3f803f80')
        a('s_mov_b32 s52, 0x00110000')
        a('s_mov_b32 s53, 0x00110000')
        a('v_cndmask_b32 v97, v97, v98, s[52:53]')
        for r in range(80,96): a(f'v_mov_b32 v{r}, v97')
    a('s_mov_b32 s48, 0x0000ffff')
    a('s_mov_b32 s49, 0x0000ffff')
    a('s_mov_b32 s50, 0')
    a('s_cmp_lt_u32 s32, 4')
    a(f's_cselect_b32 s54, {PR[0]}, {PR[1]}')
    a(f's_cselect_b32 s55, {PR[2]}, {PR[3]}')
    a('s_setprio 2')
    for r in range(16): a(f'v_mov_b32 v{O+r}, 0')
    for r in range(8,16): a(f'v_mov_b32 v{S[1]+r}, 0')
    a(f'v_mov_b32 v{ADDR}, v2')
    a('s_waitcnt vmcnt(14)' if 'b1b' in EXPT else 's_waitcnt vmcnt(12)')
    a('s_barrier')
    stamp(a,1)
    a(f'ds_read_b128 v[{K[0]}:{K[0]+3}], v2')
    a(f'ds_read_b128 v[{K[1]}:{K[1]+3}], v2 offset:2048')
    a('s_mov_b64 exec, s[48:49]')
    a(f'ds_read_b128 v[{V0[0]}:{V0[0]+3}], v2 offset:1024')
    a(f'ds_read_b128 v[{V1[0]}:{V1[0]+3}], v2 offset:1280')
    a('s_mov_b64 exec, -1')
    a('s_waitcnt lgkmcnt(3)')
    a(f'v_mfma_f32_32x32x16_bf16 v[{S[0]}:{S[0]+15}], v[{K[0]}:{K[0]+3}], v[{Q}:{Q+3}], 0')
    a('s_nop 15')
    s0=S[0]
    a(f'v_max3_f32 v97, v{s0}, v{s0+1}, v{s0+2}')
    for r in range(3,15,2): a(f'v_max3_f32 v97, v97, v{s0+r}, v{s0+r+1}')
    a(f'v_max_f32 v97, v97, v{s0+15}')
    a.label(f'L_{name}_havemax')
    a('v_mov_b32 v98, v97')
    a('s_nop 1')
    a('v_permlane32_swap_b32 v97, v98')
    a('s_nop 1')
    a('v_max_f32 v97, v97, v98')
    for r in range(16): a(f'v_sub_f32 v{C+r}, 0, v97')
    a('s_waitcnt lgkmcnt(0)')
    a(f'v_mfma_f32_32x32x16_bf16 v[{S[0]}:{S[0]+15}], v[{K[0]}:{K[0]+3}], v[{Q}:{Q+3}], v[{C}:{C+15}]')
    a('s_mov_b32 s51, 0')
    if STAMPS: a('s_memtime s[74:75]')
    a('s_nop 15')
    a.raw('.p2align 6')
    a.label(f'L_{name}_loop')
    for i in range(4):
        cur=S[i%2]; prev=S[(i+1)%2]
        def e(x,y):
            for j in range(x,y):
                if 'noexp' in EXPT: a(f'v_mov_b32 v{cur+j}, v{cur+j}')
                else: a(f'v_exp_f32 v{cur+j}, v{cur+j}')
        a('s_waitcnt lgkmcnt(0)')
        e(0,2)
        if 'nopv' not in EXPT: a(f'v_smfmac_f32_32x32x32_bf16 v[{O}:{O+15}], v[{V1[(i+1)%2]}:{V1[(i+1)%2]+3}], v[{prev+8}:{prev+15}], v{IDX}')
        if 'nolds' not in EXPT:
            a(f'ds_read_b128 v[{K[i%2]}:{K[i%2]+3}], v{ADDR} offset:{(i+2)*2048}')
            a('s_mov_b64 exec, s[48:49]')
            a(f'ds_read_b128 v[{V0[(i+1)%2]}:{V0[(i+1)%2]+3}], v{ADDR} offset:{(i+1)*2048+1024}')
            a(f'ds_read_b128 v[{V1[(i+1)%2]}:{V1[(i+1)%2]+3}], v{ADDR} offset:{(i+1)*2048+1280}')
            a('s_mov_b64 exec, -1')
        e(2,7)
        a(f'v_mfma_f32_32x32x16_bf16 v[{prev}:{prev+15}], v[{K[(i+1)%2]}:{K[(i+1)%2]+3}], v[{Q}:{Q+3}], v[{C}:{C+15}]')
        e(7,12)
        if 'nopv' not in EXPT: a(f'v_smfmac_f32_32x32x32_bf16 v[{O}:{O+15}], v[{V0[i%2]}:{V0[i%2]+3}], v[{cur}:{cur+7}], v{IDX}')
        e(12,16)
    a(f'v_add_u32 v{ADDR}, 8192, v{ADDR}')
    a('s_add_u32 s51, s51, 1')
    if 'b1b' in EXPT:
        a('s_cmp_eq_u32 s51, 1')
        a(f's_cbranch_scc1 L_{name}_ev1')
    a('s_cmp_eq_u32 s51, 3')
    a(f's_cbranch_scc1 L_{name}_ev3')
    a('s_cmp_eq_u32 s51, s54')
    a(f's_cbranch_scc1 L_{name}_ev10')
    a('s_cmp_eq_u32 s51, s55')
    a(f's_cbranch_scc1 L_{name}_ev14')
    a('s_cmp_lt_u32 s51, 16')
    a(f's_cbranch_scc1 L_{name}_loop')
    a(f's_branch L_{name}_done')
    a.label(f'L_{name}_ev1')
    a('s_cmp_eq_u32 s50, 0')
    a(f's_cbranch_scc0 L_{name}_loop')
    a('s_waitcnt vmcnt(12)')
    a('s_barrier')
    a(f's_branch L_{name}_loop')
    a.label(f'L_{name}_ev3')
    a('s_cmp_eq_u32 s50, 0')
    a(f's_cbranch_scc0 L_{name}_loop')
    stamp(a,3)
    a('s_waitcnt vmcnt(0)')
    a('s_barrier')
    stamp(a,4)
    a(f's_branch L_{name}_loop')
    a.label(f'L_{name}_ev10')
    stamp(a,5)
    a('s_setprio 1')
    a(f's_branch L_{name}_loop')
    a.label(f'L_{name}_ev14')
    a('s_setprio 0')
    a(f's_branch L_{name}_loop')
    a.label(f'L_{name}_done')
    a('s_nop 1')
    a(f'v_smfmac_f32_32x32x32_bf16 v[{O}:{O+15}], v[{V1[1]}:{V1[1]+3}], v[{S[1]+8}:{S[1]+15}], v{IDX}')
    a('s_waitcnt lgkmcnt(0)')
    a('s_nop 15')
    stamp(a,2)
    if STAMPS:
        a('s_memtime s[76:77]')
        a('s_waitcnt lgkmcnt(0)')
        a('s_sub_u32 s78, s76, s74')
    THR = -1.0 if 'forcefb' in EXPT else 2.0**60
    a(f's_mov_b32 s52, {hex(f2u(THR))}')
    a(f'v_cmp_gt_f32 vcc, s52, v{O+8}')
    if 'nopv' in EXPT or 'noexp' in EXPT: a('s_mov_b32 s50, 1')
    a('s_nop 3')
    a('s_cmp_eq_u64 vcc, -1')
    a(f's_cbranch_scc1 L_{name}_ok')
    a('s_cmp_eq_u32 s50, 0')
    a(f's_cbranch_scc0 L_{name}_ok')
    a('s_mov_b32 s50, 1')
    a('s_setprio 2')
    a('v_mov_b32 v97, 0xff800000')
    a(f'v_mov_b32 v{ADDR}, v2')
    a('s_mov_b32 s51, 0')
    a.label(f'L_{name}_fb')
    a(f'ds_read_b128 v[{K[0]}:{K[0]+3}], v{ADDR}')
    a('s_waitcnt lgkmcnt(0)')
    a(f'v_mfma_f32_32x32x16_bf16 v[{S[0]}:{S[0]+15}], v[{K[0]}:{K[0]+3}], v[{Q}:{Q+3}], 0')
    a('s_nop 15')
    for r in range(0,16,2): a(f'v_max3_f32 v97, v97, v{s0+r}, v{s0+r+1}')
    a(f'v_add_u32 v{ADDR}, 2048, v{ADDR}')
    a('s_add_u32 s51, s51, 1')
    a('s_cmp_lt_u32 s51, 64')
    a(f's_cbranch_scc1 L_{name}_fb')
    for r in range(16): a(f'v_mov_b32 v{O+r}, 0')
    for r in range(8,16): a(f'v_mov_b32 v{S[1]+r}, 0')
    a(f'v_mov_b32 v{ADDR}, v2')
    a(f'ds_read_b128 v[{K[0]}:{K[0]+3}], v2')
    a(f'ds_read_b128 v[{K[1]}:{K[1]+3}], v2 offset:2048')
    a('s_mov_b64 exec, s[48:49]')
    a(f'ds_read_b128 v[{V0[0]}:{V0[0]+3}], v2 offset:1024')
    a(f'ds_read_b128 v[{V1[0]}:{V1[0]+3}], v2 offset:1280')
    a('s_mov_b64 exec, -1')
    a(f's_branch L_{name}_havemax')
    a.label(f'L_{name}_ok')
    a(f'v_rcp_f32 v97, v{O+8}')
    a('s_nop 0')
    for r in range(8): a(f'v_mul_f32 v{O+r}, v97, v{O+r}')
    for q in range(4): a(f'v_cvt_pk_bf16_f32 v{100+q}, v{O+2*q}, v{O+2*q+1}')
    a('s_lshl_b32 s43, s42, 15')
    a('s_lshl_b32 s44, s40, 10')
    a('s_add_u32 s43, s43, s44')
    a(f's_add_u32 s43, s43, {WS_O}')
    a('buffer_store_dwordx4 v[100:103], v2, s[24:27], s43 offen')
    if fused:
        a('s_waitcnt vmcnt(0)')
        a(f's_branch L_{name}_endB')
    else:
        a(f's_branch L_{name}_fin')

    a.label(f'L_{name}_fnet')
    a(f's_setprio {FPRIO}')
    a('s_sub_u32 s35, s32, 8')
    srd(a, 8, 36, 0x800000)
    srd(a, 12, 38, 0x800000)
    for r in range(4,8): a(f'v_mov_b32 v{r}, 0')
    a(f'v_mov_b32 v8, {K2_CNT}')
    a('ds_write_b128 v8, v[4:7]')
    a('s_waitcnt lgkmcnt(0)')
    a('s_barrier')
    stamp(a,1)
    if 'b1b' in EXPT: a('s_barrier')
    if NOFNET:
        a('s_barrier')
        a(f's_branch L_{name}_fin')
    a('v_and_b32 v9, 31, v1')
    a('v_lshrrev_b32 v10, 5, v1')
    stamp(a,2)
    a('s_mov_b32 s60, 0')
    a('s_mov_b32 s61, 0')
    a('s_lshr_b32 s62, s35, 1')
    a('s_and_b32 s63, s35, 1')
    a('s_cmp_eq_u32 s62, 0')
    a('s_cselect_b32 s16, s8, s12')
    a('s_cselect_b32 s17, s9, s13')
    a('s_mov_b32 s18, 0x800000')
    a('s_mov_b32 s19, 0x20000')
    a.label(f'L_{name}_job')
    a('s_cmp_eq_u32 s60, 0')
    a(f's_cbranch_scc1 L_{name}_dojob')
    a('s_mov_b32 s16, s8')
    a('s_mov_b32 s17, s9')
    a('s_mov_b32 s62, 0')
    a.label(f'L_{name}_dojob')
    a('s_and_b32 s66, s40, 1')
    a('s_lshr_b32 s42, s40, 1')
    a('s_lshl_b32 s42, s42, 6')
    a('s_add_u32 s42, s42, s66')
    a('v_lshl_add_u32 v11, v9, 1, s42')
    a('v_mov_b32 v8, v11')
    a('v_lshlrev_b32 v11, 12, v11')
    a('v_lshl_add_u32 v11, v10, 4, v11')
    a('s_lshl_b32 s43, s66, 1')
    a('s_add_u32 s43, s43, s62')
    a(f's_mul_i32 s43, s43, {T_ARR}')
    a(f's_mul_i32 s44, s41, {T_ET}')
    a('s_add_u32 s43, s43, s44')
    a(f's_add_u32 s43, s43, {WS_T}')
    a(f's_add_u32 s67, s43, {32*1024}')
    a('s_lshl_b32 s45, s63, 4')
    a('s_lshl_b32 s46, s35, 3')
    a('s_cmp_eq_u32 s60, 0')
    a('s_cselect_b32 s49, s45, s46')
    a('s_lshl_b32 s45, s49, 10')
    a('s_add_u32 s43, s43, s45')
    a('s_lshl_b32 s45, s49, 5')
    ACCF=16
    for r in range(16): a(f'v_mov_b32 v{ACCF+r}, 0')
    SET=[32,96]
    a('s_cmp_eq_u32 s60, 0')
    a('s_cselect_b32 s58, 1, 0')
    a('s_and_b32 s59, s41, s58')
    def issue(setb, b):
        a(f's_xor_b32 s64, s59, {b}')
        a('s_lshl_b32 s65, s64, 8')
        a('s_add_u32 s65, s65, s45')
        a('s_lshl_b32 s64, s64, 13')
        a('s_add_u32 s64, s64, s43')
        for k in range(8):
            ra=setb+8*k
            a(f'buffer_load_dwordx4 v[{ra}:{ra+3}], v11, s[16:19], s65 offen offset:{k*32}')
            if k==4: a('s_add_u32 s64, s64, 4096')
            a(f'buffer_load_dwordx4 v[{ra+4}:{ra+7}], v2, s[24:27], s64 offen offset:{(k%4)*1024}')
    def mm(setb, first_wait):
        for k in range(8):
            ra=setb+8*k
            a(f's_waitcnt vmcnt({first_wait-2*k-2})')
            a(f'v_mfma_f32_32x32x16_bf16 v[{ACCF}:{ACCF+15}], v[{ra+4}:{ra+7}], v[{ra}:{ra+3}], v[{ACCF}:{ACCF+15}]')
    issue(SET[0],0)
    a('s_cmp_eq_u32 s61, 0')
    a(f's_cbranch_scc0 L_{name}_nob2')
    a('s_mov_b32 s61, 1')
    stamp(a,3)
    a('s_barrier')
    stamp(a,4)
    a.label(f'L_{name}_nob2')
    a('s_cmp_eq_u32 s62, s66')
    a('s_cselect_b32 s68, 1, 0')
    a('s_cmp_eq_u32 s60, 0')
    a('s_cselect_b32 s69, s63, 0')
    a('s_cmp_eq_u32 s35, 3')
    a('s_cselect_b32 s70, 1, 0')
    a('s_cmp_eq_u32 s60, 0')
    a('s_cselect_b32 s69, s69, s70')
    a('s_and_b32 s68, s68, s69')
    a('s_cmp_eq_u32 s60, 0')
    a(f's_cbranch_scc0 L_{name}_short')
    issue(SET[1],1)
    mm(SET[0],32)
    mm(SET[1],16)
    a(f's_branch L_{name}_mmd')
    a.label(f'L_{name}_short')
    mm(SET[0],16)
    a.label(f'L_{name}_mmd')
    a('s_cmp_eq_u32 s68, 1')
    a(f's_cbranch_scc0 L_{name}_nox')
    a('s_mov_b32 s45, 1024')
    a(f'buffer_load_dwordx4 v[32:35], v11, s[16:19], s45 offen')
    a(f'buffer_load_dwordx4 v[36:39], v2, s[24:27], s67 offen')
    a('s_waitcnt vmcnt(0)')
    a(f'v_mfma_f32_32x32x16_bf16 v[{ACCF}:{ACCF+15}], v[36:39], v[32:35], v[{ACCF}:{ACCF+15}]')
    a.label(f'L_{name}_nox')
    a('s_nop 15')
    a('s_cmp_eq_u32 s60, 0')
    a(f's_cbranch_scc1 L_{name}_nospin')
    a(f'v_mov_b32 v12, {K2_CNT+8}')
    a.label(f'L_{name}_spin')
    a('ds_read_b32 v13, v12')
    a('s_waitcnt lgkmcnt(0)')
    a('v_readfirstlane_b32 s47, v13')
    a('s_nop 3')
    a('s_cmp_eq_u32 s47, 0')
    a(f's_cbranch_scc0 L_{name}_nospin')
    a('s_sleep 2')
    a(f's_branch L_{name}_spin')
    a.label(f'L_{name}_nospin')
    a('s_lshl_b32 s45, s35, 12')
    a(f's_add_u32 s45, s45, {K2_SUM}')
    a('v_add_u32 v12, s45, v2')
    for g in range(4): a(f'ds_write_b128 v12, v[{ACCF+4*g}:{ACCF+4*g+3}] offset:{g*1024}')
    stamp(a,5)
    a('s_waitcnt lgkmcnt(0)')
    a('s_lshl_b32 s45, s60, 2')
    a(f's_add_u32 s45, s45, {K2_CNT}')
    a('v_mov_b32 v12, s45')
    a('v_mov_b32 v13, 1')
    a('s_mov_b64 exec, 1')
    a('ds_add_rtn_u32 v14, v12, v13')
    a('s_waitcnt lgkmcnt(0)')
    a('s_mov_b64 exec, -1')
    a('v_readfirstlane_b32 s47, v14')
    a('s_nop 3')
    a('s_cmp_eq_u32 s47, 3')
    a(f's_cbranch_scc0 L_{name}_nextjob')
    a(f'v_add_u32 v12, {K2_SUM}, v2')
    for g in range(4): a(f'ds_read_b128 v[{32+4*g}:{35+4*g}], v12 offset:{g*1024}')
    for g in range(4): a(f'ds_read_b128 v[{80+4*g}:{83+4*g}], v12 offset:{4096+g*1024}')
    for g in range(4): a(f'ds_read_b128 v[{48+4*g}:{51+4*g}], v12 offset:{8192+g*1024}')
    a('s_waitcnt lgkmcnt(8)')
    for g in range(4): a(f'ds_read_b128 v[{96+4*g}:{99+4*g}], v12 offset:{12288+g*1024}')
    a('s_waitcnt lgkmcnt(0)')
    a(f'v_mov_b32 v12, {K2_CNT+8}')
    a('v_mov_b32 v13, 1')
    a('ds_write_b32 v12, v13')
    for r in range(16): a(f'v_add_f32 v{48+r}, v{48+r}, v{96+r}')
    for r in range(16): a(f'v_add_f32 v{32+r}, v{32+r}, v{80+r}')
    a('s_cmp_eq_u32 s60, 0')
    a(f's_cbranch_scc1 L_{name}_haveq')
    for r in range(16):
        a(f'v_add_f32 v{32+r}, v{32+r}, v{48+r}')
        a(f'v_mov_b32 v{48+r}, 0')
    a.label(f'L_{name}_haveq')
    for r in range(16):
        a(f'v_sub_f32 v{64+r}, v{32+r}, v{48+r}')
        a(f'v_add_f32 v{32+r}, v{32+r}, v{48+r}')
    for q in range(8):
        a(f'v_cvt_pk_bf16_f32 v{80+q}, v{64+2*q}, v{64+2*q+1}')
        a(f'v_cvt_pk_bf16_f32 v{88+q}, v{32+2*q}, v{32+2*q+1}')
    a(f'v_mul_u32_u24 v13, {YQ_PITCH}, v8')
    a('v_lshl_add_u32 v13, v10, 3, v13')
    a('s_lshl_b32 s42, s41, 6')
    a(f's_add_u32 s42, s42, {WS_Y}')
    a(f's_add_u32 s43, s42, 0x100000')
    for b in range(4):
        a(f'buffer_store_dwordx2 v[{80+2*b}:{81+2*b}], v13, s[24:27], s42 offen offset:{b*16} sc1')
        a(f'buffer_store_dwordx2 v[{88+2*b}:{89+2*b}], v13, s[24:27], s43 offen offset:{b*16} sc1')
    if fused:
        a('s_waitcnt vmcnt(0)')
        a('v_lshlrev_b32 v12, 7, v1')
        a(f'v_add_u32 v12, {WS_FLAG+4}, v12')
        a('v_mov_b32 v13, 1')
        a('s_mov_b64 exec, 0xff')
        a('global_atomic_add v12, v13, s[24:25] sc1')
        a('s_mov_b64 exec, -1')
    a.label(f'L_{name}_nextjob')
    a('s_add_u32 s60, s60, 1')
    a('s_cmp_eq_u32 s60, 1')
    a(f's_cbranch_scc0 L_{name}_fin')
    a('s_cmp_ge_u32 s2, 224')
    a(f's_cbranch_scc1 L_{name}_edgec')
    a('s_sub_u32 s42, s2, 192')
    a('s_cmp_lt_u32 s42, 9')
    a(f's_cbranch_scc0 L_{name}_fin')
    a('s_mov_b32 s40, 32')
    a('s_mov_b32 s41, s42')
    a(f's_branch L_{name}_job')
    a.label(f'L_{name}_edgec')
    a('s_mov_b32 s41, 8')
    a(f's_branch L_{name}_job')
    a.label(f'L_{name}_fin')
    if fused:
        a('s_setprio 0')
        srd(a, 8, 56, 0x80000)
        a('v_lshrrev_b32 v3, 3, v1')
        a('v_bfe_u32 v4, v1, 4, 1')
        a('v_lshlrev_b32 v4, 2, v4')
        a('v_and_b32 v5, 7, v1')
        a('v_xor_b32 v4, v4, v5')
        a('v_lshlrev_b32 v4, 4, v4')
        a('v_lshl_add_u32 v3, v3, 10, v4')
        a('s_lshl_b32 s45, s35, 17')
        a('s_lshr_b32 s48, s2, 5')
        a('s_lshl_b32 s48, s48, 7')
        a('s_add_u32 s45, s45, s48')
        for i in range(16):
            a(f's_add_u32 s49, s45, {i*8192}')
            a(f'buffer_load_dwordx4 v[{32+4*i}:{35+4*i}], v3, s[8:11], s49 offen')
        a('s_lshl_b32 s45, s35, 14')
        a('v_add_u32 v4, s45, v2')
        a('s_waitcnt vmcnt(0)')
        a('s_barrier')
        for i in range(16): a(f'ds_write_b128 v4, v[{32+4*i}:{35+4*i}] offset:{i*1024}')
        a('s_waitcnt lgkmcnt(0)')
        a('s_barrier')
        stamp_flush(a, 6, 24, 32, 12, 1, vtmp=104, extra=78)
        a(f's_branch L_{name}_end')
        a.label(f'L_{name}_endB')
        a('s_setprio 0')
        a('s_barrier')
        stamp_flush(a, 6, 24, 32, 12, 1, vtmp=104, extra=78)
        if STAMPS: a('s_mov_b64 exec, -1')
        a('s_cmp_ge_u32 s32, 4')
        a(f's_cbranch_scc1 L_{name}_w47')
        phase_c(a, name)
        a(f's_branch L_{name}_end')
        a.label(f'L_{name}_w47')
        a('s_barrier')
    else:
        stamp_flush(a, 6, 24, 32, 12, 1, vtmp=104, extra=78)
    a.label(f'L_{name}_end')
    a('s_endpgm')
    return 168


K3_X=65536
K3_LDS=K3_X+16384
def gen_k3(a, name):
    a.stflag=''
    kernel_header(a, name)
    a('s_cmp_ge_u32 s2, 256')
    a(f's_cbranch_scc1 L_{name}_end')
    stamp(a,0)
    a('s_load_dwordx2 s[46:47], s[0:1], 88')
    a('v_lshrrev_b32 v2, 6, v0')
    a('v_and_b32 v1, 63, v0')
    a('v_readfirstlane_b32 s32, v2')
    a('v_lshlrev_b32 v2, 4, v1')
    a('s_and_b32 s33, s2, 7')
    a('s_lshr_b32 s34, s2, 3')
    a('s_and_b32 s35, s34, 3')
    a('s_lshl_b32 s40, s33, 2')
    a('s_add_u32 s40, s40, s35')
    a('s_lshr_b32 s41, s2, 5')
    a('s_and_b32 s42, s32, 1')
    a('s_lshr_b32 s43, s32, 1')
    a('s_lshl_b32 s44, s40, 1')
    a('s_add_u32 s44, s44, s42')
    a('s_add_u32 s50, s41, s35')
    a('s_and_b32 s50, s50, 3')
    a('v_lshrrev_b32 v3, 3, v1')
    a('v_bfe_u32 v4, v1, 4, 1')
    a('v_lshlrev_b32 v4, 2, v4')
    a('v_and_b32 v5, 7, v1')
    a('v_xor_b32 v4, v4, v5')
    a('v_lshlrev_b32 v4, 4, v4')
    a('v_lshl_add_u32 v3, v3, 10, v4')
    a('s_lshl_b32 s45, s43, 8')
    a('s_lshl_b32 s48, s42, 5')
    a('s_add_u32 s45, s45, s48')
    a('s_lshl_b32 s48, s41, 7')
    a('s_lshl_b32 s51, s44, 15')
    a('s_lshl_b32 s52, s43, 14')
    a('s_add_u32 s51, s51, s52')
    a(f's_add_u32 s51, s51, {WS_O}')
    a('s_waitcnt lgkmcnt(0)')
    srd(a, 8, 36, 0x80000)
    srd(a, 24, 46, WS_SIZE)
    OF=32
    def issue(st):
        a(f's_add_u32 s53, s50, {st}')
        a('s_and_b32 s53, s53, 3')
        a('s_lshl_b32 s54, s53, 6')
        a('s_add_u32 s54, s54, s45')
        a('s_lshl_b32 s55, s54, 7')
        a('s_lshl_b32 s56, s54, 10')
        a('s_add_u32 s56, s56, s48')
        for i in range(4):
            a(f's_add_u32 m0, s55, {i*1024}')
            a(f's_add_u32 s57, s56, {i*8192}')
            a('buffer_load_dwordx4 v3, s[8:11], s57 offen lds')
        a('s_lshl_b32 s56, s53, 12')
        a('s_add_u32 s56, s56, s51')
        for i in range(4):
            a(f'buffer_load_dwordx4 v[{OF+16*st+4*i}:{OF+16*st+4*i+3}], v2, s[24:27], s56 offen offset:{i*1024}')
    issue(0); issue(1)
    srd(a, 12, 38, 0x200000)
    a('v_and_b32 v8, 31, v1')
    a('v_lshrrev_b32 v9, 5, v1')
    a('s_lshl_b32 s58, s44, 5')
    a('v_add_u32 v10, s58, v8')
    a('v_and_b32 v12, 511, v10')
    a('s_lshr_b32 s58, s44, 4')
    a('s_cmp_eq_u32 s58, 0')
    a('s_cselect_b32 s59, 0, 1024')
    a('s_cmp_eq_u32 s58, 1')
    a('s_cselect_b32 s59, 2048, s59')
    a('s_and_b32 s61, s58, 1')
    a('s_cmp_eq_u32 s58, 1')
    a('s_cselect_b32 s62, 1, 0')
    a('s_cmp_eq_u32 s58, 2')
    a('s_cselect_b32 s62, 1, s62')
    a('v_add_u32 v10, s59, v12')
    a('v_sub_u32 v11, s59, v12')
    a('s_cmp_eq_u32 s62, 1')
    a('s_cselect_b64 vcc, -1, 0')
    a('v_cndmask_b32 v10, v10, v11, vcc')
    a('s_cmp_lt_u32 s58, 2')
    a('s_cselect_b64 vcc, -1, 0')
    a('v_sub_u32 v11, 1024, v12')
    a('v_cndmask_b32 v13, v11, v12, vcc')
    a('s_lshl_b32 s61, s61, 20')
    a('v_mov_b32 v106, s61')
    a('s_lshr_b32 s62, s58, 1')
    a('s_lshl_b32 s63, s62, 10')
    a('s_add_u32 s63, s63, 512')
    a('s_lshl_b32 s62, s62, 20')
    a('s_and_b32 s59, s58, 1')
    a('s_cmp_eq_u32 s59, 1')
    a('s_cselect_b64 s[64:65], -1, 0')
    a('v_cmp_eq_u32 vcc, 0, v12')
    a('s_nop 1')
    a('s_and_b64 vcc, vcc, s[64:65]')
    a('v_mov_b32 v11, s63')
    a('v_cndmask_b32 v10, v10, v11, vcc')
    a('v_mov_b32 v11, 512')
    a('v_cndmask_b32 v13, v13, v11, vcc')
    a('v_mov_b32 v11, s62')
    a('v_cndmask_b32 v106, v106, v11, vcc')
    a('v_lshlrev_b32 v11, 10, v10')
    a('v_lshl_add_u32 v11, v9, 3, v11')
    a('s_lshl_b32 s58, s41, 7')
    a('s_lshl_b32 s59, s43, 6')
    a('s_add_u32 s58, s58, s59')
    a('v_add_u32 v11, s58, v11')
    a(f'v_mul_u32_u24 v13, {YQ_PITCH}, v13')
    a('v_lshlrev_b32 v12, 3, v9')
    a('s_cmp_lt_u32 s41, 4')
    a(f's_cbranch_scc0 L_{name}_ym')
    a('v_add_u32 v13, v13, v12')
    a('v_add_u32 v13, s58, v13')
    a(f's_branch L_{name}_ymd')
    a.label(f'L_{name}_ym')
    a('v_sub_u32 v13, v13, v12')
    a('s_sub_u32 s59, 1018-48, s58')
    a('v_add_u32 v13, s59, v13')
    a.label(f'L_{name}_ymd')
    a('s_lshr_b32 s59, s41, 2')
    a('s_lshl_b32 s59, s59, 20')
    a('v_xor_b32 v106, s59, v106')
    a('v_add_u32 v13, v13, v106')
    a(f's_mov_b32 s60, {WS_Y}')
    a('v_lshlrev_b32 v105, 2, v10')
    a('v_bfe_u32 v5, v1, 2, 2')
    a('v_lshl_add_u32 v6, v9, 2, v5')
    a('v_lshlrev_b32 v6, 7, v6')
    a('v_bfe_u32 v7, v1, 3, 1')
    a('v_lshlrev_b32 v7, 6, v7')
    a('v_bfe_u32 v12, v1, 4, 1')
    a('v_lshl_add_u32 v6, v12, 5, v6')
    a('v_bfe_u32 v12, v1, 1, 1')
    a('v_lshl_add_u32 v6, v12, 4, v6')
    a('v_and_b32 v12, 1, v1')
    a('v_lshl_add_u32 v6, v12, 3, v6')
    a('v_add_u32 v14, v6, v7')
    a('s_lshl_b32 s58, s43, 15')
    a('v_add_u32 v14, s58, v14')
    ACC=[16,112]
    FW=[128,136]
    stamp(a,1)
    first=True
    waits={0:8, 1:8, 2:13, 3:5}
    for st in range(4):
        a(f's_add_u32 s53, s50, {st}')
        a('s_and_b32 s53, s53, 3')
        a('s_lshl_b32 s53, s53, 13')
        a('v_add_u32 v6, s53, v14')
        a('v_xor_b32 v7, 64, v6')
        a(f's_waitcnt vmcnt({waits[st]})')
        a('s_barrier')
        if st==0: stamp(a,2)
        def reads(i):
            s_=i%2
            for j in range(2):
                a(f'ds_read_b64_tr_b16 v[{FW[s_]+4*j}:{FW[s_]+4*j+1}], v{6+j} offset:{i*2048}')
                a(f'ds_read_b64_tr_b16 v[{FW[s_]+4*j+2}:{FW[s_]+4*j+3}], v{6+j} offset:{i*2048+1024}')
        reads(0)
        if st==0: issue(2)
        if st==1:
            issue(3)
            for b in range(4): a(f'buffer_load_dwordx2 v[{96+2*b}:{97+2*b}], v13, s[24:27], s60 offen offset:{b*16}')
            a(f's_mov_b32 s59, {WS_G}')
            a('buffer_load_dword v104, v105, s[24:27], s59 offen')
        for i in range(4):
            if i<3: reads(i+1); a('s_waitcnt lgkmcnt(4)')
            else: a('s_waitcnt lgkmcnt(0)')
            s_=i%2
            for j in range(2):
                c = '0' if first else f'v[{ACC[j]}:{ACC[j]+15}]'
                a(f'v_mfma_f32_32x32x16_bf16 v[{ACC[j]}:{ACC[j]+15}], v[{FW[s_]+4*j}:{FW[s_]+4*j+3}], v[{OF+16*st+4*i}:{OF+16*st+4*i+3}], {c}')
            first=False
    stamp(a,3)
    a('s_lshl_b32 s48, s42, 13')
    a('s_xor_b32 s49, s43, 1')
    a('s_lshl_b32 s49, s49, 12')
    a('s_add_u32 s49, s49, s48')
    a(f's_add_u32 s49, s49, {K3_X}')
    a('v_add_u32 v5, s49, v2')
    a('s_lshl_b32 s49, s43, 12')
    a('s_add_u32 s49, s49, s48')
    a(f's_add_u32 s49, s49, {K3_X}')
    a('v_add_u32 v6, s49, v2')
    a('s_nop 7')
    a('s_cmp_eq_u32 s43, 0')
    a(f's_cbranch_scc0 L_{name}_kw1')
    for g in range(4): a(f'ds_write_b128 v5, v[{ACC[1]+4*g}:{ACC[1]+4*g+3}] offset:{g*1024}')
    a(f's_branch L_{name}_x')
    a.label(f'L_{name}_kw1')
    for g in range(4): a(f'ds_write_b128 v5, v[{ACC[0]+4*g}:{ACC[0]+4*g+3}] offset:{g*1024}')
    a('s_nop 1')
    for r in range(16): a(f'v_mov_b32 v{ACC[0]+r}, v{ACC[1]+r}')
    a.label(f'L_{name}_x')
    a('s_waitcnt vmcnt(0) lgkmcnt(0)')
    a('s_barrier')
    for g in range(4): a(f'ds_read_b128 v[{32+4*g}:{35+4*g}], v6 offset:{g*1024}')
    a('v_sub_f32 v105, 1.0, v104')
    a('s_cmp_lt_u32 s41, 4')
    a(f's_cbranch_scc0 L_{name}_um')
    for b in range(4):
        for q in range(2):
            src=96+2*b+q
            a(f'v_lshlrev_b32 v{48+4*b+2*q}, 16, v{src}')
            a(f'v_and_b32 v{48+4*b+2*q+1}, 0xffff0000, v{src}')
    a(f's_branch L_{name}_umd')
    a.label(f'L_{name}_um')
    for b in range(4):
        g=3-b
        d0=96+2*b; d1=97+2*b
        a(f'v_and_b32 v{48+4*g+0}, 0xffff0000, v{d1}')
        a(f'v_lshlrev_b32 v{48+4*g+1}, 16, v{d1}')
        a(f'v_and_b32 v{48+4*g+2}, 0xffff0000, v{d0}')
        a(f'v_lshlrev_b32 v{48+4*g+3}, 16, v{d0}')
    a.label(f'L_{name}_umd')
    for r in range(16): a(f'v_mul_f32 v{48+r}, v104, v{48+r}')
    a('s_waitcnt lgkmcnt(0)')
    for r in range(16):
        a(f'v_add_f32 v{16+r}, v{16+r}, v{32+r}')
    for r in range(16):
        a(f'v_fmac_f32 v{48+r}, v105, v{16+r}')
    for b in range(4):
        a(f'v_cvt_pk_bf16_f32 v{64+2*b}, v{48+4*b}, v{48+4*b+1}')
        a(f'v_cvt_pk_bf16_f32 v{65+2*b}, v{48+4*b+2}, v{48+4*b+3}')
    for b in range(4):
        a(f'buffer_store_dwordx2 v[{64+2*b}:{65+2*b}], v11, s[12:15], 0 offen offset:{b*16}')
    stamp_flush(a, 4, 24, 32, 4, 2, vtmp=106)
    a.label(f'L_{name}_end')
    a('s_endpgm')
    return 144

def build(kernels):
    a=Asm()
    hdr = """; Kernarg layout (96 bytes): A_x, dft_seq_re, dft_seq_im, dft_hid_re, dft_hid_im, B_x, wqkv, wo, gate_w, out, debug, ws
"""
    descs=''
    body=Asm()
    for (name, fn, grid, block, lds) in kernels:
        hdr += f'; @launch kernel={name} grid=({grid},1,1) block=({block},1,1) lds={lds}\n'
    body.raw('.amdgcn_target "amdgcn-amd-amdhsa--gfx950"')
    body.raw('.text')
    for (name, fn, grid, block, lds) in kernels:
        v=fn(body,name)
        descs += kernel_desc(name, v)
    return hdr + body.text() + '.section .rodata,"a"\n' + descs

if __name__=='__main__':
    which = sys.argv[1] if len(sys.argv)>1 else 'k1'
    ks=[]
    ks.append(('k1_qkv_kernel', gen_k1, 256, 512, K1_LDS))
    if which in ('k2','all'): ks.append(('k2_attn_kernel', gen_k2, 256, 768, K2_LDS))
    if which=='f23': ks.append(('k2_attn_kernel', gen_k23, 256, 768, K2_LDS))
    if which=='all': ks.append(('k3_out_kernel', gen_k3, 256, 256, K3_LDS))
    txt=build(ks)
    out = sys.argv[2] if len(sys.argv)>2 else 'out.s'
    open(out,'w').write(txt)
```

```python
import sys, os
NAME='gated_mix__spectral_fnet__mha_block__prompt'
WS_Q=0; WS_KV=0x200000; WS_O=0x600000; WS_Y=0x800000; WS_T1=0xA00000; WS_T2=0xB00000; WS_G=0xC00000
WS_FLAG=0xC80000
WS_SIZE=0xD00000
YQ_PITCH=576; YQ_SZ=0x98000
T1_ET=65*1024; T2_ET=64*1024
WS_T=0xA00000; T_ET=33*1024; T_ARR=0x50000
C_SCALE=0.25*1.4426950408889634
import struct
def f2u(x): return struct.unpack('<I',struct.pack('<f',x))[0]

STAMPS = os.environ.get('STAMPS','0')=='1'
NOFNET = os.environ.get('NOFNET','0')=='1'
NOPRIO = os.environ.get('NOPRIO','0')=='1'
FAKEA = os.environ.get('FAKEA','0')=='1'
EXPT = os.environ.get('EXPT','')
FPRIO = int(os.environ.get('FPRIO','3'))
PR = [int(x) for x in os.environ.get('PR','9,10,15,63').split(',')]
class Asm:
    def __init__(self): self.L=[]; self.noload=False; self.stflag=''
    def __call__(self, s):
        for line in s.strip('\n').split('\n'):
            if self.noload and line.strip().endswith(' lds'): continue
            if NOPRIO and line.strip().startswith('s_setprio'): continue
            if line.strip().startswith('buffer_store_dwordx4') and self.stflag:
                if self.stflag=='none': continue
                line = line.strip()+' '+self.stflag
            self.L.append('    '+line.strip())
    def label(self, s): self.L.append(s+':')
    def raw(self, s): self.L.append(s)
    def text(self): return '\n'.join(self.L)+'\n'

def srd(a, d, lo, size):
    a(f's_mov_b32 s{d}, s{lo}')
    a(f's_mov_b32 s{d+1}, s{lo+1}')
    a(f's_mov_b32 s{d+2}, {hex(size)}')
    a(f's_mov_b32 s{d+3}, 0x20000')

def pi_perm(a, dst, src, tmp):
    a(f'v_and_b32 v{dst}, 0x13, v{src}')
    a(f'v_and_b32 v{tmp}, 4, v{src}')
    a(f'v_lshl_or_b32 v{dst}, v{tmp}, 1, v{dst}')
    a(f'v_and_b32 v{tmp}, 8, v{src}')
    a(f'v_lshrrev_b32 v{tmp}, 1, v{tmp}')
    a(f'v_or_b32 v{dst}, v{dst}, v{tmp}')

WS_STAMP=0x1000000
def stamp(a, i):
    if STAMPS:
        a(f's_memrealtime s[{80+2*i}:{81+2*i}]')
def stamp_flush(a, n, wsreg, widreg, wpw, kidx, vtmp=100, extra=None):
    if not STAMPS: return
    a('s_waitcnt vmcnt(0) lgkmcnt(0)')
    a(f's_memrealtime s[{80+2*n}:{81+2*n}]')
    a('s_waitcnt lgkmcnt(0)')
    a(f's_mul_i32 s98, s2, {wpw}')
    a(f's_add_u32 s98, s98, s{widreg}')
    a('s_lshl_b32 s98, s98, 5')
    a(f's_add_u32 s98, s98, {WS_STAMP+kidx*0x40000}')
    a(f's_mov_b32 s{wsreg+2}, 0x2000000')
    a('s_mov_b64 exec, 1')
    a(f'v_mov_b32 v{vtmp+1}, 0')
    for i in range(n+1):
        a(f'v_mov_b32 v{vtmp}, s{80+2*i}')
        a(f'buffer_store_dword v{vtmp}, v{vtmp+1}, s[{wsreg}:{wsreg+3}], s98 offen offset:{4*i}')
        a('s_nop 1')
    if extra is not None:
        a(f'v_mov_b32 v{vtmp}, s{extra}')
        a(f'buffer_store_dword v{vtmp}, v{vtmp+1}, s[{wsreg}:{wsreg+3}], s98 offen offset:28')

def kernel_header(a, name):
    a.raw(f'.globl {name}')
    a.raw('.p2align 8')
    a.raw(f'.type {name},@function')
    a.label(name)

def kernel_desc(name, vgpr, sgpr=102):
    acc = (vgpr+3)//4*4
    return f""".p2align 6
.amdhsa_kernel {name}
  .amdhsa_next_free_vgpr {vgpr}
  .amdhsa_next_free_sgpr {sgpr}
  .amdhsa_accum_offset {acc}
  .amdhsa_group_segment_fixed_size 0
  .amdhsa_kernarg_size 96
  .amdhsa_user_sgpr_count 2
  .amdhsa_user_sgpr_kernarg_segment_ptr 1
  .amdhsa_system_sgpr_workgroup_id_x 1
.end_amdhsa_kernel
"""

K1_SLOT=32768
K1_NS=4
K1_X=0; K1_WQK=16384; K1_WV=24576; K1_WD=28672
K1_LDS=163840

SELF_KB=int(os.environ.get('SELF_KB','7'))
def gen_k1(a, name):
    WR=131072
    a.noload = 'noload' in EXPT
    a.stflag = 'sc1' if 'st_sc1' in EXPT else 'nt' if 'st_nt' in EXPT else 'none' if 'st_none' in EXPT else 'sc0 sc1' if 'st_sc01' in EXPT else '' if 'st_plain' in EXPT else 'sc1'
    kernel_header(a, name)
    a('s_cmp_ge_u32 s2, 256')
    a(f's_cbranch_scc1 L_{name}_end')
    stamp(a,0)
    a('s_load_dwordx2 s[4:5], s[0:1], 0')
    a('s_load_dwordx4 s[36:39], s[0:1], 24')
    a('s_load_dwordx2 s[42:43], s[0:1], 48')
    a('s_load_dwordx2 s[44:45], s[0:1], 64')
    a('s_load_dwordx2 s[46:47], s[0:1], 88')
    a('v_lshrrev_b32 v2, 6, v0')
    a('v_and_b32 v1, 63, v0')
    a('v_readfirstlane_b32 s32, v2')
    a('s_and_b32 s33, s2, 7')
    a('s_lshr_b32 s34, s2, 3')
    a('s_lshr_b32 s54, s33, 1')
    a('s_lshl_b32 s54, s54, 2')
    a('s_and_b32 s55, s34, 3')
    a('s_add_u32 s54, s54, s55')
    a('s_and_b32 s55, s33, 1')
    a('s_lshl_b32 s55, s55, 3')
    a('s_lshr_b32 s56, s34, 2')
    a('s_add_u32 s55, s55, s56')
    a('s_cmp_lt_u32 s32, 4')
    a(f's_cbranch_scc1 L_{name}_comp')
    if 'ldprio' in EXPT: a('s_setprio 3')
    a('s_sub_u32 s35, s32, 4')
    a('v_lshrrev_b32 v2, 3, v1')
    a('v_and_b32 v3, 7, v1')
    a('v_lshrrev_b32 v4, 4, v1')
    a('v_xor_b32 v5, v3, v4')
    a('v_lshlrev_b32 v5, 4, v5')
    a('s_and_b32 s57, s35, 1')
    a('s_lshl_b32 s56, s54, 5')
    a('v_add_u32 v11, s56, v2')
    a('s_lshr_b32 s58, s35, 1')
    a('s_lshl_b32 s58, s58, 10')
    a('s_cmp_eq_u32 s35, 0')
    a(f's_cbranch_scc1 L_{name}_plus')
    a('s_cmp_eq_u32 s35, 3')
    a(f's_cbranch_scc1 L_{name}_plus')
    a('s_sub_u32 s59, 2048, s58')
    a('v_sub_u32 v12, s59, v11')
    a('v_lshl_add_u32 v16, v12, 10, v5')
    a('v_subrev_u32 v17, 8192, v16')
    a('v_subrev_u32 v18, 16384, v16')
    a('v_subrev_u32 v19, 24576, v16')
    a(f's_branch L_{name}_mird')
    a.label(f'L_{name}_plus')
    a('v_add_u32 v12, s58, v11')
    a('v_lshl_add_u32 v16, v12, 10, v5')
    a('v_add_u32 v17, 8192, v16')
    a('v_add_u32 v18, 16384, v16')
    a('v_add_u32 v19, 24576, v16')
    a.label(f'L_{name}_mird')
    a('s_add_u32 s58, s58, 512')
    a('v_mov_b32 v13, s58')
    a('v_lshl_add_u32 v13, v13, 10, v5')
    a('v_cmp_eq_u32 vcc, 0, v11')
    a('s_cmp_eq_u32 s57, 1')
    a('s_cselect_b64 s[58:59], -1, 0')
    a('s_and_b64 vcc, vcc, s[58:59]')
    a('v_cndmask_b32 v16, v16, v13, vcc')
    a('v_xor_b32 v17, 64, v17')
    a('v_xor_b32 v19, 64, v19')
    a('v_bfe_u32 v6, v1, 4, 1')
    a('v_lshlrev_b32 v6, 2, v6')
    a('v_xor_b32 v6, v6, v3')
    a('v_lshlrev_b32 v6, 4, v6')
    a('v_mul_u32_u24 v7, 3072, v2')
    a('v_add_u32 v6, v6, v7')
    a('s_lshl_b32 s58, s55, 7')
    a('v_add_u32 v20, s58, v6')
    a('v_add_u32 v21, 8*3072, v20')
    a('v_lshrrev_b32 v6, 2, v1')
    a('v_mul_u32_u24 v6, 3072, v6')
    a('v_and_b32 v7, 3, v1')
    a('v_lshl_add_u32 v6, v7, 4, v6')
    a('s_lshl_b32 s58, s55, 6')
    a('s_add_u32 s58, s58, 2048')
    a('v_add_u32 v22, s58, v6')
    a('s_lshl_b32 s56, s55, 4')
    a('s_lshl_b32 s58, s57, 3')
    a('s_add_u32 s56, s56, s58')
    a('v_add_u32 v11, s56, v2')
    a('v_lshl_add_u32 v23, v11, 10, v5')
    a('s_lshl_b32 s58, s57, 6')
    a('v_xor_b32 v23, s58, v23')
    a('s_mul_i32 s71, s35, 16*3072')
    if 'norot' in EXPT: a('s_mov_b32 s70, 0')
    else:
        a('s_lshr_b32 s70, s34, 2')
        a('s_and_b32 s72, s34, 3')
        a('s_lshl_b32 s72, s72, 1')
        a('s_add_u32 s70, s70, s72')
        a('s_and_b32 s70, s70, 7')
    a('s_lshl_b32 s56, s70, 7')
    a(f's_mul_i32 s57, s70, {64*3072}')
    a('s_add_u32 s57, s57, s71')
    a('s_lshl_b32 s61, s35, 12')
    a('s_lshl_b32 s62, s35, 11')
    a('s_lshl_b32 s63, s35, 10')
    a('s_waitcnt lgkmcnt(0)')
    if STAMPS:
        a('s_memrealtime s[76:77]')
        a('s_waitcnt lgkmcnt(0)')
        a('s_sub_u32 s78, s76, s80')
    srd(a, 8, 4, 0x200000)
    srd(a, 16, 42, 0x180000)
    a('s_cmp_lt_u32 s35, 2')
    a('s_cselect_b32 s20, s36, s38')
    a('s_cselect_b32 s21, s37, s39')
    a('s_mov_b32 s22, 0x80000')
    a('s_mov_b32 s23, 0x20000')
    a('s_mov_b32 s50, 0')
    a('s_mov_b32 s72, 0')
    a('s_mov_b32 s73, s56')
    def issue_x():
        a('s_lshl_b32 s65, s72, 14')
        a('s_add_u32 s65, s65, s61')
        for i in range(4):
            a(f's_add_u32 m0, s65, {i*1024}')
            a('s_nop 0')
            a(f'buffer_load_dwordx4 v{16+i}, s[8:11], s73 offen lds')
        a('s_add_u32 s73, s73, 128')
        a('s_and_b32 s73, s73, 1023')
        a('s_add_u32 s72, s72, 1')
    def adv():
        a('s_add_u32 s70, s70, 1')
        a('s_and_b32 s70, s70, 7')
        a('s_lshl_b32 s56, s70, 7')
        a(f's_mul_i32 s57, s70, {64*3072}')
        a('s_add_u32 s57, s57, s71')
        a('s_add_u32 s50, s50, 1')
    def slot():
        a('s_and_b32 s52, s50, 3')
        a('s_lshl_b32 s52, s52, 13')
        a(f's_add_u32 s52, s52, {WR}')
    def issue_w1():
        slot()
        a('s_add_u32 s65, s52, s62')
        for i in range(2):
            a(f's_add_u32 m0, s65, {i*1024}')
            a('s_nop 0')
            a(f'buffer_load_dwordx4 v{20+i}, s[16:19], s57 offen lds')
        adv()
    XA_=int(os.environ.get('XAHEAD','1'))
    seq=[('x',0),('w',0),('x',1),('w',1)]+[('x',2+i) for i in range(XA_)]+[('b',0)]
    nx=2+XA_
    for j in range(1,7):
        seq.append(('w',j+1))
        if nx<8: seq.append(('x',nx)); nx+=1
        seq.append(('b',j))
    def cnt(o): return 4 if o[0]=='x' else 2
    ticks=[]; cur={}
    order={'w':0,'x':1,'b':2}
    last=-1
    for i,o in enumerate(seq):
        if order[o[0]]<=last:
            ticks.append(cur); cur={}
        if o[0]=='b':
            j=o[1]; pos=max(seq.index(('x',j)), seq.index(('w',j)))
            cur['b']=sum(cnt(q) for q in seq[pos+1:i] if q[0]!='b')
        else: cur[o[0]]=1
        last=order[o[0]]
    ticks.append(cur)
    mW=sum(1<<i for i,t in enumerate(ticks) if 'w' in t)
    mX=sum(1<<i for i,t in enumerate(ticks) if 'x' in t)
    waits=sorted(set(t['b'] for t in ticks if 'b' in t))
    a(f's_mov_b32 s74, 0')
    a(f's_mov_b32 s75, {mW}')
    a(f's_mov_b32 s76, {mX}')
    for k,wv in enumerate(waits):
        a(f's_mov_b32 s{84+k}, {sum(1<<i for i,t in enumerate(ticks) if t.get("b")==wv)}')
    a.label(f'L_{name}_tick')
    a('s_bitcmp1_b32 s75, s74')
    a(f's_cbranch_scc0 L_{name}_tk1')
    issue_w1()
    a.label(f'L_{name}_tk1')
    a('s_bitcmp1_b32 s76, s74')
    a(f's_cbranch_scc0 L_{name}_tk2')
    issue_x()
    a.label(f'L_{name}_tk2')
    for k,wv in enumerate(waits):
        a(f's_bitcmp1_b32 s{84+k}, s74')
        a(f's_cbranch_scc0 L_{name}_tw{k}')
        a(f's_waitcnt vmcnt({wv})')
        a('s_barrier')
        a.label(f'L_{name}_tw{k}')
    a('s_add_u32 s74, s74, 1')
    a(f's_cmp_lt_u32 s74, {len(ticks)}')
    a(f's_cbranch_scc1 L_{name}_tick')
    a.label(f'L_{name}_issue2')
    slot()
    a('s_add_u32 s65, s52, s63')
    a('s_mov_b32 m0, s65')
    a('s_nop 0')
    a(f'buffer_load_dwordx4 v22, s[16:19], s57 offen lds')
    a('s_add_u32 m0, s65, 4096')
    a('s_nop 0')
    a(f'buffer_load_dwordx4 v23, s[20:23], s56 offen lds')
    adv()
    a('s_cmp_eq_u32 s50, 16')
    a(f's_cbranch_scc1 L_{name}_ld16')
    a('s_waitcnt vmcnt(2)')
    a('s_barrier')
    a(f's_branch L_{name}_issue2')
    a.label(f'L_{name}_ld16')
    srd(a, 28, 44, 1024)
    a('s_lshl_b32 s48, s2, 3')
    a('s_lshl_b32 s49, s35, 1')
    a('s_add_u32 s48, s48, s49')
    a('s_lshl_b32 s49, s48, 10')
    a('v_lshlrev_b32 v12, 4, v1')
    a('buffer_load_dwordx4 v[24:27], v12, s[8:11], s49 offen')
    a('buffer_load_dwordx4 v[28:31], v12, s[8:11], s49 offen offset:1024')
    a('buffer_load_dwordx4 v[32:35], v12, s[28:31], 0 offen')
    a('s_waitcnt vmcnt(5)')
    a('s_barrier')
    a('s_waitcnt vmcnt(3)')
    a('s_barrier')
    stamp(a,3)
    a('s_barrier')
    srd(a, 24, 46, WS_SIZE)
    a('v_mov_b32 v16, 0'); a('v_mov_b32 v17, 0')
    a('s_waitcnt vmcnt(0)')
    for q in range(4):
        a(f'v_dot2_f32_bf16 v16, v{24+q}, v{32+q}, v16')
        a(f'v_dot2_f32_bf16 v17, v{28+q}, v{32+q}, v17')
    a('s_nop 2')
    def dpp(op):
        a('s_nop 0')
        a(f'v_add_f32_dpp v16, v16, v16 {op}')
        a(f'v_add_f32_dpp v17, v17, v17 {op}')
    for sh in (1,2,4,8): dpp(f'row_shr:{sh} row_mask:0xf bank_mask:0xf')
    dpp('row_bcast:15 row_mask:0xa bank_mask:0xf')
    dpp('row_bcast:31 row_mask:0xc bank_mask:0xf')
    for r in (16,17): a(f'v_mul_f32 v{r}, {hex(f2u(-1.4426950408889634))}, v{r}')
    for r in (16,17): a(f'v_exp_f32 v{r}, v{r}')
    a('s_nop 0')
    for r in (16,17): a(f'v_add_f32 v{r}, 1.0, v{r}')
    for r in (16,17): a(f'v_rcp_f32 v{r}, v{r}')
    a('s_lshl_b32 s49, s48, 2')
    a(f's_add_u32 s49, s49, {WS_G}')
    a('v_mov_b32 v18, 0')
    a('s_mov_b32 exec_lo, 0')
    a('s_mov_b32 exec_hi, 0x80000000')
    a('buffer_store_dwordx2 v[16:17], v18, s[24:27], s49 offen')
    a('s_mov_b64 exec, -1')
    if 'nopf' not in EXPT:
        a('s_cmp_lt_u32 s2, 16')
        a(f's_cbranch_scc0 L_{name}_nopf')
        a('s_cmp_eq_u32 s32, 7')
        a(f's_cbranch_scc0 L_{name}_nopf')
        a('s_getpc_b64 s[72:73]')
        a.label(f'L_{name}_pc')
        a(f's_add_u32 s72, s72, k2_attn_kernel-L_{name}_pc')
        a('s_addc_u32 s73, s73, 0')
        a('v_lshlrev_b32 v18, 4, v1')
        for i in range(6):
            a(f'global_load_dwordx4 v[{36+4*i}:{39+4*i}], v18, s[72:73]')
            a('v_add_u32 v18, 1024, v18')
        a('v_lshlrev_b32 v18, 4, v1')
        a('v_add_u32 v18, L_k2_attn_kernel_end-k2_attn_kernel-1024, v18')
        a('global_load_dwordx4 v[60:63], v18, s[72:73]')
        a.label(f'L_{name}_nopf')
    a('s_cmp_eq_u32 s2, 0')
    a(f's_cbranch_scc0 L_{name}_fin')
    a('s_cmp_eq_u32 s32, 4')
    a(f's_cbranch_scc0 L_{name}_fin')
    for r in range(20,24): a(f'v_mov_b32 v{r}, 0')
    a('v_lshlrev_b32 v18, 4, v1')
    a(f's_mov_b32 s49, {WS_FLAG}')
    a('buffer_store_dwordx4 v[20:23], v18, s[24:27], s49 offen')
    a(f's_branch L_{name}_fin')

    a.label(f'L_{name}_comp')
    if 'noselfpf' not in EXPT:
        a('s_cmp_lt_u32 s2, 16')
        a(f's_cbranch_scc0 L_{name}_nspf')
        a('s_cmp_eq_u32 s32, 3')
        a(f's_cbranch_scc0 L_{name}_nspf')
        a('s_getpc_b64 s[72:73]')
        a.label(f'L_{name}_pc0')
        a(f's_sub_u32 s72, s72, L_{name}_pc0-{name}')
        a('s_subb_u32 s73, s73, 0')
        a('v_lshlrev_b32 v18, 4, v1')
        for i in range(SELF_KB):
            a(f'global_load_dwordx4 v[{144+4*i}:{147+4*i}], v18, s[72:73]')
            a('v_add_u32 v18, 1024, v18')
        a.label(f'L_{name}_nspf')
    a('s_lshr_b32 s35, s32, 1')
    a('s_and_b32 s40, s32, 1')
    a('v_and_b32 v8, 31, v1')
    a('v_lshrrev_b32 v9, 5, v1')
    pi_perm(a, 10, 8, 11)
    def frag_addr(dst0, rowreg, base_off, tmp):
        a(f'v_lshrrev_b32 v{tmp}, 1, v{rowreg}')
        a(f'v_and_b32 v{tmp}, 7, v{tmp}')
        a(f'v_xor_b32 v{tmp}, v{tmp}, v9')
        a(f'v_lshlrev_b32 v{tmp}, 4, v{tmp}')
        a(f'v_lshl_add_u32 v{dst0}, v{rowreg}, 7, v{tmp}')
        if base_off: a(f'v_add_u32 v{dst0}, {base_off}, v{dst0}')
        for ks in range(1,4): a(f'v_xor_b32 v{dst0+ks}, {ks*32}, v{dst0}')
    a('s_lshl_b32 s63, s35, 6')
    a('v_add_u32 v11, s63, v10')
    frag_addr(16, 11, 0, 15)
    a('v_bfe_u32 v11, v1, 2, 2')
    a('v_lshl_add_u32 v11, v9, 3, v11')
    a('v_bfe_u32 v12, v1, 4, 1')
    a('v_and_b32 v13, 3, v1')
    a('v_lshlrev_b32 v20, 7, v11')
    a('v_bfe_u32 v14, v1, 3, 1')
    a('v_xor_b32 v14, s40, v14')
    a('v_lshl_add_u32 v20, v14, 6, v20')
    a('v_lshl_add_u32 v20, v12, 5, v20')
    a('v_lshrrev_b32 v14, 1, v13')
    a('v_lshl_add_u32 v20, v14, 4, v20')
    a('v_and_b32 v14, 1, v13')
    a('v_lshl_add_u32 v20, v14, 3, v20')
    a('v_lshlrev_b32 v22, 6, v11')
    a('v_lshl_add_u32 v22, v12, 5, v22')
    a('v_lshl_add_u32 v22, v13, 3, v22')
    frag_addr(24, 8, 4096, 15)
    a('s_cmp_eq_u32 s55, 0')
    a('s_cselect_b32 s66, 0x10000, 0')
    a('s_mov_b32 s67, s66')
    a('v_mov_b32 v14, 0xbf803f80')
    A1=[32,48]; A2=[64,80]
    FS=[96,108,120,132]
    XA=28; WA=21; DA=4
    a('s_mov_b32 s50, 0')
    def mf(d,A,B,zero=False):
        c='0' if zero else f'v[{d}:{d+15}]'
        return f'v_mfma_f32_32x32x16_bf16 v[{d}:{d+15}], v[{A}:{A+3}], v[{B}:{B+3}], {c}'
    def setaddr(kind):
        L=[]
        L.append('s_and_b32 s52, s51, 7'); L.append('s_lshl_b32 s52, s52, 14')
        L.append('s_and_b32 s53, s51, 3'); L.append('s_lshl_b32 s53, s53, 13'); L.append(f's_add_u32 s53, s53, {WR}')
        for ks in range(4): L.append(f'v_add_u32 v{XA+ks}, s52, v{16+ks}')
        if kind=='QK': L.append(f'v_add_u32 v{WA}, s53, v20')
        elif kind=='V': L.append(f'v_add_u32 v{WA}, s53, v22')
        else:
            for ks in range(4): L.append(f'v_add_u32 v{DA+ks}, s53, v{24+ks}')
        return L
    def reads(kind, ks):
        F=FS[ks]
        L=[f'ds_read_b128 v[{F}:{F+3}], v{XA+ks}', f'ds_read_b128 v[{F+4}:{F+7}], v{XA+ks} offset:4096']
        if kind=='QK':
            L+= [f'ds_read_b64_tr_b16 v[{F+8}:{F+9}], v{WA} offset:{ks*2048}', f'ds_read_b64_tr_b16 v[{F+10}:{F+11}], v{WA} offset:{ks*2048+512}']
        elif kind=='V':
            L+= [f'ds_read_b64_tr_b16 v[{F+8}:{F+9}], v{WA} offset:{ks*1024}', f'ds_read_b64_tr_b16 v[{F+10}:{F+11}], v{WA} offset:{ks*1024+256}']
        else:
            L+= [f'ds_read_b128 v[{F+8}:{F+11}], v{DA+ks}']
        return L
    def nreads(kind): return 3 if kind=='F' else 4
    def mfmas(kind, ks, zero=False):
        F=FS[ks]
        if kind=='QK': return [], [mf(A1[t], F+8, F+4*t, zero) for t in range(2)]
        pre=[f'v_cndmask_b32 v{F+8+q}, v{F+8+q}, v14, s[66:67]' for q in range(4)] if kind=='F' else []
        return pre, [mf(A2[t], F+4*t, F+8, zero) for t in range(2)]
    def body(kind, nxt, zero=False, extra=None, last=False):
        extra=list(extra or [])
        ex_per = -(-len(extra)//8) if extra else 0
        def take():
            nonlocal extra
            t=extra[:ex_per]; extra=extra[ex_per:]; return t
        n=nreads(kind); nn=nreads(nxt) if nxt else 0
        for ks in range(4):
            cnt=0
            for d in (1,2):
                k2=ks+d
                if k2<4: cnt+=n
                elif nxt: cnt+=nn
            if ks==0: pass
            a(f's_waitcnt lgkmcnt({min(cnt,15)})')
            pre,mm=mfmas(kind,ks,zero and ks==0)
            if ks==0: rd=reads(kind,3)
            elif nxt: rd=reads(nxt,ks-1)
            else: rd=[]
            for x in pre: a(x)
            if pre: a('s_nop 1')
            h1=rd[:2]; h2=rd[2:]
            a(mm[0])
            for x in h1: a(x)
            for x in take(): a(x)
            a(mm[1])
            for x in h2: a(x)
            for x in take(): a(x)
            if ks==0 and nxt:
                a('s_add_u32 s51, s50, 1')
                for x in setaddr(nxt): a(x)
                a('s_barrier')
        for x in extra: a(x)
        a('s_add_u32 s50, s50, 1')
    for r in range(32,64): a(f'v_mov_b32 v{r}, 0')
    stamp(a,1)
    a('s_waitcnt vmcnt(0) lgkmcnt(0)')
    a('s_barrier')
    stamp(a,2)
    if STAMPS: a('s_memtime s[74:75]')
    a('s_mov_b32 s51, 0')
    for x in setaddr('QK'): a(x)
    for ks in range(3):
        for x in reads('QK',ks): a(x)
    a.label(f'L_{name}_p1')
    body('QK','QK')
    a('s_cmp_lt_u32 s50, 7')
    a(f's_cbranch_scc1 L_{name}_p1')
    srd(a, 24, 46, WS_SIZE)
    a('s_lshl_b32 s57, s35, 5')
    a('s_add_u32 s56, s54, s57')
    a('s_cmp_ge_u32 s55, 8')
    a('s_cselect_b32 s57, 17, 16')
    a('s_cselect_b32 s58, 11, 10')
    a(f's_cselect_b32 s59, {WS_KV}, {WS_Q}')
    a(f's_cselect_b32 s60, 1.0, {hex(f2u(C_SCALE))}')
    a('s_lshl_b32 s57, 1, s57')
    a('s_lshl_b32 s61, s56, s58')
    a('s_add_u32 s59, s59, s61')
    a('s_lshl_b32 s63, 16, s58')
    a('s_and_b32 s62, s55, 7')
    a('s_lshl_b32 s62, s62, 2')
    a('s_lshl_b32 s64, s40, 1')
    a('s_add_u32 s62, s62, s64')
    a('s_mul_i32 s62, s62, s57')
    a('s_add_u32 s59, s59, s62')
    a('s_add_u32 s68, s59, s57')
    a('s_add_u32 s69, s59, s63')
    a('s_add_u32 s70, s68, s63')
    a('v_lshlrev_b32 v11, 9, v9')
    a('v_lshl_add_u32 v11, v10, 4, v11')
    def ep1(t):
        L=[]
        for hb in range(2):
            base=A1[t]+8*hb; d=144+8*t+4*hb
            for r in range(8): L.append(f'v_mul_f32 v{base+r}, s60, v{base+r}')
            for q in range(4): L.append(f'v_cvt_pk_bf16_f32 v{d+q}, v{base+2*q}, v{base+2*q+1}')
            so=[['s59','s68'],['s69','s70']][t][hb]
            L.append(f'buffer_store_dwordx4 v[{d}:{d+3}], v11, s[24:27], {so} offen')
        return L
    a('s_cmp_eq_u32 s40, 0')
    a(f's_cbranch_scc0 L_{name}_roleF')
    for role in ('V','F'):
        if role=='F': a.label(f'L_{name}_roleF')
        body('QK',role)
        stamp(a,1)
        body(role,role,zero=True,extra=['s_nop 7','s_nop 3']+ep1(0))
        body(role,role,extra=ep1(1))
        a.label(f'L_{name}_p2{role}')
        body(role,role)
        a('s_cmp_lt_u32 s50, 15')
        a(f's_cbranch_scc1 L_{name}_p2{role}')
        body(role,None)
        if STAMPS:
            a('s_memtime s[76:77]')
            a('s_waitcnt lgkmcnt(0)')
            a('s_sub_u32 s78, s76, s74')
        stamp(a,3)
        a('s_nop 15')
        if role=='V':
            a('s_barrier')
            a('s_lshl_b32 s57, s35, 5')
            a('s_add_u32 s58, s54, s57')
            a('v_lshrrev_b32 v19, 4, v8')
            a('v_lshlrev_b32 v19, 17, v19')
            a('v_lshl_add_u32 v19, v9, 9, v19')
            a('v_and_b32 v13, 15, v8')
            a('v_lshl_add_u32 v19, v13, 4, v19')
            a('s_lshl_b32 s61, s55, 18')
            a('s_lshl_b32 s62, s58, 11')
            a('s_add_u32 s61, s61, s62')
            a(f's_add_u32 s61, s61, {WS_KV+1024}')
            for t in range(2):
                for mfi in range(2):
                    base=A2[t]+8*mfi
                    d=96+8*t+4*mfi
                    for q in range(4): a(f'v_cvt_pk_bf16_f32 v{d+q}, v{base+2*q}, v{base+2*q+1}')
                    a(f'buffer_store_dwordx4 v[{d}:{d+3}], v19, s[24:27], s61 offen offset:{mfi*256}')
                if t==0: a('s_add_u32 s61, s61, 32768')
            a(f's_branch L_{name}_fin')
    ACC=[[0,A2[0]],[0,A2[1]]]
    XCH = 0
    a('v_mov_b32 v12, -1.0')
    a('v_mov_b32 v13, 1.0')
    a('v_cmp_gt_u32 vcc, 16, v8')
    a('s_nop 1')
    a('v_cndmask_b32 v12, v12, v13, vcc')
    a('v_cndmask_b32 v12, v12, v13, s[66:67]')
    a('s_cmp_eq_u32 s54, 0')
    a('s_cselect_b32 s68, -1, 0')
    a('s_mov_b32 s69, 0')
    A0=ACC[0][1]; A1=ACC[1][1]
    a(f'v_mov_b32 v15, v{A1}')
    a('v_mov_b32 v13, 0')
    a(f'v_cndmask_b32 v{A1}, v{A1}, v13, s[68:69]')
    for r in range(16): a(f'v_fma_f32 v{A0+r}, v{A1+r}, v12, v{A0+r}')
    a('v_lshlrev_b32 v11, 4, v1')
    a('s_mul_i32 s63, s35, 5120')
    a(f's_add_u32 s63, s63, {XCH}')
    a('v_add_u32 v16, s63, v11')
    a('s_xor_b32 s63, s35, 1')
    a('s_mul_i32 s63, s63, 5120')
    a(f's_add_u32 s63, s63, {XCH}')
    a('v_add_u32 v17, s63, v11')
    for g in range(4): a(f'ds_write_b128 v16, v[{A0+4*g}:{A0+4*g+3}] offset:{g*1024}')
    a('v_lshlrev_b32 v18, 2, v1')
    a('s_mul_i32 s63, s35, 5120')
    a(f's_add_u32 s63, s63, {XCH+4096}')
    a('v_add_u32 v18, s63, v18')
    a('ds_write_b32 v18, v15')
    a('s_waitcnt lgkmcnt(0)')
    a('s_barrier')
    for g in range(4): a(f'ds_read_b128 v[{112+4*g}:{115+4*g}], v17 offset:{g*1024}')
    a('v_lshlrev_b32 v18, 2, v1')
    a('s_xor_b32 s63, s35, 1')
    a('s_mul_i32 s63, s63, 5120')
    a(f's_add_u32 s63, s63, {XCH+4096}')
    a('v_add_u32 v18, s63, v18')
    a('ds_read_b32 v14, v18')
    a('s_waitcnt lgkmcnt(0)')
    a('s_cmp_eq_u32 s35, 0')
    a(f's_cbranch_scc0 L_{name}_odd')
    for r in range(16): a(f'v_fma_f32 v{A0+r}, v{112+r}, v12, v{A0+r}')
    a('v_fma_f32 v15, v14, v12, v15')
    a(f's_branch L_{name}_oddd')
    a.label(f'L_{name}_odd')
    a('v_sub_f32 v13, 0, v12')
    for r in range(16): a(f'v_fma_f32 v{A0+r}, v{A0+r}, v13, v{112+r}')
    a('v_fma_f32 v15, v15, v12, v14')
    a.label(f'L_{name}_oddd')
    for q in range(8): a(f'v_cvt_pk_bf16_f32 v{144+q}, v{A0+2*q}, v{A0+2*q+1}')
    a('s_lshr_b32 s57, s55, 1')
    a(f's_mul_i32 s58, s57, {T_ET}')
    a(f's_mul_i32 s59, s35, {2*T_ARR}')
    a('s_add_u32 s58, s58, s59')
    a(f's_add_u32 s58, s58, {WS_T}')
    a(f's_add_u32 s60, s58, {T_ARR}')
    a('s_and_b32 s62, s55, 1')
    a('s_lshl_b32 s62, s62, 8')
    a('v_and_b32 v16, 15, v8')
    a('v_lshlrev_b32 v16, 4, v16')
    a('v_lshl_add_u32 v16, v9, 9, v16')
    a('v_add_u32 v16, s62, v16')
    a('v_mov_b32 v17, s60')
    a('v_mov_b32 v18, s58')
    a('v_cmp_gt_u32 vcc, 16, v8')
    a('s_nop 1')
    a('v_cndmask_b32 v17, v17, v18, vcc')
    a('v_add_u32 v17, v17, v16')
    a(f's_add_u32 s59, s59, {WS_T+8*T_ET}')
    a('v_mov_b32 v18, s59')
    a('v_lshl_add_u32 v18, v9, 9, v18')
    a('v_cndmask_b32 v19, v17, v18, s[66:67]')
    a('s_lshl_b32 s63, s54, 11')
    for c in range(2):
        a(f'buffer_store_dwordx4 v[{144+4*c}:{147+4*c}], v19, s[24:27], s63 offen offset:{c*1024}')
    a('s_cmp_eq_u32 s55, 0')
    a(f's_cbranch_scc0 L_{name}_nz')
    for r in range(4): a(f'v_mov_b32 v{104+r}, 0')
    a('s_mov_b64 exec, s[66:67]')
    for q in range(2): a(f'buffer_store_dwordx4 v[104:107], v17, s[24:27], s63 offen offset:{q*1024}')
    a(f's_mov_b32 s64, {32*1024}')
    a('buffer_store_dwordx4 v[104:107], v17, s[24:27], s64 offen')
    a('s_mov_b64 exec, -1')
    a.label(f'L_{name}_nz')
    a('s_cmp_eq_u32 s54, 0')
    a(f's_cbranch_scc0 L_{name}_fin')
    a('v_mov_b32 v13, 0')
    a('v_cndmask_b32 v15, v13, v15, s[68:69]')
    a('v_cvt_pk_bf16_f32 v108, v15, v13')
    a('v_mov_b32 v109, 0'); a('v_mov_b32 v110, 0'); a('v_mov_b32 v111, 0')
    a('s_mov_b32 s70, 0x0000ffff')
    a('s_mov_b32 s71, 0x0000ffff')
    a('s_or_b64 s[70:71], s[70:71], s[66:67]')
    a('s_not_b64 s[72:73], s[70:71]')
    a('s_cmp_eq_u32 s35, 0')
    a('s_cselect_b64 s[70:71], s[70:71], s[72:73]')
    a('s_mov_b64 exec, s[70:71]')
    a(f's_mov_b32 s63, {32*1024}')
    a('buffer_store_dwordx4 v[108:111], v19, s[24:27], s63 offen')
    a('s_mov_b64 exec, -1')
    a.label(f'L_{name}_fin')
    if STAMPS: srd(a, 24, 46, WS_SIZE)
    stamp_flush(a, 4, 24, 32, 8, 0, vtmp=170, extra=78)
    a.label(f'L_{name}_end')
    a('s_endpgm')
    return 176


SPIN_MAX=400000
SLEEP=int(os.environ.get('SLEEP','2'))
def poll(a, tag, addr_v, exp_v, nl, base='s[56:57]', tmp=12):
    a(f's_mov_b32 s61, 0')
    a(f's_mov_b64 exec, {(1<<nl)-1}')
    a.label(f'L_{tag}_poll')
    a(f'global_load_dword v{tmp}, v{addr_v}, {base} sc1')
    a('s_waitcnt vmcnt(0)')
    a(f'v_cmp_eq_u32 vcc, v{tmp}, v{exp_v}')
    a('s_add_u32 s61, s61, 1')
    a('s_nop 2')
    a(f's_cmp_eq_u64 vcc, exec')
    a(f's_cbranch_scc1 L_{tag}_polld')
    a(f's_cmp_ge_u32 s61, {SPIN_MAX}')
    a(f's_cbranch_scc1 L_{tag}_polld')
    a(f's_sleep {SLEEP}')
    a(f's_branch L_{tag}_poll')
    a.label(f'L_{tag}_polld')
    a('s_mov_b64 exec, -1')

def phase_c(a, name):
    stamp(a,0)
    a('s_cmp_eq_u32 s32, 0')
    a(f's_cbranch_scc0 L_{name}_nosig')
    a('s_lshr_b32 s33, s2, 5')
    a('s_lshl_b32 s33, s33, 7')
    a(f's_add_u32 s33, s33, {WS_FLAG}')
    a('v_mov_b32 v12, s33')
    a('v_mov_b32 v13, 1')
    a('s_mov_b64 exec, 1')
    a('global_atomic_add v12, v13, s[24:25] sc1')
    a('s_mov_b64 exec, -1')
    a.label(f'L_{name}_nosig')
    a('s_and_b32 s33, s2, 7')
    a('s_lshr_b32 s34, s2, 3')
    a('s_and_b32 s35, s34, 3')
    a('s_lshl_b32 s40, s33, 2')
    a('s_add_u32 s40, s40, s35')
    a('s_lshr_b32 s41, s2, 5')
    a('s_and_b32 s42, s32, 1')
    a('s_lshr_b32 s43, s32, 1')
    a('s_lshl_b32 s44, s40, 1')
    a('s_add_u32 s44, s44, s42')
    srd(a, 12, 72, 0x200000)
    a('v_and_b32 v8, 31, v1')
    a('v_lshrrev_b32 v9, 5, v1')
    a('s_lshl_b32 s58, s44, 5')
    a('v_add_u32 v10, s58, v8')
    a('v_and_b32 v12, 511, v10')
    a('s_lshr_b32 s58, s44, 4')
    a('s_cmp_eq_u32 s58, 0')
    a('s_cselect_b32 s59, 0, 1024')
    a('s_cmp_eq_u32 s58, 1')
    a('s_cselect_b32 s59, 2048, s59')
    a('s_and_b32 s61, s58, 1')
    a('s_cmp_eq_u32 s58, 1')
    a('s_cselect_b32 s62, 1, 0')
    a('s_cmp_eq_u32 s58, 2')
    a('s_cselect_b32 s62, 1, s62')
    a('v_add_u32 v10, s59, v12')
    a('v_sub_u32 v11, s59, v12')
    a('s_cmp_eq_u32 s62, 1')
    a('s_cselect_b64 vcc, -1, 0')
    a('v_cndmask_b32 v10, v10, v11, vcc')
    a('s_cmp_lt_u32 s58, 2')
    a('s_cselect_b64 vcc, -1, 0')
    a('v_sub_u32 v11, 1024, v12')
    a('v_cndmask_b32 v13, v11, v12, vcc')
    a('s_lshl_b32 s61, s61, 20')
    a('v_mov_b32 v106, s61')
    a('s_lshr_b32 s62, s58, 1')
    a('s_lshl_b32 s63, s62, 10')
    a('s_add_u32 s63, s63, 512')
    a('s_lshl_b32 s62, s62, 20')
    a('s_and_b32 s59, s58, 1')
    a('s_cmp_eq_u32 s59, 1')
    a('s_cselect_b64 s[64:65], -1, 0')
    a('v_cmp_eq_u32 vcc, 0, v12')
    a('s_nop 1')
    a('s_and_b64 vcc, vcc, s[64:65]')
    a('v_mov_b32 v11, s63')
    a('v_cndmask_b32 v10, v10, v11, vcc')
    a('v_mov_b32 v11, 512')
    a('v_cndmask_b32 v13, v13, v11, vcc')
    a('v_mov_b32 v11, s62')
    a('v_cndmask_b32 v106, v106, v11, vcc')
    a('v_lshlrev_b32 v11, 10, v10')
    a('v_lshl_add_u32 v11, v9, 3, v11')
    a('s_lshl_b32 s58, s41, 7')
    a('s_lshl_b32 s59, s43, 6')
    a('s_add_u32 s58, s58, s59')
    a('v_add_u32 v11, s58, v11')
    a(f'v_mul_u32_u24 v13, {YQ_PITCH}, v13')
    a('v_lshlrev_b32 v12, 3, v9')
    a('s_cmp_lt_u32 s41, 4')
    a(f's_cbranch_scc0 L_{name}_ym')
    a('v_add_u32 v13, v13, v12')
    a('v_add_u32 v13, s58, v13')
    a(f's_branch L_{name}_ymd')
    a.label(f'L_{name}_ym')
    a('v_sub_u32 v13, v13, v12')
    a('s_sub_u32 s59, 1018-48, s58')
    a('v_add_u32 v13, s59, v13')
    a.label(f'L_{name}_ymd')
    a('s_lshr_b32 s59, s41, 2')
    a('s_lshl_b32 s59, s59, 20')
    a('v_xor_b32 v106, s59, v106')
    a('v_add_u32 v13, v13, v106')
    a(f's_mov_b32 s60, {WS_Y}')
    a('v_lshlrev_b32 v105, 2, v10')
    a('v_bfe_u32 v5, v1, 2, 2')
    a('v_lshl_add_u32 v6, v9, 2, v5')
    a('v_lshlrev_b32 v6, 7, v6')
    a('v_bfe_u32 v7, v1, 3, 1')
    a('v_lshlrev_b32 v7, 6, v7')
    a('v_bfe_u32 v16, v1, 4, 1')
    a('v_lshl_add_u32 v6, v16, 5, v6')
    a('v_bfe_u32 v16, v1, 1, 1')
    a('v_lshl_add_u32 v6, v16, 4, v6')
    a('v_and_b32 v16, 1, v1')
    a('v_lshl_add_u32 v6, v16, 3, v6')
    a('v_add_u32 v14, v6, v7')
    a('s_lshl_b32 s58, s43, 15')
    a('v_add_u32 v14, s58, v14')
    a('v_xor_b32 v15, 64, v14')
    a(f's_mov_b32 s59, {WS_G}')
    a('buffer_load_dword v104, v105, s[24:27], s59 offen')
    stamp(a,1)
    a('s_cmp_eq_u32 s32, 0')
    a(f's_cbranch_scc0 L_{name}_nopoll')
    a('s_lshl_b32 s58, s33, 7')
    a(f's_add_u32 s58, s58, {WS_FLAG}')
    a('v_lshlrev_b32 v16, 2, v1')
    a('v_add_u32 v16, s58, v16')
    a('v_mov_b32 v17, 32')
    a('v_mov_b32 v19, 297')
    a('v_cmp_eq_u32 vcc, 1, v1')
    a('s_nop 1')
    a('v_cndmask_b32 v17, v17, v19, vcc')
    poll(a, name+'_c', 16, 17, 2, base='s[24:25]', tmp=18)
    a.label(f'L_{name}_nopoll')
    a('s_barrier')
    stamp(a,2)
    OF=32
    a('s_lshl_b32 s51, s44, 15')
    a('s_lshl_b32 s52, s43, 14')
    a('s_add_u32 s51, s51, s52')
    a(f's_add_u32 s51, s51, {WS_O}')
    for i in range(16):
        if i%4==0 and i: a('s_add_u32 s51, s51, 4096')
        a(f'buffer_load_dwordx4 v[{OF+4*i}:{OF+4*i+3}], v2, s[24:27], s51 offen offset:{(i%4)*1024} sc1')
    for b in range(4): a(f'buffer_load_dwordx2 v[{96+2*b}:{97+2*b}], v13, s[24:27], s60 offen offset:{b*16} sc1')
    ACC=[16,112]; FW=[128,136]
    def reads(i):
        s_=i%2
        for j in range(2):
            a(f'ds_read_b64_tr_b16 v[{FW[s_]+4*j}:{FW[s_]+4*j+1}], v{14+j} offset:{i*2048}')
            a(f'ds_read_b64_tr_b16 v[{FW[s_]+4*j+2}:{FW[s_]+4*j+3}], v{14+j} offset:{i*2048+1024}')
    reads(0)
    for i in range(16):
        if i<15: reads(i+1); a(f's_waitcnt vmcnt({4+15-i}) lgkmcnt(4)')
        else: a('s_waitcnt vmcnt(4) lgkmcnt(0)')
        s_=i%2
        for j in range(2):
            c = '0' if i==0 else f'v[{ACC[j]}:{ACC[j]+15}]'
            a(f'v_mfma_f32_32x32x16_bf16 v[{ACC[j]}:{ACC[j]+15}], v[{FW[s_]+4*j}:{FW[s_]+4*j+3}], v[{OF+4*i}:{OF+4*i+3}], {c}')
    stamp(a,3)
    K3X=65536
    a('s_lshl_b32 s48, s42, 13')
    a('s_xor_b32 s49, s43, 1')
    a('s_lshl_b32 s49, s49, 12')
    a('s_add_u32 s49, s49, s48')
    a(f's_add_u32 s49, s49, {K3X}')
    a('v_add_u32 v5, s49, v2')
    a('s_lshl_b32 s49, s43, 12')
    a('s_add_u32 s49, s49, s48')
    a(f's_add_u32 s49, s49, {K3X}')
    a('v_add_u32 v6, s49, v2')
    a('s_nop 7')
    a('s_cmp_eq_u32 s43, 0')
    a(f's_cbranch_scc0 L_{name}_kw1')
    for g in range(4): a(f'ds_write_b128 v5, v[{ACC[1]+4*g}:{ACC[1]+4*g+3}] offset:{g*1024}')
    a(f's_branch L_{name}_x')
    a.label(f'L_{name}_kw1')
    for g in range(4): a(f'ds_write_b128 v5, v[{ACC[0]+4*g}:{ACC[0]+4*g+3}] offset:{g*1024}')
    a('s_nop 1')
    for r in range(16): a(f'v_mov_b32 v{ACC[0]+r}, v{ACC[1]+r}')
    a.label(f'L_{name}_x')
    a('s_waitcnt vmcnt(0) lgkmcnt(0)')
    a('s_barrier')
    for g in range(4): a(f'ds_read_b128 v[{32+4*g}:{35+4*g}], v6 offset:{g*1024}')
    a('v_sub_f32 v105, 1.0, v104')
    a('s_cmp_lt_u32 s41, 4')
    a(f's_cbranch_scc0 L_{name}_um')
    for b in range(4):
        for q in range(2):
            src=96+2*b+q
            a(f'v_lshlrev_b32 v{48+4*b+2*q}, 16, v{src}')
            a(f'v_and_b32 v{48+4*b+2*q+1}, 0xffff0000, v{src}')
    a(f's_branch L_{name}_umd')
    a.label(f'L_{name}_um')
    for b in range(4):
        g=3-b
        d0=96+2*b; d1=97+2*b
        a(f'v_and_b32 v{48+4*g+0}, 0xffff0000, v{d1}')
        a(f'v_lshlrev_b32 v{48+4*g+1}, 16, v{d1}')
        a(f'v_and_b32 v{48+4*g+2}, 0xffff0000, v{d0}')
        a(f'v_lshlrev_b32 v{48+4*g+3}, 16, v{d0}')
    a.label(f'L_{name}_umd')
    for r in range(16): a(f'v_mul_f32 v{48+r}, v104, v{48+r}')
    a('s_waitcnt lgkmcnt(0)')
    for r in range(16): a(f'v_add_f32 v{16+r}, v{16+r}, v{32+r}')
    for r in range(16): a(f'v_fmac_f32 v{48+r}, v105, v{16+r}')
    for b in range(4):
        a(f'v_cvt_pk_bf16_f32 v{64+2*b}, v{48+4*b}, v{48+4*b+1}')
        a(f'v_cvt_pk_bf16_f32 v{65+2*b}, v{48+4*b+2}, v{48+4*b+3}')
    a('v_lshl_add_u32 v11, v9, 3, v11')
    for b in (0,2):
        a(f'v_permlane32_swap_b32 v{64+2*b}, v{66+2*b}')
        a(f'v_permlane32_swap_b32 v{65+2*b}, v{67+2*b}')
    sv=a.stflag; a.stflag='sc1' if 'outsc1' in EXPT else ''
    for b in (0,2):
        a(f'buffer_store_dwordx4 v[{64+2*b}:{67+2*b}], v11, s[12:15], 0 offen offset:{b*16}')
    a.stflag=sv
    stamp_flush(a, 4, 24, 32, 4, 2, vtmp=106)

K2_SUM=131072
K2_CNT=K2_SUM+16384
K2_LDS=K2_CNT+64
def gen_k23(a, name):
    return gen_k2(a, name, fused=True)

def gen_k2(a, name, fused=False):
    a.noload=False
    kernel_header(a, name)
    a('s_cmp_ge_u32 s2, 256')
    a(f's_cbranch_scc1 L_{name}_end')
    stamp(a,0)
    a('s_load_dwordx4 s[36:39], s[0:1], 8')
    a('s_load_dwordx2 s[46:47], s[0:1], 88')
    a('s_load_dwordx2 s[56:57], s[0:1], 56')
    a('s_load_dwordx2 s[72:73], s[0:1], 72')
    a('v_lshrrev_b32 v2, 6, v0')
    a('v_and_b32 v1, 63, v0')
    a('v_readfirstlane_b32 s32, v2')
    a('v_lshlrev_b32 v2, 4, v1')
    a('s_and_b32 s33, s2, 7')
    a('s_lshr_b32 s34, s2, 3')
    a('s_and_b32 s35, s34, 3')
    a('s_lshl_b32 s40, s33, 2')
    a('s_add_u32 s40, s40, s35')
    a('s_lshr_b32 s41, s2, 5')
    a('s_waitcnt lgkmcnt(0)')
    srd(a, 24, 46, WS_SIZE)
    a('s_cmp_ge_u32 s32, 8')
    a(f's_cbranch_scc1 L_{name}_fnet')
    Q=4; C=8; S=[24,40]; O=56; K=[72,76]; V0=[80,88]; V1=[84,92]; ADDR=96; IDX=3
    a('s_lshl_b32 s42, s41, 3')
    a('s_add_u32 s42, s42, s32')
    a('s_lshl_b32 s43, s40, 16')
    a('s_lshl_b32 s44, s42, 10')
    a('s_add_u32 s43, s43, s44')
    a(f'buffer_load_dwordx4 v[{Q}:{Q+3}], v2, s[24:27], s43 offen')
    a('s_lshl_b32 s43, s40, 17')
    a(f's_add_u32 s43, s43, {WS_KV}')
    a('s_lshl_b32 s44, s32, 11')
    if 'kvrot' in EXPT:
        a('s_lshl_b32 s46, s41, 3')
        a('s_add_u32 s46, s46, s32')
    else: a('s_mov_b32 s46, s32')
    for i in range(8):
        a(f's_add_u32 m0, s44, {i*8*2048}')
        a('s_and_b32 s46, s46, 63')
        a('s_lshl_b32 s45, s46, 11')
        a('s_add_u32 s45, s45, s43')
        a('buffer_load_dwordx4 v2, s[24:27], s45 offen lds')
        a('buffer_load_dwordx4 v2, s[24:27], s45 offen offset:1024 lds')
        a('s_add_u32 s46, s46, 8')
    a(f'v_mov_b32 v{IDX}, 0xdddddddd')
    if 'allones' in EXPT:
        for r in range(80,96): a(f'v_mov_b32 v{r}, 0x3f803f80')
    else:
        a('v_mov_b32 v97, 0')
        a('v_mov_b32 v98, 0x3f803f80')
        a('s_mov_b32 s52, 0x00110000')
        a('s_mov_b32 s53, 0x00110000')
        a('v_cndmask_b32 v97, v97, v98, s[52:53]')
        for r in range(80,96): a(f'v_mov_b32 v{r}, v97')
    a('s_mov_b32 s48, 0x0000ffff')
    a('s_mov_b32 s49, 0x0000ffff')
    a('s_mov_b32 s50, 0')
    a('s_cmp_lt_u32 s32, 4')
    a(f's_cselect_b32 s54, {PR[0]}, {PR[1]}')
    a(f's_cselect_b32 s55, {PR[2]}, {PR[3]}')
    a('s_setprio 2')
    for r in range(16): a(f'v_mov_b32 v{O+r}, 0')
    for r in range(8,16): a(f'v_mov_b32 v{S[1]+r}, 0')
    a(f'v_mov_b32 v{ADDR}, v2')
    a('s_waitcnt vmcnt(14)' if 'b1b' in EXPT else 's_waitcnt vmcnt(12)')
    a('s_barrier')
    stamp(a,1)
    a(f'ds_read_b128 v[{K[0]}:{K[0]+3}], v2')
    a(f'ds_read_b128 v[{K[1]}:{K[1]+3}], v2 offset:2048')
    a('s_mov_b64 exec, s[48:49]')
    a(f'ds_read_b128 v[{V0[0]}:{V0[0]+3}], v2 offset:1024')
    a(f'ds_read_b128 v[{V1[0]}:{V1[0]+3}], v2 offset:1280')
    a('s_mov_b64 exec, -1')
    a('s_waitcnt lgkmcnt(3)')
    a(f'v_mfma_f32_32x32x16_bf16 v[{S[0]}:{S[0]+15}], v[{K[0]}:{K[0]+3}], v[{Q}:{Q+3}], 0')
    a('s_nop 15')
    s0=S[0]
    a(f'v_max3_f32 v97, v{s0}, v{s0+1}, v{s0+2}')
    for r in range(3,15,2): a(f'v_max3_f32 v97, v97, v{s0+r}, v{s0+r+1}')
    a(f'v_max_f32 v97, v97, v{s0+15}')
    a.label(f'L_{name}_havemax')
    a('v_mov_b32 v98, v97')
    a('s_nop 1')
    a('v_permlane32_swap_b32 v97, v98')
    a('s_nop 1')
    a('v_max_f32 v97, v97, v98')
    for r in range(16): a(f'v_sub_f32 v{C+r}, 0, v97')
    a('s_waitcnt lgkmcnt(0)')
    a(f'v_mfma_f32_32x32x16_bf16 v[{S[0]}:{S[0]+15}], v[{K[0]}:{K[0]+3}], v[{Q}:{Q+3}], v[{C}:{C+15}]')
    a('s_mov_b32 s51, 0')
    if STAMPS: a('s_memtime s[74:75]')
    a('s_nop 15')
    a.raw('.p2align 6')
    a.label(f'L_{name}_loop')
    for i in range(4):
        cur=S[i%2]; prev=S[(i+1)%2]
        def e(x,y):
            for j in range(x,y):
                if 'noexp' in EXPT: a(f'v_mov_b32 v{cur+j}, v{cur+j}')
                else: a(f'v_exp_f32 v{cur+j}, v{cur+j}')
        a('s_waitcnt lgkmcnt(0)')
        e(0,2)
        if 'nopv' not in EXPT: a(f'v_smfmac_f32_32x32x32_bf16 v[{O}:{O+15}], v[{V1[(i+1)%2]}:{V1[(i+1)%2]+3}], v[{prev+8}:{prev+15}], v{IDX}')
        if 'nolds' not in EXPT:
            a(f'ds_read_b128 v[{K[i%2]}:{K[i%2]+3}], v{ADDR} offset:{(i+2)*2048}')
            a('s_mov_b64 exec, s[48:49]')
            a(f'ds_read_b128 v[{V0[(i+1)%2]}:{V0[(i+1)%2]+3}], v{ADDR} offset:{(i+1)*2048+1024}')
            a(f'ds_read_b128 v[{V1[(i+1)%2]}:{V1[(i+1)%2]+3}], v{ADDR} offset:{(i+1)*2048+1280}')
            a('s_mov_b64 exec, -1')
        e(2,7)
        a(f'v_mfma_f32_32x32x16_bf16 v[{prev}:{prev+15}], v[{K[(i+1)%2]}:{K[(i+1)%2]+3}], v[{Q}:{Q+3}], v[{C}:{C+15}]')
        e(7,12)
        if 'nopv' not in EXPT: a(f'v_smfmac_f32_32x32x32_bf16 v[{O}:{O+15}], v[{V0[i%2]}:{V0[i%2]+3}], v[{cur}:{cur+7}], v{IDX}')
        e(12,16)
    a(f'v_add_u32 v{ADDR}, 8192, v{ADDR}')
    a('s_add_u32 s51, s51, 1')
    if 'b1b' in EXPT:
        a('s_cmp_eq_u32 s51, 1')
        a(f's_cbranch_scc1 L_{name}_ev1')
    a('s_cmp_eq_u32 s51, 3')
    a(f's_cbranch_scc1 L_{name}_ev3')
    a('s_cmp_eq_u32 s51, s54')
    a(f's_cbranch_scc1 L_{name}_ev10')
    a('s_cmp_eq_u32 s51, s55')
    a(f's_cbranch_scc1 L_{name}_ev14')
    a('s_cmp_lt_u32 s51, 16')
    a(f's_cbranch_scc1 L_{name}_loop')
    a(f's_branch L_{name}_done')
    a.label(f'L_{name}_ev1')
    a('s_cmp_eq_u32 s50, 0')
    a(f's_cbranch_scc0 L_{name}_loop')
    a('s_waitcnt vmcnt(12)')
    a('s_barrier')
    a(f's_branch L_{name}_loop')
    a.label(f'L_{name}_ev3')
    a('s_cmp_eq_u32 s50, 0')
    a(f's_cbranch_scc0 L_{name}_loop')
    stamp(a,3)
    a('s_waitcnt vmcnt(0)')
    a('s_barrier')
    stamp(a,4)
    a(f's_branch L_{name}_loop')
    a.label(f'L_{name}_ev10')
    stamp(a,5)
    a('s_setprio 1')
    a(f's_branch L_{name}_loop')
    a.label(f'L_{name}_ev14')
    a('s_setprio 0')
    a(f's_branch L_{name}_loop')
    a.label(f'L_{name}_done')
    a('s_nop 1')
    a(f'v_smfmac_f32_32x32x32_bf16 v[{O}:{O+15}], v[{V1[1]}:{V1[1]+3}], v[{S[1]+8}:{S[1]+15}], v{IDX}')
    a('s_waitcnt lgkmcnt(0)')
    a('s_nop 15')
    stamp(a,2)
    if STAMPS:
        a('s_memtime s[76:77]')
        a('s_waitcnt lgkmcnt(0)')
        a('s_sub_u32 s78, s76, s74')
    THR = -1.0 if 'forcefb' in EXPT else 2.0**60
    a(f's_mov_b32 s52, {hex(f2u(THR))}')
    a(f'v_cmp_gt_f32 vcc, s52, v{O+8}')
    if 'nopv' in EXPT or 'noexp' in EXPT: a('s_mov_b32 s50, 1')
    a('s_nop 3')
    a('s_cmp_eq_u64 vcc, -1')
    a(f's_cbranch_scc1 L_{name}_ok')
    a('s_cmp_eq_u32 s50, 0')
    a(f's_cbranch_scc0 L_{name}_ok')
    a('s_mov_b32 s50, 1')
    a('s_setprio 2')
    a('v_mov_b32 v97, 0xff800000')
    a(f'v_mov_b32 v{ADDR}, v2')
    a('s_mov_b32 s51, 0')
    a.label(f'L_{name}_fb')
    a(f'ds_read_b128 v[{K[0]}:{K[0]+3}], v{ADDR}')
    a('s_waitcnt lgkmcnt(0)')
    a(f'v_mfma_f32_32x32x16_bf16 v[{S[0]}:{S[0]+15}], v[{K[0]}:{K[0]+3}], v[{Q}:{Q+3}], 0')
    a('s_nop 15')
    for r in range(0,16,2): a(f'v_max3_f32 v97, v97, v{s0+r}, v{s0+r+1}')
    a(f'v_add_u32 v{ADDR}, 2048, v{ADDR}')
    a('s_add_u32 s51, s51, 1')
    a('s_cmp_lt_u32 s51, 64')
    a(f's_cbranch_scc1 L_{name}_fb')
    for r in range(16): a(f'v_mov_b32 v{O+r}, 0')
    for r in range(8,16): a(f'v_mov_b32 v{S[1]+r}, 0')
    a(f'v_mov_b32 v{ADDR}, v2')
    a(f'ds_read_b128 v[{K[0]}:{K[0]+3}], v2')
    a(f'ds_read_b128 v[{K[1]}:{K[1]+3}], v2 offset:2048')
    a('s_mov_b64 exec, s[48:49]')
    a(f'ds_read_b128 v[{V0[0]}:{V0[0]+3}], v2 offset:1024')
    a(f'ds_read_b128 v[{V1[0]}:{V1[0]+3}], v2 offset:1280')
    a('s_mov_b64 exec, -1')
    a(f's_branch L_{name}_havemax')
    a.label(f'L_{name}_ok')
    a(f'v_rcp_f32 v97, v{O+8}')
    a('s_nop 0')
    for r in range(8): a(f'v_mul_f32 v{O+r}, v97, v{O+r}')
    for q in range(4): a(f'v_cvt_pk_bf16_f32 v{100+q}, v{O+2*q}, v{O+2*q+1}')
    a('s_lshl_b32 s43, s42, 15')
    a('s_lshl_b32 s44, s40, 10')
    a('s_add_u32 s43, s43, s44')
    a(f's_add_u32 s43, s43, {WS_O}')
    a('buffer_store_dwordx4 v[100:103], v2, s[24:27], s43 offen')
    if fused:
        a('s_waitcnt vmcnt(0)')
        a(f's_branch L_{name}_endB')
    else:
        a(f's_branch L_{name}_fin')

    a.label(f'L_{name}_fnet')
    a(f's_setprio {FPRIO}')
    a('s_sub_u32 s35, s32, 8')
    srd(a, 8, 36, 0x800000)
    srd(a, 12, 38, 0x800000)
    for r in range(4,8): a(f'v_mov_b32 v{r}, 0')
    a(f'v_mov_b32 v8, {K2_CNT}')
    a('ds_write_b128 v8, v[4:7]')
    a('s_waitcnt lgkmcnt(0)')
    a('s_barrier')
    stamp(a,1)
    if 'b1b' in EXPT: a('s_barrier')
    if NOFNET:
        a('s_barrier')
        a(f's_branch L_{name}_fin')
    a('v_and_b32 v9, 31, v1')
    a('v_lshrrev_b32 v10, 5, v1')
    stamp(a,2)
    a('s_mov_b32 s60, 0')
    a('s_mov_b32 s61, 0')
    a('s_lshr_b32 s62, s35, 1')
    a('s_and_b32 s63, s35, 1')
    a('s_cmp_eq_u32 s62, 0')
    a('s_cselect_b32 s16, s8, s12')
    a('s_cselect_b32 s17, s9, s13')
    a('s_mov_b32 s18, 0x800000')
    a('s_mov_b32 s19, 0x20000')
    a.label(f'L_{name}_job')
    a('s_cmp_eq_u32 s60, 0')
    a(f's_cbranch_scc1 L_{name}_dojob')
    a('s_mov_b32 s16, s8')
    a('s_mov_b32 s17, s9')
    a('s_mov_b32 s62, 0')
    a.label(f'L_{name}_dojob')
    a('s_and_b32 s66, s40, 1')
    a('s_lshr_b32 s42, s40, 1')
    a('s_lshl_b32 s42, s42, 6')
    a('s_add_u32 s42, s42, s66')
    a('v_lshl_add_u32 v11, v9, 1, s42')
    a('v_mov_b32 v8, v11')
    a('v_lshlrev_b32 v11, 12, v11')
    a('v_lshl_add_u32 v11, v10, 4, v11')
    a('s_lshl_b32 s43, s66, 1')
    a('s_add_u32 s43, s43, s62')
    a(f's_mul_i32 s43, s43, {T_ARR}')
    a(f's_mul_i32 s44, s41, {T_ET}')
    a('s_add_u32 s43, s43, s44')
    a(f's_add_u32 s43, s43, {WS_T}')
    a(f's_add_u32 s67, s43, {32*1024}')
    a('s_lshl_b32 s45, s63, 4')
    a('s_lshl_b32 s46, s35, 3')
    a('s_cmp_eq_u32 s60, 0')
    a('s_cselect_b32 s49, s45, s46')
    a('s_lshl_b32 s45, s49, 10')
    a('s_add_u32 s43, s43, s45')
    a('s_lshl_b32 s45, s49, 5')
    ACCF=16
    for r in range(16): a(f'v_mov_b32 v{ACCF+r}, 0')
    SET=[32,96]
    a('s_cmp_eq_u32 s60, 0')
    a('s_cselect_b32 s58, 1, 0')
    a('s_and_b32 s59, s41, s58')
    def issue(setb, b):
        a(f's_xor_b32 s64, s59, {b}')
        a('s_lshl_b32 s65, s64, 8')
        a('s_add_u32 s65, s65, s45')
        a('s_lshl_b32 s64, s64, 13')
        a('s_add_u32 s64, s64, s43')
        for k in range(8):
            ra=setb+8*k
            a(f'buffer_load_dwordx4 v[{ra}:{ra+3}], v11, s[16:19], s65 offen offset:{k*32}')
            if k==4: a('s_add_u32 s64, s64, 4096')
            a(f'buffer_load_dwordx4 v[{ra+4}:{ra+7}], v2, s[24:27], s64 offen offset:{(k%4)*1024}')
    def mm(setb, first_wait):
        for k in range(8):
            ra=setb+8*k
            a(f's_waitcnt vmcnt({first_wait-2*k-2})')
            a(f'v_mfma_f32_32x32x16_bf16 v[{ACCF}:{ACCF+15}], v[{ra+4}:{ra+7}], v[{ra}:{ra+3}], v[{ACCF}:{ACCF+15}]')
    issue(SET[0],0)
    a('s_cmp_eq_u32 s61, 0')
    a(f's_cbranch_scc0 L_{name}_nob2')
    a('s_mov_b32 s61, 1')
    stamp(a,3)
    a('s_barrier')
    stamp(a,4)
    a.label(f'L_{name}_nob2')
    a('s_cmp_eq_u32 s62, s66')
    a('s_cselect_b32 s68, 1, 0')
    a('s_cmp_eq_u32 s60, 0')
    a('s_cselect_b32 s69, s63, 0')
    a('s_cmp_eq_u32 s35, 3')
    a('s_cselect_b32 s70, 1, 0')
    a('s_cmp_eq_u32 s60, 0')
    a('s_cselect_b32 s69, s69, s70')
    a('s_and_b32 s68, s68, s69')
    a('s_cmp_eq_u32 s60, 0')
    a(f's_cbranch_scc0 L_{name}_short')
    issue(SET[1],1)
    mm(SET[0],32)
    mm(SET[1],16)
    a(f's_branch L_{name}_mmd')
    a.label(f'L_{name}_short')
    mm(SET[0],16)
    a.label(f'L_{name}_mmd')
    a('s_cmp_eq_u32 s68, 1')
    a(f's_cbranch_scc0 L_{name}_nox')
    a('s_mov_b32 s45, 1024')
    a(f'buffer_load_dwordx4 v[32:35], v11, s[16:19], s45 offen')
    a(f'buffer_load_dwordx4 v[36:39], v2, s[24:27], s67 offen')
    a('s_waitcnt vmcnt(0)')
    a(f'v_mfma_f32_32x32x16_bf16 v[{ACCF}:{ACCF+15}], v[36:39], v[32:35], v[{ACCF}:{ACCF+15}]')
    a.label(f'L_{name}_nox')
    a('s_nop 15')
    a('s_cmp_eq_u32 s60, 0')
    a(f's_cbranch_scc1 L_{name}_nospin')
    a(f'v_mov_b32 v12, {K2_CNT+8}')
    a.label(f'L_{name}_spin')
    a('ds_read_b32 v13, v12')
    a('s_waitcnt lgkmcnt(0)')
    a('v_readfirstlane_b32 s47, v13')
    a('s_nop 3')
    a('s_cmp_eq_u32 s47, 0')
    a(f's_cbranch_scc0 L_{name}_nospin')
    a('s_sleep 2')
    a(f's_branch L_{name}_spin')
    a.label(f'L_{name}_nospin')
    a('s_lshl_b32 s45, s35, 12')
    a(f's_add_u32 s45, s45, {K2_SUM}')
    a('v_add_u32 v12, s45, v2')
    for g in range(4): a(f'ds_write_b128 v12, v[{ACCF+4*g}:{ACCF+4*g+3}] offset:{g*1024}')
    stamp(a,5)
    a('s_waitcnt lgkmcnt(0)')
    a('s_lshl_b32 s45, s60, 2')
    a(f's_add_u32 s45, s45, {K2_CNT}')
    a('v_mov_b32 v12, s45')
    a('v_mov_b32 v13, 1')
    a('s_mov_b64 exec, 1')
    a('ds_add_rtn_u32 v14, v12, v13')
    a('s_waitcnt lgkmcnt(0)')
    a('s_mov_b64 exec, -1')
    a('v_readfirstlane_b32 s47, v14')
    a('s_nop 3')
    a('s_cmp_eq_u32 s47, 3')
    a(f's_cbranch_scc0 L_{name}_nextjob')
    a(f'v_add_u32 v12, {K2_SUM}, v2')
    for g in range(4): a(f'ds_read_b128 v[{32+4*g}:{35+4*g}], v12 offset:{g*1024}')
    for g in range(4): a(f'ds_read_b128 v[{80+4*g}:{83+4*g}], v12 offset:{4096+g*1024}')
    for g in range(4): a(f'ds_read_b128 v[{48+4*g}:{51+4*g}], v12 offset:{8192+g*1024}')
    a('s_waitcnt lgkmcnt(8)')
    for g in range(4): a(f'ds_read_b128 v[{96+4*g}:{99+4*g}], v12 offset:{12288+g*1024}')
    a('s_waitcnt lgkmcnt(0)')
    a(f'v_mov_b32 v12, {K2_CNT+8}')
    a('v_mov_b32 v13, 1')
    a('ds_write_b32 v12, v13')
    for r in range(16): a(f'v_add_f32 v{48+r}, v{48+r}, v{96+r}')
    for r in range(16): a(f'v_add_f32 v{32+r}, v{32+r}, v{80+r}')
    a('s_cmp_eq_u32 s60, 0')
    a(f's_cbranch_scc1 L_{name}_haveq')
    for r in range(16):
        a(f'v_add_f32 v{32+r}, v{32+r}, v{48+r}')
        a(f'v_mov_b32 v{48+r}, 0')
    a.label(f'L_{name}_haveq')
    for r in range(16):
        a(f'v_sub_f32 v{64+r}, v{32+r}, v{48+r}')
        a(f'v_add_f32 v{32+r}, v{32+r}, v{48+r}')
    for q in range(8):
        a(f'v_cvt_pk_bf16_f32 v{80+q}, v{64+2*q}, v{64+2*q+1}')
        a(f'v_cvt_pk_bf16_f32 v{88+q}, v{32+2*q}, v{32+2*q+1}')
    a(f'v_mul_u32_u24 v13, {YQ_PITCH}, v8')
    a('v_lshl_add_u32 v13, v10, 3, v13')
    a('s_lshl_b32 s42, s41, 6')
    a(f's_add_u32 s42, s42, {WS_Y}')
    a(f's_add_u32 s43, s42, 0x100000')
    for b in range(4):
        a(f'buffer_store_dwordx2 v[{80+2*b}:{81+2*b}], v13, s[24:27], s42 offen offset:{b*16} sc1')
        a(f'buffer_store_dwordx2 v[{88+2*b}:{89+2*b}], v13, s[24:27], s43 offen offset:{b*16} sc1')
    if fused:
        a('s_waitcnt vmcnt(0)')
        a('v_lshlrev_b32 v12, 7, v1')
        a(f'v_add_u32 v12, {WS_FLAG+4}, v12')
        a('v_mov_b32 v13, 1')
        a('s_mov_b64 exec, 0xff')
        a('global_atomic_add v12, v13, s[24:25] sc1')
        a('s_mov_b64 exec, -1')
    a.label(f'L_{name}_nextjob')
    a('s_add_u32 s60, s60, 1')
    a('s_cmp_eq_u32 s60, 1')
    a(f's_cbranch_scc0 L_{name}_fin')
    a('s_cmp_ge_u32 s2, 224')
    a(f's_cbranch_scc1 L_{name}_edgec')
    a('s_sub_u32 s42, s2, 192')
    a('s_cmp_lt_u32 s42, 9')
    a(f's_cbranch_scc0 L_{name}_fin')
    a('s_mov_b32 s40, 32')
    a('s_mov_b32 s41, s42')
    a(f's_branch L_{name}_job')
    a.label(f'L_{name}_edgec')
    a('s_mov_b32 s41, 8')
    a(f's_branch L_{name}_job')
    a.label(f'L_{name}_fin')
    if fused:
        a('s_setprio 0')
        srd(a, 8, 56, 0x80000)
        a('v_lshrrev_b32 v3, 3, v1')
        a('v_bfe_u32 v4, v1, 4, 1')
        a('v_lshlrev_b32 v4, 2, v4')
        a('v_and_b32 v5, 7, v1')
        a('v_xor_b32 v4, v4, v5')
        a('v_lshlrev_b32 v4, 4, v4')
        a('v_lshl_add_u32 v3, v3, 10, v4')
        a('s_lshl_b32 s45, s35, 17')
        a('s_lshr_b32 s48, s2, 5')
        a('s_lshl_b32 s48, s48, 7')
        a('s_add_u32 s45, s45, s48')
        for i in range(16):
            a(f's_add_u32 s49, s45, {i*8192}')
            a(f'buffer_load_dwordx4 v[{32+4*i}:{35+4*i}], v3, s[8:11], s49 offen')
        a('s_lshl_b32 s45, s35, 14')
        a('v_add_u32 v4, s45, v2')
        a('s_waitcnt vmcnt(0)')
        a('s_barrier')
        for i in range(16): a(f'ds_write_b128 v4, v[{32+4*i}:{35+4*i}] offset:{i*1024}')
        a('s_waitcnt lgkmcnt(0)')
        a('s_barrier')
        stamp_flush(a, 6, 24, 32, 12, 1, vtmp=104, extra=78)
        a(f's_branch L_{name}_end')
        a.label(f'L_{name}_endB')
        a('s_setprio 0')
        a('s_barrier')
        stamp_flush(a, 6, 24, 32, 12, 1, vtmp=104, extra=78)
        if STAMPS: a('s_mov_b64 exec, -1')
        a('s_cmp_ge_u32 s32, 4')
        a(f's_cbranch_scc1 L_{name}_w47')
        phase_c(a, name)
        a(f's_branch L_{name}_end')
        a.label(f'L_{name}_w47')
        a('s_barrier')
    else:
        stamp_flush(a, 6, 24, 32, 12, 1, vtmp=104, extra=78)
    a.label(f'L_{name}_end')
    a('s_endpgm')
    return 168


K3_X=65536
K3_LDS=K3_X+16384
def gen_k3(a, name):
    a.stflag=''
    kernel_header(a, name)
    a('s_cmp_ge_u32 s2, 256')
    a(f's_cbranch_scc1 L_{name}_end')
    stamp(a,0)
    a('s_load_dwordx2 s[46:47], s[0:1], 88')
    a('v_lshrrev_b32 v2, 6, v0')
    a('v_and_b32 v1, 63, v0')
    a('v_readfirstlane_b32 s32, v2')
    a('v_lshlrev_b32 v2, 4, v1')
    a('s_and_b32 s33, s2, 7')
    a('s_lshr_b32 s34, s2, 3')
    a('s_and_b32 s35, s34, 3')
    a('s_lshl_b32 s40, s33, 2')
    a('s_add_u32 s40, s40, s35')
    a('s_lshr_b32 s41, s2, 5')
    a('s_and_b32 s42, s32, 1')
    a('s_lshr_b32 s43, s32, 1')
    a('s_lshl_b32 s44, s40, 1')
    a('s_add_u32 s44, s44, s42')
    a('s_add_u32 s50, s41, s35')
    a('s_and_b32 s50, s50, 3')
    a('v_lshrrev_b32 v3, 3, v1')
    a('v_bfe_u32 v4, v1, 4, 1')
    a('v_lshlrev_b32 v4, 2, v4')
    a('v_and_b32 v5, 7, v1')
    a('v_xor_b32 v4, v4, v5')
    a('v_lshlrev_b32 v4, 4, v4')
    a('v_lshl_add_u32 v3, v3, 10, v4')
    a('s_lshl_b32 s45, s43, 8')
    a('s_lshl_b32 s48, s42, 5')
    a('s_add_u32 s45, s45, s48')
    a('s_lshl_b32 s48, s41, 7')
    a('s_lshl_b32 s51, s44, 15')
    a('s_lshl_b32 s52, s43, 14')
    a('s_add_u32 s51, s51, s52')
    a(f's_add_u32 s51, s51, {WS_O}')
    a('s_waitcnt lgkmcnt(0)')
    srd(a, 8, 36, 0x80000)
    srd(a, 24, 46, WS_SIZE)
    OF=32
    def issue(st):
        a(f's_add_u32 s53, s50, {st}')
        a('s_and_b32 s53, s53, 3')
        a('s_lshl_b32 s54, s53, 6')
        a('s_add_u32 s54, s54, s45')
        a('s_lshl_b32 s55, s54, 7')
        a('s_lshl_b32 s56, s54, 10')
        a('s_add_u32 s56, s56, s48')
        for i in range(4):
            a(f's_add_u32 m0, s55, {i*1024}')
            a(f's_add_u32 s57, s56, {i*8192}')
            a('buffer_load_dwordx4 v3, s[8:11], s57 offen lds')
        a('s_lshl_b32 s56, s53, 12')
        a('s_add_u32 s56, s56, s51')
        for i in range(4):
            a(f'buffer_load_dwordx4 v[{OF+16*st+4*i}:{OF+16*st+4*i+3}], v2, s[24:27], s56 offen offset:{i*1024}')
    issue(0); issue(1)
    srd(a, 12, 38, 0x200000)
    a('v_and_b32 v8, 31, v1')
    a('v_lshrrev_b32 v9, 5, v1')
    a('s_lshl_b32 s58, s44, 5')
    a('v_add_u32 v10, s58, v8')
    a('v_and_b32 v12, 511, v10')
    a('s_lshr_b32 s58, s44, 4')
    a('s_cmp_eq_u32 s58, 0')
    a('s_cselect_b32 s59, 0, 1024')
    a('s_cmp_eq_u32 s58, 1')
    a('s_cselect_b32 s59, 2048, s59')
    a('s_and_b32 s61, s58, 1')
    a('s_cmp_eq_u32 s58, 1')
    a('s_cselect_b32 s62, 1, 0')
    a('s_cmp_eq_u32 s58, 2')
    a('s_cselect_b32 s62, 1, s62')
    a('v_add_u32 v10, s59, v12')
    a('v_sub_u32 v11, s59, v12')
    a('s_cmp_eq_u32 s62, 1')
    a('s_cselect_b64 vcc, -1, 0')
    a('v_cndmask_b32 v10, v10, v11, vcc')
    a('s_cmp_lt_u32 s58, 2')
    a('s_cselect_b64 vcc, -1, 0')
    a('v_sub_u32 v11, 1024, v12')
    a('v_cndmask_b32 v13, v11, v12, vcc')
    a('s_lshl_b32 s61, s61, 20')
    a('v_mov_b32 v106, s61')
    a('s_lshr_b32 s62, s58, 1')
    a('s_lshl_b32 s63, s62, 10')
    a('s_add_u32 s63, s63, 512')
    a('s_lshl_b32 s62, s62, 20')
    a('s_and_b32 s59, s58, 1')
    a('s_cmp_eq_u32 s59, 1')
    a('s_cselect_b64 s[64:65], -1, 0')
    a('v_cmp_eq_u32 vcc, 0, v12')
    a('s_nop 1')
    a('s_and_b64 vcc, vcc, s[64:65]')
    a('v_mov_b32 v11, s63')
    a('v_cndmask_b32 v10, v10, v11, vcc')
    a('v_mov_b32 v11, 512')
    a('v_cndmask_b32 v13, v13, v11, vcc')
    a('v_mov_b32 v11, s62')
    a('v_cndmask_b32 v106, v106, v11, vcc')
    a('v_lshlrev_b32 v11, 10, v10')
    a('v_lshl_add_u32 v11, v9, 3, v11')
    a('s_lshl_b32 s58, s41, 7')
    a('s_lshl_b32 s59, s43, 6')
    a('s_add_u32 s58, s58, s59')
    a('v_add_u32 v11, s58, v11')
    a(f'v_mul_u32_u24 v13, {YQ_PITCH}, v13')
    a('v_lshlrev_b32 v12, 3, v9')
    a('s_cmp_lt_u32 s41, 4')
    a(f's_cbranch_scc0 L_{name}_ym')
    a('v_add_u32 v13, v13, v12')
    a('v_add_u32 v13, s58, v13')
    a(f's_branch L_{name}_ymd')
    a.label(f'L_{name}_ym')
    a('v_sub_u32 v13, v13, v12')
    a('s_sub_u32 s59, 1018-48, s58')
    a('v_add_u32 v13, s59, v13')
    a.label(f'L_{name}_ymd')
    a('s_lshr_b32 s59, s41, 2')
    a('s_lshl_b32 s59, s59, 20')
    a('v_xor_b32 v106, s59, v106')
    a('v_add_u32 v13, v13, v106')
    a(f's_mov_b32 s60, {WS_Y}')
    a('v_lshlrev_b32 v105, 2, v10')
    a('v_bfe_u32 v5, v1, 2, 2')
    a('v_lshl_add_u32 v6, v9, 2, v5')
    a('v_lshlrev_b32 v6, 7, v6')
    a('v_bfe_u32 v7, v1, 3, 1')
    a('v_lshlrev_b32 v7, 6, v7')
    a('v_bfe_u32 v12, v1, 4, 1')
    a('v_lshl_add_u32 v6, v12, 5, v6')
    a('v_bfe_u32 v12, v1, 1, 1')
    a('v_lshl_add_u32 v6, v12, 4, v6')
    a('v_and_b32 v12, 1, v1')
    a('v_lshl_add_u32 v6, v12, 3, v6')
    a('v_add_u32 v14, v6, v7')
    a('s_lshl_b32 s58, s43, 15')
    a('v_add_u32 v14, s58, v14')
    ACC=[16,112]
    FW=[128,136]
    stamp(a,1)
    first=True
    waits={0:8, 1:8, 2:13, 3:5}
    for st in range(4):
        a(f's_add_u32 s53, s50, {st}')
        a('s_and_b32 s53, s53, 3')
        a('s_lshl_b32 s53, s53, 13')
        a('v_add_u32 v6, s53, v14')
        a('v_xor_b32 v7, 64, v6')
        a(f's_waitcnt vmcnt({waits[st]})')
        a('s_barrier')
        if st==0: stamp(a,2)
        def reads(i):
            s_=i%2
            for j in range(2):
                a(f'ds_read_b64_tr_b16 v[{FW[s_]+4*j}:{FW[s_]+4*j+1}], v{6+j} offset:{i*2048}')
                a(f'ds_read_b64_tr_b16 v[{FW[s_]+4*j+2}:{FW[s_]+4*j+3}], v{6+j} offset:{i*2048+1024}')
        reads(0)
        if st==0: issue(2)
        if st==1:
            issue(3)
            for b in range(4): a(f'buffer_load_dwordx2 v[{96+2*b}:{97+2*b}], v13, s[24:27], s60 offen offset:{b*16}')
            a(f's_mov_b32 s59, {WS_G}')
            a('buffer_load_dword v104, v105, s[24:27], s59 offen')
        for i in range(4):
            if i<3: reads(i+1); a('s_waitcnt lgkmcnt(4)')
            else: a('s_waitcnt lgkmcnt(0)')
            s_=i%2
            for j in range(2):
                c = '0' if first else f'v[{ACC[j]}:{ACC[j]+15}]'
                a(f'v_mfma_f32_32x32x16_bf16 v[{ACC[j]}:{ACC[j]+15}], v[{FW[s_]+4*j}:{FW[s_]+4*j+3}], v[{OF+16*st+4*i}:{OF+16*st+4*i+3}], {c}')
            first=False
    stamp(a,3)
    a('s_lshl_b32 s48, s42, 13')
    a('s_xor_b32 s49, s43, 1')
    a('s_lshl_b32 s49, s49, 12')
    a('s_add_u32 s49, s49, s48')
    a(f's_add_u32 s49, s49, {K3_X}')
    a('v_add_u32 v5, s49, v2')
    a('s_lshl_b32 s49, s43, 12')
    a('s_add_u32 s49, s49, s48')
    a(f's_add_u32 s49, s49, {K3_X}')
    a('v_add_u32 v6, s49, v2')
    a('s_nop 7')
    a('s_cmp_eq_u32 s43, 0')
    a(f's_cbranch_scc0 L_{name}_kw1')
    for g in range(4): a(f'ds_write_b128 v5, v[{ACC[1]+4*g}:{ACC[1]+4*g+3}] offset:{g*1024}')
    a(f's_branch L_{name}_x')
    a.label(f'L_{name}_kw1')
    for g in range(4): a(f'ds_write_b128 v5, v[{ACC[0]+4*g}:{ACC[0]+4*g+3}] offset:{g*1024}')
    a('s_nop 1')
    for r in range(16): a(f'v_mov_b32 v{ACC[0]+r}, v{ACC[1]+r}')
    a.label(f'L_{name}_x')
    a('s_waitcnt vmcnt(0) lgkmcnt(0)')
    a('s_barrier')
    for g in range(4): a(f'ds_read_b128 v[{32+4*g}:{35+4*g}], v6 offset:{g*1024}')
    a('v_sub_f32 v105, 1.0, v104')
    a('s_cmp_lt_u32 s41, 4')
    a(f's_cbranch_scc0 L_{name}_um')
    for b in range(4):
        for q in range(2):
            src=96+2*b+q
            a(f'v_lshlrev_b32 v{48+4*b+2*q}, 16, v{src}')
            a(f'v_and_b32 v{48+4*b+2*q+1}, 0xffff0000, v{src}')
    a(f's_branch L_{name}_umd')
    a.label(f'L_{name}_um')
    for b in range(4):
        g=3-b
        d0=96+2*b; d1=97+2*b
        a(f'v_and_b32 v{48+4*g+0}, 0xffff0000, v{d1}')
        a(f'v_lshlrev_b32 v{48+4*g+1}, 16, v{d1}')
        a(f'v_and_b32 v{48+4*g+2}, 0xffff0000, v{d0}')
        a(f'v_lshlrev_b32 v{48+4*g+3}, 16, v{d0}')
    a.label(f'L_{name}_umd')
    for r in range(16): a(f'v_mul_f32 v{48+r}, v104, v{48+r}')
    a('s_waitcnt lgkmcnt(0)')
    for r in range(16):
        a(f'v_add_f32 v{16+r}, v{16+r}, v{32+r}')
    for r in range(16):
        a(f'v_fmac_f32 v{48+r}, v105, v{16+r}')
    for b in range(4):
        a(f'v_cvt_pk_bf16_f32 v{64+2*b}, v{48+4*b}, v{48+4*b+1}')
        a(f'v_cvt_pk_bf16_f32 v{65+2*b}, v{48+4*b+2}, v{48+4*b+3}')
    for b in range(4):
        a(f'buffer_store_dwordx2 v[{64+2*b}:{65+2*b}], v11, s[12:15], 0 offen offset:{b*16}')
    stamp_flush(a, 4, 24, 32, 4, 2, vtmp=106)
    a.label(f'L_{name}_end')
    a('s_endpgm')
    return 144

def build(kernels):
    a=Asm()
    hdr = """; Kernarg layout (96 bytes): A_x, dft_seq_re, dft_seq_im, dft_hid_re, dft_hid_im, B_x, wqkv, wo, gate_w, out, debug, ws
"""
    descs=''
    body=Asm()
    for (name, fn, grid, block, lds) in kernels:
        hdr += f'; @launch kernel={name} grid=({grid},1,1) block=({block},1,1) lds={lds}\n'
    body.raw('.amdgcn_target "amdgcn-amd-amdhsa--gfx950"')
    body.raw('.text')
    for (name, fn, grid, block, lds) in kernels:
        v=fn(body,name)
        descs += kernel_desc(name, v)
    return hdr + body.text() + '.section .rodata,"a"\n' + descs

if __name__=='__main__':
    which = sys.argv[1] if len(sys.argv)>1 else 'k1'
    ks=[]
    ks.append(('k1_qkv_kernel', gen_k1, 256, 512, K1_LDS))
    if which in ('k2','all'): ks.append(('k2_attn_kernel', gen_k2, 256, 768, K2_LDS))
    if which=='f23': ks.append(('k2_attn_kernel', gen_k23, 256, 768, K2_LDS))
    if which=='all': ks.append(('k3_out_kernel', gen_k3, 256, 256, K3_LDS))
    txt=build(ks)
    out = sys.argv[2] if len(sys.argv)>2 else 'out.s'
    open(out,'w').write(txt)
```
